```python
import torch

def _softmax(x, axis=-1):
    return torch.softmax(x, dim=axis)

def _gelu(x):
    return torch.nn.functional.gelu(x, approximate='tanh')

def _silu(x):
    return torch.nn.functional.silu(x)

def _sigmoid(x):
    return torch.sigmoid(x)

def _layernorm(x, axis=-1, eps=1e-05):
    m = x.mean(dim=axis, keepdim=True)
    v = x.var(dim=axis, keepdim=True, unbiased=False)
    return (x - m) / torch.sqrt(v + eps)

def _scatter_add(tgt, idx, src, axis=0):
    return tgt.clone().index_add_(axis, idx, src)

def _segment_sum(src, seg, n):
    out = torch.zeros((n,) + src.shape[1:], dtype=src.dtype)
    return out.index_add_(0, seg, src)

def _pad(x, pw):
    flat = tuple((v for pair in reversed(pw) for v in pair))
    return torch.nn.functional.pad(x, flat)
kernel_name = 'adaLN_cond__sliding_block__dense_activation_relu__prompt'

def setup_inputs():

    _w = lambda a: (lambda t: t.to(torch.bfloat16) if t.is_floating_point() else t)(torch.as_tensor(a))

    def _A_setup():
        B, S, D = (1, 2048, 512)
        return {'x': _w((lambda *s: torch.randn(*s, dtype=torch.bfloat16) * 0.05)(B, S, D)), 'wqkv': _w((lambda *s: torch.randn(*s, dtype=torch.bfloat16) * 0.05)(D, 3 * D)), 'wo': _w((lambda *s: torch.randn(*s, dtype=torch.bfloat16) * 0.05)(D, D))}
    _A_in = _A_setup()

    def _B_setup():
        B, S, D, Dff = (1, 2048, 512, 1792)
        return {'x': _w((lambda *s: torch.randn(*s, dtype=torch.bfloat16) * 0.05)(B, S, D)), 'w1': _w((lambda *s: torch.randn(*s, dtype=torch.bfloat16) * 0.05)(D, Dff)), 'w2': _w((lambda *s: torch.randn(*s, dtype=torch.bfloat16) * 0.05)(Dff, D))}
    _B_in = _B_setup()
    return {'A_x': _A_in['x'], 'A_wqkv': _A_in['wqkv'], 'A_wo': _A_in['wo'], 'B_x': _B_in['x'], 'B_w1': _B_in['w1'], 'B_w2': _B_in['w2'], 'c': _w((lambda *s: torch.randn(*s, dtype=torch.bfloat16) * 0.1)(1, 512) * 8.0), 'w_mod': _w((lambda *s: torch.randn(*s, dtype=torch.bfloat16) * 0.1)(512, 6 * 512) * 512 ** (-0.5) * 8.0)}

def reference(A_x, A_wqkv, A_wo, B_x, B_w1, B_w2, c, w_mod):

    def _A_ref(x, wqkv, wo):
        B, S, D = x.shape
        H = 32
        Dh = D // H
        W = 256
        qkv = (lambda x, *d: x.permute(*d))((x @ wqkv).reshape(B, S, 3, H, Dh), 2, 0, 3, 1, 4)
        q, k, v = (qkv[0], qkv[1], qkv[2])
        scores = torch.einsum('bhqd,bhkd->bhqk', q, k) * Dh ** (-0.5)
        idx = torch.arange(S)
        mask = (idx[:, None] - idx[None, :] >= 0) & (idx[:, None] - idx[None, :] < W)
        scores = torch.where(mask[None, None], scores, -1000000000.0)
        p = _softmax(scores, axis=-1)
        o = torch.einsum('bhqk,bhkd->bhqd', p, v)
        return (lambda x, *d: x.permute(*d))(o, 0, 2, 1, 3).reshape(B, S, D) @ wo

    def _B_ref(x, w1, w2):
        h = torch.einsum('bsd,df->bsf', x, w1)
        zero = torch.zeros_like(h)
        h = torch.maximum(h, zero)
        return torch.einsum('bsf,fd->bsd', h, w2)
    x = A_x
    mod = (_silu(c) @ w_mod).reshape(c.shape[0], 6, 1, -1)
    sa, ca, ga, sb, cb, gb = (mod[:, 0].clone(), mod[:, 1].clone(), mod[:, 2].clone(), mod[:, 3].clone(), mod[:, 4].clone(), mod[:, 5].clone())
    h = _layernorm(x, axis=-1) * (1 + ca) + sa
    x = x + ga * _A_ref(h, A_wqkv, A_wo)
    h = _layernorm(x, axis=-1) * (1 + cb) + sb
    x = x + gb * _B_ref(h, B_w1, B_w2)
    return x
```

```python
import re

REG_RE = re.compile(r'^(-|\|)?([vas])(?:(\d+)|\[(\d+):(\d+)\])\|?$')
TRANS = ('v_exp_f32', 'v_log_f32', 'v_rcp_f32', 'v_rsq_f32', 'v_sqrt_f32', 'v_sin_f32', 'v_cos_f32', 'v_rcp_iflag_f32')


def regs_of(op):
    op = op.strip()
    if op in ('vcc', 'vcc_lo', 'vcc_hi'):
        return {('s', 'vcc')}
    if op in ('exec', 'exec_lo', 'exec_hi'):
        return {('s', 'exec')}
    if op == 'm0':
        return {('s', 'm0')}
    m = re.match(r'^abs\((.*)\)$', op)
    if m:
        op = m.group(1)
    m = REG_RE.match(op)
    if not m:
        return set()
    k = m.group(2)
    if m.group(3) is not None:
        return {(k, int(m.group(3)))}
    return {(k, i) for i in range(int(m.group(4)), int(m.group(5)) + 1)}


class Ins:
    __slots__ = ('text', 'op', 'kind', 'w', 'r', 'label', 'target', 'passes', 'ra', 'rb', 'rc', 'data', 'uncond', 'nop', 'dpp', 'ldsdma')

    def __init__(self, text):
        self.text = text
        self.label = None
        self.target = None
        self.w = set()
        self.r = set()
        self.passes = 0
        self.ra = self.rb = self.rc = set()
        self.data = set()
        self.uncond = False
        self.nop = 1
        self.dpp = False
        self.ldsdma = False
        t = text.split(';')[0].strip()
        if t.endswith(':'):
            self.label = t[:-1]
            self.kind = 'label'
            self.op = ''
            self.nop = 0
            return
        if t.startswith('.') or not t:
            self.kind = 'dir'
            self.op = ''
            self.nop = 0
            return
        sp = t.split(None, 1)
        op = sp[0]
        rest = sp[1] if len(sp) > 1 else ''
        ops = []
        cur = ''
        d = 0
        for ch in rest:
            if ch in '[(':
                d += 1
            if ch in '])':
                d -= 1
            if ch == ',' and d == 0:
                ops.append(cur.strip())
                cur = ''
            else:
                cur += ch
        mods = ''
        if cur.strip():
            last = cur.strip().split(None, 1)
            ops.append(last[0])
            mods = last[1] if len(last) > 1 else ''
        base = re.sub(r'_(e32|e64|dpp|sdwa)$', '', op)
        self.op = base
        R = [regs_of(o) for o in ops]
        allr = lambda l: set().union(*l) if l else set()
        if base.startswith('v_mfma'):
            self.kind = 'mfma'
            self.passes = 8 if '32x32' in base else 4
            self.w = R[0]
            self.ra, self.rb, self.rc = R[1], R[2], R[3]
            self.r = R[1] | R[2] | R[3]
        elif base.startswith('v_'):
            self.kind = 'valu'
            self.dpp = op.endswith('_dpp')
            if base.startswith('v_permlane'):
                self.w = R[0] | R[1]
                self.r = R[0] | R[1]
            elif base.startswith('v_cmp'):
                self.w = R[0]
                self.r = allr(R[1:])
                assert not base.startswith('v_cmpx')
            elif base in ('v_add_co_u32', 'v_sub_co_u32', 'v_addc_co_u32'):
                self.w = R[0] | R[1]
                self.r = allr(R[2:])
            else:
                self.w = R[0]
                self.r = allr(R[1:])
                if base.startswith('v_fmac') or base.startswith('v_dot2c') or base == 'v_writelane_b32' or self.dpp:
                    self.r |= R[0]
        elif base.startswith('ds_'):
            self.kind = 'ds'
            if base.startswith('ds_read'):
                self.w = R[0]
                self.r = allr(R[1:])
            else:
                self.r = allr(R)
        elif base.startswith('buffer_') or base.startswith('global_'):
            self.kind = 'vmem'
            lds = re.search(r'\blds\b', mods) is not None or 'load_lds' in base
            if base in ('buffer_wbl2', 'buffer_inv'):
                pass
            elif lds:
                self.ldsdma = True
                self.r = allr(R) | {('s', 'm0')}
            elif '_load' in base:
                self.w = R[0]
                self.r = allr(R[1:])
            else:
                self.r = allr(R)
                if base.endswith('x3') or base.endswith('x4'):
                    self.data = R[0] if base.startswith('buffer_') else R[1]
        elif base.startswith('s_'):
            self.kind = 'salu'
            if base == 's_nop':
                self.nop = int(ops[0], 0) + 1
            elif base.startswith('s_cbranch') or base == 's_branch':
                self.target = ops[0]
                self.uncond = base == 's_branch'
            elif base == 's_endpgm':
                self.uncond = True
            elif base.startswith('s_cmp') or base in ('s_waitcnt', 's_barrier', 's_sleep', 's_setprio'):
                self.r = allr(R)
            else:
                self.w = R[0] if R else set()
                self.r = allr(R[1:])
        else:
            raise ValueError('unknown instruction: ' + text)


def need(p, c):
    n = 0
    vr = lambda s: {x for x in s if x[0] in 'va'}
    sr = lambda s: {x for x in s if x[0] == 's'}
    if p.kind == 'valu':
        pw = vr(p.w)
        if pw:
            if c.kind == 'mfma' and pw & c.r:
                n = max(n, 2)
            if c.kind == 'valu' and pw & c.r:
                if c.op.startswith('v_permlane') or c.dpp:
                    n = max(n, 2)
                if c.op in ('v_readlane_b32', 'v_readfirstlane_b32'):
                    n = max(n, 1)
                if p.op in TRANS and c.op not in TRANS:
                    n = max(n, 1)
            if p.op in TRANS and c.kind in ('ds', 'vmem') and pw & c.r:
                n = max(n, 1)
        ps = sr(p.w)
        if ps:
            if c.kind == 'valu' and ps & c.r:
                n = max(n, 4 if c.op in ('v_readlane_b32', 'v_writelane_b32') else 2)
            if c.kind == 'vmem' and ps & c.r:
                n = max(n, 5)
            if c.kind == 'salu' and ps & c.r:
                n = max(n, 1)
    elif p.kind == 'mfma':
        big = p.passes == 8
        if c.kind == 'mfma':
            if p.w & (c.ra | c.rb):
                n = max(n, 12 if big else 8)
            if p.w & c.rc and not (p.w == c.rc and p.passes == c.passes):
                n = max(n, 10 if big else 6)
            if p.w & c.w and not (p.w == c.rc and p.passes == c.passes):
                n = max(n, 10 if big else 6)
        elif c.kind in ('valu', 'ds', 'vmem'):
            if p.w & (c.r | c.w):
                n = max(n, 12 if big else 8)
            if c.kind == 'valu' and p.rc & c.w:
                n = max(n, 7 if big else 3)
    elif p.kind == 'vmem':
        if p.data and p.data & c.w:
            n = max(n, 2 if c.kind in ('valu', 'mfma') else 1)
    elif p.kind == 'salu':
        if ('s', 'm0') in p.w and c.ldsdma:
            n = max(n, 1)
    return n


MAXD = 13


def pad_hazards(ins):
    out = []
    added = 0
    labels_src = {}

    def worst(lst, srcs, idx, c):
        best = 0
        stack = [(idx - 1, 0, True)]
        seen = set()
        while stack:
            i, dist, fall = stack.pop()
            while i >= 0 and dist < MAXD:
                if (i, dist) in seen:
                    break
                seen.add((i, dist))
                p = lst[i]
                if p.kind == 'label':
                    for s in srcs.get(p.label, ()):
                        stack.append((s, dist, False))
                    i -= 1
                    fall = True
                    continue
                if p.kind == 'dir':
                    i -= 1
                    continue
                if p.uncond and fall:
                    break
                fall = True
                best = max(best, need(p, c) - dist)
                dist += p.nop
                i -= 1
        return best

    for c in ins:
        if c.kind not in ('label', 'dir'):
            k = worst(out, labels_src, len(out), c)
            if k > 0:
                out.append(Ins(f's_nop {k-1}'))
                added += 1
        if c.target:
            labels_src.setdefault(c.target, []).append(len(out))
        out.append(c)
    for i, c in enumerate(out):
        if c.kind in ('label', 'dir'):
            continue
        k = worst(out, labels_src, i, c)
        assert k <= 0, f'hazard across back edge at: {c.text}'
    return out, added


class Asm:
    def __init__(self):
        self.ins = []
        self.vm = 0
        self.vm_done = 0
        self.ds = 0
        self.ds_done = 0
        self.uid = 0

    def __call__(self, text):
        tok = None
        for t in text.split('\n'):
            t = t.strip()
            if not t:
                continue
            i = Ins(t)
            self.ins.append(i)
            if i.kind == 'vmem':
                self.vm += 1
                tok = self.vm
            elif i.kind == 'ds':
                self.ds += 1
                tok = self.ds
        return tok

    def label(self, name):
        self.ins.append(Ins(name + ':'))

    def new(self, s):
        self.uid += 1
        return f'L_{s}_{self.uid}'

    def wait(self, vm=None, ds=None, force=False):
        parts = []
        if vm is not None and (force or vm > self.vm_done):
            n = min(self.vm - vm, 63)
            parts.append(f'vmcnt({n})')
            self.vm_done = max(self.vm_done, self.vm - n)
        if ds is not None and (force or ds > self.ds_done):
            n = min(self.ds - ds, 15)
            parts.append(f'lgkmcnt({n})')
            self.ds_done = max(self.ds_done, self.ds - n)
        if parts:
            self('s_waitcnt ' + ' '.join(parts))

    def wait_all(self, vm=False, ds=False):
        parts = []
        if vm:
            parts.append('vmcnt(0)')
            self.vm_done = self.vm
        if ds:
            parts.append('lgkmcnt(0)')
            self.ds_done = self.ds
        self('s_waitcnt ' + ' '.join(parts))

    def cond_begin(self):
        return (self.vm, self.vm_done, self.ds, self.ds_done)

    def cond_end(self, st):
        self.vm, self.vm_done, self.ds, self.ds_done = st

    def text(self):
        out, added = pad_hazards(self.ins)
        return '\n'.join(('' if i.kind == 'label' else '  ') + i.text for i in out), added


def v(i, n=1):
    return f'v{i}' if n == 1 else f'v[{i}:{i+n-1}]'


def a(i, n=1):
    return f'a{i}' if n == 1 else f'a[{i}:{i+n-1}]'


def s(i, n=1):
    return f's{i}' if n == 1 else f's[{i}:{i+n-1}]'
```

```python
import sys
from asmlib import Asm, v, a, s

NAME = 'adaLN_cond__sliding_block__dense_activation_relu__prompt'
OPT = dict(stamps=0, fast=1, forcemax=0, stop=0)
for arg in sys.argv[2:]:
    k, val = arg.split('=')
    OPT[k] = int(val)

EPOCH = 0
HELLO = 0x1000
FKV = 0x10000
FO = 0x30000
FY = 0x34000
FF = 0x38000
MODP = 0x40000
STATS = 0x80000
STAMPS = 0xC0000
KVB = 0x100000
OBUF = 0x500000
YBUF = 0x700000
FBUF = 0x900000
LA, LB, LC = 0, 65536, 131072
MODT = LC
PRED1 = LC + 4096
SCR = 114688
RING = 10240
TAB = SCR + 4 * RING
T_MOD2 = TAB
T_CB = TAB + 4096
T_RST = TAB + 6144
XST = LB + 32768
PRED2 = LB + 49152
sC, sDBG, sWS = 16, 22, 24
rX, rWQ, rWO, rW1, rW2, rWM, rWS, rOUT = 28, 32, 36, 40, 44, 48, 52, 56
sW, sRB, sHQ, sJ, sRB2, sN, sXCC, sFAST = 60, 61, 62, 63, 64, 65, 66, 67
sHI = 68
sT = [3, 4, 5, 6, 7, 8, 9, 10, 11, 12, 13, 14, 15, 26, 27, 69, 70, 71]
STAMP0 = 72
LIMIT = 1 << 15
vL, vL16 = 1, 2

A = Asm()
COLD = Asm()
COLD.uid = 100000


def srd(r):
    return s(r, 4)


nstamp = [0]
SKIP = {'issued', 'wk'}
NAMES = ['rt']


def stamp(name):
    if OPT['stamps'] and name not in SKIP:
        NAMES.append(name)
        k = nstamp[0]
        assert k < 15
        A(f's_memtime {s(STAMP0+2*k, 2)}')
        nstamp[0] += 1


def barrier():
    A('s_barrier')


def vpoll(vaddr, nl, soff, vt):
    lp, dn = A.new('poll'), A.new('polld')
    A(f's_mov_b64 exec, {hex((1 << nl) - 1)}')
    A(f's_mov_b32 s3, 0')
    A.label(lp)
    A(f'buffer_load_dword {v(vt)}, {v(vaddr)}, {srd(rWS)}, {soff} offen sc1')
    A(f's_add_u32 s3, s3, 1')
    A.wait_all(vm=True)
    A(f'v_cmp_ne_u32 vcc, {s(sN)}, {v(vt)}')
    A(f's_cmp_lt_u32 s3, {LIMIT}')
    A(f's_cbranch_vccz {dn}')
    A(f's_cbranch_scc1 {lp}')
    A.label(dn)
    A('s_mov_b64 exec, -1')


def handoff(stores):
    if not OPT['fast']:
        tok = None
        for t in stores:
            tok = A(t.replace('@', 'sc1')) or tok
        return tok
    slow, back = A.new('slow'), A.new('back')
    A(f's_cmp_eq_u32 {s(sFAST)}, 0')
    A(f's_cbranch_scc1 {slow}')
    tok = None
    for t in stores:
        tok = A(t.replace('@', '')) or tok
    A.label(back)
    COLD.label(slow)
    for t in stores:
        COLD(t.replace('@', 'sc1'))
    COLD('s_nop 1')
    COLD(f's_branch {back}')
    return tok


def setflag(soff):
    A(f'v_mov_b32 v3, {s(sN)}')
    A(f'v_mov_b32 v4, 0')
    A('s_mov_b64 exec, 1')
    handoff([f'buffer_store_dword v3, v4, {srd(rWS)}, {soff} offen @'])
    A('s_mov_b64 exec, -1')


def mod_issue(base, ncg, cg0, PW, PC):
    lg = ncg.bit_length() - 1
    A(f's_sub_u32 s3, s2, {base}')
    A(f's_and_b32 s4, s3, {ncg-1}')
    A(f's_add_u32 s4, s4, {cg0}')
    A(f's_lshr_b32 s5, s3, {lg}')
    A(f's_lshl_b32 s6, s5, 7')
    A(f's_lshl_b32 s7, {s(sW)}, 5')
    A(f's_add_u32 s6, s6, s7')
    A(f'v_lshrrev_b32 v3, 3, {v(vL)}')
    A(f'v_add_u32 v3, s6, v3')
    A(f'v_lshlrev_b32 v4, 1, v3')
    A(f'v_mul_u32_u24 v3, 6144, v3')
    A(f'v_and_b32 v5, 7, {v(vL)}')
    A(f'v_lshl_add_u32 v3, v5, 4, v3')
    A(f's_lshl_b32 s6, s4, 7')
    for i in range(4):
        A(f'buffer_load_dwordx4 {v(PW+4*i, 4)}, v3, {srd(rWM)}, s6 offen')
        if i < 3:
            A(f's_add_u32 s6, s6, 49152')
    for i in range(4):
        A(f'global_load_ushort {v(PC+i)}, v4, {s(sC, 2)} offset:{16*i}')


def mod_finish(base, ncg, cg0, PW, PC, ACC, UT, pred):
    lg = ncg.bit_length() - 1
    A(f's_sub_u32 s3, s2, {base}')
    A(f's_and_b32 s4, s3, {ncg-1}')
    A(f's_add_u32 s4, s4, {cg0}')
    A(f's_lshr_b32 s5, s3, {lg}')
    A(f's_mul_i32 s5, s5, 12288')
    A(f's_lshl_b32 s4, s4, 8')
    A(f's_add_u32 s4, s4, s5')
    A(f's_add_u32 s4, s4, {MODP}')
    for i in range(4):
        A(f'v_lshlrev_b32 {v(PC+i)}, 16, {v(PC+i)}')
    for i in range(4):
        A(f'v_mul_f32 {v(UT+i)}, 0xbfb8aa3b, {v(PC+i)}')
    for i in range(4):
        A(f'v_exp_f32 {v(UT+i)}, {v(UT+i)}')
    for i in range(4):
        A(f'v_add_f32 {v(UT+i)}, 1.0, {v(UT+i)}')
    for i in range(4):
        A(f'v_rcp_f32 {v(UT+i)}, {v(UT+i)}')
    for i in range(4):
        A(f'v_mul_f32 {v(PC+i)}, {v(PC+i)}, {v(UT+i)}')
    for i in range(4):
        A(f'v_cvt_pk_bf16_f32 {v(PC+i)}, {v(PC+i)}, {v(PC+i)}')
    for i in range(4):
        A(f'v_and_b32 {v(PC+i)}, {s(sHI)}, {v(PC+i)}')
    for i in range(4):
        for r in range(4):
            A(f'v_lshlrev_b32 {v(UT+2*r)}, 16, {v(PW+4*i+r)}')
            A(f'v_and_b32 {v(UT+2*r+1)}, {s(sHI)}, {v(PW+4*i+r)}')
        for e in range(8):
            if i == 0:
                A(f'v_mul_f32 {v(ACC+e)}, {v(PC)}, {v(UT+e)}')
            else:
                A(f'v_fmac_f32 {v(ACC+e)}, {v(PC+i)}, {v(UT+e)}')
    for e in range(4):
        A(f'v_permlane32_swap_b32 {v(ACC+e)}, {v(ACC+e+4)}')
    for e in range(4):
        A(f'v_add_f32 {v(ACC+e)}, {v(ACC+e)}, {v(ACC+e+4)}')
    for e in range(2):
        A(f'v_permlane16_swap_b32 {v(ACC+e)}, {v(ACC+e+2)}')
    for e in range(2):
        A(f'v_add_f32 {v(ACC+e)}, {v(ACC+e)}, {v(ACC+e+2)}')
    A(f'v_and_b32 v3, 7, {v(vL)}')
    A(f'v_lshlrev_b32 v3, 5, v3')
    A(f'v_lshrrev_b32 v4, 4, {v(vL)}')
    A(f'v_lshl_add_u32 v3, v4, 3, v3')
    A(f's_lshl_b32 s5, {s(sW)}, 8')
    A(f's_add_u32 s5, s5, {pred}')
    A(f'v_add_u32 v3, s5, v3')
    for e in range(2):
        A(f'v_add_f32_dpp {v(ACC+2+e)}, {v(ACC+e)}, {v(ACC+e)} row_ror:8 row_mask:0xf bank_mask:0xf')
    A(f'ds_write_b64 v3, {v(ACC+2, 2)}')
    A(f'v_and_b32 v4, 15, {v(vL)}')
    A(f'v_lshlrev_b32 v4, 4, v4')
    A(f'v_add_u32 v3, {pred}, v4')
    A.wait_all(ds=True)
    barrier()
    sk = A.new('pskip')
    A(f's_cmp_lg_u32 {s(sW)}, 0')
    A(f's_cbranch_scc1 {sk}')
    for i in range(4):
        A(f'ds_read_b128 {v(PW+4*i, 4)}, v3 offset:{256*i}')
    A(f's_movk_i32 s5, 0xff')
    A(f's_lshr_b32 s6, {s(sN)}, 8')
    A(f's_lshr_b32 s7, {s(sN)}, 16')
    A(f's_lshr_b32 s8, {s(sN)}, 24')
    for e, t in enumerate((sN, 6, 7, 8)):
        A(f'v_mov_b32 {v(UT+e)}, {s(t)}')
    A.wait_all(ds=True)
    for e in range(4):
        A(f'v_add_f32 {v(PW+e)}, {v(PW+e)}, {v(PW+4+e)}')
        A(f'v_add_f32 {v(PW+8+e)}, {v(PW+8+e)}, {v(PW+12+e)}')
    for e in range(4):
        A(f'v_add_f32 {v(PW+e)}, {v(PW+e)}, {v(PW+8+e)}')
    for e in range(4):
        A(f'v_bfi_b32 {v(PW+e)}, s5, {v(UT+e)}, {v(PW+e)}')
    A('s_mov_b64 exec, 0xffff')
    A(f'buffer_store_dwordx4 {v(PW, 4)}, v4, {srd(rWS)}, s4 offen sc1')
    A('s_mov_b64 exec, -1')
    A('s_nop 1')
    A.label(sk)


def mod_gather(col0, nset, G, T):
    lp, dn = A.new('mg'), A.new('mgd')
    A(f'v_lshlrev_b32 v3, 4, v0')
    A(f's_mov_b32 s3, 0')
    A(f's_mov_b32 s4, 0x0c0c0400')
    A(f's_mov_b32 s5, 0x05040100')
    for st in range(nset):
        for q in range(4):
            A(f's_mov_b32 {s(6+4*st+q)}, {MODP + q*12288 + (col0 + 1024*st)*4}')
    A.label(lp)
    for st in range(nset):
        for q in range(4):
            A(f'buffer_load_dwordx4 {v(G+16*st+4*q, 4)}, v3, {srd(rWS)}, {s(6+4*st+q)} offen sc1')
    A(f's_add_u32 s3, s3, 1')
    A.wait_all(vm=True)
    for n in range(4 * nset):
        g = G + 4 * n
        A(f'v_perm_b32 {v(T)}, {v(g+1)}, {v(g)}, s4')
        A(f'v_perm_b32 {v(T+1)}, {v(g+3)}, {v(g+2)}, s4')
        A(f'v_perm_b32 {v(T)}, {v(T+1)}, {v(T)}, s5')
        if n == 0:
            A(f'v_xor_b32 {v(T+2)}, {s(sN)}, {v(T)}')
        else:
            A(f'v_xor_b32 {v(T)}, {s(sN)}, {v(T)}')
            A(f'v_or_b32 {v(T+2)}, {v(T+2)}, {v(T)}')
    A(f'v_cmp_ne_u32 vcc, 0, {v(T+2)}')
    A(f's_cmp_lt_u32 s3, {LIMIT}')
    A(f's_cbranch_vccz {dn}')
    A(f's_cbranch_scc1 {lp}')
    A.label(dn)
    A(f's_movk_i32 s4, 0xff00')
    for st in range(nset):
        g = G + 16 * st
        for n in range(16):
            A(f'v_and_b32 {v(g+n)}, s4, {v(g+n)}')
        for e in range(4):
            A(f'v_add_f32 {v(g+e)}, {v(g+e)}, {v(g+4+e)}')
            A(f'v_add_f32 {v(g+8+e)}, {v(g+8+e)}, {v(g+12+e)}')
        for e in range(4):
            A(f'v_add_f32 {v(g+e)}, {v(g+e)}, {v(g+8+e)}')
        A(f'v_cvt_pk_bf16_f32 {v(g)}, {v(g)}, {v(g+1)}')
        A(f'v_cvt_pk_bf16_f32 {v(g+1)}, {v(g+2)}, {v(g+3)}')


def unpack2(dst, src):
    A(f'v_lshlrev_b32 {v(dst)}, 16, {v(src)}')
    A(f'v_and_b32 {v(dst+1)}, {s(sHI)}, {v(src)}')


def add_const_round(g, sadd):
    unpack2(g + 4, g)
    unpack2(g + 6, g + 1)
    for e in range(4):
        A(f'v_add_f32 {v(g+4+e)}, {s(sadd)}, {v(g+4+e)}')
    A(f'v_cvt_pk_bf16_f32 {v(g)}, {v(g+4)}, {v(g+5)}')
    A(f'v_cvt_pk_bf16_f32 {v(g+1)}, {v(g+6)}, {v(g+7)}')


A('s_cmp_ge_u32 s2, 256')
A('s_cbranch_scc1 L_end')
if OPT['stamps']:
    A(f's_memrealtime {s(STAMP0, 2)}')
    nstamp[0] = 1
stamp('start')
A('s_load_dwordx16 s[4:19], s[0:1], 0')
A('s_load_dwordx4 s[20:23], s[0:1], 64')
A('s_load_dwordx2 s[24:25], s[0:1], 80')
A(f'v_and_b32 {v(vL)}, 63, v0')
A(f'v_lshrrev_b32 v3, 6, v0')
A(f'v_lshlrev_b32 {v(vL16)}, 4, {v(vL)}')
A(f'v_readfirstlane_b32 {s(sW)}, v3')
A(f's_and_b32 s26, s2, 7')
A(f's_lshr_b32 s27, s2, 3')
A(f's_and_b32 {s(sHQ)}, s27, 7')
A(f's_and_b32 {s(sJ)}, s27, 15')
A(f's_lshr_b32 s27, s27, 3')
A(f's_lshl_b32 s26, s26, 2')
A(f's_add_u32 {s(sRB)}, s26, s27')
A(f's_lshr_b32 {s(sRB2)}, {s(sRB)}, 1')
A(f's_getreg_b32 {s(sXCC)}, hwreg(HW_REG_XCC_ID, 0, 4)')
A(f's_mov_b32 {s(sHI)}, 0xffff0000')
for r, n in ((rX, 2097152), (rWQ, 1572864), (rWO, 524288), (rW1, 1835008), (rW2, 1835008), (rWM, 3145728), (rWS, 0x10000000), (rOUT, 2097152)):
    A(f's_mov_b32 {s(r+2)}, {n}')
    A(f's_mov_b32 {s(r+3)}, 0x20000')
sk = A.new('cpf')
A(f's_cmp_lg_u32 {s(sW)}, 3')
A(f's_cbranch_scc1 {sk}')
A(f's_cmp_ge_u32 {s(sHQ)}, CODE_CHUNKS')
A(f's_cbranch_scc1 {sk}')
A(f's_getpc_b64 s[70:71]')
A(f's_lshl_b32 s69, {s(sHQ)}, 13')
A(f'v_lshl_add_u32 v3, {v(vL)}, 7, s69')
st = A.cond_begin()
A(f'global_load_dword v15, v3, s[70:71]')
A.cond_end(st)
A.label(sk)
A('s_waitcnt lgkmcnt(0)')
A(f's_load_dword {s(sN)}, {s(sWS, 2)}, {EPOCH}')
for r, p in ((rX, 4), (rWQ, 6), (rWO, 8), (rW1, 12), (rW2, 14), (rWM, 18), (rWS, 24), (rOUT, 20)):
    A(f's_mov_b64 {s(r, 2)}, {s(p, 2)}')

XF, XP, MOD, GA, PW, PC, PACC = 16, 144, 144, 208, 224, 240, 244

sk = A.new('np1')
A('s_cmp_ge_u32 s2, 64')
A(f's_cbranch_scc1 {sk}')
st = A.cond_begin()
mod_issue(0, 16, 0, PW, PC)
A.cond_end(st)
A.label(sk)
tok_p1 = A.vm

A(f'v_lshrrev_b32 v5, 4, {v(vL)}')
A(f'v_and_b32 v6, 15, {v(vL)}')
A(f's_lshl_b32 s3, {s(sRB)}, 6')
A(f's_lshl_b32 s4, {s(sW)}, 4')
A(f's_add_u32 s3, s3, s4')
A(f'v_add_u32 v3, s3, v5')
A(f'v_lshlrev_b32 v3, 10, v3')
A(f'v_lshl_add_u32 v3, v6, 4, v3')
A(f's_and_b32 s8, {s(sHQ)}, 3')
A(f's_lshl_b32 s8, s8, 12')
tok_x = []
for aa in range(4):
    A(f's_xor_b32 s4, s8, {aa << 12}')
    for c in range(4):
        t = A(f'buffer_load_dwordx4 {v(XP+(aa*4+c)*4, 4)}, v3, {srd(rX)}, s4 offen offset:{c*256}')
    tok_x.append(t)
A(f's_lshr_b32 s8, s8, 10')
A(f's_lshl_b32 s9, {s(sW)}, 14')
A(f'v_and_b32 v7, 7, v6')
A(f'v_lshl_add_u32 v8, v6, 8, s9')
for aa in range(4):
    A(f's_xor_b32 s4, s8, {4*aa}')
    A(f'v_or_b32 v4, s4, v5')
    A(f'v_xor_b32 v4, v4, v7')
    A(f'v_lshl_add_u32 {v(11+aa)}, v4, 4, v8')
vHW = 11
vWD = 10
A(f'v_bfe_u32 v4, {v(vL)}, 2, 3')
A(f's_lshl_b32 s4, {s(sW)}, 3')
A(f'v_add_u32 v4, s4, v4')
A(f'v_mul_u32_u24 v4, 3072, v4')
A(f'v_lshrrev_b32 v7, 5, {v(vL)}')
A(f'v_lshl_add_u32 v4, v7, 6, v4')
A(f'v_and_b32 v7, 3, {v(vL)}')
A(f's_and_b32 s4, {s(sW)}, 1')
A(f's_lshl_b32 s4, s4, 1')
A(f'v_xor_b32 v7, s4, v7')
A(f'v_lshl_add_u32 v4, v7, 4, v4')
A(f's_lshl_b32 s4, {s(sHQ)}, 7')
A(f'v_add_u32 {v(vWD)}, s4, v4')


def wq_dma(colbyte, region, ks0, nks):
    A(f's_and_b32 s4, {s(sRB)}, {nks-1}')
    A(f's_lshl_b32 s4, s4, 12')
    A(f's_lshl_b32 s5, {s(sW)}, 10')
    A(f's_add_u32 s5, s5, {region}')
    t = None
    for i in range(nks):
        A(f's_xor_b32 s6, s4, {i << 12}')
        A(f's_add_u32 m0, s5, s6')
        A(f's_mul_i32 s6, s6, 24')
        A(f's_add_u32 s6, s6, {colbyte + ks0*98304}')
        t = A(f'buffer_load_dwordx4 {v(vWD)}, {srd(rWQ)}, s6 offen lds')
    return t


tok_wk = wq_dma(1024, LA, 0, 16)
stamp('issued')

A('s_waitcnt lgkmcnt(0)')
A(f's_add_u32 {s(sN)}, {s(sN)}, 0x9e3779b1')
sk = A.new('np1b')
A('s_cmp_ge_u32 s2, 64')
A(f's_cbranch_scc1 {sk}')
st = A.cond_begin()
A.wait(vm=tok_p1, force=True)
mod_finish(0, 16, 0, PW, PC, PACC, GA, PRED1)
A.cond_end(st)
A.label(sk)
sk = A.new('hello')
A(f's_cmp_lg_u32 {s(sW)}, 1')
A(f's_cbranch_scc1 {sk}')
st = A.cond_begin()
A(f's_andn2_b32 s3, {s(sN)}, 15')
A(f's_or_b32 s3, s3, {s(sXCC)}')
A(f'v_mov_b32 v3, s3')
A(f's_lshl_b32 s3, {s(sRB2)}, 7')
A(f's_lshl_b32 s4, {s(sJ)}, 2')
A(f's_add_u32 s3, s3, s4')
A(f's_add_u32 s3, s3, {HELLO}')
A(f'v_mov_b32 v4, 0')
A('s_mov_b64 exec, 1')
A(f'buffer_store_dword v3, v4, {srd(rWS)}, s3 offen sc1')
A('s_mov_b64 exec, -1')
A.cond_end(st)
A.label(sk)

ST = 224
for aa in range(4):
    A.wait(vm=tok_x[aa])
    for i in range(16):
        unpack2(XF + aa * 32 + 2 * i, XP + aa * 16 + i)
    b = XF + aa * 32
    t0, t1 = ST + 4 * aa, ST + 4 * aa + 2
    A(f'v_pk_add_f32 {v(t0, 2)}, {v(b, 2)}, {v(b+2, 2)}')
    A(f'v_pk_add_f32 {v(t1, 2)}, {v(b+4, 2)}, {v(b+6, 2)}')
    for i in range(4, 16):
        t = t0 if i % 2 == 0 else t1
        A(f'v_pk_add_f32 {v(t, 2)}, {v(t, 2)}, {v(b+2*i, 2)}')
    A(f'v_pk_add_f32 {v(t0, 2)}, {v(t0, 2)}, {v(t1, 2)}')
    A(f'v_add_f32 {v(t0)}, {v(t0)}, {v(t0+1)}')


def row_allreduce():
    for sh in (8, 4, 2, 1):
        for aa in range(4):
            t0 = ST + 4 * aa
            A(f'v_add_f32_dpp {v(t0)}, {v(t0)}, {v(t0)} row_ror:{sh} row_mask:0xf bank_mask:0xf')


row_allreduce()
for aa in range(4):
    A(f'v_mul_f32 {v(240+2*aa)}, 0xbb000000, {v(ST+4*aa)}')
for aa in range(4):
    b = XF + aa * 32
    t0, t1 = ST + 4 * aa, ST + 4 * aa + 2
    for i in range(16):
        A(f'v_pk_add_f32 {v(b+2*i, 2)}, {v(b+2*i, 2)}, {v(240+2*aa, 2)} op_sel_hi:[1,0]')
    for i in range(16):
        t = t0 if i % 2 == 0 else t1
        if i < 2:
            A(f'v_pk_mul_f32 {v(t, 2)}, {v(b+2*i, 2)}, {v(b+2*i, 2)}')
        else:
            A(f'v_pk_fma_f32 {v(t, 2)}, {v(b+2*i, 2)}, {v(b+2*i, 2)}, {v(t, 2)}')
    A(f'v_pk_add_f32 {v(t0, 2)}, {v(t0, 2)}, {v(t1, 2)}')
    A(f'v_add_f32 {v(t0)}, {v(t0)}, {v(t0+1)}')
row_allreduce()
A('s_mov_b32 s3, 0x3b000000')
A('v_mov_b32 v3, 0x3727c5ac')
for aa in range(4):
    A(f'v_fma_f32 {v(240+2*aa)}, {v(ST+4*aa)}, s3, v3')
for aa in range(4):
    A(f'v_rsq_f32 {v(240+2*aa)}, {v(240+2*aa)}')
for aa in range(4):
    b = XF + aa * 32
    for i in range(16):
        A(f'v_pk_mul_f32 {v(b+2*i, 2)}, {v(b+2*i, 2)}, {v(240+2*aa, 2)} op_sel_hi:[1,0]')
stamp('ln_pre')

vWR = 9
A(f'v_lshrrev_b32 v4, 4, {v(vL)}')
A(f'v_lshlrev_b32 v3, 10, v4')
A(f'v_xor_b32 v4, {s(sW)}, v4')
A(f'v_and_b32 v4, 1, v4')
A(f'v_lshl_add_u32 v3, v4, 5, v3')
A(f'v_bfe_u32 v4, {v(vL)}, 2, 2')
A(f'v_lshl_add_u32 v3, v4, 6, v3')
A(f'v_and_b32 v4, 3, {v(vL)}')
A(f'v_lshl_add_u32 v3, v4, 3, v3')
A(f's_lshr_b32 s3, {s(sW)}, 1')
A(f's_lshl_b32 s3, s3, 9')
A(f'v_add_u32 {v(vWR)}, s3, v3')
A.wait(vm=tok_wk)
barrier()
tok_wv = wq_dma(2048, LB, 0, 16)
for ks in range(16):
    for rd in range(2):
        A(f'ds_read_b64_tr_b16 {a(4*ks+2*rd, 2)}, {v(vWR)} offset:{ks*4096+rd*256}')
stamp('wk')

mod_gather(0, 1, GA, 4)
A(f's_cmp_ge_u32 {s(sW)}, 2')
A(f's_cselect_b32 s3, 1.0, 0')
add_const_round(GA, 3)
unpack2(GA + 4, GA)
unpack2(GA + 6, GA + 1)
A(f'v_add_u32 v3, {MODT}, v3')
A(f'ds_write_b128 v3, {v(GA+4, 4)}')
A(f'v_and_b32 v4, 15, {v(vL)}')
A(f'v_lshlrev_b32 v4, 5, v4')
A(f'v_add_u32 v4, {MODT}, v4')
A.wait_all(ds=True)
barrier()
stamp('mod')
tm = []
for c in range(4):
    for arr in range(2):
        for hlf in range(2):
            t = A(f'ds_read_b128 {v(MOD+arr*32+c*8+hlf*4, 4)}, v4 offset:{arr*2048+c*512+hlf*16}')
    tm.append(t)
for c in range(4):
    A.wait(ds=tm[c])
    for aa in range(4):
        b = XF + aa * 32 + c * 8
        for i in range(4):
            A(f'v_pk_fma_f32 {v(b+2*i, 2)}, {v(b+2*i, 2)}, {v(MOD+32+c*8+2*i, 2)}, {v(MOD+c*8+2*i, 2)}')
        for i in range(4):
            A(f'v_cvt_pk_bf16_f32 {v(b+i)}, {v(b+2*i)}, {v(b+2*i+1)}')
        A(f'ds_write_b128 {v(vHW+aa)}, {v(b, 4)} offset:{c*4096}')
A(f'v_lshrrev_b32 v4, 4, {v(vL)}')
A(f'v_and_b32 v5, 15, {v(vL)}')
A(f'v_xor_b32 v5, v5, v4')
A(f'v_lshlrev_b32 v5, 4, v5')
A.wait_all(ds=True)
A(f'v_lshl_add_u32 v11, v4, 8, v5')
A(f'v_xor_b32 v12, 64, v11')
A(f'v_add_u32 v13, {LB}, {v(vWR)}')
A(f'v_add_u32 v14, {LC}, {v(vWR)}')
A.wait(vm=tok_wv)
barrier()
stamp('h')
tok_wq = wq_dma(0, LC, 0, 8)

AK, AV, AQ, WB = 144, 160, 176, 48


def hreg(u, ks):
    return a(64 + ks * 16 + u * 4, 4) if ks < 12 else v(80 + (ks - 12) * 16 + u * 4, 4)


def mm16(d, x, y, first):
    A(f'v_mfma_f32_16x16x32_bf16 {v(d, 4)}, {x}, {y}, {"0" if first else v(d, 4)}')


def kv_reads(ks):
    l = [f'ds_read_b128 {hreg(u, ks)}, {v(11 + ks % 2)} offset:{u*16384+ks*1024}' for u in range(4)]
    wb = WB + 4 * (ks % 4)
    w = [f'ds_read_b64_tr_b16 {v(wb+2*rd, 2)}, v13 offset:{ks*4096+rd*256}' for rd in range(2)]
    return [l[0], w[0], w[1], l[1], l[2], l[3]]


LOOK = 2
tk = {}
for ks in range(LOOK):
    for t in kv_reads(ks):
        tk[ks] = A(t)
for ks in range(16):
    nxt = kv_reads(ks + LOOK) if ks + LOOK < 16 else []
    A.wait(ds=tk[ks])
    if ks == 8:
        barrier()
        tok_wq = wq_dma(0, LB, 8, 8)
    wb = v(WB + 4 * (ks % 4), 4)
    n = 0
    for u in range(4):
        mm16(AK + 4 * u, a(4 * ks, 4), hreg(u, ks), ks == 0)
        if n < len(nxt):
            tk[ks + LOOK] = A(nxt[n])
            n += 1
        mm16(AV + 4 * u, hreg(u, ks), wb, ks == 0)
        if n < len(nxt):
            tk[ks + LOOK] = A(nxt[n])
            n += 1
stamp('kv')

QF, KO, VO, KH, VH, SB, PB, MD, MO, OA = 16, 24, 32, 48, 80, 144, 176, 192, 208, 224
A(f's_lshl_b32 s14, {s(sHQ)}, 2')
A(f's_add_u32 s14, s14, {s(sW)}')
A(f's_lshl_b32 s14, s14, 17')
A(f's_add_u32 s14, s14, {KVB}')
A(f's_lshl_b32 s3, {s(sRB)}, 12')
A(f's_add_u32 s15, s14, s3')
A(f'v_lshrrev_b32 v7, 5, {v(vL)}')
A(f'v_and_b32 v6, 15, {v(vL)}')
A(f'v_lshl_add_u32 v7, v7, 4, v6')
A(f'v_lshlrev_b32 v7, 4, v7')
A(f's_mov_b32 s13, 0x3f803f80')
for T in range(2):
    for g2 in range(2):
        for r in range(2):
            A(f'v_mov_b32 {v(VO+8*T+4*g2+2+r)}, s13')


def pack_swap16(dst, acc):
    for u in range(2):
        for r in range(2):
            A(f'v_cvt_pk_bf16_f32 {v(dst+2*u+r)}, {v(acc+4*u+2*r)}, {v(acc+4*u+2*r+1)}')


for T in range(2):
    pack_swap16(KO + 4 * T, AK + 8 * T)
for u in range(4):
    for r in range(2):
        A(f'v_cvt_pk_bf16_f32 {v(VO+4*u+r)}, {v(AV+4*u+2*r)}, {v(AV+4*u+2*r+1)}')
for T in range(2):
    for r in range(2):
        A(f'v_permlane16_swap_b32 {v(KO+4*T+r)}, {v(KO+4*T+2+r)}')
for u in range(4):
    for r in range(2):
        A(f'v_permlane16_swap_b32 {v(VO+4*u+r)}, {v(VO+4*u+2+r)}')
for T in range(2):
    A(f'buffer_store_dwordx4 {v(KO+4*T, 4)}, {v(vL16)}, {srd(rWS)}, s15 offen offset:{T*2048} sc1')
for u in range(4):
    for r in range(2):
        A(f'v_permlane32_swap_b32 {v(VO+4*u+r)}, {v(VO+4*u+2+r)}')
A('s_mov_b32 s4, 0xffff')
A('s_mov_b32 s5, 0xffff')
A('s_mov_b64 exec, s[4:5]')
for u in range(4):
    tok_kv = A(f'buffer_store_dwordx4 {v(VO+4*u, 4)}, v7, {srd(rWS)}, s15 offen offset:{(u//2)*2048+1024+(u%2)*512} sc1')
A('s_mov_b64 exec, -1')
A.wait(vm=tok_wq)
barrier()

sk = A.new('np2')
A('s_sub_u32 s3, s2, 64')
A('s_cmp_ge_u32 s3, 128')
A(f's_cbranch_scc1 {sk}')
st = A.cond_begin()
mod_issue(64, 32, 16, PW, PC)
A.cond_end(st)
A.label(sk)
tok_p2 = A.vm
A(f'v_bfe_u32 v4, {v(vL)}, 2, 3')
A(f'v_lshlrev_b32 v4, 10, v4')
A(f'v_lshrrev_b32 v5, 5, {v(vL)}')
A(f'v_lshl_add_u32 v4, v5, 6, v4')
A(f'v_and_b32 v5, 3, {v(vL)}')
A(f'v_lshl_add_u32 v4, v5, 4, v4')
A(f's_lshl_b32 s4, {s(sHQ)}, 7')
A(f'v_add_u32 {v(vWD)}, s4, v4')
A(f's_and_b32 s4, {s(sRB)}, 15')
A(f's_lshl_b32 s4, s4, 10')
A(f's_lshl_b32 s5, {s(sW)}, 14')
for i in range(16):
    A(f's_xor_b32 s6, s4, {i << 10}')
    A(f's_add_u32 s6, s6, s5')
    A(f's_mov_b32 m0, s6')
    A(f's_lshl_b32 s6, s6, 3')
    A(f'buffer_load_dwordx4 {v(vWD)}, {srd(rWO)}, s6 offen lds')
A(f'v_lshrrev_b32 v4, 2, {v(vL)}')
A(f'v_lshlrev_b32 v4, 10, v4')
A(f'v_lshl_add_u32 v4, v5, 4, v4')
A(f's_lshr_b32 s4, {s(sW)}, 1')
A(f's_lshl_b32 s5, {s(sRB)}, 1')
A(f's_add_u32 s4, s4, s5')
A(f's_lshl_b32 s4, s4, 15')
A(f's_lshl_b32 s5, {s(sHQ)}, 1')
A(f's_and_b32 s6, {s(sW)}, 1')
A(f's_add_u32 s5, s5, s6')
A(f's_lshl_b32 s5, s5, 6')
A(f's_add_u32 s69, s4, s5')
A(f's_lshl_b32 s5, {s(sW)}, 11')
A(f's_add_u32 m0, s5, {XST}')
A(f's_add_u32 s4, s69, {16384-1024}')
A(f'buffer_load_dwordx4 v4, {srd(rX)}, s69 offen lds')
tok_wo = A(f'buffer_load_dwordx4 v4, {srd(rX)}, s4 offen offset:1024 lds')


def q_reads(ks):
    wb = WB + 4 * (ks % 4)
    base, off = (14, ks * 4096) if ks < 8 else (13, (ks - 8) * 4096)
    return [f'ds_read_b64_tr_b16 {v(wb+2*rd, 2)}, {v(base)} offset:{off+rd*256}' for rd in range(2)]


LOOK = 3
tk = {}
for ks in range(LOOK):
    for t in q_reads(ks):
        tk[ks] = A(t)
for ks in range(16):
    nxt = q_reads(ks + LOOK) if ks + LOOK < 16 else []
    A.wait(ds=tk[ks])
    for u in range(4):
        mm16(AQ + 4 * u, v(WB + 4 * (ks % 4), 4), hreg(u, ks), ks == 0)
        if u >= 2 and nxt:
            tk[ks + LOOK] = A(nxt[u - 2])
    if ks == 7:
        A.wait(vm=tok_kv)
        A(f's_lshl_b32 s3, {s(sRB)}, 3')
        A(f's_add_u32 s3, s3, {s(sHQ)}')
        A(f's_lshl_b32 s3, s3, 2')
        A(f's_add_u32 s3, s3, {s(sW)}')
        A(f's_lshl_b32 s3, s3, 7')
        A(f's_add_u32 s11, s3, {FKV}')
        A(f'v_mov_b32 v3, {s(sN)}')
        A(f'v_mov_b32 v4, 0')
        A('s_mov_b64 exec, 1')
        A(f'buffer_store_dword v3, v4, {srd(rWS)}, s11 offen sc1')
        A('s_mov_b64 exec, -1')
stamp('q')
A(f'v_and_b32 v4, 31, {v(vL)}')
A(f'v_lshrrev_b32 v5, 5, {v(vL)}')
A(f'v_lshlrev_b32 v5, 2, v5')
A(f'v_sub_u32 v4, v4, v5')
A(f'v_mov_b32 v5, 0xf149f2ca')
A(f'v_mov_b32 v6, 0')
for i in range(16):
    A(f'v_cmp_le_i32 vcc, {8*(i//4) + i % 4}, v4')
    A(f'v_mov_b32 {v(VH+4*i)}, s13')
    A(f'v_mov_b32 {v(VH+4*i+1)}, s13')
    A(f'v_cndmask_b32 {v(MD+i)}, v5, v6, vcc')
    A(f'v_cndmask_b32 {v(MO+i)}, v6, v5, vcc')
    A(f'v_mov_b32 {v(VH+4*i+2)}, s13')
    A(f'v_mov_b32 {v(VH+4*i+3)}, s13')
for i in range(16):
    A(f'v_mul_f32 {v(AQ+i)}, 0x3eb8aa3b, {v(AQ+i)}')
for T in range(2):
    pack_swap16(QF + 4 * T, AQ + 8 * T)
for T in range(2):
    for r in range(2):
        A(f'v_permlane16_swap_b32 {v(QF+4*T+r)}, {v(QF+4*T+2+r)}')
sk = A.new('np2b')
A('s_sub_u32 s3, s2, 64')
A('s_cmp_ge_u32 s3, 128')
A(f's_cbranch_scc1 {sk}')
st = A.cond_begin()
A.wait(vm=tok_p2, force=True)
mod_finish(64, 32, 16, PW, PC, PACC, SB, PRED2)
A.cond_end(st)
A.label(sk)


def mm32(X, d, x, y, c):
    X(f'v_mfma_f32_32x32x16_bf16 {d}, {x}, {y}, {c}')


def units_of(blk):
    if blk == 0:
        return [(0, KO, VO, MD), (1, KO, VO, None), (1, KO + 4, VO + 8, MD)]
    t0 = 8 - 2 * blk
    r = []
    for t in (t0 + 1, t0):
        for q in (0, 1):
            if t < q:
                continue
            r.append((q, KH + 4 * t, VH + 8 * t, MO if t == q else None))
    return r


def s_mm(X, un, buf):
    q, k, _, m = un
    mm32(X, v(SB + 16 * buf, 16), v(k, 4), v(QF + 4 * q, 4), v(m, 16) if m else '0')


def attn_units(X, uns, first, sub=None, bg=None):
    s_mm(X, uns[0], 0)
    for n, un in enumerate(uns):
        q, _, vr, _ = un
        sb = SB + 16 * (n % 2)
        pb = PB + 8 * (n % 2)
        o = v(OA + 16 * q, 16)
        if n + 1 < len(uns):
            s_mm(X, uns[n + 1], (n + 1) % 2)
            if bg:
                bg()
        for hf in range(2):
            b = sb + 8 * hf
            if sub:
                for i in range(8):
                    X(f'v_sub_f32 {v(b+i)}, {v(b+i)}, {v(sub+q)}')
            seq = [('e', 0), ('e', 1), ('e', 2), ('c', 0), ('e', 3), ('e', 4), ('c', 1), ('e', 5), ('e', 6), ('c', 2), ('e', 7)]
            for kind, i in seq:
                if kind == 'e':
                    X(f'v_exp_f32 {v(b+i)}, {v(b+i)}')
                else:
                    X(f'v_cvt_pk_bf16_f32 {v(pb+4*hf+i)}, {v(b+2*i)}, {v(b+2*i+1)}')
                if hf == 1 and (kind, i) == ('e', 1):
                    mm32(X, o, v(vr, 4), v(pb, 4), '0' if q in first else o)
                    first.discard(q)
                    if bg:
                        bg()
            X(f'v_cvt_pk_bf16_f32 {v(pb+4*hf+3)}, {v(b+6)}, {v(b+7)}')
        mm32(X, o, v(vr + 4, 4), v(pb + 4, 4), o)
        if bg:
            bg()


attn_units(A, units_of(0), {0, 1})
stamp('own')
A(f'v_bfe_u32 v4, {v(vL)}, 2, 2')
A(f'v_lshlrev_b32 v3, 6, v4')
A(f'v_bfe_u32 v4, {v(vL)}, 4, 1')
A(f'v_lshl_add_u32 v3, v4, 5, v3')
A(f'v_and_b32 v4, 3, {v(vL)}')
A(f'v_lshl_add_u32 v3, v4, 3, v3')
A(f'v_lshrrev_b32 v5, 5, {v(vL)}')
A(f's_and_b32 s3, {s(sW)}, 1')
A(f's_lshl_b32 s3, s3, 9')
A(f'v_add_u32 v3, s3, v3')
A(f's_mul_i32 s4, {s(sW)}, {RING}')
A(f's_add_u32 s4, s4, {SCR}')
A(f'v_lshl_add_u32 v8, v5, 10, v3')
A(f'v_add_u32 v8, s4, v8')
A(f'v_xor_b32 v9, 512, v8')
A(f's_lshl_b32 s4, {s(sW)}, 14')
A(f'v_lshl_add_u32 v3, v5, 8, v3')
A(f'v_add_u32 v3, s4, v3')
A(f'v_xor_b32 v4, 512, v3')
A(f'v_and_b32 v6, 31, {v(vL)}')
A(f'v_lshlrev_b32 v6, 6, v6')
A(f'v_lshl_add_u32 v6, v5, 3, v6')
A(f's_lshl_b32 s4, {s(sW)}, 11')
A(f's_add_u32 s4, s4, {XST}')
A(f'v_add_u32 v6, s4, v6')
A.wait(vm=tok_wo)
for i in range(8):
    for fi in range(2):
        for rd in range(2):
            A(f'ds_read_b64_tr_b16 {a(fi*32+4*i+2*rd, 2)}, {v(3+fi)} offset:{i*2048+rd*1024}')
for q in range(4):
    A(f'ds_read_b64 {a(64+2*q, 2)}, v6 offset:{16*q}')
A.wait_all(ds=True)
barrier()
W1A = [3, 4, 5, 6, 11, 12, 13]
for i in range(7):
    A(f'v_add_u32 v14, {64*i}, {v(vL)}')
    A(f'v_mul_u32_u24 v15, 4682, v14')
    A(f'v_lshrrev_b32 v15, 16, v15')
    A(f'v_lshlrev_b32 v14, 4, v14')
    A(f'v_mul_u32_u24 v15, {3584-224}, v15')
    A(f'v_add_u32 {v(W1A[i])}, v14, v15')
for d in range(1, 5):
    A(f's_cmp_ge_u32 {s(sRB)}, {d}')
    A(f's_cselect_b32 s3, {d*4096}, 0')
    A(f's_sub_u32 {s(3+d)}, s11, s3')
lp, dn = A.new('kvp'), A.new('kvd')
A('s_mov_b32 s3, 0')
A.label(lp)
for d in range(4):
    A(f's_load_dword {s((8, 9, 10, 26)[d])}, {s(sWS, 2)}, {s(4+d)} glc')
A('s_add_u32 s3, s3, 1')
A('s_waitcnt lgkmcnt(0)')
A(f's_xor_b32 s8, s8, {s(sN)}')
for r in (9, 10, 26):
    A(f's_xor_b32 {s(r)}, {s(r)}, {s(sN)}')
    A(f's_or_b32 s8, s8, {s(r)}')
A(f's_cbranch_scc0 {dn}')
A(f's_cmp_lt_u32 s3, {LIMIT}')
A(f's_cbranch_scc1 {lp}')
A.label(dn)
stamp('kvflag')
tok_h = {}
for d in range(1, 5):
    A(f's_cmp_ge_u32 {s(sRB)}, {d}')
    A(f's_cselect_b32 s3, {d*4096}, 0')
    A(f's_sub_u32 s3, s15, s3')
    t0 = 8 - 2 * d
    for T in range(2):
        A(f'buffer_load_dwordx4 {v(KH+4*(t0+T), 4)}, {v(vL16)}, {srd(rWS)}, s3 offen offset:{T*2048} sc1')
    A('s_mov_b32 exec_lo, 0xffff')
    A('s_mov_b32 exec_hi, 0xffff')
    for u in range(4):
        tok_h[d] = A(f'buffer_load_dwordx4 {v(VH+8*t0+4*u, 4)}, v7, {srd(rWS)}, s3 offen offset:{(u//2)*2048+1024+(u%2)*512} sc1')
    A('s_mov_b64 exec, -1')
A(f's_mul_i32 s8, {s(sJ)}, 224')
for gi in range(4):
    A(f's_lshl_b32 s3, {s(sW)}, 2')
    A(f's_add_u32 s3, s3, {s(sRB2)}')
    A(f's_add_u32 s3, s3, {gi}')
    A(f's_and_b32 s3, s3, 15')
    A(f's_mul_i32 s4, s3, 7168')
    A(f's_mul_i32 s5, s3, 114688')
    A(f's_add_u32 s5, s5, s8')
    for i in range(7):
        A(f's_add_u32 m0, s4, {1024*i}')
        A('s_nop 0')
        tok_w1 = A(f'buffer_load_dwordx4 {v(W1A[i])}, {srd(rW1)}, s5 offen lds')
att_end = A.new('attend')
for d in range(1, 5):
    A(f's_cmp_lt_u32 {s(sRB)}, {d}')
    A(f's_cbranch_scc1 {att_end}')
    st = A.cond_begin()
    A.wait(vm=tok_h[d])
    attn_units(A, units_of(d), set())
    A.cond_end(st)
A('s_nop 7')
A.label(att_end)
A('s_nop 7')
A('s_nop 1')
redo, fin = A.new('redo'), A.new('attfin')
A(f'v_max_f32 v14, {v(OA+8)}, {v(OA+24)}')
A(f'v_min_f32 v15, {v(OA+8)}, {v(OA+24)}')
A(f's_mov_b32 s3, {"0" if OPT["forcemax"] else "0x67800000"}')
A(f's_mov_b32 s6, 0x17800000')
A(f'v_cmp_nge_f32 vcc, s3, v14')
A(f'v_cmp_nle_f32 s[4:5], s6, v15')
A(f'v_cmp_u_f32 s[8:9], {v(OA+8)}, {v(OA+24)}')
A('s_or_b64 vcc, vcc, s[4:5]')
A('s_or_b64 vcc, vcc, s[8:9]')
A(f's_cbranch_vccnz {redo}')
A.label(fin)
C = COLD
C.label(redo)
C('s_waitcnt vmcnt(0)')
C(f'v_mov_b32 v14, 0xff7fffff')
C(f'v_mov_b32 v15, 0xff7fffff')
mx_end, p2_end = C.new('mxend'), C.new('p2end')
for d in range(5):
    if d:
        C(f's_cmp_lt_u32 {s(sRB)}, {d}')
        C(f's_cbranch_scc1 {mx_end}')
    for un in units_of(d):
        s_mm(C, un, 0)
        for i in range(0, 16, 2):
            C(f'v_max3_f32 {v(14+un[0])}, {v(14+un[0])}, {v(SB+i)}, {v(SB+i+1)}')
C.label(mx_end)
for q in range(2):
    C(f'v_mov_b32 {v(SB)}, {v(14+q)}')
    C(f'v_permlane32_swap_b32 {v(SB)}, {v(14+q)}')
    C(f'v_max_f32 {v(14+q)}, {v(SB)}, {v(14+q)}')
fs = {0, 1}
for d in range(5):
    if d:
        C(f's_cmp_lt_u32 {s(sRB)}, {d}')
        C(f's_cbranch_scc1 {p2_end}')
    attn_units(C, units_of(d), fs, sub=14)
C('s_nop 7')
C.label(p2_end)
C('s_nop 7')
C('s_nop 7')
C(f's_branch {fin}')
for q in range(2):
    A(f'v_rcp_f32 {v(OA+16*q+8)}, {v(OA+16*q+8)}')
A(f's_lshl_b32 s3, {s(sRB)}, 6')
A(f's_lshl_b32 s4, {s(sHQ)}, 2')
A(f's_add_u32 s3, s3, s4')
A(f's_add_u32 s3, s3, {s(sW)}')
A(f's_lshl_b32 s3, s3, 10')
A(f's_add_u32 s4, s3, {OBUF}')
A(f's_add_u32 s5, s3, {OBUF+32768}')
for q in range(2):
    for i in range(8):
        A(f'v_mul_f32 {v(OA+16*q+i)}, {v(OA+16*q+i)}, {v(OA+16*q+8)}')
    for i in range(4):
        A(f'v_cvt_pk_bf16_f32 {v(OA+16*q+i)}, {v(OA+16*q+2*i)}, {v(OA+16*q+2*i+1)}')
A(f'v_lshlrev_b32 v14, 2, {v(vL)}')
A(f's_lshl_b32 s6, {s(sRB2)}, 7')
A(f's_add_u32 s6, s6, {HELLO}')
A(f's_andn2_b32 s7, {s(sN)}, 15')
A(f's_or_b32 s7, s7, {s(sXCC)}')
A('s_mov_b64 exec, 0xffff')
A(f'buffer_load_dword v15, v14, {srd(rWS)}, s6 offen sc1')
A.wait_all(vm=True)
A(f'v_cmp_ne_u32 vcc, s7, v15')
A('s_mov_b64 exec, -1')
A(f's_cmp_eq_u64 vcc, 0')
A(f's_cselect_b32 {s(sFAST)}, 1, 0')
stamp('attn')
tok_o = handoff([f'buffer_store_dwordx4 {v(OA+16*q, 4)}, {v(vL16)}, {srd(rWS)}, {s(4+q)} offen @' for q in range(2)])
A(f's_lshl_b32 s3, {s(sRB)}, 9')
A(f's_lshr_b32 s4, {s(sHQ)}, 1')
A(f's_lshl_b32 s4, s4, 7')
A(f's_add_u32 s4, s4, s3')
A(f's_and_b32 s5, {s(sHQ)}, 1')
A(f's_lshl_b32 s5, s5, 2')
A(f's_add_u32 s5, s5, {s(sW)}')
A(f's_lshl_b32 s5, s5, 2')
A(f's_add_u32 s4, s4, s5')
A(f's_add_u32 s4, s4, {FO}')
A.wait(vm=tok_o)
setflag('s4')

G2 = 16
mod_gather(1024, 2, G2, 4)
A(f's_cmp_lt_u32 {s(sW)}, 2')
A(f's_cselect_b32 s3, 1.0, 0')
add_const_round(G2 + 16, 3)
A(f'v_lshlrev_b32 v3, 3, v0')
A(f'v_add_u32 v3, {T_MOD2}, v3')
A(f'ds_write_b64 v3, {v(G2, 2)}')
A(f'ds_write_b64 v3, {v(G2+16, 2)} offset:2048')
A(f'v_lshrrev_b32 v4, 5, {v(vL)}')
A(f'v_lshlrev_b32 v4, 4, v4')
A(f'v_bfe_u32 v5, {v(vL)}, 2, 3')
A(f'v_add_u32 v4, v4, v5')
A(f'v_mul_u32_u24 v4, 224, v4')
A(f'v_and_b32 v5, 3, {v(vL)}')
A(f'v_lshl_add_u32 v11, v5, 3, v4')
A(f'v_add_u32 v12, {8*7168}, v11')
A.wait_all(vm=True, ds=True)
barrier()
CG, CS, GB, X1, CB = 208, 224, 240, 184, 248
A(f'v_lshrrev_b32 v4, 5, {v(vL)}')
A(f'v_lshlrev_b32 v4, 3, v4')
A(f's_and_b32 s3, s69, 1023')
A(f's_add_u32 s3, s3, {T_MOD2}')
A(f'v_add_u32 v4, s3, v4')
for q in range(4):
    A(f'ds_read_b64 {v(16+2*q, 2)}, v4 offset:{16*q}')
    A(f'ds_read_b64 {v(24+2*q, 2)}, v4 offset:{2048+16*q}')
    A(f'ds_read_b64 {v(GB+2*q, 2)}, v4 offset:{3072+16*q}')
A(f'v_and_b32 v4, 1, {v(vL)}')
A(f'v_lshlrev_b32 v4, 10, v4')
A(f'v_lshrrev_b32 v5, 5, {v(vL)}')
A(f'v_lshl_add_u32 v4, v5, 5, v4')
A(f'v_bfe_u32 v5, {v(vL)}, 4, 1')
A(f'v_lshl_add_u32 v4, v5, 3, v4')
A(f'v_add_u32 v4, {T_MOD2+1024}, v4')
A(f's_add_u32 s3, {s(sW)}, 4')
A(f's_min_u32 s3, s3, 6')
A(f's_lshl_b32 s4, {s(sW)}, 5')
A(f's_lshl_b32 s5, s3, 5')
A(f'v_add_u32 v5, s4, v11')
A(f'v_add_u32 v6, s5, v11')
A(f'v_add_u32 v13, s4, v12')
A(f'v_add_u32 v14, s5, v12')
A.wait_all(ds=True)
for i in range(8):
    unpack2(CG + 2 * i, 16 + i)
    unpack2(CS + 2 * i, 24 + i)
for hb in range(4):
    for k4 in range(4):
        ks = hb * 4 + k4
        b = 32 + k4 * 12
        A(f'ds_read_b64 {v(b, 2)}, v4 offset:{ks*64}')
        A(f'ds_read_b64 {v(b+2, 2)}, v4 offset:{ks*64+16}')
        for t in range(2):
            base = (5, 6)[t] if ks < 8 else (13, 14)[t]
            for rd in range(2):
                A(f'ds_read_b64_tr_b16 {v(b+4+4*t+2*rd, 2)}, {v(base)} offset:{(ks%8)*7168+rd*1792}')
    A.wait_all(ds=True)
    for k4 in range(4):
        b = 32 + k4 * 12
        for t in range(2):
            mm16(16 + 4 * t, v(b + 4 + 4 * t, 4), v(b, 4), hb == 0 and k4 == 0)
A(f'v_and_b32 v4, 1, {v(vL)}')
A(f'v_lshlrev_b32 v4, 6, v4')
A(f'v_lshrrev_b32 v5, 4, {v(vL)}')
A(f'v_lshl_add_u32 v4, v5, 4, v4')
A(f's_lshl_b32 s4, {s(sW)}, 7')
A(f's_lshl_b32 s5, s3, 7')
A(f's_add_u32 s4, s4, {T_CB}')
A(f's_add_u32 s5, s5, {T_CB}')
A(f'v_add_u32 v6, s4, v4')
A(f'v_add_u32 v4, s5, v4')
A(f'ds_write_b128 v6, {v(16, 4)}')
A(f'ds_write_b128 v4, {v(20, 4)}')
A(f'v_and_b32 v4, 15, {v(vL)}')
A(f'v_lshlrev_b32 v4, 6, v4')
A(f'v_lshl_add_u32 v4, v5, 4, v4')
A(f'v_add_u32 v4, {T_CB}, v4')
A.wait_all(ds=True)
barrier()
A(f'ds_read_b128 {v(CB, 4)}, v4')
for i in range(8):
    A(f'v_accvgpr_read_b32 {v(16+i)}, {a(64+i)}')
for i in range(8):
    unpack2(X1 + 2 * i, 16 + i)
A.wait_all(ds=True)
barrier()
stamp('prep')

OB, ACC = 16, 80
A(f'v_lshlrev_b32 v14, 2, {v(vL)}')
A(f's_lshl_b32 s4, {s(sRB)}, 2')
A(f's_add_u32 s4, s4, {s(sW)}')
A(f's_lshl_b32 s4, s4, 7')
A(f's_add_u32 s4, s4, {FO}')
A(f's_lshr_b32 s5, {s(sW)}, 1')
A(f's_lshl_b32 s6, {s(sRB)}, 1')
A(f's_add_u32 s13, s5, s6')
A(f's_lshl_b32 s5, s13, 15')
A(f's_lshl_b32 s6, {s(sW)}, 13')
A(f's_add_u32 s5, s5, s6')
A(f's_xor_b32 s7, s5, 32768')
A(f's_add_u32 s5, s5, {OBUF}')
A(f's_add_u32 s6, s5, 4096')
A(f's_add_u32 s7, s7, {OBUF}')
A(f's_add_u32 s8, s7, 4096')
vpoll(14, 8, 's4', 15)
tk = {}
for ti in (1, 0):
    for i in range(8):
        tk[ti, i] = A(f'buffer_load_dwordx4 {v(OB+32*ti+4*i, 4)}, {v(vL16)}, {srd(rWS)}, {s(5+2*ti+i//4)} offen offset:{(i%4)*1024} sc1')


def reduce_addrs():
    for aa in range(1, 4):
        A(f's_xor_b32 s3, {s(sW)}, {aa}')
        A(f's_mul_i32 s3, s3, 12288')
        A(f's_add_u32 s3, s3, {SCR + (aa-1)*4096}')
        A(f'v_add_u32 {v(2+aa)}, s3, {v(vL16)}')
    A(f's_mul_i32 s3, {s(sW)}, 12288')
    A(f's_add_u32 s3, s3, {SCR}')
    A(f'v_add_u32 v6, s3, {v(vL16)}')


def reduce_write(aa):
    for r in range(4):
        A(f'ds_write_b128 {v(2+aa)}, {v(ACC+16*aa+4*r, 4)} offset:{r*1024}')


def reduce_read():
    A.wait_all(ds=True)
    barrier()
    t = {}
    for r in range(4):
        for p in range(3):
            t[r] = A(f'ds_read_b128 {v(ACC+16+16*p+4*r, 4)}, v6 offset:{p*4096+r*1024}')
    for r in range(4):
        A.wait(ds=t[r])
        for h in range(2):
            b = ACC + 4 * r + 2 * h
            A(f'v_pk_add_f32 {v(b, 2)}, {v(b, 2)}, {v(b+16, 2)}')
            A(f'v_pk_add_f32 {v(b+32, 2)}, {v(b+32, 2)}, {v(b+48, 2)}')
        for h in range(2):
            b = ACC + 4 * r + 2 * h
            A(f'v_pk_add_f32 {v(b, 2)}, {v(b, 2)}, {v(b+32, 2)}')


reduce_addrs()
for ti in (1, 0):
    for i in range(8):
        A.wait(vm=tk[ti, i])
        for fi in (1, 0):
            d = v(ACC + 32 * ti + 16 * fi, 16)
            mm32(A, d, a(32 * fi + 4 * i, 4), v(OB + 32 * ti + 4 * i, 4), '0' if i == 0 else d)
        if ti == 0 and i == 2:
            reduce_write(3)
        if ti == 0 and i == 4:
            reduce_write(2)
reduce_write(1)
reduce_read()
for i in range(8):
    A(f'v_pk_fma_f32 {v(X1+2*i, 2)}, {v(ACC+2*i, 2)}, {v(CG+2*i, 2)}, {v(X1+2*i, 2)}')
for i in range(8):
    A(f'v_pk_mul_f32 {v(CS+2*i, 2)}, {v(CS+2*i, 2)}, {v(X1+2*i, 2)}')
for i in range(8):
    A(f'v_cvt_pk_bf16_f32 {v(CS+i)}, {v(CS+2*i)}, {v(CS+2*i+1)}')
A(f'v_bfe_u32 v4, {v(vL)}, 4, 1')
A(f'v_and_b32 v5, 15, {v(vL)}')
A(f'v_lshlrev_b32 v5, 4, v5')
A(f'v_lshl_add_u32 v13, v4, 3, v5')
A(f'v_lshl_add_u32 v5, v4, 14, v5')
A(f'v_lshrrev_b32 v4, 5, {v(vL)}')
A(f'v_lshl_add_u32 v5, v4, 8, v5')
A(f's_lshl_b32 s4, {s(sHQ)}, 1')
A(f's_and_b32 s5, {s(sW)}, 1')
A(f's_add_u32 s4, s4, s5')
A(f's_lshl_b32 s5, s13, 15')
A(f's_lshl_b32 s6, s4, 10')
A(f's_add_u32 s5, s5, s6')
A(f's_add_u32 s5, s5, {YBUF}')
A(f's_lshl_b32 s6, s13, 12')
A(f's_lshl_b32 s7, s4, 8')
A(f's_add_u32 s6, s6, s7')
A(f's_add_u32 s6, s6, {STATS}')
A(f's_lshl_b32 s7, s13, 7')
A(f's_lshl_b32 s4, s4, 2')
A(f's_add_u32 s7, s7, s4')
A(f's_add_u32 s7, s7, {FY}')
handoff([f'buffer_store_dwordx4 {v(CS+4*g, 4)}, v5, {srd(rWS)}, s5 offen offset:{512*g} @' for g in range(2)])
A(f'v_pk_add_f32 {v(CG, 2)}, {v(X1, 2)}, {v(X1+2, 2)}')
A(f'v_pk_mul_f32 {v(CG+2, 2)}, {v(X1, 2)}, {v(X1, 2)}')
for i in range(1, 8):
    if i > 1:
        A(f'v_pk_add_f32 {v(CG, 2)}, {v(CG, 2)}, {v(X1+2*i, 2)}')
    A(f'v_pk_fma_f32 {v(CG+2, 2)}, {v(X1+2*i, 2)}, {v(X1+2*i, 2)}, {v(CG+2, 2)}')
A(f'v_add_f32 {v(CG)}, {v(CG)}, {v(CG+1)}')
A(f'v_add_f32 {v(CG+1)}, {v(CG+2)}, {v(CG+3)}')
A(f'v_mov_b32 {v(CG+2)}, {v(CG)}')
A(f'v_mov_b32 {v(CG+3)}, {v(CG+1)}')
A(f'v_permlane32_swap_b32 {v(CG)}, {v(CG+2)}')
A(f'v_permlane32_swap_b32 {v(CG+1)}, {v(CG+3)}')
A(f'v_pk_add_f32 {v(CG, 2)}, {v(CG, 2)}, {v(CG+2, 2)}')
A('s_mov_b32 exec_hi, 0')
tok_y = handoff([f'buffer_store_dwordx2 {v(CG, 2)}, v13, {srd(rWS)}, s6 offen @'])
A('s_mov_b64 exec, -1')
A.wait(vm=tok_y)
setflag('s7')
stamp('oproj')
barrier()


def w2reg(fi, n):
    return 32 + n * 8 + fi * 4


def w2_issue(n0, n1):
    A(f's_mul_i32 s3, {s(sW)}, {RING}')
    A(f's_add_u32 s3, s3, {SCR}')
    A(f's_mul_i32 s4, {s(sW)}, {448*1024}')
    t = None
    for n in range(n0, n1):
        for hb in range(2):
            A(f's_add_u32 m0, s3, {(n-n0)*2048+hb*1024}')
            A(f's_add_u32 s5, s4, {n*16384+hb*8192}')
            t = A(f'buffer_load_dwordx4 {v(vWD)}, {srd(rW2)}, s5 offen lds')
    return t


def w2_read(n0, n1):
    for n in range(n0, n1):
        for fi in range(2):
            for rd in range(2):
                A(f'ds_read_b64_tr_b16 {a(w2reg(fi, n)+2*rd, 2)}, {v(8+fi)} offset:{(n-n0)*2048+rd*256}')


for n0 in range(0, 28, 5):
    n1 = min(n0 + 5, 28)
    t = w2_issue(n0, n1)
    A.wait(vm=t)
    w2_read(n0, n1)
    A.wait_all(ds=True)

YB, FA, FW, SV = 16, 144, 208, 224


def facc(t, u):
    r = FA + 8 * t + 4 * u
    return r if r < X1 else r + 16


FW = 216
SV = 232
A(f's_lshl_b32 s9, {s(sRB2)}, 2')
A(f's_add_u32 s9, s9, {s(sW)}')
A(f's_lshl_b32 s4, s9, 7')
A(f's_add_u32 s4, s4, {FY}')
A(f's_lshl_b32 s5, s9, 12')
A(f's_add_u32 s5, s5, {STATS}')
A(f's_lshl_b32 s6, s9, 15')
A(f's_add_u32 s6, s6, {YBUF}')
vpoll(14, 16, 's4', 15)
stamp('yflag')
for i in range(4):
    tst = A(f'buffer_load_dwordx4 {v(FA+4*i, 4)}, {v(vL16)}, {srd(rWS)}, s5 offen offset:{i*1024} sc1')
ty = {}
for ks in range(16):
    if ks % 4 == 0:
        A(f's_add_u32 s7, s6, {ks*1024}')
        A(f's_add_u32 s8, s6, {ks*1024+16384}')
    for u in range(2):
        ty[ks] = A(f'buffer_load_dwordx4 {v(YB+8*ks+4*u, 4)}, {v(vL16)}, {srd(rWS)}, {s(7+u)} offen offset:{(ks%4)*1024} sc1')
A.wait(vm=tst)
for h in range(2):
    A(f'v_pk_add_f32 {v(FA+2*h, 2)}, {v(FA+2*h, 2)}, {v(FA+4+2*h, 2)}')
    A(f'v_pk_add_f32 {v(FA+8+2*h, 2)}, {v(FA+8+2*h, 2)}, {v(FA+12+2*h, 2)}')
for h in range(2):
    A(f'v_pk_add_f32 {v(FA+2*h, 2)}, {v(FA+2*h, 2)}, {v(FA+8+2*h, 2)}')
for sw in ('32', '16'):
    for e in range(4):
        A(f'v_mov_b32 {v(FA+4+e)}, {v(FA+e)}')
    for e in range(4):
        A(f'v_permlane{sw}_swap_b32 {v(FA+e)}, {v(FA+4+e)}')
    for e in range(4):
        A(f'v_add_f32 {v(FA+e)}, {v(FA+e)}, {v(FA+4+e)}')
A('s_mov_b32 s3, 0x3b000000')
A('v_mov_b32 v3, 0x3727c5ac')
for u in range(2):
    A(f'v_mul_f32 {v(SV+2*u)}, 0xbb000000, {v(FA+2*u)}')
    A(f'v_mul_f32 {v(FA+2*u+1)}, s3, {v(FA+2*u+1)}')
    A(f'v_fma_f32 {v(FA+2*u+1)}, -{v(SV+2*u)}, {v(SV+2*u)}, {v(FA+2*u+1)}')
    A(f'v_max_f32 {v(FA+2*u+1)}, 0, {v(FA+2*u+1)}')
    A(f'v_add_f32 {v(FA+2*u+1)}, v3, {v(FA+2*u+1)}')
    A(f'v_sqrt_f32 {v(SV+2*u+1)}, {v(FA+2*u+1)}')
    A(f'v_rsq_f32 {v(FA+2*u)}, {v(FA+2*u+1)}')
A(f'v_and_b32 v4, 15, {v(vL)}')
A(f'v_lshlrev_b32 v4, 2, v4')
A(f's_lshl_b32 s3, {s(sW)}, 7')
A(f's_add_u32 s3, s3, {T_RST}')
A(f'v_add_u32 v4, s3, v4')
A(f'ds_write_b32 v4, {v(FA)}')
A(f'ds_write_b32 v4, {v(FA+2)} offset:64')
A.wait_all(ds=True)
A(f's_mul_i32 s10, s9, {112*1024}')
A(f's_mul_i32 s3, {s(sJ)}, 7168')
A(f's_add_u32 s10, s10, s3')
A(f's_add_u32 s10, s10, {FBUF}')
A(f's_add_u32 s11, s10, 4096')
A(f's_lshr_b32 s3, s9, 1')
A(f's_lshl_b32 s3, s3, 2')
A(f's_lshr_b32 s4, {s(sJ)}, 2')
A(f's_add_u32 s3, s3, s4')
A(f's_lshl_b32 s3, s3, 7')
A(f's_and_b32 s4, {s(sJ)}, 3')
A(f's_lshl_b32 s4, s4, 1')
A(f's_and_b32 s5, {s(sW)}, 1')
A(f's_add_u32 s4, s4, s5')
A(f's_lshl_b32 s4, s4, 2')
A(f's_add_u32 s3, s3, s4')
A(f's_add_u32 s14, s3, {FF}')
A(f's_add_u32 s15, s3, {FF+16384}')


def ffn1_pass(tiles, waity, mid=None):
    seq = [(ks, t) for ks in range(16) for t in tiles]

    def rd(n):
        ks, t = seq[n]
        base = 11 if ks < 8 else 12
        return [f'ds_read_b64_tr_b16 {v(FW+4*(n%4)+2*r, 2)}, {v(base)} offset:{(ks%8)*7168+r*1792+t*32}' for r in range(2)]
    LK = 3
    tk = {}
    for n in range(LK):
        for t in rd(n):
            tk[n] = A(t)
    for n, (ks, t) in enumerate(seq):
        nxt = rd(n + LK) if n + LK < len(seq) else []
        A.wait(vm=ty[ks] if waity else None, ds=tk[n])
        for u in range(2):
            mm16(facc(t, u), v(FW + 4 * (n % 4), 4), v(YB + 8 * ks + 4 * u, 4), ks == 0)
            if nxt:
                tk[n + LK] = A(nxt[u])
        if mid and n == mid[0]:
            mid[1]()


def ffn1_epi(tiles, sdst):
    for t in tiles:
        for u in range(2):
            for i in range(4):
                A(f'v_fmac_f32_dpp {v(facc(t, u)+i)}, {v(CB+i)}, {v(SV+2*u)} row_newbcast:{2*t+1} row_mask:0xf bank_mask:0xf')
        for u in range(2):
            for i in range(4):
                A(f'v_fmac_f32_dpp {v(facc(t, u)+i)}, {v(CB+i)}, {v(SV+2*u+1)} row_newbcast:{2*t} row_mask:0xf bank_mask:0xf')
    for t in tiles:
        pack_swap16(facc(t, 0), facc(t, 0))
        for i in range(4):
            A(f'v_pk_max_i16 {v(facc(t, 0)+i)}, {v(facc(t, 0)+i)}, 0')
    for t in tiles:
        for r in range(2):
            A(f'v_permlane16_swap_b32 {v(facc(t, 0)+r)}, {v(facc(t, 0)+2+r)}')
    return handoff([f'buffer_store_dwordx4 {v(facc(t, 0), 4)}, {v(vL16)}, {srd(rWS)}, {sdst} offen offset:{(t%4)*1024} @' for t in tiles])


ffn1_pass(range(4), True)
tf1 = ffn1_epi(range(4), 's10')


def flag1():
    A.wait(vm=tf1)
    setflag('s14')


ffn1_pass(range(4, 7), False, (24, flag1))
tf2 = ffn1_epi(range(4, 7), 's11')
A.wait(vm=tf2)
setflag('s15')
stamp('ffn1')

FB = 16
FB2 = 144


def fbuf(n):
    n %= 26
    return FB + 4 * n if n < 16 else FB2 + 4 * (n - 16)


A(f's_lshl_b32 s4, {s(sRB)}, 2')
A(f's_add_u32 s4, s4, {s(sW)}')
A(f's_lshl_b32 s4, s4, 7')
A(f's_add_u32 s14, s4, {FF}')
A(f's_add_u32 s15, s4, {FF+16384}')
A(f's_mul_i32 s10, s13, {112*1024}')
A(f's_xor_b32 s3, s13, 1')
A(f's_mul_i32 s11, s3, {112*1024}')
A(f's_mul_i32 s3, {s(sW)}, {28*1024}')
A(f's_add_u32 s3, s3, {FBUF}')
A(f's_add_u32 s10, s10, s3')
A(f's_add_u32 s11, s11, s3')
barrier()
A(f's_and_b32 s3, s13, 3')
A(f's_lshl_b32 s3, s3, 7')
A(f's_add_u32 s3, s3, {T_RST}')
A(f'v_and_b32 v13, 31, {v(vL)}')
A(f'v_lshl_add_u32 v4, v13, 2, s3')
A(f'ds_read_b32 {v(200)}, v4')
A.wait_all(ds=True)
barrier()
reduce_addrs()
first = {0, 1}
for stage, tl in enumerate((range(4), range(4, 7))):
    vpoll(14, 8, s(14 + stage), 15)
    seq = [(ti, jj, t) for ti in (1, 0) for jj in range(4) for t in tl]
    tk = {}

    def ld(n):
        ti, jj, t = seq[n]
        if t == tl[0]:
            A(f's_add_u32 s4, {s(10+ti)}, {(7*jj+t)*1024}')
        tk[n] = A(f'buffer_load_dwordx4 {v(fbuf(n), 4)}, {v(vL16)}, {srd(rWS)}, s4 offen offset:{(t-tl[0])*1024} sc1')
    LK = 24
    for n in range(min(LK, len(seq))):
        ld(n)
    for n, (ti, jj, t) in enumerate(seq):
        A.wait(vm=tk[n])
        for fi in (1, 0):
            d = v(ACC + 32 * ti + 16 * fi, 16)
            mm32(A, d, a(w2reg(fi, 7 * jj + t), 4), v(fbuf(n), 4), '0' if ti in first else d)
        first.discard(ti)
        if n + LK < len(seq):
            ld(n + LK)
        if stage == 1 and n == 14:
            reduce_write(3)
        if stage == 1 and n == 17:
            reduce_write(2)
reduce_write(1)
for i in range(8):
    unpack2(CG + 2 * i, GB + i)
for i in range(8):
    A(f'v_pk_mul_f32 {v(CG+2*i, 2)}, {v(CG+2*i, 2)}, {v(200, 2)} op_sel_hi:[1,0]')
reduce_read()
for i in range(8):
    A(f'v_pk_fma_f32 {v(X1+2*i, 2)}, {v(ACC+2*i, 2)}, {v(CG+2*i, 2)}, {v(X1+2*i, 2)}')
for i in range(8):
    A(f'v_cvt_pk_bf16_f32 {v(X1+i)}, {v(X1+2*i)}, {v(X1+2*i+1)}')
A(f'v_lshlrev_b32 v13, 10, v13')
A(f'v_lshrrev_b32 v4, 5, {v(vL)}')
A(f'v_lshl_add_u32 v13, v4, 4, v13')
for k in range(2):
    for r in range(2):
        A(f'v_permlane32_swap_b32 {v(X1+4*k+r)}, {v(X1+4*k+2+r)}')
for k in range(2):
    A(f'buffer_store_dwordx4 {v(X1+4*k, 4)}, v13, {srd(rOUT)}, s69 offen offset:{32*k}')

sk = A.new('ep')
A(f's_cmp_lg_u32 s2, 255')
A(f's_cbranch_scc1 {sk}')
A(f's_cmp_lg_u32 {s(sW)}, 3')
A(f's_cbranch_scc1 {sk}')
lp, dn = A.new('epl'), A.new('epd')
A(f'v_lshrrev_b32 v3, 2, {v(vL)}')
A(f'v_lshlrev_b32 v3, 7, v3')
A(f'v_and_b32 v4, 3, {v(vL)}')
A(f'v_lshl_add_u32 v3, v4, 4, v3')
A(f's_mov_b32 s4, {HELLO}')
A('s_mov_b32 s3, 0')
A.label(lp)
A(f'buffer_load_dwordx4 v[4:7], v3, {srd(rWS)}, s4 offen sc1')
A('s_add_u32 s3, s3, 1')
A.wait_all(vm=True)
for i in range(4):
    A(f'v_xor_b32 {v(4+i)}, {s(sN)}, {v(4+i)}')
A('v_or_b32 v4, v4, v5')
A('v_or3_b32 v4, v4, v6, v7')
A('v_cmp_lt_u32 vcc, 15, v4')
A(f's_cmp_lt_u32 s3, {LIMIT}')
A(f's_cbranch_vccz {dn}')
A(f's_cbranch_scc1 {lp}')
A.label(dn)
A(f'v_mov_b32 v3, {s(sN)}')
A(f'v_mov_b32 v4, {EPOCH}')
A('s_mov_b64 exec, 1')
A(f'buffer_store_dword v3, v4, {srd(rWS)}, 0 offen sc1')
A('s_mov_b64 exec, -1')
A.label(sk)
if OPT['stamps']:
    A.wait_all(vm=True)
    stamp('end')
    A('s_waitcnt lgkmcnt(0)')
    A('v_mov_b32 v3, 0')
    for k in range(nstamp[0]):
        A(f'v_writelane_b32 v3, {s(STAMP0+2*k)}, {k}')
    A(f'v_writelane_b32 v3, {s(sXCC)}, 16')
    A(f'v_writelane_b32 v3, {s(sFAST)}, 17')
    A(f's_lshl_b32 s3, s2, 2')
    A(f's_add_u32 s3, s3, {s(sW)}')
    A(f's_lshl_b32 s3, s3, 7')
    A(f's_add_u32 s3, s3, {STAMPS}')
    A(f'v_lshlrev_b32 v4, 2, {v(vL)}')
    A('s_mov_b32 exec_hi, 0')
    A(f'buffer_store_dword v3, v4, {srd(rWS)}, s3 offen')
A.label('L_end')
A('s_endpgm')
A.label('L_hot_end')
A.ins += COLD.ins
body, added = A.text()

hdr = open('cdna_kernels/' + NAME + '.s.ref').read().split('\n')
hdr = [l for l in hdr if l.startswith(';') and '@launch' not in l and 'Override' not in l and 'grid=ceil' not in l]
out = '\n'.join(hdr) + f'''
; @launch grid=(256,1,1) block=(256,1,1) lds=163840
; generated by gen/gen.py (hand-written generator): one persistent launch, one workgroup per CU
.amdgcn_target "amdgcn-amd-amdhsa--gfx950"
.text
.globl {NAME}_kernel
.p2align 8
.type {NAME}_kernel,@function
{NAME}_kernel:
{body}
  s_endpgm
.fill 2048, 4, 0xbf800000
  s_endpgm
.section .rodata,"a"
.p2align 6
.amdhsa_kernel {NAME}_kernel
  .amdhsa_next_free_vgpr 512
  .amdhsa_next_free_sgpr 102
  .amdhsa_accum_offset 256
  .amdhsa_group_segment_fixed_size 0
  .amdhsa_kernarg_size 88
  .amdhsa_user_sgpr_count 2
  .amdhsa_user_sgpr_kernarg_segment_ptr 1
  .amdhsa_system_sgpr_workgroup_id_x 1
  .amdhsa_float_denorm_mode_32 3
.end_amdhsa_kernel
'''
out = out.replace('CODE_CHUNKS', str(OPT.get('chunks', 4)))
open(sys.argv[1], 'w').write(out)
open(sys.argv[1] + '.names', 'w').write(' '.join(NAMES))
print(f'instructions: {len(A.ins)}, nops added: {added}, stamps: {nstamp[0]}')
```

```python
import sys
from asmlib import Asm, v, a, s

NAME = 'adaLN_cond__sliding_block__dense_activation_relu__prompt'
OPT = dict(stamps=0, fast=1, forcemax=0, stop=0)
for arg in sys.argv[2:]:
    k, val = arg.split('=')
    OPT[k] = int(val)

EPOCH = 0
HELLO = 0x1000
FKV = 0x10000
FO = 0x30000
FY = 0x34000
FF = 0x38000
MODP = 0x40000
STATS = 0x80000
STAMPS = 0xC0000
KVB = 0x100000
OBUF = 0x500000
YBUF = 0x700000
FBUF = 0x900000
LA, LB, LC = 0, 65536, 131072
MODT = LC
PRED1 = LC + 4096
SCR = 114688
RING = 10240
TAB = SCR + 4 * RING
T_MOD2 = TAB
T_CB = TAB + 4096
T_RST = TAB + 6144
XST = LB + 32768
PRED2 = LB + 49152
sC, sDBG, sWS = 16, 22, 24
rX, rWQ, rWO, rW1, rW2, rWM, rWS, rOUT = 28, 32, 36, 40, 44, 48, 52, 56
sW, sRB, sHQ, sJ, sRB2, sN, sXCC, sFAST = 60, 61, 62, 63, 64, 65, 66, 67
sHI = 68
sT = [3, 4, 5, 6, 7, 8, 9, 10, 11, 12, 13, 14, 15, 26, 27, 69, 70, 71]
STAMP0 = 72
LIMIT = 1 << 15
vL, vL16 = 1, 2

A = Asm()
COLD = Asm()
COLD.uid = 100000


def srd(r):
    return s(r, 4)


nstamp = [0]
SKIP = {'issued', 'wk'}
NAMES = ['rt']


def stamp(name):
    if OPT['stamps'] and name not in SKIP:
        NAMES.append(name)
        k = nstamp[0]
        assert k < 15
        A(f's_memtime {s(STAMP0+2*k, 2)}')
        nstamp[0] += 1


def barrier():
    A('s_barrier')


def vpoll(vaddr, nl, soff, vt):
    lp, dn = A.new('poll'), A.new('polld')
    A(f's_mov_b64 exec, {hex((1 << nl) - 1)}')
    A(f's_mov_b32 s3, 0')
    A.label(lp)
    A(f'buffer_load_dword {v(vt)}, {v(vaddr)}, {srd(rWS)}, {soff} offen sc1')
    A(f's_add_u32 s3, s3, 1')
    A.wait_all(vm=True)
    A(f'v_cmp_ne_u32 vcc, {s(sN)}, {v(vt)}')
    A(f's_cmp_lt_u32 s3, {LIMIT}')
    A(f's_cbranch_vccz {dn}')
    A(f's_cbranch_scc1 {lp}')
    A.label(dn)
    A('s_mov_b64 exec, -1')


def handoff(stores):
    if not OPT['fast']:
        tok = None
        for t in stores:
            tok = A(t.replace('@', 'sc1')) or tok
        return tok
    slow, back = A.new('slow'), A.new('back')
    A(f's_cmp_eq_u32 {s(sFAST)}, 0')
    A(f's_cbranch_scc1 {slow}')
    tok = None
    for t in stores:
        tok = A(t.replace('@', '')) or tok
    A.label(back)
    COLD.label(slow)
    for t in stores:
        COLD(t.replace('@', 'sc1'))
    COLD('s_nop 1')
    COLD(f's_branch {back}')
    return tok


def setflag(soff):
    A(f'v_mov_b32 v3, {s(sN)}')
    A(f'v_mov_b32 v4, 0')
    A('s_mov_b64 exec, 1')
    handoff([f'buffer_store_dword v3, v4, {srd(rWS)}, {soff} offen @'])
    A('s_mov_b64 exec, -1')


def mod_issue(base, ncg, cg0, PW, PC):
    lg = ncg.bit_length() - 1
    A(f's_sub_u32 s3, s2, {base}')
    A(f's_and_b32 s4, s3, {ncg-1}')
    A(f's_add_u32 s4, s4, {cg0}')
    A(f's_lshr_b32 s5, s3, {lg}')
    A(f's_lshl_b32 s6, s5, 7')
    A(f's_lshl_b32 s7, {s(sW)}, 5')
    A(f's_add_u32 s6, s6, s7')
    A(f'v_lshrrev_b32 v3, 3, {v(vL)}')
    A(f'v_add_u32 v3, s6, v3')
    A(f'v_lshlrev_b32 v4, 1, v3')
    A(f'v_mul_u32_u24 v3, 6144, v3')
    A(f'v_and_b32 v5, 7, {v(vL)}')
    A(f'v_lshl_add_u32 v3, v5, 4, v3')
    A(f's_lshl_b32 s6, s4, 7')
    for i in range(4):
        A(f'buffer_load_dwordx4 {v(PW+4*i, 4)}, v3, {srd(rWM)}, s6 offen')
        if i < 3:
            A(f's_add_u32 s6, s6, 49152')
    for i in range(4):
        A(f'global_load_ushort {v(PC+i)}, v4, {s(sC, 2)} offset:{16*i}')


def mod_finish(base, ncg, cg0, PW, PC, ACC, UT, pred):
    lg = ncg.bit_length() - 1
    A(f's_sub_u32 s3, s2, {base}')
    A(f's_and_b32 s4, s3, {ncg-1}')
    A(f's_add_u32 s4, s4, {cg0}')
    A(f's_lshr_b32 s5, s3, {lg}')
    A(f's_mul_i32 s5, s5, 12288')
    A(f's_lshl_b32 s4, s4, 8')
    A(f's_add_u32 s4, s4, s5')
    A(f's_add_u32 s4, s4, {MODP}')
    for i in range(4):
        A(f'v_lshlrev_b32 {v(PC+i)}, 16, {v(PC+i)}')
    for i in range(4):
        A(f'v_mul_f32 {v(UT+i)}, 0xbfb8aa3b, {v(PC+i)}')
    for i in range(4):
        A(f'v_exp_f32 {v(UT+i)}, {v(UT+i)}')
    for i in range(4):
        A(f'v_add_f32 {v(UT+i)}, 1.0, {v(UT+i)}')
    for i in range(4):
        A(f'v_rcp_f32 {v(UT+i)}, {v(UT+i)}')
    for i in range(4):
        A(f'v_mul_f32 {v(PC+i)}, {v(PC+i)}, {v(UT+i)}')
    for i in range(4):
        A(f'v_cvt_pk_bf16_f32 {v(PC+i)}, {v(PC+i)}, {v(PC+i)}')
    for i in range(4):
        A(f'v_and_b32 {v(PC+i)}, {s(sHI)}, {v(PC+i)}')
    for i in range(4):
        for r in range(4):
            A(f'v_lshlrev_b32 {v(UT+2*r)}, 16, {v(PW+4*i+r)}')
            A(f'v_and_b32 {v(UT+2*r+1)}, {s(sHI)}, {v(PW+4*i+r)}')
        for e in range(8):
            if i == 0:
                A(f'v_mul_f32 {v(ACC+e)}, {v(PC)}, {v(UT+e)}')
            else:
                A(f'v_fmac_f32 {v(ACC+e)}, {v(PC+i)}, {v(UT+e)}')
    for e in range(4):
        A(f'v_permlane32_swap_b32 {v(ACC+e)}, {v(ACC+e+4)}')
    for e in range(4):
        A(f'v_add_f32 {v(ACC+e)}, {v(ACC+e)}, {v(ACC+e+4)}')
    for e in range(2):
        A(f'v_permlane16_swap_b32 {v(ACC+e)}, {v(ACC+e+2)}')
    for e in range(2):
        A(f'v_add_f32 {v(ACC+e)}, {v(ACC+e)}, {v(ACC+e+2)}')
    A(f'v_and_b32 v3, 7, {v(vL)}')
    A(f'v_lshlrev_b32 v3, 5, v3')
    A(f'v_lshrrev_b32 v4, 4, {v(vL)}')
    A(f'v_lshl_add_u32 v3, v4, 3, v3')
    A(f's_lshl_b32 s5, {s(sW)}, 8')
    A(f's_add_u32 s5, s5, {pred}')
    A(f'v_add_u32 v3, s5, v3')
    for e in range(2):
        A(f'v_add_f32_dpp {v(ACC+2+e)}, {v(ACC+e)}, {v(ACC+e)} row_ror:8 row_mask:0xf bank_mask:0xf')
    A(f'ds_write_b64 v3, {v(ACC+2, 2)}')
    A(f'v_and_b32 v4, 15, {v(vL)}')
    A(f'v_lshlrev_b32 v4, 4, v4')
    A(f'v_add_u32 v3, {pred}, v4')
    A.wait_all(ds=True)
    barrier()
    sk = A.new('pskip')
    A(f's_cmp_lg_u32 {s(sW)}, 0')
    A(f's_cbranch_scc1 {sk}')
    for i in range(4):
        A(f'ds_read_b128 {v(PW+4*i, 4)}, v3 offset:{256*i}')
    A(f's_movk_i32 s5, 0xff')
    A(f's_lshr_b32 s6, {s(sN)}, 8')
    A(f's_lshr_b32 s7, {s(sN)}, 16')
    A(f's_lshr_b32 s8, {s(sN)}, 24')
    for e, t in enumerate((sN, 6, 7, 8)):
        A(f'v_mov_b32 {v(UT+e)}, {s(t)}')
    A.wait_all(ds=True)
    for e in range(4):
        A(f'v_add_f32 {v(PW+e)}, {v(PW+e)}, {v(PW+4+e)}')
        A(f'v_add_f32 {v(PW+8+e)}, {v(PW+8+e)}, {v(PW+12+e)}')
    for e in range(4):
        A(f'v_add_f32 {v(PW+e)}, {v(PW+e)}, {v(PW+8+e)}')
    for e in range(4):
        A(f'v_bfi_b32 {v(PW+e)}, s5, {v(UT+e)}, {v(PW+e)}')
    A('s_mov_b64 exec, 0xffff')
    A(f'buffer_store_dwordx4 {v(PW, 4)}, v4, {srd(rWS)}, s4 offen sc1')
    A('s_mov_b64 exec, -1')
    A('s_nop 1')
    A.label(sk)


def mod_gather(col0, nset, G, T):
    lp, dn = A.new('mg'), A.new('mgd')
    A(f'v_lshlrev_b32 v3, 4, v0')
    A(f's_mov_b32 s3, 0')
    A(f's_mov_b32 s4, 0x0c0c0400')
    A(f's_mov_b32 s5, 0x05040100')
    for st in range(nset):
        for q in range(4):
            A(f's_mov_b32 {s(6+4*st+q)}, {MODP + q*12288 + (col0 + 1024*st)*4}')
    A.label(lp)
    for st in range(nset):
        for q in range(4):
            A(f'buffer_load_dwordx4 {v(G+16*st+4*q, 4)}, v3, {srd(rWS)}, {s(6+4*st+q)} offen sc1')
    A(f's_add_u32 s3, s3, 1')
    A.wait_all(vm=True)
    for n in range(4 * nset):
        g = G + 4 * n
        A(f'v_perm_b32 {v(T)}, {v(g+1)}, {v(g)}, s4')
        A(f'v_perm_b32 {v(T+1)}, {v(g+3)}, {v(g+2)}, s4')
        A(f'v_perm_b32 {v(T)}, {v(T+1)}, {v(T)}, s5')
        if n == 0:
            A(f'v_xor_b32 {v(T+2)}, {s(sN)}, {v(T)}')
        else:
            A(f'v_xor_b32 {v(T)}, {s(sN)}, {v(T)}')
            A(f'v_or_b32 {v(T+2)}, {v(T+2)}, {v(T)}')
    A(f'v_cmp_ne_u32 vcc, 0, {v(T+2)}')
    A(f's_cmp_lt_u32 s3, {LIMIT}')
    A(f's_cbranch_vccz {dn}')
    A(f's_cbranch_scc1 {lp}')
    A.label(dn)
    A(f's_movk_i32 s4, 0xff00')
    for st in range(nset):
        g = G + 16 * st
        for n in range(16):
            A(f'v_and_b32 {v(g+n)}, s4, {v(g+n)}')
        for e in range(4):
            A(f'v_add_f32 {v(g+e)}, {v(g+e)}, {v(g+4+e)}')
            A(f'v_add_f32 {v(g+8+e)}, {v(g+8+e)}, {v(g+12+e)}')
        for e in range(4):
            A(f'v_add_f32 {v(g+e)}, {v(g+e)}, {v(g+8+e)}')
        A(f'v_cvt_pk_bf16_f32 {v(g)}, {v(g)}, {v(g+1)}')
        A(f'v_cvt_pk_bf16_f32 {v(g+1)}, {v(g+2)}, {v(g+3)}')


def unpack2(dst, src):
    A(f'v_lshlrev_b32 {v(dst)}, 16, {v(src)}')
    A(f'v_and_b32 {v(dst+1)}, {s(sHI)}, {v(src)}')


def add_const_round(g, sadd):
    unpack2(g + 4, g)
    unpack2(g + 6, g + 1)
    for e in range(4):
        A(f'v_add_f32 {v(g+4+e)}, {s(sadd)}, {v(g+4+e)}')
    A(f'v_cvt_pk_bf16_f32 {v(g)}, {v(g+4)}, {v(g+5)}')
    A(f'v_cvt_pk_bf16_f32 {v(g+1)}, {v(g+6)}, {v(g+7)}')


A('s_cmp_ge_u32 s2, 256')
A('s_cbranch_scc1 L_end')
if OPT['stamps']:
    A(f's_memrealtime {s(STAMP0, 2)}')
    nstamp[0] = 1
stamp('start')
if OPT.get('pad'):
    A('s_memrealtime s[100:101]')
A('s_load_dwordx16 s[4:19], s[0:1], 0')
A('s_load_dwordx4 s[20:23], s[0:1], 64')
A('s_load_dwordx2 s[24:25], s[0:1], 80')
A(f'v_and_b32 {v(vL)}, 63, v0')
A(f'v_lshrrev_b32 v3, 6, v0')
A(f'v_lshlrev_b32 {v(vL16)}, 4, {v(vL)}')
A(f'v_readfirstlane_b32 {s(sW)}, v3')
A(f's_and_b32 s26, s2, 7')
A(f's_lshr_b32 s27, s2, 3')
A(f's_and_b32 {s(sHQ)}, s27, 7')
A(f's_and_b32 {s(sJ)}, s27, 15')
A(f's_lshr_b32 s27, s27, 3')
A(f's_lshl_b32 s26, s26, 2')
A(f's_add_u32 {s(sRB)}, s26, s27')
A(f's_lshr_b32 {s(sRB2)}, {s(sRB)}, 1')
A(f's_getreg_b32 {s(sXCC)}, hwreg(HW_REG_XCC_ID, 0, 4)')
A(f's_mov_b32 {s(sHI)}, 0xffff0000')
for r, n in ((rX, 2097152), (rWQ, 1572864), (rWO, 524288), (rW1, 1835008), (rW2, 1835008), (rWM, 3145728), (rWS, 0x10000000), (rOUT, 2097152)):
    A(f's_mov_b32 {s(r+2)}, {n}')
    A(f's_mov_b32 {s(r+3)}, 0x20000')
sk = A.new('cpf')
A(f's_cmp_lg_u32 {s(sW)}, 3')
A(f's_cbranch_scc1 {sk}')
A(f's_cmp_ge_u32 {s(sHQ)}, CODE_CHUNKS')
A(f's_cbranch_scc1 {sk}')
A(f's_getpc_b64 s[70:71]')
A(f's_lshl_b32 s69, {s(sHQ)}, 13')
A(f'v_lshl_add_u32 v3, {v(vL)}, 7, s69')
st = A.cond_begin()
A(f'global_load_dword v15, v3, s[70:71]')
A.cond_end(st)
A.label(sk)
A('s_waitcnt lgkmcnt(0)')
A(f's_load_dword {s(sN)}, {s(sWS, 2)}, {EPOCH}')
for r, p in ((rX, 4), (rWQ, 6), (rWO, 8), (rW1, 12), (rW2, 14), (rWM, 18), (rWS, 24), (rOUT, 20)):
    A(f's_mov_b64 {s(r, 2)}, {s(p, 2)}')

XF, XP, MOD, GA, PW, PC, PACC = 16, 144, 144, 208, 224, 240, 244

sk = A.new('np1')
A('s_cmp_ge_u32 s2, 64')
A(f's_cbranch_scc1 {sk}')
st = A.cond_begin()
mod_issue(0, 16, 0, PW, PC)
A.cond_end(st)
A.label(sk)
tok_p1 = A.vm

A(f'v_lshrrev_b32 v5, 4, {v(vL)}')
A(f'v_and_b32 v6, 15, {v(vL)}')
A(f's_lshl_b32 s3, {s(sRB)}, 6')
A(f's_lshl_b32 s4, {s(sW)}, 4')
A(f's_add_u32 s3, s3, s4')
A(f'v_add_u32 v3, s3, v5')
A(f'v_lshlrev_b32 v3, 10, v3')
A(f'v_lshl_add_u32 v3, v6, 4, v3')
A(f's_and_b32 s8, {s(sHQ)}, 3')
A(f's_lshl_b32 s8, s8, 12')
tok_x = []
for aa in range(4):
    A(f's_xor_b32 s4, s8, {aa << 12}')
    for c in range(4):
        t = A(f'buffer_load_dwordx4 {v(XP+(aa*4+c)*4, 4)}, v3, {srd(rX)}, s4 offen offset:{c*256}')
    tok_x.append(t)
A(f's_lshr_b32 s8, s8, 10')
A(f's_lshl_b32 s9, {s(sW)}, 14')
A(f'v_and_b32 v7, 7, v6')
A(f'v_lshl_add_u32 v8, v6, 8, s9')
for aa in range(4):
    A(f's_xor_b32 s4, s8, {4*aa}')
    A(f'v_or_b32 v4, s4, v5')
    A(f'v_xor_b32 v4, v4, v7')
    A(f'v_lshl_add_u32 {v(11+aa)}, v4, 4, v8')
vHW = 11
vWD = 10
A(f'v_bfe_u32 v4, {v(vL)}, 2, 3')
A(f's_lshl_b32 s4, {s(sW)}, 3')
A(f'v_add_u32 v4, s4, v4')
A(f'v_mul_u32_u24 v4, 3072, v4')
A(f'v_lshrrev_b32 v7, 5, {v(vL)}')
A(f'v_lshl_add_u32 v4, v7, 6, v4')
A(f'v_and_b32 v7, 3, {v(vL)}')
A(f's_and_b32 s4, {s(sW)}, 1')
A(f's_lshl_b32 s4, s4, 1')
A(f'v_xor_b32 v7, s4, v7')
A(f'v_lshl_add_u32 v4, v7, 4, v4')
A(f's_lshl_b32 s4, {s(sHQ)}, 7')
A(f'v_add_u32 {v(vWD)}, s4, v4')


def wq_dma(colbyte, region, ks0, nks):
    A(f's_and_b32 s4, {s(sRB)}, {nks-1}')
    A(f's_lshl_b32 s4, s4, 12')
    A(f's_lshl_b32 s5, {s(sW)}, 10')
    A(f's_add_u32 s5, s5, {region}')
    t = None
    for i in range(nks):
        A(f's_xor_b32 s6, s4, {i << 12}')
        A(f's_add_u32 m0, s5, s6')
        A(f's_mul_i32 s6, s6, 24')
        A(f's_add_u32 s6, s6, {colbyte + ks0*98304}')
        t = A(f'buffer_load_dwordx4 {v(vWD)}, {srd(rWQ)}, s6 offen lds')
    return t


tok_wk = wq_dma(1024, LA, 0, 16)
stamp('issued')

A('s_waitcnt lgkmcnt(0)')
A(f's_add_u32 {s(sN)}, {s(sN)}, 0x9e3779b1')
sk = A.new('np1b')
A('s_cmp_ge_u32 s2, 64')
A(f's_cbranch_scc1 {sk}')
st = A.cond_begin()
A.wait(vm=tok_p1, force=True)
mod_finish(0, 16, 0, PW, PC, PACC, GA, PRED1)
A.cond_end(st)
A.label(sk)
sk = A.new('hello')
A(f's_cmp_lg_u32 {s(sW)}, 1')
A(f's_cbranch_scc1 {sk}')
st = A.cond_begin()
A(f's_andn2_b32 s3, {s(sN)}, 15')
A(f's_or_b32 s3, s3, {s(sXCC)}')
A(f'v_mov_b32 v3, s3')
A(f's_lshl_b32 s3, {s(sRB2)}, 7')
A(f's_lshl_b32 s4, {s(sJ)}, 2')
A(f's_add_u32 s3, s3, s4')
A(f's_add_u32 s3, s3, {HELLO}')
A(f'v_mov_b32 v4, 0')
A('s_mov_b64 exec, 1')
A(f'buffer_store_dword v3, v4, {srd(rWS)}, s3 offen sc1')
A('s_mov_b64 exec, -1')
A.cond_end(st)
A.label(sk)

ST = 224
for aa in range(4):
    A.wait(vm=tok_x[aa])
    for i in range(16):
        unpack2(XF + aa * 32 + 2 * i, XP + aa * 16 + i)
    b = XF + aa * 32
    t0, t1 = ST + 4 * aa, ST + 4 * aa + 2
    A(f'v_pk_add_f32 {v(t0, 2)}, {v(b, 2)}, {v(b+2, 2)}')
    A(f'v_pk_add_f32 {v(t1, 2)}, {v(b+4, 2)}, {v(b+6, 2)}')
    for i in range(4, 16):
        t = t0 if i % 2 == 0 else t1
        A(f'v_pk_add_f32 {v(t, 2)}, {v(t, 2)}, {v(b+2*i, 2)}')
    A(f'v_pk_add_f32 {v(t0, 2)}, {v(t0, 2)}, {v(t1, 2)}')
    A(f'v_add_f32 {v(t0)}, {v(t0)}, {v(t0+1)}')


def row_allreduce():
    for sh in (8, 4, 2, 1):
        for aa in range(4):
            t0 = ST + 4 * aa
            A(f'v_add_f32_dpp {v(t0)}, {v(t0)}, {v(t0)} row_ror:{sh} row_mask:0xf bank_mask:0xf')


row_allreduce()
for aa in range(4):
    A(f'v_mul_f32 {v(240+2*aa)}, 0xbb000000, {v(ST+4*aa)}')
for aa in range(4):
    b = XF + aa * 32
    t0, t1 = ST + 4 * aa, ST + 4 * aa + 2
    for i in range(16):
        A(f'v_pk_add_f32 {v(b+2*i, 2)}, {v(b+2*i, 2)}, {v(240+2*aa, 2)} op_sel_hi:[1,0]')
    for i in range(16):
        t = t0 if i % 2 == 0 else t1
        if i < 2:
            A(f'v_pk_mul_f32 {v(t, 2)}, {v(b+2*i, 2)}, {v(b+2*i, 2)}')
        else:
            A(f'v_pk_fma_f32 {v(t, 2)}, {v(b+2*i, 2)}, {v(b+2*i, 2)}, {v(t, 2)}')
    A(f'v_pk_add_f32 {v(t0, 2)}, {v(t0, 2)}, {v(t1, 2)}')
    A(f'v_add_f32 {v(t0)}, {v(t0)}, {v(t0+1)}')
row_allreduce()
A('s_mov_b32 s3, 0x3b000000')
A('v_mov_b32 v3, 0x3727c5ac')
for aa in range(4):
    A(f'v_fma_f32 {v(240+2*aa)}, {v(ST+4*aa)}, s3, v3')
for aa in range(4):
    A(f'v_rsq_f32 {v(240+2*aa)}, {v(240+2*aa)}')
for aa in range(4):
    b = XF + aa * 32
    for i in range(16):
        A(f'v_pk_mul_f32 {v(b+2*i, 2)}, {v(b+2*i, 2)}, {v(240+2*aa, 2)} op_sel_hi:[1,0]')
stamp('ln_pre')

vWR = 9
A(f'v_lshrrev_b32 v4, 4, {v(vL)}')
A(f'v_lshlrev_b32 v3, 10, v4')
A(f'v_xor_b32 v4, {s(sW)}, v4')
A(f'v_and_b32 v4, 1, v4')
A(f'v_lshl_add_u32 v3, v4, 5, v3')
A(f'v_bfe_u32 v4, {v(vL)}, 2, 2')
A(f'v_lshl_add_u32 v3, v4, 6, v3')
A(f'v_and_b32 v4, 3, {v(vL)}')
A(f'v_lshl_add_u32 v3, v4, 3, v3')
A(f's_lshr_b32 s3, {s(sW)}, 1')
A(f's_lshl_b32 s3, s3, 9')
A(f'v_add_u32 {v(vWR)}, s3, v3')
A.wait(vm=tok_wk)
barrier()
tok_wv = wq_dma(2048, LB, 0, 16)
for ks in range(16):
    for rd in range(2):
        A(f'ds_read_b64_tr_b16 {a(4*ks+2*rd, 2)}, {v(vWR)} offset:{ks*4096+rd*256}')
stamp('wk')

mod_gather(0, 1, GA, 4)
A(f's_cmp_ge_u32 {s(sW)}, 2')
A(f's_cselect_b32 s3, 1.0, 0')
add_const_round(GA, 3)
unpack2(GA + 4, GA)
unpack2(GA + 6, GA + 1)
A(f'v_add_u32 v3, {MODT}, v3')
A(f'ds_write_b128 v3, {v(GA+4, 4)}')
A(f'v_and_b32 v4, 15, {v(vL)}')
A(f'v_lshlrev_b32 v4, 5, v4')
A(f'v_add_u32 v4, {MODT}, v4')
A.wait_all(ds=True)
barrier()
stamp('mod')
tm = []
for c in range(4):
    for arr in range(2):
        for hlf in range(2):
            t = A(f'ds_read_b128 {v(MOD+arr*32+c*8+hlf*4, 4)}, v4 offset:{arr*2048+c*512+hlf*16}')
    tm.append(t)
for c in range(4):
    A.wait(ds=tm[c])
    for aa in range(4):
        b = XF + aa * 32 + c * 8
        for i in range(4):
            A(f'v_pk_fma_f32 {v(b+2*i, 2)}, {v(b+2*i, 2)}, {v(MOD+32+c*8+2*i, 2)}, {v(MOD+c*8+2*i, 2)}')
        for i in range(4):
            A(f'v_cvt_pk_bf16_f32 {v(b+i)}, {v(b+2*i)}, {v(b+2*i+1)}')
        A(f'ds_write_b128 {v(vHW+aa)}, {v(b, 4)} offset:{c*4096}')
A(f'v_lshrrev_b32 v4, 4, {v(vL)}')
A(f'v_and_b32 v5, 15, {v(vL)}')
A(f'v_xor_b32 v5, v5, v4')
A(f'v_lshlrev_b32 v5, 4, v5')
A.wait_all(ds=True)
A(f'v_lshl_add_u32 v11, v4, 8, v5')
A(f'v_xor_b32 v12, 64, v11')
A(f'v_add_u32 v13, {LB}, {v(vWR)}')
A(f'v_add_u32 v14, {LC}, {v(vWR)}')
A.wait(vm=tok_wv)
barrier()
stamp('h')
tok_wq = wq_dma(0, LC, 0, 8)

AK, AV, AQ, WB = 144, 160, 176, 48


def hreg(u, ks):
    return a(64 + ks * 16 + u * 4, 4) if ks < 12 else v(80 + (ks - 12) * 16 + u * 4, 4)


def mm16(d, x, y, first):
    A(f'v_mfma_f32_16x16x32_bf16 {v(d, 4)}, {x}, {y}, {"0" if first else v(d, 4)}')


def kv_reads(ks):
    l = [f'ds_read_b128 {hreg(u, ks)}, {v(11 + ks % 2)} offset:{u*16384+ks*1024}' for u in range(4)]
    wb = WB + 4 * (ks % 4)
    w = [f'ds_read_b64_tr_b16 {v(wb+2*rd, 2)}, v13 offset:{ks*4096+rd*256}' for rd in range(2)]
    return [l[0], w[0], w[1], l[1], l[2], l[3]]


LOOK = 2
tk = {}
for ks in range(LOOK):
    for t in kv_reads(ks):
        tk[ks] = A(t)
for ks in range(16):
    nxt = kv_reads(ks + LOOK) if ks + LOOK < 16 else []
    A.wait(ds=tk[ks])
    if ks == 8:
        barrier()
        tok_wq = wq_dma(0, LB, 8, 8)
    wb = v(WB + 4 * (ks % 4), 4)
    n = 0
    for u in range(4):
        mm16(AK + 4 * u, a(4 * ks, 4), hreg(u, ks), ks == 0)
        if n < len(nxt):
            tk[ks + LOOK] = A(nxt[n])
            n += 1
        mm16(AV + 4 * u, hreg(u, ks), wb, ks == 0)
        if n < len(nxt):
            tk[ks + LOOK] = A(nxt[n])
            n += 1
stamp('kv')

QF, KO, VO, KH, VH, SB, PB, MD, MO, OA = 16, 24, 32, 48, 80, 144, 176, 192, 208, 224
A(f's_lshl_b32 s14, {s(sHQ)}, 2')
A(f's_add_u32 s14, s14, {s(sW)}')
A(f's_lshl_b32 s14, s14, 17')
A(f's_add_u32 s14, s14, {KVB}')
A(f's_lshl_b32 s3, {s(sRB)}, 12')
A(f's_add_u32 s15, s14, s3')
A(f'v_lshrrev_b32 v7, 5, {v(vL)}')
A(f'v_and_b32 v6, 15, {v(vL)}')
A(f'v_lshl_add_u32 v7, v7, 4, v6')
A(f'v_lshlrev_b32 v7, 4, v7')
A(f's_mov_b32 s13, 0x3f803f80')
for T in range(2):
    for g2 in range(2):
        for r in range(2):
            A(f'v_mov_b32 {v(VO+8*T+4*g2+2+r)}, s13')


def pack_swap16(dst, acc):
    for u in range(2):
        for r in range(2):
            A(f'v_cvt_pk_bf16_f32 {v(dst+2*u+r)}, {v(acc+4*u+2*r)}, {v(acc+4*u+2*r+1)}')


for T in range(2):
    pack_swap16(KO + 4 * T, AK + 8 * T)
for u in range(4):
    for r in range(2):
        A(f'v_cvt_pk_bf16_f32 {v(VO+4*u+r)}, {v(AV+4*u+2*r)}, {v(AV+4*u+2*r+1)}')
for T in range(2):
    for r in range(2):
        A(f'v_permlane16_swap_b32 {v(KO+4*T+r)}, {v(KO+4*T+2+r)}')
for u in range(4):
    for r in range(2):
        A(f'v_permlane16_swap_b32 {v(VO+4*u+r)}, {v(VO+4*u+2+r)}')
for T in range(2):
    A(f'buffer_store_dwordx4 {v(KO+4*T, 4)}, {v(vL16)}, {srd(rWS)}, s15 offen offset:{T*2048} sc1')
for u in range(4):
    for r in range(2):
        A(f'v_permlane32_swap_b32 {v(VO+4*u+r)}, {v(VO+4*u+2+r)}')
A('s_mov_b32 s4, 0xffff')
A('s_mov_b32 s5, 0xffff')
A('s_mov_b64 exec, s[4:5]')
for u in range(4):
    tok_kv = A(f'buffer_store_dwordx4 {v(VO+4*u, 4)}, v7, {srd(rWS)}, s15 offen offset:{(u//2)*2048+1024+(u%2)*512} sc1')
A('s_mov_b64 exec, -1')
A.wait(vm=tok_wq)
barrier()

sk = A.new('np2')
A('s_sub_u32 s3, s2, 64')
A('s_cmp_ge_u32 s3, 128')
A(f's_cbranch_scc1 {sk}')
st = A.cond_begin()
mod_issue(64, 32, 16, PW, PC)
A.cond_end(st)
A.label(sk)
tok_p2 = A.vm
A(f'v_bfe_u32 v4, {v(vL)}, 2, 3')
A(f'v_lshlrev_b32 v4, 10, v4')
A(f'v_lshrrev_b32 v5, 5, {v(vL)}')
A(f'v_lshl_add_u32 v4, v5, 6, v4')
A(f'v_and_b32 v5, 3, {v(vL)}')
A(f'v_lshl_add_u32 v4, v5, 4, v4')
A(f's_lshl_b32 s4, {s(sHQ)}, 7')
A(f'v_add_u32 {v(vWD)}, s4, v4')
A(f's_and_b32 s4, {s(sRB)}, 15')
A(f's_lshl_b32 s4, s4, 10')
A(f's_lshl_b32 s5, {s(sW)}, 14')
for i in range(16):
    A(f's_xor_b32 s6, s4, {i << 10}')
    A(f's_add_u32 s6, s6, s5')
    A(f's_mov_b32 m0, s6')
    A(f's_lshl_b32 s6, s6, 3')
    A(f'buffer_load_dwordx4 {v(vWD)}, {srd(rWO)}, s6 offen lds')
A(f'v_lshrrev_b32 v4, 2, {v(vL)}')
A(f'v_lshlrev_b32 v4, 10, v4')
A(f'v_lshl_add_u32 v4, v5, 4, v4')
A(f's_lshr_b32 s4, {s(sW)}, 1')
A(f's_lshl_b32 s5, {s(sRB)}, 1')
A(f's_add_u32 s4, s4, s5')
A(f's_lshl_b32 s4, s4, 15')
A(f's_lshl_b32 s5, {s(sHQ)}, 1')
A(f's_and_b32 s6, {s(sW)}, 1')
A(f's_add_u32 s5, s5, s6')
A(f's_lshl_b32 s5, s5, 6')
A(f's_add_u32 s69, s4, s5')
A(f's_lshl_b32 s5, {s(sW)}, 11')
A(f's_add_u32 m0, s5, {XST}')
A(f's_add_u32 s4, s69, {16384-1024}')
A(f'buffer_load_dwordx4 v4, {srd(rX)}, s69 offen lds')
tok_wo = A(f'buffer_load_dwordx4 v4, {srd(rX)}, s4 offen offset:1024 lds')


def q_reads(ks):
    wb = WB + 4 * (ks % 4)
    base, off = (14, ks * 4096) if ks < 8 else (13, (ks - 8) * 4096)
    return [f'ds_read_b64_tr_b16 {v(wb+2*rd, 2)}, {v(base)} offset:{off+rd*256}' for rd in range(2)]


LOOK = 3
tk = {}
for ks in range(LOOK):
    for t in q_reads(ks):
        tk[ks] = A(t)
for ks in range(16):
    nxt = q_reads(ks + LOOK) if ks + LOOK < 16 else []
    A.wait(ds=tk[ks])
    for u in range(4):
        mm16(AQ + 4 * u, v(WB + 4 * (ks % 4), 4), hreg(u, ks), ks == 0)
        if u >= 2 and nxt:
            tk[ks + LOOK] = A(nxt[u - 2])
    if ks == 7:
        A.wait(vm=tok_kv)
        A(f's_lshl_b32 s3, {s(sRB)}, 3')
        A(f's_add_u32 s3, s3, {s(sHQ)}')
        A(f's_lshl_b32 s3, s3, 2')
        A(f's_add_u32 s3, s3, {s(sW)}')
        A(f's_lshl_b32 s3, s3, 7')
        A(f's_add_u32 s11, s3, {FKV}')
        A(f'v_mov_b32 v3, {s(sN)}')
        A(f'v_mov_b32 v4, 0')
        A('s_mov_b64 exec, 1')
        A(f'buffer_store_dword v3, v4, {srd(rWS)}, s11 offen sc1')
        A('s_mov_b64 exec, -1')
stamp('q')
A(f'v_and_b32 v4, 31, {v(vL)}')
A(f'v_lshrrev_b32 v5, 5, {v(vL)}')
A(f'v_lshlrev_b32 v5, 2, v5')
A(f'v_sub_u32 v4, v4, v5')
A(f'v_mov_b32 v5, 0xf149f2ca')
A(f'v_mov_b32 v6, 0')
for i in range(16):
    A(f'v_cmp_le_i32 vcc, {8*(i//4) + i % 4}, v4')
    A(f'v_mov_b32 {v(VH+4*i)}, s13')
    A(f'v_mov_b32 {v(VH+4*i+1)}, s13')
    A(f'v_cndmask_b32 {v(MD+i)}, v5, v6, vcc')
    A(f'v_cndmask_b32 {v(MO+i)}, v6, v5, vcc')
    A(f'v_mov_b32 {v(VH+4*i+2)}, s13')
    A(f'v_mov_b32 {v(VH+4*i+3)}, s13')
for i in range(16):
    A(f'v_mul_f32 {v(AQ+i)}, 0x3eb8aa3b, {v(AQ+i)}')
for T in range(2):
    pack_swap16(QF + 4 * T, AQ + 8 * T)
for T in range(2):
    for r in range(2):
        A(f'v_permlane16_swap_b32 {v(QF+4*T+r)}, {v(QF+4*T+2+r)}')
sk = A.new('np2b')
A('s_sub_u32 s3, s2, 64')
A('s_cmp_ge_u32 s3, 128')
A(f's_cbranch_scc1 {sk}')
st = A.cond_begin()
A.wait(vm=tok_p2, force=True)
mod_finish(64, 32, 16, PW, PC, PACC, SB, PRED2)
A.cond_end(st)
A.label(sk)


def mm32(X, d, x, y, c):
    X(f'v_mfma_f32_32x32x16_bf16 {d}, {x}, {y}, {c}')


def units_of(blk):
    if blk == 0:
        return [(0, KO, VO, MD), (1, KO, VO, None), (1, KO + 4, VO + 8, MD)]
    t0 = 8 - 2 * blk
    r = []
    for t in (t0 + 1, t0):
        for q in (0, 1):
            if t < q:
                continue
            r.append((q, KH + 4 * t, VH + 8 * t, MO if t == q else None))
    return r


def s_mm(X, un, buf):
    q, k, _, m = un
    mm32(X, v(SB + 16 * buf, 16), v(k, 4), v(QF + 4 * q, 4), v(m, 16) if m else '0')


def attn_units(X, uns, first, sub=None, bg=None):
    s_mm(X, uns[0], 0)
    for n, un in enumerate(uns):
        q, _, vr, _ = un
        sb = SB + 16 * (n % 2)
        pb = PB + 8 * (n % 2)
        o = v(OA + 16 * q, 16)
        if n + 1 < len(uns):
            s_mm(X, uns[n + 1], (n + 1) % 2)
            if bg:
                bg()
        for hf in range(2):
            b = sb + 8 * hf
            if sub:
                for i in range(8):
                    X(f'v_sub_f32 {v(b+i)}, {v(b+i)}, {v(sub+q)}')
            seq = [('e', 0), ('e', 1), ('e', 2), ('c', 0), ('e', 3), ('e', 4), ('c', 1), ('e', 5), ('e', 6), ('c', 2), ('e', 7)]
            for kind, i in seq:
                if kind == 'e':
                    X(f'v_exp_f32 {v(b+i)}, {v(b+i)}')
                else:
                    X(f'v_cvt_pk_bf16_f32 {v(pb+4*hf+i)}, {v(b+2*i)}, {v(b+2*i+1)}')
                if hf == 1 and (kind, i) == ('e', 1):
                    mm32(X, o, v(vr, 4), v(pb, 4), '0' if q in first else o)
                    first.discard(q)
                    if bg:
                        bg()
            X(f'v_cvt_pk_bf16_f32 {v(pb+4*hf+3)}, {v(b+6)}, {v(b+7)}')
        mm32(X, o, v(vr + 4, 4), v(pb + 4, 4), o)
        if bg:
            bg()


attn_units(A, units_of(0), {0, 1})
stamp('own')
A(f'v_bfe_u32 v4, {v(vL)}, 2, 2')
A(f'v_lshlrev_b32 v3, 6, v4')
A(f'v_bfe_u32 v4, {v(vL)}, 4, 1')
A(f'v_lshl_add_u32 v3, v4, 5, v3')
A(f'v_and_b32 v4, 3, {v(vL)}')
A(f'v_lshl_add_u32 v3, v4, 3, v3')
A(f'v_lshrrev_b32 v5, 5, {v(vL)}')
A(f's_and_b32 s3, {s(sW)}, 1')
A(f's_lshl_b32 s3, s3, 9')
A(f'v_add_u32 v3, s3, v3')
A(f's_mul_i32 s4, {s(sW)}, {RING}')
A(f's_add_u32 s4, s4, {SCR}')
A(f'v_lshl_add_u32 v8, v5, 10, v3')
A(f'v_add_u32 v8, s4, v8')
A(f'v_xor_b32 v9, 512, v8')
A(f's_lshl_b32 s4, {s(sW)}, 14')
A(f'v_lshl_add_u32 v3, v5, 8, v3')
A(f'v_add_u32 v3, s4, v3')
A(f'v_xor_b32 v4, 512, v3')
A(f'v_and_b32 v6, 31, {v(vL)}')
A(f'v_lshlrev_b32 v6, 6, v6')
A(f'v_lshl_add_u32 v6, v5, 3, v6')
A(f's_lshl_b32 s4, {s(sW)}, 11')
A(f's_add_u32 s4, s4, {XST}')
A(f'v_add_u32 v6, s4, v6')
A.wait(vm=tok_wo)
for i in range(8):
    for fi in range(2):
        for rd in range(2):
            A(f'ds_read_b64_tr_b16 {a(fi*32+4*i+2*rd, 2)}, {v(3+fi)} offset:{i*2048+rd*1024}')
for q in range(4):
    A(f'ds_read_b64 {a(64+2*q, 2)}, v6 offset:{16*q}')
A.wait_all(ds=True)
barrier()
W1A = [3, 4, 5, 6, 11, 12, 13]
for i in range(7):
    A(f'v_add_u32 v14, {64*i}, {v(vL)}')
    A(f'v_mul_u32_u24 v15, 4682, v14')
    A(f'v_lshrrev_b32 v15, 16, v15')
    A(f'v_lshlrev_b32 v14, 4, v14')
    A(f'v_mul_u32_u24 v15, {3584-224}, v15')
    A(f'v_add_u32 {v(W1A[i])}, v14, v15')
for d in range(1, 5):
    A(f's_cmp_ge_u32 {s(sRB)}, {d}')
    A(f's_cselect_b32 s3, {d*4096}, 0')
    A(f's_sub_u32 {s(3+d)}, s11, s3')
lp, dn = A.new('kvp'), A.new('kvd')
A('s_mov_b32 s3, 0')
A.label(lp)
for d in range(4):
    A(f's_load_dword {s((8, 9, 10, 26)[d])}, {s(sWS, 2)}, {s(4+d)} glc')
A('s_add_u32 s3, s3, 1')
A('s_waitcnt lgkmcnt(0)')
A(f's_xor_b32 s8, s8, {s(sN)}')
for r in (9, 10, 26):
    A(f's_xor_b32 {s(r)}, {s(r)}, {s(sN)}')
    A(f's_or_b32 s8, s8, {s(r)}')
A(f's_cbranch_scc0 {dn}')
A(f's_cmp_lt_u32 s3, {LIMIT}')
A(f's_cbranch_scc1 {lp}')
A.label(dn)
stamp('kvflag')
tok_h = {}
for d in range(1, 5):
    A(f's_cmp_ge_u32 {s(sRB)}, {d}')
    A(f's_cselect_b32 s3, {d*4096}, 0')
    A(f's_sub_u32 s3, s15, s3')
    t0 = 8 - 2 * d
    for T in range(2):
        A(f'buffer_load_dwordx4 {v(KH+4*(t0+T), 4)}, {v(vL16)}, {srd(rWS)}, s3 offen offset:{T*2048} sc1')
    A('s_mov_b32 exec_lo, 0xffff')
    A('s_mov_b32 exec_hi, 0xffff')
    for u in range(4):
        tok_h[d] = A(f'buffer_load_dwordx4 {v(VH+8*t0+4*u, 4)}, v7, {srd(rWS)}, s3 offen offset:{(u//2)*2048+1024+(u%2)*512} sc1')
    A('s_mov_b64 exec, -1')
A(f's_mul_i32 s8, {s(sJ)}, 224')
for gi in range(4):
    A(f's_lshl_b32 s3, {s(sW)}, 2')
    A(f's_add_u32 s3, s3, {s(sRB2)}')
    A(f's_add_u32 s3, s3, {gi}')
    A(f's_and_b32 s3, s3, 15')
    A(f's_mul_i32 s4, s3, 7168')
    A(f's_mul_i32 s5, s3, 114688')
    A(f's_add_u32 s5, s5, s8')
    for i in range(7):
        A(f's_add_u32 m0, s4, {1024*i}')
        A('s_nop 0')
        tok_w1 = A(f'buffer_load_dwordx4 {v(W1A[i])}, {srd(rW1)}, s5 offen lds')
att_end = A.new('attend')
for d in range(1, 5):
    A(f's_cmp_lt_u32 {s(sRB)}, {d}')
    A(f's_cbranch_scc1 {att_end}')
    st = A.cond_begin()
    A.wait(vm=tok_h[d])
    attn_units(A, units_of(d), set())
    A.cond_end(st)
A('s_nop 7')
A.label(att_end)
A('s_nop 7')
A('s_nop 1')
redo, fin = A.new('redo'), A.new('attfin')
A(f'v_max_f32 v14, {v(OA+8)}, {v(OA+24)}')
A(f'v_min_f32 v15, {v(OA+8)}, {v(OA+24)}')
A(f's_mov_b32 s3, {"0" if OPT["forcemax"] else "0x67800000"}')
A(f's_mov_b32 s6, 0x17800000')
A(f'v_cmp_nge_f32 vcc, s3, v14')
A(f'v_cmp_nle_f32 s[4:5], s6, v15')
A(f'v_cmp_u_f32 s[8:9], {v(OA+8)}, {v(OA+24)}')
A('s_or_b64 vcc, vcc, s[4:5]')
A('s_or_b64 vcc, vcc, s[8:9]')
A(f's_cbranch_vccnz {redo}')
A.label(fin)
C = COLD
C.label(redo)
C('s_waitcnt vmcnt(0)')
C(f'v_mov_b32 v14, 0xff7fffff')
C(f'v_mov_b32 v15, 0xff7fffff')
mx_end, p2_end = C.new('mxend'), C.new('p2end')
for d in range(5):
    if d:
        C(f's_cmp_lt_u32 {s(sRB)}, {d}')
        C(f's_cbranch_scc1 {mx_end}')
    for un in units_of(d):
        s_mm(C, un, 0)
        for i in range(0, 16, 2):
            C(f'v_max3_f32 {v(14+un[0])}, {v(14+un[0])}, {v(SB+i)}, {v(SB+i+1)}')
C.label(mx_end)
for q in range(2):
    C(f'v_mov_b32 {v(SB)}, {v(14+q)}')
    C(f'v_permlane32_swap_b32 {v(SB)}, {v(14+q)}')
    C(f'v_max_f32 {v(14+q)}, {v(SB)}, {v(14+q)}')
fs = {0, 1}
for d in range(5):
    if d:
        C(f's_cmp_lt_u32 {s(sRB)}, {d}')
        C(f's_cbranch_scc1 {p2_end}')
    attn_units(C, units_of(d), fs, sub=14)
C('s_nop 7')
C.label(p2_end)
C('s_nop 7')
C('s_nop 7')
C(f's_branch {fin}')
for q in range(2):
    A(f'v_rcp_f32 {v(OA+16*q+8)}, {v(OA+16*q+8)}')
A(f's_lshl_b32 s3, {s(sRB)}, 6')
A(f's_lshl_b32 s4, {s(sHQ)}, 2')
A(f's_add_u32 s3, s3, s4')
A(f's_add_u32 s3, s3, {s(sW)}')
A(f's_lshl_b32 s3, s3, 10')
A(f's_add_u32 s4, s3, {OBUF}')
A(f's_add_u32 s5, s3, {OBUF+32768}')
for q in range(2):
    for i in range(8):
        A(f'v_mul_f32 {v(OA+16*q+i)}, {v(OA+16*q+i)}, {v(OA+16*q+8)}')
    for i in range(4):
        A(f'v_cvt_pk_bf16_f32 {v(OA+16*q+i)}, {v(OA+16*q+2*i)}, {v(OA+16*q+2*i+1)}')
A(f'v_lshlrev_b32 v14, 2, {v(vL)}')
A(f's_lshl_b32 s6, {s(sRB2)}, 7')
A(f's_add_u32 s6, s6, {HELLO}')
A(f's_andn2_b32 s7, {s(sN)}, 15')
A(f's_or_b32 s7, s7, {s(sXCC)}')
A('s_mov_b64 exec, 0xffff')
A(f'buffer_load_dword v15, v14, {srd(rWS)}, s6 offen sc1')
A.wait_all(vm=True)
A(f'v_cmp_ne_u32 vcc, s7, v15')
A('s_mov_b64 exec, -1')
A(f's_cmp_eq_u64 vcc, 0')
A(f's_cselect_b32 {s(sFAST)}, 1, 0')
stamp('attn')
tok_o = handoff([f'buffer_store_dwordx4 {v(OA+16*q, 4)}, {v(vL16)}, {srd(rWS)}, {s(4+q)} offen @' for q in range(2)])
A(f's_lshl_b32 s3, {s(sRB)}, 9')
A(f's_lshr_b32 s4, {s(sHQ)}, 1')
A(f's_lshl_b32 s4, s4, 7')
A(f's_add_u32 s4, s4, s3')
A(f's_and_b32 s5, {s(sHQ)}, 1')
A(f's_lshl_b32 s5, s5, 2')
A(f's_add_u32 s5, s5, {s(sW)}')
A(f's_lshl_b32 s5, s5, 2')
A(f's_add_u32 s4, s4, s5')
A(f's_add_u32 s4, s4, {FO}')
A.wait(vm=tok_o)
setflag('s4')

G2 = 16
mod_gather(1024, 2, G2, 4)
A(f's_cmp_lt_u32 {s(sW)}, 2')
A(f's_cselect_b32 s3, 1.0, 0')
add_const_round(G2 + 16, 3)
A(f'v_lshlrev_b32 v3, 3, v0')
A(f'v_add_u32 v3, {T_MOD2}, v3')
A(f'ds_write_b64 v3, {v(G2, 2)}')
A(f'ds_write_b64 v3, {v(G2+16, 2)} offset:2048')
A(f'v_lshrrev_b32 v4, 5, {v(vL)}')
A(f'v_lshlrev_b32 v4, 4, v4')
A(f'v_bfe_u32 v5, {v(vL)}, 2, 3')
A(f'v_add_u32 v4, v4, v5')
A(f'v_mul_u32_u24 v4, 224, v4')
A(f'v_and_b32 v5, 3, {v(vL)}')
A(f'v_lshl_add_u32 v11, v5, 3, v4')
A(f'v_add_u32 v12, {8*7168}, v11')
A.wait_all(vm=True, ds=True)
barrier()
CG, CS, GB, X1, CB = 208, 224, 240, 184, 248
A(f'v_lshrrev_b32 v4, 5, {v(vL)}')
A(f'v_lshlrev_b32 v4, 3, v4')
A(f's_and_b32 s3, s69, 1023')
A(f's_add_u32 s3, s3, {T_MOD2}')
A(f'v_add_u32 v4, s3, v4')
for q in range(4):
    A(f'ds_read_b64 {v(16+2*q, 2)}, v4 offset:{16*q}')
    A(f'ds_read_b64 {v(24+2*q, 2)}, v4 offset:{2048+16*q}')
    A(f'ds_read_b64 {v(GB+2*q, 2)}, v4 offset:{3072+16*q}')
A(f'v_and_b32 v4, 1, {v(vL)}')
A(f'v_lshlrev_b32 v4, 10, v4')
A(f'v_lshrrev_b32 v5, 5, {v(vL)}')
A(f'v_lshl_add_u32 v4, v5, 5, v4')
A(f'v_bfe_u32 v5, {v(vL)}, 4, 1')
A(f'v_lshl_add_u32 v4, v5, 3, v4')
A(f'v_add_u32 v4, {T_MOD2+1024}, v4')
A(f's_add_u32 s3, {s(sW)}, 4')
A(f's_min_u32 s3, s3, 6')
A(f's_lshl_b32 s4, {s(sW)}, 5')
A(f's_lshl_b32 s5, s3, 5')
A(f'v_add_u32 v5, s4, v11')
A(f'v_add_u32 v6, s5, v11')
A(f'v_add_u32 v13, s4, v12')
A(f'v_add_u32 v14, s5, v12')
A.wait_all(ds=True)
for i in range(8):
    unpack2(CG + 2 * i, 16 + i)
    unpack2(CS + 2 * i, 24 + i)
for hb in range(4):
    for k4 in range(4):
        ks = hb * 4 + k4
        b = 32 + k4 * 12
        A(f'ds_read_b64 {v(b, 2)}, v4 offset:{ks*64}')
        A(f'ds_read_b64 {v(b+2, 2)}, v4 offset:{ks*64+16}')
        for t in range(2):
            base = (5, 6)[t] if ks < 8 else (13, 14)[t]
            for rd in range(2):
                A(f'ds_read_b64_tr_b16 {v(b+4+4*t+2*rd, 2)}, {v(base)} offset:{(ks%8)*7168+rd*1792}')
    A.wait_all(ds=True)
    for k4 in range(4):
        b = 32 + k4 * 12
        for t in range(2):
            mm16(16 + 4 * t, v(b + 4 + 4 * t, 4), v(b, 4), hb == 0 and k4 == 0)
A(f'v_and_b32 v4, 1, {v(vL)}')
A(f'v_lshlrev_b32 v4, 6, v4')
A(f'v_lshrrev_b32 v5, 4, {v(vL)}')
A(f'v_lshl_add_u32 v4, v5, 4, v4')
A(f's_lshl_b32 s4, {s(sW)}, 7')
A(f's_lshl_b32 s5, s3, 7')
A(f's_add_u32 s4, s4, {T_CB}')
A(f's_add_u32 s5, s5, {T_CB}')
A(f'v_add_u32 v6, s4, v4')
A(f'v_add_u32 v4, s5, v4')
A(f'ds_write_b128 v6, {v(16, 4)}')
A(f'ds_write_b128 v4, {v(20, 4)}')
A(f'v_and_b32 v4, 15, {v(vL)}')
A(f'v_lshlrev_b32 v4, 6, v4')
A(f'v_lshl_add_u32 v4, v5, 4, v4')
A(f'v_add_u32 v4, {T_CB}, v4')
A.wait_all(ds=True)
barrier()
A(f'ds_read_b128 {v(CB, 4)}, v4')
for i in range(8):
    A(f'v_accvgpr_read_b32 {v(16+i)}, {a(64+i)}')
for i in range(8):
    unpack2(X1 + 2 * i, 16 + i)
A.wait_all(ds=True)
barrier()
stamp('prep')

OB, ACC = 16, 80
A(f'v_lshlrev_b32 v14, 2, {v(vL)}')
A(f's_lshl_b32 s4, {s(sRB)}, 2')
A(f's_add_u32 s4, s4, {s(sW)}')
A(f's_lshl_b32 s4, s4, 7')
A(f's_add_u32 s4, s4, {FO}')
A(f's_lshr_b32 s5, {s(sW)}, 1')
A(f's_lshl_b32 s6, {s(sRB)}, 1')
A(f's_add_u32 s13, s5, s6')
A(f's_lshl_b32 s5, s13, 15')
A(f's_lshl_b32 s6, {s(sW)}, 13')
A(f's_add_u32 s5, s5, s6')
A(f's_xor_b32 s7, s5, 32768')
A(f's_add_u32 s5, s5, {OBUF}')
A(f's_add_u32 s6, s5, 4096')
A(f's_add_u32 s7, s7, {OBUF}')
A(f's_add_u32 s8, s7, 4096')
vpoll(14, 8, 's4', 15)
tk = {}
for ti in (1, 0):
    for i in range(8):
        tk[ti, i] = A(f'buffer_load_dwordx4 {v(OB+32*ti+4*i, 4)}, {v(vL16)}, {srd(rWS)}, {s(5+2*ti+i//4)} offen offset:{(i%4)*1024} sc1')


def reduce_addrs():
    for aa in range(1, 4):
        A(f's_xor_b32 s3, {s(sW)}, {aa}')
        A(f's_mul_i32 s3, s3, 12288')
        A(f's_add_u32 s3, s3, {SCR + (aa-1)*4096}')
        A(f'v_add_u32 {v(2+aa)}, s3, {v(vL16)}')
    A(f's_mul_i32 s3, {s(sW)}, 12288')
    A(f's_add_u32 s3, s3, {SCR}')
    A(f'v_add_u32 v6, s3, {v(vL16)}')


def reduce_write(aa):
    for r in range(4):
        A(f'ds_write_b128 {v(2+aa)}, {v(ACC+16*aa+4*r, 4)} offset:{r*1024}')


def reduce_read():
    A.wait_all(ds=True)
    barrier()
    t = {}
    for r in range(4):
        for p in range(3):
            t[r] = A(f'ds_read_b128 {v(ACC+16+16*p+4*r, 4)}, v6 offset:{p*4096+r*1024}')
    for r in range(4):
        A.wait(ds=t[r])
        for h in range(2):
            b = ACC + 4 * r + 2 * h
            A(f'v_pk_add_f32 {v(b, 2)}, {v(b, 2)}, {v(b+16, 2)}')
            A(f'v_pk_add_f32 {v(b+32, 2)}, {v(b+32, 2)}, {v(b+48, 2)}')
        for h in range(2):
            b = ACC + 4 * r + 2 * h
            A(f'v_pk_add_f32 {v(b, 2)}, {v(b, 2)}, {v(b+32, 2)}')


reduce_addrs()
for ti in (1, 0):
    for i in range(8):
        A.wait(vm=tk[ti, i])
        for fi in (1, 0):
            d = v(ACC + 32 * ti + 16 * fi, 16)
            mm32(A, d, a(32 * fi + 4 * i, 4), v(OB + 32 * ti + 4 * i, 4), '0' if i == 0 else d)
        if ti == 0 and i == 2:
            reduce_write(3)
        if ti == 0 and i == 4:
            reduce_write(2)
reduce_write(1)
reduce_read()
for i in range(8):
    A(f'v_pk_fma_f32 {v(X1+2*i, 2)}, {v(ACC+2*i, 2)}, {v(CG+2*i, 2)}, {v(X1+2*i, 2)}')
for i in range(8):
    A(f'v_pk_mul_f32 {v(CS+2*i, 2)}, {v(CS+2*i, 2)}, {v(X1+2*i, 2)}')
for i in range(8):
    A(f'v_cvt_pk_bf16_f32 {v(CS+i)}, {v(CS+2*i)}, {v(CS+2*i+1)}')
A(f'v_bfe_u32 v4, {v(vL)}, 4, 1')
A(f'v_and_b32 v5, 15, {v(vL)}')
A(f'v_lshlrev_b32 v5, 4, v5')
A(f'v_lshl_add_u32 v13, v4, 3, v5')
A(f'v_lshl_add_u32 v5, v4, 14, v5')
A(f'v_lshrrev_b32 v4, 5, {v(vL)}')
A(f'v_lshl_add_u32 v5, v4, 8, v5')
A(f's_lshl_b32 s4, {s(sHQ)}, 1')
A(f's_and_b32 s5, {s(sW)}, 1')
A(f's_add_u32 s4, s4, s5')
A(f's_lshl_b32 s5, s13, 15')
A(f's_lshl_b32 s6, s4, 10')
A(f's_add_u32 s5, s5, s6')
A(f's_add_u32 s5, s5, {YBUF}')
A(f's_lshl_b32 s6, s13, 12')
A(f's_lshl_b32 s7, s4, 8')
A(f's_add_u32 s6, s6, s7')
A(f's_add_u32 s6, s6, {STATS}')
A(f's_lshl_b32 s7, s13, 7')
A(f's_lshl_b32 s4, s4, 2')
A(f's_add_u32 s7, s7, s4')
A(f's_add_u32 s7, s7, {FY}')
handoff([f'buffer_store_dwordx4 {v(CS+4*g, 4)}, v5, {srd(rWS)}, s5 offen offset:{512*g} @' for g in range(2)])
A(f'v_pk_add_f32 {v(CG, 2)}, {v(X1, 2)}, {v(X1+2, 2)}')
A(f'v_pk_mul_f32 {v(CG+2, 2)}, {v(X1, 2)}, {v(X1, 2)}')
for i in range(1, 8):
    if i > 1:
        A(f'v_pk_add_f32 {v(CG, 2)}, {v(CG, 2)}, {v(X1+2*i, 2)}')
    A(f'v_pk_fma_f32 {v(CG+2, 2)}, {v(X1+2*i, 2)}, {v(X1+2*i, 2)}, {v(CG+2, 2)}')
A(f'v_add_f32 {v(CG)}, {v(CG)}, {v(CG+1)}')
A(f'v_add_f32 {v(CG+1)}, {v(CG+2)}, {v(CG+3)}')
A(f'v_mov_b32 {v(CG+2)}, {v(CG)}')
A(f'v_mov_b32 {v(CG+3)}, {v(CG+1)}')
A(f'v_permlane32_swap_b32 {v(CG)}, {v(CG+2)}')
A(f'v_permlane32_swap_b32 {v(CG+1)}, {v(CG+3)}')
A(f'v_pk_add_f32 {v(CG, 2)}, {v(CG, 2)}, {v(CG+2, 2)}')
A('s_mov_b32 exec_hi, 0')
tok_y = handoff([f'buffer_store_dwordx2 {v(CG, 2)}, v13, {srd(rWS)}, s6 offen @'])
A('s_mov_b64 exec, -1')
A.wait(vm=tok_y)
setflag('s7')
stamp('oproj')
barrier()


def w2reg(fi, n):
    return 32 + n * 8 + fi * 4


def w2_issue(n0, n1):
    A(f's_mul_i32 s3, {s(sW)}, {RING}')
    A(f's_add_u32 s3, s3, {SCR}')
    A(f's_mul_i32 s4, {s(sW)}, {448*1024}')
    t = None
    for n in range(n0, n1):
        for hb in range(2):
            A(f's_add_u32 m0, s3, {(n-n0)*2048+hb*1024}')
            A(f's_add_u32 s5, s4, {n*16384+hb*8192}')
            t = A(f'buffer_load_dwordx4 {v(vWD)}, {srd(rW2)}, s5 offen lds')
    return t


def w2_read(n0, n1):
    for n in range(n0, n1):
        for fi in range(2):
            for rd in range(2):
                A(f'ds_read_b64_tr_b16 {a(w2reg(fi, n)+2*rd, 2)}, {v(8+fi)} offset:{(n-n0)*2048+rd*256}')


for n0 in range(0, 28, 5):
    n1 = min(n0 + 5, 28)
    t = w2_issue(n0, n1)
    A.wait(vm=t)
    w2_read(n0, n1)
    A.wait_all(ds=True)

YB, FA, FW, SV = 16, 144, 208, 224


def facc(t, u):
    r = FA + 8 * t + 4 * u
    return r if r < X1 else r + 16


FW = 216
SV = 232
A(f's_lshl_b32 s9, {s(sRB2)}, 2')
A(f's_add_u32 s9, s9, {s(sW)}')
A(f's_lshl_b32 s4, s9, 7')
A(f's_add_u32 s4, s4, {FY}')
A(f's_lshl_b32 s5, s9, 12')
A(f's_add_u32 s5, s5, {STATS}')
A(f's_lshl_b32 s6, s9, 15')
A(f's_add_u32 s6, s6, {YBUF}')
vpoll(14, 16, 's4', 15)
stamp('yflag')
for i in range(4):
    tst = A(f'buffer_load_dwordx4 {v(FA+4*i, 4)}, {v(vL16)}, {srd(rWS)}, s5 offen offset:{i*1024} sc1')
ty = {}
for ks in range(16):
    if ks % 4 == 0:
        A(f's_add_u32 s7, s6, {ks*1024}')
        A(f's_add_u32 s8, s6, {ks*1024+16384}')
    for u in range(2):
        ty[ks] = A(f'buffer_load_dwordx4 {v(YB+8*ks+4*u, 4)}, {v(vL16)}, {srd(rWS)}, {s(7+u)} offen offset:{(ks%4)*1024} sc1')
A.wait(vm=tst)
for h in range(2):
    A(f'v_pk_add_f32 {v(FA+2*h, 2)}, {v(FA+2*h, 2)}, {v(FA+4+2*h, 2)}')
    A(f'v_pk_add_f32 {v(FA+8+2*h, 2)}, {v(FA+8+2*h, 2)}, {v(FA+12+2*h, 2)}')
for h in range(2):
    A(f'v_pk_add_f32 {v(FA+2*h, 2)}, {v(FA+2*h, 2)}, {v(FA+8+2*h, 2)}')
for sw in ('32', '16'):
    for e in range(4):
        A(f'v_mov_b32 {v(FA+4+e)}, {v(FA+e)}')
    for e in range(4):
        A(f'v_permlane{sw}_swap_b32 {v(FA+e)}, {v(FA+4+e)}')
    for e in range(4):
        A(f'v_add_f32 {v(FA+e)}, {v(FA+e)}, {v(FA+4+e)}')
A('s_mov_b32 s3, 0x3b000000')
A('v_mov_b32 v3, 0x3727c5ac')
for u in range(2):
    A(f'v_mul_f32 {v(SV+2*u)}, 0xbb000000, {v(FA+2*u)}')
    A(f'v_mul_f32 {v(FA+2*u+1)}, s3, {v(FA+2*u+1)}')
    A(f'v_fma_f32 {v(FA+2*u+1)}, -{v(SV+2*u)}, {v(SV+2*u)}, {v(FA+2*u+1)}')
    A(f'v_max_f32 {v(FA+2*u+1)}, 0, {v(FA+2*u+1)}')
    A(f'v_add_f32 {v(FA+2*u+1)}, v3, {v(FA+2*u+1)}')
    A(f'v_sqrt_f32 {v(SV+2*u+1)}, {v(FA+2*u+1)}')
    A(f'v_rsq_f32 {v(FA+2*u)}, {v(FA+2*u+1)}')
A(f'v_and_b32 v4, 15, {v(vL)}')
A(f'v_lshlrev_b32 v4, 2, v4')
A(f's_lshl_b32 s3, {s(sW)}, 7')
A(f's_add_u32 s3, s3, {T_RST}')
A(f'v_add_u32 v4, s3, v4')
A(f'ds_write_b32 v4, {v(FA)}')
A(f'ds_write_b32 v4, {v(FA+2)} offset:64')
A.wait_all(ds=True)
A(f's_mul_i32 s10, s9, {112*1024}')
A(f's_mul_i32 s3, {s(sJ)}, 7168')
A(f's_add_u32 s10, s10, s3')
A(f's_add_u32 s10, s10, {FBUF}')
A(f's_add_u32 s11, s10, 4096')
A(f's_lshr_b32 s3, s9, 1')
A(f's_lshl_b32 s3, s3, 2')
A(f's_lshr_b32 s4, {s(sJ)}, 2')
A(f's_add_u32 s3, s3, s4')
A(f's_lshl_b32 s3, s3, 7')
A(f's_and_b32 s4, {s(sJ)}, 3')
A(f's_lshl_b32 s4, s4, 1')
A(f's_and_b32 s5, {s(sW)}, 1')
A(f's_add_u32 s4, s4, s5')
A(f's_lshl_b32 s4, s4, 2')
A(f's_add_u32 s3, s3, s4')
A(f's_add_u32 s14, s3, {FF}')
A(f's_add_u32 s15, s3, {FF+16384}')


def ffn1_pass(tiles, waity, mid=None):
    seq = [(ks, t) for ks in range(16) for t in tiles]

    def rd(n):
        ks, t = seq[n]
        base = 11 if ks < 8 else 12
        return [f'ds_read_b64_tr_b16 {v(FW+4*(n%4)+2*r, 2)}, {v(base)} offset:{(ks%8)*7168+r*1792+t*32}' for r in range(2)]
    LK = 3
    tk = {}
    for n in range(LK):
        for t in rd(n):
            tk[n] = A(t)
    for n, (ks, t) in enumerate(seq):
        nxt = rd(n + LK) if n + LK < len(seq) else []
        A.wait(vm=ty[ks] if waity else None, ds=tk[n])
        for u in range(2):
            mm16(facc(t, u), v(FW + 4 * (n % 4), 4), v(YB + 8 * ks + 4 * u, 4), ks == 0)
            if nxt:
                tk[n + LK] = A(nxt[u])
        if mid and n == mid[0]:
            mid[1]()


def ffn1_epi(tiles, sdst):
    for t in tiles:
        for u in range(2):
            for i in range(4):
                A(f'v_fmac_f32_dpp {v(facc(t, u)+i)}, {v(CB+i)}, {v(SV+2*u)} row_newbcast:{2*t+1} row_mask:0xf bank_mask:0xf')
        for u in range(2):
            for i in range(4):
                A(f'v_fmac_f32_dpp {v(facc(t, u)+i)}, {v(CB+i)}, {v(SV+2*u+1)} row_newbcast:{2*t} row_mask:0xf bank_mask:0xf')
    for t in tiles:
        pack_swap16(facc(t, 0), facc(t, 0))
        for i in range(4):
            A(f'v_pk_max_i16 {v(facc(t, 0)+i)}, {v(facc(t, 0)+i)}, 0')
    for t in tiles:
        for r in range(2):
            A(f'v_permlane16_swap_b32 {v(facc(t, 0)+r)}, {v(facc(t, 0)+2+r)}')
    return handoff([f'buffer_store_dwordx4 {v(facc(t, 0), 4)}, {v(vL16)}, {srd(rWS)}, {sdst} offen offset:{(t%4)*1024} @' for t in tiles])


ffn1_pass(range(4), True)
tf1 = ffn1_epi(range(4), 's10')


def flag1():
    A.wait(vm=tf1)
    setflag('s14')


ffn1_pass(range(4, 7), False, (24, flag1))
tf2 = ffn1_epi(range(4, 7), 's11')
A.wait(vm=tf2)
setflag('s15')
stamp('ffn1')

FB = 16
FB2 = 144


def fbuf(n):
    n %= 26
    return FB + 4 * n if n < 16 else FB2 + 4 * (n - 16)


A(f's_lshl_b32 s4, {s(sRB)}, 2')
A(f's_add_u32 s4, s4, {s(sW)}')
A(f's_lshl_b32 s4, s4, 7')
A(f's_add_u32 s14, s4, {FF}')
A(f's_add_u32 s15, s4, {FF+16384}')
A(f's_mul_i32 s10, s13, {112*1024}')
A(f's_xor_b32 s3, s13, 1')
A(f's_mul_i32 s11, s3, {112*1024}')
A(f's_mul_i32 s3, {s(sW)}, {28*1024}')
A(f's_add_u32 s3, s3, {FBUF}')
A(f's_add_u32 s10, s10, s3')
A(f's_add_u32 s11, s11, s3')
barrier()
A(f's_and_b32 s3, s13, 3')
A(f's_lshl_b32 s3, s3, 7')
A(f's_add_u32 s3, s3, {T_RST}')
A(f'v_and_b32 v13, 31, {v(vL)}')
A(f'v_lshl_add_u32 v4, v13, 2, s3')
A(f'ds_read_b32 {v(200)}, v4')
A.wait_all(ds=True)
barrier()
reduce_addrs()
first = {0, 1}
for stage, tl in enumerate((range(4), range(4, 7))):
    vpoll(14, 8, s(14 + stage), 15)
    seq = [(ti, jj, t) for ti in (1, 0) for jj in range(4) for t in tl]
    tk = {}

    def ld(n):
        ti, jj, t = seq[n]
        if t == tl[0]:
            A(f's_add_u32 s4, {s(10+ti)}, {(7*jj+t)*1024}')
        tk[n] = A(f'buffer_load_dwordx4 {v(fbuf(n), 4)}, {v(vL16)}, {srd(rWS)}, s4 offen offset:{(t-tl[0])*1024} sc1')
    LK = 24
    for n in range(min(LK, len(seq))):
        ld(n)
    for n, (ti, jj, t) in enumerate(seq):
        A.wait(vm=tk[n])
        for fi in (1, 0):
            d = v(ACC + 32 * ti + 16 * fi, 16)
            mm32(A, d, a(w2reg(fi, 7 * jj + t), 4), v(fbuf(n), 4), '0' if ti in first else d)
        first.discard(ti)
        if n + LK < len(seq):
            ld(n + LK)
        if stage == 1 and n == 14:
            reduce_write(3)
        if stage == 1 and n == 17:
            reduce_write(2)
reduce_write(1)
for i in range(8):
    unpack2(CG + 2 * i, GB + i)
for i in range(8):
    A(f'v_pk_mul_f32 {v(CG+2*i, 2)}, {v(CG+2*i, 2)}, {v(200, 2)} op_sel_hi:[1,0]')
reduce_read()
for i in range(8):
    A(f'v_pk_fma_f32 {v(X1+2*i, 2)}, {v(ACC+2*i, 2)}, {v(CG+2*i, 2)}, {v(X1+2*i, 2)}')
for i in range(8):
    A(f'v_cvt_pk_bf16_f32 {v(X1+i)}, {v(X1+2*i)}, {v(X1+2*i+1)}')
A(f'v_lshlrev_b32 v13, 10, v13')
A(f'v_lshrrev_b32 v4, 5, {v(vL)}')
A(f'v_lshl_add_u32 v13, v4, 4, v13')
for k in range(2):
    for r in range(2):
        A(f'v_permlane32_swap_b32 {v(X1+4*k+r)}, {v(X1+4*k+2+r)}')
for k in range(2):
    A(f'buffer_store_dwordx4 {v(X1+4*k, 4)}, v13, {srd(rOUT)}, s69 offen offset:{32*k}')

sk = A.new('ep')
A(f's_cmp_lg_u32 s2, 255')
A(f's_cbranch_scc1 {sk}')
A(f's_cmp_lg_u32 {s(sW)}, 3')
A(f's_cbranch_scc1 {sk}')
lp, dn = A.new('epl'), A.new('epd')
A(f'v_lshrrev_b32 v3, 2, {v(vL)}')
A(f'v_lshlrev_b32 v3, 7, v3')
A(f'v_and_b32 v4, 3, {v(vL)}')
A(f'v_lshl_add_u32 v3, v4, 4, v3')
A(f's_mov_b32 s4, {HELLO}')
A('s_mov_b32 s3, 0')
A.label(lp)
A(f'buffer_load_dwordx4 v[4:7], v3, {srd(rWS)}, s4 offen sc1')
A('s_add_u32 s3, s3, 1')
A.wait_all(vm=True)
for i in range(4):
    A(f'v_xor_b32 {v(4+i)}, {s(sN)}, {v(4+i)}')
A('v_or_b32 v4, v4, v5')
A('v_or3_b32 v4, v4, v6, v7')
A('v_cmp_lt_u32 vcc, 15, v4')
A(f's_cmp_lt_u32 s3, {LIMIT}')
A(f's_cbranch_vccz {dn}')
A(f's_cbranch_scc1 {lp}')
A.label(dn)
A(f'v_mov_b32 v3, {s(sN)}')
A(f'v_mov_b32 v4, {EPOCH}')
A('s_mov_b64 exec, 1')
A(f'buffer_store_dword v3, v4, {srd(rWS)}, 0 offen sc1')
A('s_mov_b64 exec, -1')
A.label(sk)
if OPT['stamps']:
    A.wait_all(vm=True)
    stamp('end')
    A('s_waitcnt lgkmcnt(0)')
    A('v_mov_b32 v3, 0')
    for k in range(nstamp[0]):
        A(f'v_writelane_b32 v3, {s(STAMP0+2*k)}, {k}')
    A(f'v_writelane_b32 v3, {s(sXCC)}, 16')
    A(f'v_writelane_b32 v3, {s(sFAST)}, 17')
    A(f's_lshl_b32 s3, s2, 2')
    A(f's_add_u32 s3, s3, {s(sW)}')
    A(f's_lshl_b32 s3, s3, 7')
    A(f's_add_u32 s3, s3, {STAMPS}')
    A(f'v_lshlrev_b32 v4, 2, {v(vL)}')
    A('s_mov_b32 exec_hi, 0')
    A(f'buffer_store_dword v3, v4, {srd(rWS)}, s3 offen')
if OPT.get('pad'):
    A.label('L_padl')
    A('s_memrealtime s[4:5]')
    A('s_waitcnt lgkmcnt(0)')
    A('s_sub_u32 s4, s4, s100')
    A(f's_cmp_lt_u32 s4, {OPT["pad"]}')
    A('s_cbranch_scc1 L_padl')
A.label('L_end')
A('s_endpgm')
A.label('L_hot_end')
A.ins += COLD.ins
body, added = A.text()

hdr = open('cdna_kernels/' + NAME + '.s.ref').read().split('\n')
hdr = [l for l in hdr if l.startswith(';') and '@launch' not in l and 'Override' not in l and 'grid=ceil' not in l]
out = '\n'.join(hdr) + f'''
; @launch grid=(256,1,1) block=(256,1,1) lds=163840
; generated by gen/gen.py (hand-written generator): one persistent launch, one workgroup per CU
.amdgcn_target "amdgcn-amd-amdhsa--gfx950"
.text
.globl {NAME}_kernel
.p2align 8
.type {NAME}_kernel,@function
{NAME}_kernel:
{body}
  s_endpgm
.fill 2048, 4, 0xbf800000
  s_endpgm
.section .rodata,"a"
.p2align 6
.amdhsa_kernel {NAME}_kernel
  .amdhsa_next_free_vgpr 512
  .amdhsa_next_free_sgpr 102
  .amdhsa_accum_offset 256
  .amdhsa_group_segment_fixed_size 0
  .amdhsa_kernarg_size 88
  .amdhsa_user_sgpr_count 2
  .amdhsa_user_sgpr_kernarg_segment_ptr 1
  .amdhsa_system_sgpr_workgroup_id_x 1
  .amdhsa_float_denorm_mode_32 3
.end_amdhsa_kernel
'''
out = out.replace('CODE_CHUNKS', str(OPT.get('chunks', 4)))
open(sys.argv[1], 'w').write(out)
open(sys.argv[1] + '.names', 'w').write(' '.join(NAMES))
print(f'instructions: {len(A.ins)}, nops added: {added}, stamps: {nstamp[0]}')
```

```python
import sys
from asmlib import Asm, v, a, s

NAME = 'adaLN_cond__sliding_block__dense_activation_relu__prompt'
OPT = dict(stamps=0, fast=1, forcemax=0, fmode=0, dmode=1, chunks=17, pad=0, outsc1=0)
for arg in sys.argv[2:]:
    k, val = arg.split('=')
    OPT[k] = int(val)

EPOCH = 0
HELLO = 0x1000
FKV = 0x10000
FO = 0x30000
FY = 0x34000
FF = 0x38000
MODP = 0x40000
STATS = 0x80000
STAMPS = 0xC0000
KVB = 0x100000
OBUF = 0x500000
YBUF = 0x700000
FBUF = 0x900000
LH, WVH, WVL, WQL = 0, 65536, 98304, 131072
MODT = WQL
PRED1 = WQL + 4096
XST = 86016
PRED2 = XST + 8192
WOS = 90112
SCR = 114688
RING = 10240
TAB = SCR + 4 * RING
T_MOD2 = TAB
T_CB = TAB + 4096
T_RST = TAB + 6144
sC, sWS = 16, 24
rX, rWQ, rWO, rW1, rW2, rWM, rWS, rOUT = 28, 32, 36, 40, 44, 48, 52, 56
rH = 32
sW, sRB, sHQ, sJ, sRB2, sN, sXCC, sFAST, sHI = 60, 61, 62, 63, 64, 65, 66, 67, 68
(sKV, sFKV, sO, sFO, sPO, sOL0, sOL1, sTILE, sY, sST, sFY, sPY, sSTL, sYL, sF, sFF, sPF, sFL0, sFL1, sBO, sRING) = (
    12, 13, 14, 15, 18, 19, 20, 21, 22, 23, 26, 27, 69, 70, 71, 72, 73, 74, 75, 76, 77)
STAMP0, STP = 78, 100
LIMIT = 1 << 15
vL, vL16 = 1, 2
W1A = [5, 6, 7, 8, 9, 10, 11]
vWD, vR0, vR1, vVS = 12, 13, 14, 15

A = Asm()
COLD = Asm()
COLD.uid = 100000


def srd(r):
    return s(r, 4)


NAMES = []
SETS = {1: 'rt start setup ln_pre mod h kv kvst q own wo kvflag attn prep oflag oproj cb yflag c1 ffn1 fflag ffn2',
        2: 'rt start karg iss setup0 nonce pland setup x0 x1 x2 x3 ln_pre wkl wk gchk mod h kv kvst q'}
KEEP = set(SETS.get(OPT['stamps'], '').split())


def stamp(name):
    if OPT['stamps'] and name in KEEP:
        k = len(NAMES)
        assert k < 22
        if k:
            A(f's_mov_b32 {s(STAMP0+k-1)}, {s(STP)}')
        A(f's_mem{"real" if name == "rt" else ""}time {s(STP, 2)}')
        NAMES.append(name)
        if name == 'rt':
            A('s_waitcnt lgkmcnt(0)')


def barrier():
    A('s_barrier')


class Q:
    def __init__(self, items=()):
        self.q = list(items)
        self.tok = None

    def add(self, items):
        self.q += list(items)

    def pop(self, n=1):
        for _ in range(n):
            if not self.q:
                return
            it = self.q.pop(0)
            t = it() if callable(it) else A(it)
            if t is not None:
                self.tok = t

    def flush(self):
        self.pop(len(self.q))


def vpoll(vaddr, nl, soff, vt):
    lp, dn = A.new('poll'), A.new('polld')
    A(f's_mov_b64 exec, {hex((1 << nl) - 1)}')
    A(f's_mov_b32 s3, 0')
    A.label(lp)
    A(f'buffer_load_dword {v(vt)}, {v(vaddr)}, {srd(rWS)}, {soff} offen sc1')
    A(f's_add_u32 s3, s3, 1')
    A.wait_all(vm=True)
    A(f'v_cmp_ne_u32 vcc, {s(sN)}, {v(vt)}')
    A(f's_cmp_lt_u32 s3, {LIMIT}')
    A(f's_cbranch_vccz {dn}')
    A(f's_cbranch_scc1 {lp}')
    A.label(dn)
    A('s_mov_b64 exec, -1')


def handoff(stores, fast=True):
    tok = None
    if not (OPT['fast'] and fast):
        for t in stores:
            tok = A(t.replace('@', 'sc1')) or tok
        return tok
    slow, back = A.new('slow'), A.new('back')
    A(f's_cmp_eq_u32 {s(sFAST)}, 0')
    A(f's_cbranch_scc1 {slow}')
    for t in stores:
        tok = A(t.replace('@', '')) or tok
    A.label(back)
    COLD.label(slow)
    for t in stores:
        COLD(t.replace('@', 'sc1'))
    COLD('s_nop 1')
    COLD(f's_branch {back}')
    return tok


def setflag(soff, fast=True):
    A(f'v_mov_b32 v3, {s(sN)}')
    A('s_mov_b64 exec, 1')
    handoff([f'buffer_store_dword v3, off, {srd(rWS)}, {soff} @'], fast)
    A('s_mov_b64 exec, -1')


def unpack2(dst, src):
    return [f'v_lshlrev_b32 {v(dst)}, 16, {v(src)}', f'v_and_b32 {v(dst+1)}, {s(sHI)}, {v(src)}']


def emit(l):
    t = None
    for x in l:
        t = A(x) or t
    return t


def mod_addr(lpr, va, vc, so):
    lg = lpr.bit_length() - 1
    l = [f's_bfe_u32 s3, s2, 0x20005', f's_lshl_b32 s3, s3, 7', f's_lshl_b32 {s(so)}, {s(sW)}, 5', f's_add_u32 s3, s3, {s(so)}',
         f'v_lshrrev_b32 {v(va)}, {lg}, {v(vL)}', f'v_add_u32 {v(va)}, s3, {v(va)}', f'v_lshlrev_b32 {v(vc)}, 1, {v(va)}',
         f'v_mul_u32_u24 {v(va)}, {6144 // 16}, {v(va)}', f'v_and_or_b32 {v(va)}, {v(vL)}, {lpr-1}, {v(va)}', f'v_lshlrev_b32 {v(va)}, 4, {v(va)}',
         f's_lshl_b32 {s(so)}, {s(sRB2)}, 2', f's_and_b32 s3, {s(sJ)}, 3', f's_add_u32 {s(so)}, {s(so)}, s3', f's_lshl_b32 {s(so)}, {s(so)}, {4+lg}']
    return l


def mod_loads(lpr, colbyte, va, vc, so, PW, PC):
    l = []
    for i in range(lpr // 2):
        if i:
            l.append(f's_add_u32 {s(so)}, {s(so)}, {(64//lpr)*6144}')
        l.append(f'buffer_load_dwordx4 {v(PW+4*i, 4)}, {v(va)}, {srd(rWM)}, {s(so)} offen offset:{colbyte}')
    for i in range(lpr // 2):
        l.append(f'global_load_ushort {v(PC+i)}, {v(vc)}, {s(sC, 2)} offset:{(64//lpr)*2*i}')
    return l


def mod_finish(lpr, col0, PW, PC, ACC, UT, pred, bg=lambda: None):
    nl = lpr // 2
    lg = lpr.bit_length() - 1
    R = range(nl)
    for i in R:
        A(f'v_lshlrev_b32 {v(PC+i)}, 16, {v(PC+i)}')
    for i in R:
        A(f'v_mul_f32 {v(PC+2+i)}, 0xbfb8aa3b, {v(PC+i)}')
    for i in R:
        A(f'v_exp_f32 {v(PC+2+i)}, {v(PC+2+i)}')
    emit(unpack2(UT, PW))
    for i in R:
        A(f'v_add_f32 {v(PC+2+i)}, 1.0, {v(PC+2+i)}')
    for i in R:
        A(f'v_rcp_f32 {v(PC+2+i)}, {v(PC+2+i)}')
    emit(unpack2(UT + 2, PW + 1))
    for i in R:
        A(f'v_mul_f32 {v(PC+i)}, {v(PC+i)}, {v(PC+2+i)}')
    for i in R:
        A(f'v_cvt_pk_bf16_f32 {v(PC+i)}, {v(PC+i)}, {v(PC+i)}')
    for i in R:
        A(f'v_and_b32 {v(PC+i)}, {s(sHI)}, {v(PC+i)}')
    for i in R:
        for r in range(0 if i else 2, 4):
            emit(unpack2(UT + 2 * r, PW + 4 * i + r))
        for e in range(4):
            if i == 0:
                A(f'v_pk_mul_f32 {v(ACC+2*e, 2)}, {v(UT+2*e, 2)}, {v(PC, 2)} op_sel_hi:[1,0]')
            else:
                A(f'v_pk_fma_f32 {v(ACC+2*e, 2)}, {v(UT+2*e, 2)}, {v(PC, 2)}, {v(ACC+2*e, 2)} op_sel:[0,1,0] op_sel_hi:[1,1,1]')
    A(f'v_and_b32 v3, {lpr-1}, {v(vL)}')
    A(f'v_lshlrev_b32 v3, 5, v3')
    for e in range(4):
        A(f'v_permlane32_swap_b32 {v(ACC+e)}, {v(ACC+e+4)}')
    for e in range(2):
        A(f'v_pk_add_f32 {v(ACC+2*e, 2)}, {v(ACC+2*e, 2)}, {v(ACC+2*e+4, 2)}')
    A(f'v_lshrrev_b32 v4, 4, {v(vL)}')
    A(f'v_lshl_add_u32 v3, v4, 3, v3')
    for e in range(2):
        A(f'v_permlane16_swap_b32 {v(ACC+e)}, {v(ACC+e+2)}')
    A(f'v_pk_add_f32 {v(ACC, 2)}, {v(ACC, 2)}, {v(ACC+2, 2)}')
    A(f's_lshl_b32 s5, {s(sW)}, {5+lg}')
    A(f's_add_u32 s5, s5, {pred}')
    extra = [f'v_add_u32 v3, s5, v3', f'v_and_b32 v4, {2*lpr-1}, {v(vL)}', f'v_lshlrev_b32 v4, 4, v4']
    for sh in (8, 4, 2)[:4 - lg]:
        for e in range(2):
            A(f'v_add_f32_dpp {v(ACC+e)}, {v(ACC+e)}, {v(ACC+e)} row_ror:{sh} row_mask:0xf bank_mask:0xf')
        A(extra.pop(0))
    A(f'ds_write_b64 v3, {v(ACC, 2)}')
    emit(extra)
    A(f'v_add_u32 v3, {pred}, v4')
    bg()
    A.wait_all(ds=True)
    barrier()

    def tail():
        for i in range(4):
            A(f'ds_read_b128 {v(UT+4*i, 4)}, v3 offset:{32*lpr*i}')
        A(f's_bfe_u32 s5, s2, 0x20005')
        A(f's_mul_i32 s5, s5, 12288')
        A(f's_lshl_b32 s4, {s(sRB2)}, 2')
        A(f's_and_b32 s3, {s(sJ)}, 3')
        A(f's_add_u32 s4, s4, s3')
        A(f's_lshl_b32 s4, s4, {5+lg}')
        A(f's_add_u32 s4, s4, s5')
        A(f's_add_u32 s4, s4, {MODP + col0*4}')
        A(f's_movk_i32 s5, 0xff')
        A(f'v_mov_b32 {v(ACC)}, {s(sN)}')
        for e in range(1, 4):
            A(f'v_lshrrev_b32 {v(ACC+e)}, {8*e}, {v(ACC)}')
        A.wait_all(ds=True)
        for e in range(2):
            A(f'v_pk_add_f32 {v(UT+2*e, 2)}, {v(UT+2*e, 2)}, {v(UT+4+2*e, 2)}')
            A(f'v_pk_add_f32 {v(UT+8+2*e, 2)}, {v(UT+8+2*e, 2)}, {v(UT+12+2*e, 2)}')
        for e in range(2):
            A(f'v_pk_add_f32 {v(UT+2*e, 2)}, {v(UT+2*e, 2)}, {v(UT+8+2*e, 2)}')
        for e in range(4):
            A(f'v_bfi_b32 {v(ACC+e)}, s5, {v(ACC+e)}, {v(UT+e)}')
        A(f's_mov_b64 exec, {(1 << (2*lpr)) - 1}')
        A(f'buffer_store_dwordx4 {v(ACC, 4)}, v4, {srd(rWS)}, s4 offen sc1')
        A('s_mov_b64 exec, -1')
        A('s_nop 1')
    cond_wave(0, tail)


def gather_loads(col0, nset, G, va):
    items = []
    for st in range(nset):
        for q in range(4):
            def f(X=None, st=st, q=q):
                X = X or A
                X(f's_mov_b32 s3, {MODP + q*12288 + (col0 + 1024*st)*4}')
                return X(f'buffer_load_dwordx4 {v(G+16*st+4*q, 4)}, {v(va)}, {srd(rWS)}, s3 offen sc1')
            items.append(f)
    return items


def gather_check(col0, nset, G, va, tok, T):
    chk, again, ok = A.new('gchk'), A.new('gagain'), A.new('gok')
    for e in range(4):
        A(f's_bfe_u32 {s(4+e)}, {s(sN)}, {hex(0x80000 | (8*e))}')
    A('s_mov_b32 s8, 0')
    A.wait(vm=tok)
    A.label(chk)
    n = 16 * nset
    for i in range(n):
        A(f'v_xor_b32 {v(G+i)}, {s(4+i%4)}, {v(G+i)}')
    A(f'v_or3_b32 {v(T)}, {v(G)}, {v(G+1)}, {v(G+2)}')
    for i in range(3, n - 1, 2):
        A(f'v_or3_b32 {v(T)}, {v(T)}, {v(G+i)}, {v(G+i+1)}')
    A(f'v_or_b32 {v(T)}, {v(T)}, {v(G+n-1)}')
    A(f'v_lshlrev_b32 {v(T)}, 24, {v(T)}')
    A(f'v_cmp_ne_u32 vcc, 0, {v(T)}')
    A(f's_cbranch_vccnz {again}')
    A.label(ok)
    COLD.label(again)
    COLD('s_add_u32 s8, s8, 1')
    COLD(f's_cmp_ge_u32 s8, {LIMIT}')
    COLD(f's_cbranch_scc1 {ok}')
    for f in gather_loads(col0, nset, G, va):
        f(COLD)
    COLD('s_waitcnt vmcnt(0)')
    COLD(f's_branch {chk}')
    for st in range(nset):
        g = G + 16 * st
        for e in range(2):
            A(f'v_pk_add_f32 {v(g+2*e, 2)}, {v(g+2*e, 2)}, {v(g+4+2*e, 2)}')
            A(f'v_pk_add_f32 {v(g+8+2*e, 2)}, {v(g+8+2*e, 2)}, {v(g+12+2*e, 2)}')
        for e in range(2):
            A(f'v_pk_add_f32 {v(g+2*e, 2)}, {v(g+2*e, 2)}, {v(g+8+2*e, 2)}')
        A(f'v_cvt_pk_bf16_f32 {v(g)}, {v(g)}, {v(g+1)}')
        A(f'v_cvt_pk_bf16_f32 {v(g+1)}, {v(g+2)}, {v(g+3)}')


def add_const_round(g, sadd):
    emit(unpack2(g + 4, g) + unpack2(g + 6, g + 1))
    for e in range(4):
        A(f'v_add_f32 {v(g+4+e)}, {s(sadd)}, {v(g+4+e)}')
    A(f'v_cvt_pk_bf16_f32 {v(g)}, {v(g+4)}, {v(g+5)}')
    A(f'v_cvt_pk_bf16_f32 {v(g+1)}, {v(g+6)}, {v(g+7)}')


def cond_wave(w, fn):
    sk = A.new('cw')
    A(f's_cmp_lg_u32 {s(sW)}, {w}')
    A(f's_cbranch_scc1 {sk}')
    st = A.cond_begin()
    fn()
    A.cond_end(st)
    A.label(sk)


A('s_cmp_ge_u32 s2, 256')
A('s_cbranch_scc1 L_end')
stamp('rt')
stamp('start')
if OPT['pad']:
    A('s_memrealtime s[100:101]')
A('s_load_dwordx16 s[4:19], s[0:1], 0')
A('s_load_dwordx2 s[20:21], s[0:1], 64')
A('s_load_dwordx2 s[24:25], s[0:1], 80')
A(f'v_and_b32 {v(vL)}, 63, v0')
A(f'v_lshrrev_b32 v3, 6, v0')
A(f'v_lshlrev_b32 {v(vL16)}, 4, {v(vL)}')
A(f'v_readfirstlane_b32 {s(sW)}, v3')
A(f's_and_b32 s26, s2, 7')
A(f's_lshr_b32 s27, s2, 3')
A(f's_and_b32 {s(sHQ)}, s27, 7')
A(f's_and_b32 {s(sJ)}, s27, 15')
A(f's_lshr_b32 s27, s27, 3')
A(f's_lshl_b32 s26, s26, 2')
A(f's_add_u32 {s(sRB)}, s26, s27')
A(f's_lshr_b32 {s(sRB2)}, {s(sRB)}, 1')
A(f'v_lshlrev_b32 v253, 7, {v(vL)}')
sk = A.new('cpf')
A(f's_cmp_lg_u32 {s(sW)}, 3')
A(f's_cbranch_scc1 {sk}')
A(f's_cmp_ge_u32 s2, {OPT["chunks"]*8}')
A(f's_cbranch_scc1 {sk}')
A(f's_getpc_b64 s[70:71]')
A(f's_lshr_b32 s69, s2, 3')
A(f's_lshl_b32 s69, s69, 11')
A(f'v_add_u32 v3, s69, v253')
st = A.cond_begin()
A('s_mov_b64 exec, 0xffff')
A(f'global_load_dword v255, v3, s[70:71]')
A('s_mov_b64 exec, -1')
A.cond_end(st)
A.label(sk)
A(f's_getreg_b32 {s(sXCC)}, hwreg(HW_REG_XCC_ID, 0, 4)')
A(f's_mov_b32 {s(sHI)}, 0xffff0000')
for r, n in ((rX, 2097152), (rWQ, 1572864), (rWO, 524288), (rW1, 1835008), (rW2, 1835008), (rWM, 3145728), (rWS, 0x1000000), (rOUT, 2097152)):
    A(f's_mov_b32 {s(r+2)}, {n}')
    A(f's_mov_b32 {s(r+3)}, 0x20000')
A(f'v_lshrrev_b32 v5, 4, {v(vL)}')
A(f'v_and_b32 v6, 15, {v(vL)}')
A(f's_lshl_b32 s26, {s(sRB)}, 6')
A(f's_lshl_b32 s27, {s(sW)}, 4')
A(f's_add_u32 s26, s26, s27')
A(f'v_add_u32 v3, s26, v5')
A(f'v_lshlrev_b32 v3, 10, v3')
A(f'v_lshl_add_u32 v254, v6, 4, v3')
A(f's_and_b32 {s(sBO)}, {s(sHQ)}, 3')
A(f's_lshl_b32 {s(sBO)}, {s(sBO)}, 12')
XF, XP, MOD, GA, PW, PC, PACC = 16, 144, 144, 208, 224, 232, 236
emit(mod_addr(2, 3, 4, 69))
A('s_waitcnt lgkmcnt(0)')
stamp('karg')
if OPT.get('wsoff'):
    A(f's_add_u32 s24, s24, {OPT["wsoff"] << 20}')
    A('s_addc_u32 s25, s25, 0')
A(f's_mov_b64 {s(rWM, 2)}, s[18:19]')
A(f's_mov_b64 {s(rX, 2)}, s[4:5]')
tok_p1 = emit(mod_loads(2, 0, 3, 4, 69, PW, PC))
A(f's_load_dword {s(sN)}, {s(sWS, 2)}, {EPOCH}')
for r, p in ((rWQ, 6), (rWO, 8), (rW1, 12), (rW2, 14), (rWS, 24), (rOUT, 20)):
    A(f's_mov_b64 {s(r, 2)}, {s(p, 2)}')
vHW, vWR = 248, 252


def xloads(aa):
    A(f's_xor_b32 s4, {s(sBO)}, {aa << 12}')
    for c in range(4):
        t = A(f'buffer_load_dwordx4 {v(XP+(aa*4+c)*4, 4)}, v254, {srd(rX)}, s4 offen offset:{c*256}')
    return t


def wq_touch():
    A(f's_mul_i32 s3, s2, 6144')
    A(f'v_lshrrev_b32 v3, 4, {v(vL)}')
    A(f'v_lshl_add_u32 v3, v3, 10, v253')
    A('s_mov_b32 exec_hi, 0')
    A(f'buffer_load_dword v255, v3, {srd(rWQ)}, s3 offen offset:1024')
    A('s_mov_b32 exec_hi, -1')


tok_x = [xloads(0)]
cond_wave(2, wq_touch)
tok_x.append(xloads(1))
stamp('iss')
A(f's_lshl_b32 s3, {s(sHQ)}, 2')
A(f's_add_u32 s3, s3, {s(sW)}')
A(f's_lshl_b32 s4, s3, 17')
A(f's_lshl_b32 s5, {s(sRB)}, 12')
A(f's_add_u32 s4, s4, s5')
A(f's_add_u32 {s(sKV)}, s4, {KVB}')
A(f's_lshl_b32 s4, s3, 7')
A(f's_add_u32 s4, s4, s5')
A(f's_add_u32 {s(sFKV)}, s4, {FKV}')
A(f's_lshl_b32 s4, {s(sRB)}, 16')
A(f's_lshl_b32 s5, s3, 10')
A(f's_add_u32 s4, s4, s5')
A(f's_add_u32 {s(sO)}, s4, {OBUF}')
A(f's_lshl_b32 s6, {s(sRB)}, 9')
A(f's_lshr_b32 s4, s3, 3')
A(f's_lshl_b32 s4, s4, 7')
A(f's_and_b32 s5, s3, 7')
A(f's_lshl_b32 s5, s5, 2')
A(f's_add_u32 s4, s4, s5')
A(f's_add_u32 s4, s4, s6')
A(f's_add_u32 {s(sFO)}, s4, {FO}')
A(f's_lshl_b32 s4, {s(sW)}, 7')
A(f's_add_u32 s4, s4, s6')
A(f's_add_u32 {s(sPO)}, s4, {FO}')
A(f's_add_u32 {s(sPF)}, s4, {FF}')
A(f's_lshr_b32 s4, {s(sW)}, 1')
A(f's_lshl_b32 s5, {s(sRB)}, 1')
A(f's_add_u32 s7, s4, s5')
A(f's_lshl_b32 s8, s7, 15')
A(f's_lshl_b32 s4, {s(sW)}, 13')
A(f's_add_u32 s4, s4, s8')
A(f's_add_u32 {s(sOL0)}, s4, {OBUF}')
A(f's_xor_b32 s4, s4, 32768')
A(f's_add_u32 {s(sOL1)}, s4, {OBUF}')
A(f's_lshl_b32 s9, {s(sHQ)}, 1')
A(f's_and_b32 s10, {s(sW)}, 1')
A(f's_add_u32 s9, s9, s10')
A(f's_lshl_b32 s4, s9, 6')
A(f's_add_u32 {s(sTILE)}, s4, s8')
A(f's_lshl_b32 s4, s9, 10')
A(f's_add_u32 s4, s4, s8')
A(f's_add_u32 {s(sY)}, s4, {YBUF}')
A(f's_lshl_b32 s4, s7, 12')
A(f's_lshl_b32 s5, s9, 8')
A(f's_add_u32 s4, s4, s5')
A(f's_add_u32 {s(sST)}, s4, {STATS}')
A(f's_lshl_b32 s4, s7, 7')
A(f's_lshl_b32 s5, s9, 2')
A(f's_add_u32 s4, s4, s5')
A(f's_add_u32 {s(sFY)}, s4, {FY}')
A(f's_mul_i32 s4, {s(sW)}, {28*1024}')
A(f's_add_u32 s4, s4, {FBUF}')
A(f's_mul_i32 s5, s7, {112*1024}')
A(f's_add_u32 {s(sFL0)}, s4, s5')
A(f's_xor_b32 s5, s7, 1')
A(f's_mul_i32 s5, s5, {112*1024}')
A(f's_add_u32 {s(sFL1)}, s4, s5')
A(f's_lshl_b32 s7, {s(sRB2)}, 2')
A(f's_add_u32 s7, s7, {s(sW)}')
A(f's_lshl_b32 s4, s7, 7')
A(f's_add_u32 {s(sPY)}, s4, {FY}')
A(f's_lshl_b32 s4, s7, 12')
A(f's_add_u32 {s(sSTL)}, s4, {STATS}')
A(f's_lshl_b32 s4, s7, 15')
A(f's_add_u32 {s(sYL)}, s4, {YBUF}')
A(f's_mul_i32 s4, s7, {112*1024}')
A(f's_mul_i32 s5, {s(sJ)}, 7168')
A(f's_add_u32 s4, s4, s5')
A(f's_add_u32 {s(sF)}, s4, {FBUF}')
A(f's_lshr_b32 s4, s7, 1')
A(f's_lshl_b32 s4, s4, 9')
A(f's_lshr_b32 s5, {s(sJ)}, 2')
A(f's_lshl_b32 s5, s5, 7')
A(f's_add_u32 s4, s4, s5')
A(f's_and_b32 s5, {s(sJ)}, 3')
A(f's_lshl_b32 s5, s5, 1')
A(f's_add_u32 s5, s5, s10')
A(f's_lshl_b32 s5, s5, 2')
A(f's_add_u32 s4, s4, s5')
A(f's_add_u32 {s(sFF)}, s4, {FF}')
A(f's_mul_i32 s4, {s(sW)}, {RING}')
A(f's_add_u32 {s(sRING)}, s4, {SCR}')
A(f's_mul_i32 s4, {s(sJ)}, 224')
for i in range(7):
    A(f'v_add_u32 v3, {64*i}, {v(vL)}')
    A(f'v_mul_u32_u24 v4, 4682, v3')
    A(f'v_lshrrev_b32 v4, 16, v4')
    A(f'v_lshl_add_u32 v3, v3, 4, s4')
    A(f'v_mul_u32_u24 v4, {3584-224}, v4')
    A(f'v_add_u32 {v(W1A[i])}, v3, v4')
    if i % 4:
        A(f'v_subrev_u32 {v(W1A[i])}, {1024*(i%4)}, {v(W1A[i])}')
A(f'v_bfe_u32 v4, {v(vL)}, 2, 3')
A(f's_lshl_b32 s4, {s(sW)}, 3')
A(f'v_add_u32 v4, s4, v4')
A(f'v_mul_u32_u24 v4, 3072, v4')
A(f'v_lshrrev_b32 v3, 5, {v(vL)}')
A(f'v_lshl_add_u32 v4, v3, 6, v4')
A(f'v_and_b32 v3, 3, {v(vL)}')
A(f's_lshl_b32 s4, s10, 1')
A(f'v_xor_b32 v3, s4, v3')
A(f'v_lshl_add_u32 v4, v3, 4, v4')
A(f's_lshl_b32 s4, {s(sHQ)}, 7')
A(f'v_add_u32 {v(vWD)}, s4, v4')
A(f'v_lshrrev_b32 v4, 4, {v(vL)}')
A(f'v_lshlrev_b32 v3, 10, v4')
A(f'v_xor_b32 v4, {s(sW)}, v4')
A(f'v_and_b32 v4, 1, v4')
A(f'v_lshl_add_u32 v3, v4, 5, v3')
A(f'v_bfe_u32 v4, {v(vL)}, 2, 2')
A(f'v_lshl_add_u32 v3, v4, 6, v3')
A(f'v_and_b32 v4, 3, {v(vL)}')
A(f'v_lshl_add_u32 v3, v4, 3, v3')
A(f's_lshr_b32 s3, {s(sW)}, 1')
A(f's_lshl_b32 s3, s3, 9')
A(f'v_add_u32 {v(vWR)}, s3, v3')
A(f'v_bfe_u32 v4, {v(vL)}, 2, 2')
A(f'v_lshlrev_b32 v3, 6, v4')
A(f'v_bfe_u32 v4, {v(vL)}, 4, 1')
A(f'v_lshl_add_u32 v3, v4, 5, v3')
A(f'v_and_b32 v4, 3, {v(vL)}')
A(f'v_lshl_add_u32 v3, v4, 3, v3')
A(f'v_lshrrev_b32 v4, 5, {v(vL)}')
A(f'v_lshl_add_u32 v3, v4, 10, v3')
A(f's_lshl_b32 s3, s10, 9')
A(f's_add_u32 s3, s3, {s(sRING)}')
A(f'v_add_u32 {v(vR0)}, s3, v3')
A(f'v_xor_b32 {v(vR1)}, 512, {v(vR0)}')
A(f'v_and_b32 v3, 15, {v(vL)}')
A(f'v_lshl_add_u32 v3, v4, 4, v3')
A(f'v_lshlrev_b32 {v(vVS)}, 4, v3')
A(f'v_lshrrev_b32 v16, 4, {v(vL)}')
A(f'v_and_b32 v4, 15, {v(vL)}')
A(f's_lshl_b32 s5, {s(sW)}, 14')
A(f'v_lshl_add_u32 v3, v4, 8, s5')
A(f'v_and_b32 v4, 7, v4')
A(f'v_xor_b32 v4, v4, v16')
A(f's_lshr_b32 s8, {s(sBO)}, 10')
for aa in range(4):
    A(f's_xor_b32 s4, s8, {4*aa}')
    A(f'v_xor_b32 v16, s4, v4')
    A(f'v_lshl_add_u32 {v(vHW+aa)}, v16, 4, v3')
stamp('setup0')
A('s_waitcnt lgkmcnt(0)')
stamp('nonce')
A(f's_add_u32 {s(sN)}, {s(sN)}, 0x9e3779b1')
A.wait(vm=tok_p1)
stamp('pland')
mod_finish(2, 0, PW, PC, PACC, GA, PRED1, bg=lambda: tok_x.append(xloads(2)))
tok_x.append(xloads(3))
stamp('setup')


def hello():
    A(f's_andn2_b32 s3, {s(sN)}, 15')
    A(f's_or_b32 s3, s3, {s(sXCC)}')
    A(f'v_mov_b32 v3, s3')
    A(f's_lshl_b32 s3, {s(sRB2)}, 7')
    A(f's_lshl_b32 s4, {s(sJ)}, 2')
    A(f's_add_u32 s3, s3, s4')
    A(f's_add_u32 s3, s3, {HELLO}')
    A('s_mov_b64 exec, 1')
    A(f'buffer_store_dword v3, off, {srd(rWS)}, s3 sc1')
    A('s_mov_b64 exec, -1')


def wq_items(colbyte, region, ks0, nks):
    items = []
    for i in range(nks):
        def f(i=i):
            A(f's_add_u32 m0, s11, {region + i*4096}')
            A(f's_mov_b32 {s(sBO)}, {colbyte + (ks0+i)*98304}')
            return A(f'buffer_load_dwordx4 {v(vWD)}, {srd(rWQ)}, {s(sBO)} offen lds')
        items.append(f)
    return items


cond_wave(3, hello)
A(f's_lshl_b32 s11, {s(sW)}, 10')
qk = Q(wq_items(1024, LH, 0, 16))
qv = Q(wq_items(2048, WVL, 0, 8) + wq_items(2048, WVH, 8, 8))

ST = 224
cnt = [0]


def V(t, every=OPT.get('lnpace', 16)):
    A(t)
    cnt[0] += 1
    if cnt[0] % every == 0:
        (qk if qk.q else qv).pop()


def row_allreduce(grp):
    for sh in (8, 4, 2, 1):
        for aa in grp:
            t0 = ST + 4 * aa
            V(f'v_add_f32_dpp {v(t0)}, {v(t0)}, {v(t0)} row_ror:{sh} row_mask:0xf bank_mask:0xf')


A('s_mov_b32 s9, 0x3b000000')
A('v_mov_b32 v254, 0x3727c5ac')
for grp in ((0, 1), (2, 3)):
    for aa in grp:
        A.wait(vm=tok_x[aa])
        stamp(f'x{aa}')
        for i in range(16):
            for t in unpack2(XF + aa * 32 + 2 * i, XP + aa * 16 + i):
                V(t)
        b = XF + aa * 32
        t0, t1 = ST + 4 * aa, ST + 4 * aa + 2
        V(f'v_pk_add_f32 {v(t0, 2)}, {v(b, 2)}, {v(b+2, 2)}')
        V(f'v_pk_add_f32 {v(t1, 2)}, {v(b+4, 2)}, {v(b+6, 2)}')
        for i in range(4, 16):
            t = t0 if i % 2 == 0 else t1
            V(f'v_pk_add_f32 {v(t, 2)}, {v(t, 2)}, {v(b+2*i, 2)}')
        V(f'v_pk_add_f32 {v(t0, 2)}, {v(t0, 2)}, {v(t1, 2)}')
        V(f'v_add_f32 {v(t0)}, {v(t0)}, {v(t0+1)}')
    row_allreduce(grp)
    for aa in grp:
        V(f'v_mul_f32 {v(240+2*aa)}, 0xbb000000, {v(ST+4*aa)}')
    for aa in grp:
        b = XF + aa * 32
        t0, t1 = ST + 4 * aa, ST + 4 * aa + 2
        for i in range(16):
            V(f'v_pk_add_f32 {v(b+2*i, 2)}, {v(b+2*i, 2)}, {v(240+2*aa, 2)} op_sel_hi:[1,0]')
        for i in range(16):
            t = t0 if i % 2 == 0 else t1
            if i < 2:
                V(f'v_pk_mul_f32 {v(t, 2)}, {v(b+2*i, 2)}, {v(b+2*i, 2)}')
            else:
                V(f'v_pk_fma_f32 {v(t, 2)}, {v(b+2*i, 2)}, {v(b+2*i, 2)}, {v(t, 2)}')
        V(f'v_pk_add_f32 {v(t0, 2)}, {v(t0, 2)}, {v(t1, 2)}')
        V(f'v_add_f32 {v(t0)}, {v(t0)}, {v(t0+1)}')
    row_allreduce(grp)
    for aa in grp:
        V(f'v_fma_f32 {v(240+2*aa)}, {v(ST+4*aa)}, s9, v254')
    for aa in grp:
        V(f'v_rsq_f32 {v(240+2*aa)}, {v(240+2*aa)}')
    if grp == (2, 3):
        qk.flush()
        A(f'v_lshlrev_b32 v254, 4, v0')
        qg = Q(gather_loads(0, 1, GA, 254))
        qg.flush()
    for aa in grp:
        b = XF + aa * 32
        for i in range(16):
            V(f'v_pk_mul_f32 {v(b+2*i, 2)}, {v(b+2*i, 2)}, {v(240+2*aa, 2)} op_sel_hi:[1,0]')
stamp('ln_pre')
A.wait(vm=qk.tok)
barrier()
stamp('wkl')
for ks in range(16):
    for rd in range(2):
        A(f'ds_read_b64_tr_b16 {a(4*ks+2*rd, 2)}, {v(vWR)} offset:{ks*4096+rd*256}')
stamp('wk')
gather_check(0, 1, GA, 254, qg.tok, 3)
stamp('gchk')
A(f's_cmp_ge_u32 {s(sW)}, 2')
A(f's_cselect_b32 s3, 1.0, 0')
add_const_round(GA, 3)
emit(unpack2(GA + 4, GA) + unpack2(GA + 6, GA + 1))
A(f'v_add_u32 v3, {MODT}, v254')
A(f'ds_write_b128 v3, {v(GA+4, 4)}')
A(f'v_and_b32 v4, 15, {v(vL)}')
A(f'v_lshlrev_b32 v4, 5, v4')
A(f'v_add_u32 v4, {MODT}, v4')
A.wait_all(ds=True)
barrier()
stamp('mod')
tm = []
for c in range(4):
    for arr in range(2):
        for hlf in range(2):
            t = A(f'ds_read_b128 {v(MOD+arr*32+c*8+hlf*4, 4)}, v4 offset:{arr*2048+c*512+hlf*16}')
    tm.append(t)
    if c == 0:
        qv.pop(2)
for c in range(4):
    A.wait(ds=tm[c])
    for aa in range(4):
        b = XF + aa * 32 + c * 8
        for i in range(4):
            A(f'v_pk_fma_f32 {v(b+2*i, 2)}, {v(b+2*i, 2)}, {v(MOD+32+c*8+2*i, 2)}, {v(MOD+c*8+2*i, 2)}')
        for i in range(4):
            A(f'v_cvt_pk_bf16_f32 {v(b+i)}, {v(b+2*i)}, {v(b+2*i+1)}')
        A(f'ds_write_b128 {v(vHW+aa)}, {v(b, 4)} offset:{c*4096}')
        qv.pop()
qv.flush()
vH0, vH1, vB1, vB2 = 64, 65, 66, 67
A(f'v_lshrrev_b32 v4, 4, {v(vL)}')
A(f'v_and_b32 v3, 15, {v(vL)}')
A(f'v_xor_b32 v3, v3, v4')
A(f'v_lshlrev_b32 v3, 4, v3')
A.wait_all(ds=True)
A(f'v_lshl_add_u32 {v(vH0)}, v4, 8, v3')
A(f'v_xor_b32 {v(vH1)}, 64, {v(vH0)}')
A(f'v_add_u32 {v(vB1)}, {WVH}, {v(vWR)}')
A(f'v_add_u32 {v(vB2)}, {WQL}, {v(vWR)}')
A.wait(vm=qv.tok)
barrier()
stamp('h')

AK, AV, AQ, WB = 144, 160, 176, 48
QF, KO, VO, KH, VH, SB, PB, MD, MO, OA = 16, 24, 32, 48, 80, 144, 176, 192, 208, 224


def hreg(u, ks):
    return v(80 + ks * 16 + u * 4, 4) if ks < 4 else a(ks * 16 + u * 4, 4)


def mm16(d, x, y, first):
    A(f'v_mfma_f32_16x16x32_bf16 {v(d, 4)}, {x}, {y}, {"0" if first else v(d, 4)}')


def kv_reads(ks):
    l = [f'ds_read_b128 {hreg(u, ks)}, {v(vH0 + ks % 2)} offset:{u*16384+ks*1024}' for u in range(4)]
    wb = WB + 4 * (ks % 4)
    off = WVL - WVH + ks * 4096 if ks < 8 else (ks - 8) * 4096
    w = [f'ds_read_b64_tr_b16 {v(wb+2*rd, 2)}, {v(vB1)} offset:{off+rd*256}' for rd in range(2)]
    return [l[0], w[0], w[1], l[1], l[2], l[3]]


def later_touch():
    A(f's_mul_i32 s3, s2, 7168')
    cond_wave(0, lambda: A(f'buffer_load_dword v255, v253, {srd(rW1)}, s3 offen'))
    cond_wave(1, lambda: A(f'buffer_load_dword v255, v253, {srd(rW2)}, s3 offen'))

    def f():
        A(f's_lshl_b32 s3, s2, 11')
        A('s_mov_b64 exec, 0xffff')
        A(f'buffer_load_dword v255, v253, {srd(rWO)}, s3 offen')
        A('s_mov_b64 exec, -1')
    cond_wave(2, f)


fl = Q(mod_addr(4, 72, 73, 8) + [f'v_and_b32 v68, 31, {v(vL)}', f'v_lshrrev_b32 v69, 5, {v(vL)}', 'v_lshlrev_b32 v69, 2, v69', 'v_sub_u32 v68, v68, v69',
        'v_mov_b32 v69, 0xf149f2ca', 'v_mov_b32 v70, 0', 's_mov_b32 s10, 0x3f803f80'])
for i in range(16):
    fl.add([f'v_cmp_le_i32 vcc, {8*(i//4) + i % 4}, v68', f'v_cndmask_b32 {v(MD+i)}, v69, v70, vcc', f'v_cndmask_b32 {v(MO+i)}, v70, v69, vcc'])
fl.add([f'v_mov_b32 {v(VO+4*u+2+r)}, s10' for u in range(4) for r in range(2)])
qq = Q(wq_items(0, WQL, 0, 8))
LOOK = 2
tk = {}
for ks in range(LOOK):
    for t in kv_reads(ks):
        tk[ks] = A(t)
for ks in range(16):
    nxt = kv_reads(ks + LOOK) if ks + LOOK < 16 else []
    A.wait(ds=tk[ks])
    if ks == 8:
        barrier()
        qq.add(wq_items(0, WVL, 8, 8))
    wb = v(WB + 4 * (ks % 4), 4)
    n = 0
    for u in range(4):
        for which in range(2):
            if which == 0:
                mm16(AK + 4 * u, a(4 * ks, 4), hreg(u, ks), ks == 0)
            else:
                mm16(AV + 4 * u, hreg(u, ks), wb, ks == 0)
            if n < len(nxt):
                tk[ks + LOOK] = A(nxt[n])
            n += 1
            if n <= 5:
                fl.pop()
            if n == 7:
                qq.pop(2 if ks in (0, 1, 8, 9, 10) else 1)
    if ks == 5:
        later_touch()
    if ks == OPT.get('m2', 6):
        tok_p2 = emit(mod_loads(4, 2048, 72, 73, 8, PW, PC))
fl.flush()
qq.flush()
stamp('kv')


def pack2(dst, acc):
    return [f'v_cvt_pk_bf16_f32 {v(dst+2*u+r)}, {v(acc+4*u+2*r)}, {v(acc+4*u+2*r+1)}' for u in range(2) for r in range(2)]


for T in range(2):
    emit(pack2(KO + 4 * T, AK + 8 * T))
for u in range(4):
    for r in range(2):
        A(f'v_cvt_pk_bf16_f32 {v(VO+4*u+r)}, {v(AV+4*u+2*r)}, {v(AV+4*u+2*r+1)}')
for T in range(2):
    for r in range(2):
        A(f'v_permlane16_swap_b32 {v(KO+4*T+r)}, {v(KO+4*T+2+r)}')
for T in range(2):
    A(f'buffer_store_dwordx4 {v(KO+4*T, 4)}, {v(vL16)}, {srd(rWS)}, {s(sKV)} offen offset:{T*2048} sc1')
for u in range(4):
    for r in range(2):
        A(f'v_permlane16_swap_b32 {v(VO+4*u+r)}, {v(VO+4*u+2+r)}')
for u in range(4):
    for r in range(2):
        A(f'v_permlane32_swap_b32 {v(VO+4*u+r)}, {v(VO+4*u+2+r)}')
A('s_mov_b32 exec_lo, 0xffff')
A('s_mov_b32 exec_hi, 0xffff')
for u in range(4):
    tok_kv = A(f'buffer_store_dwordx4 {v(VO+4*u, 4)}, {v(vVS)}, {srd(rWS)}, {s(sKV)} offen offset:{(u//2)*2048+1024+(u%2)*512} sc1')
A('s_mov_b64 exec, -1')
A.wait(vm=qq.tok)
barrier()
stamp('kvst')


def w1_items(mul, add):
    items = []
    for i in range(7):
        def f(i=i):
            if i == 0:
                A(f's_mul_i32 s9, {s(sW)}, {mul*7168}')
                A(f's_add_u32 s9, s9, {add*7168}')
                A(f's_lshl_b32 {s(sBO)}, s9, 4')
            if i % 4 == 0:
                A(f's_add_u32 m0, s9, {1024*i}')
            return A(f'buffer_load_dwordx4 {v(W1A[i])}, {srd(rW1)}, {s(sBO)} offen offset:{1024*(i%4)} lds')
        items.append(f)
    return items


def q_reads(ks):
    wb = WB + 4 * (ks % 4)
    base, off = (vB2, ks * 4096) if ks < 8 else (vB1, WVL - WVH + (ks - 8) * 4096)
    return [f'ds_read_b64_tr_b16 {v(wb+2*rd, 2)}, {v(base)} offset:{off+rd*256}' for rd in range(2)]


qw1 = Q(w1_items(3, 0))
fl = Q([f'v_bfe_u32 v68, {v(vL)}, 2, 3', 'v_lshlrev_b32 v68, 10, v68', f'v_lshrrev_b32 v69, 5, {v(vL)}', 'v_lshl_add_u32 v68, v69, 6, v68',
        f'v_and_b32 v69, 3, {v(vL)}', 'v_lshl_add_u32 v68, v69, 4, v68', f's_lshl_b32 s4, {s(sHQ)}, 7', f'v_add_u32 {v(vWD)}, s4, v68',
        f'v_lshrrev_b32 v68, 2, {v(vL)}', 'v_lshlrev_b32 v68, 10, v68', 'v_lshl_add_u32 v68, v69, 4, v68',
        f'v_lshlrev_b32 v70, 2, {v(vL)}', f's_lshl_b32 s4, {s(sRB2)}, 7', f's_add_u32 s4, s4, {HELLO}'])


def hello_load():
    A('s_mov_b64 exec, 0xffff')
    t = A(f'buffer_load_dword v71, v70, {srd(rWS)}, s4 offen sc1')
    A('s_mov_b64 exec, -1')
    return t


def ones(d):
    def f():
        A(f's_cmp_ge_u32 {s(sRB)}, {d}')
        A(f's_cselect_b32 s6, s10, 0')
        A(f's_mov_b32 s7, s6')
    return [f] + [f'v_mov_b64 {v(VH+16*(4-d)+2*i, 2)}, s[6:7]' for i in range(8)]


fl.add([hello_load])
fl2 = Q(ones(4) + ones(3) + ones(2) + ones(1))
LOOK = 3
tk = {}
for ks in range(LOOK):
    for t in q_reads(ks):
        tk[ks] = A(t)
for ks in range(16):
    nxt = q_reads(ks + LOOK) if ks + LOOK < 16 else []
    A.wait(ds=tk[ks])
    for u in range(4):
        mm16(AQ + 4 * u, v(WB + 4 * (ks % 4), 4), hreg(u, ks), ks == 0)
        if u >= 2 and nxt:
            tk[ks + LOOK] = A(nxt[u - 2])
        if u == 0 and ks % 2 == 0:
            qw1.pop()
        else:
            (fl if ks < 5 else fl2).pop(2 if u < 2 else 1)
    if ks == OPT.get('kvf', 11):
        A.wait(vm=tok_kv)
        setflag(s(sFKV), False)
fl.flush()
fl2.flush()
tok_hello = fl.tok
qw1.flush()

stamp('q')


def slice_items(rs, lds0, glob0, n):
    items = []
    for i in range(n):
        def f(i=i):
            if i % 4 == 0:
                A(f's_add_u32 m0, {s(lds0[0])}, {lds0[1] + 1024*i}')
            A(f's_add_u32 {s(sBO)}, {s(glob0[0])}, {glob0[1] + 8192*i - 1024*(i%4)}')
            return A(f'buffer_load_dwordx4 {v(vWD)}, {srd(rs)}, {s(sBO)} offen offset:{1024*(i%4)} lds')
        items.append(f)
    return items


def xt_dma():
    A(f's_lshl_b32 s3, {s(sW)}, 11')
    A(f's_add_u32 m0, s3, {XST}')
    A(f's_add_u32 s3, {s(sTILE)}, {16384-1024}')
    A(f'buffer_load_dwordx4 v68, {srd(rX)}, {s(sTILE)} offen lds')
    return A(f'buffer_load_dwordx4 v68, {srd(rX)}, s3 offen offset:1024 lds')


qwo = Q([xt_dma] + w1_items(3, 1) + w1_items(3, 2))
qwo.pop(2)
for i in range(16):
    A(f'v_mul_f32 {v(AQ+i)}, 0x3eb8aa3b, {v(AQ+i)}')
for T in range(2):
    emit(pack2(QF + 4 * T, AQ + 8 * T))
for T in range(2):
    for r in range(2):
        A(f'v_permlane16_swap_b32 {v(QF+4*T+r)}, {v(QF+4*T+2+r)}')
tok_xt = qwo.tok
qwo.pop()
A(f's_andn2_b32 s7, {s(sN)}, 15')
A(f's_or_b32 s7, s7, {s(sXCC)}')
A.wait(vm=tok_hello)
A(f'v_cmp_ne_u32 vcc, s7, v71')
A(f's_and_b32 s7, vcc_lo, 0xffff')
A(f's_cselect_b32 {s(sFAST)}, 0, 1')
qwo.pop()


A.wait(vm=tok_p2)
mod_finish(4, 1024, PW, PC, PACC, SB, PRED2, bg=lambda: qwo.pop(2))
A(f'v_mov_b32 v73, v253')


def pretouch():
    sk = A.new('pt')
    A(f's_cmp_eq_u32 {s(sFAST)}, 0')
    A(f's_cbranch_scc1 {sk}')
    st = A.cond_begin()
    A(f's_lshl_b32 s3, {s(sRB)}, 3')
    A(f's_add_u32 s3, s3, {s(sHQ)}')
    A(f's_lshl_b32 s4, s3, 13')
    A(f's_lshl_b32 s5, {s(sW)}, 11')
    A(f's_add_u32 s4, s4, s5')
    A(f's_add_u32 s5, s4, {YBUF}')
    A(f's_add_u32 s4, s4, {OBUF}')
    if OPT['dmode']:
        A('s_mov_b64 exec, 0xffff')
        A(f'buffer_load_dword v72, v73, {srd(rWS)}, s4 offen sc1')
        A(f'buffer_load_dword v72, v73, {srd(rWS)}, s5 offen sc1')
        A('s_mov_b64 exec, 3')
        A(f'buffer_load_dword v72, v73, {srd(rWS)}, {s(sST)} offen sc1')
    A('s_mov_b64 exec, 1')
    A(f'buffer_load_dword v72, off, {srd(rWS)}, {s(sPO)} sc1')
    A(f'buffer_load_dword v72, off, {srd(rWS)}, {s(sPY)} sc1')
    A(f's_add_u32 s4, {s(sPF)}, 16384')
    A(f'buffer_load_dword v72, off, {srd(rWS)}, {s(sPF)} sc1')
    A(f'buffer_load_dword v72, off, {srd(rWS)}, s4 sc1')
    A('s_mov_b64 exec, -1')
    A.cond_end(st)
    A.label(sk)


def mm32(X, d, x, y, c):
    X(f'v_mfma_f32_32x32x16_bf16 {d}, {x}, {y}, {c}')


def units_of(blk):
    if blk == 0:
        return [(0, KO, VO, MD, 0), (1, KO, VO, None, 0), (1, KO + 4, VO + 8, MD, 0)]
    t0 = 8 - 2 * blk
    r = []
    for t in (t0 + 1, t0):
        for q in (0, 1):
            if t < q:
                continue
            r.append((q, KH + 4 * t, VH + 8 * t, MO if t == q else None, blk))
    return r


def s_mm(X, un, buf):
    q, k, _, m, _ = un
    mm32(X, v(SB + 16 * buf, 16), v(k, 4), v(QF + 4 * q, 4), v(m, 16) if m else '0')


def attn_units(X, uns, first, sub=None, bg=None, ready=None):
    if ready:
        ready(uns[0])
    s_mm(X, uns[0], 0)
    pend = None
    for n, un in enumerate(uns):
        q, _, vr, _, _ = un
        sb = SB + 16 * (n % 2)
        pb = PB + 8 * (n % 2)
        o = v(OA + 16 * q, 16)
        for hf in range(2):
            b = sb + 8 * hf
            if sub:
                for i in range(8):
                    X(f'v_sub_f32 {v(b+i)}, {v(b+i)}, {v(sub+q)}')
            seq = [('e', 0), ('p', 0), ('e', 1), ('e', 2), ('m', 0), ('c', 0), ('e', 3), ('e', 4), ('c', 1), ('e', 5), ('s', 0), ('e', 6), ('c', 2), ('e', 7)]
            for kind, i in seq:
                if kind == 'e':
                    X(f'v_exp_f32 {v(b+i)}, {v(b+i)}')
                elif kind == 'c':
                    X(f'v_cvt_pk_bf16_f32 {v(pb+4*hf+i)}, {v(b+2*i)}, {v(b+2*i+1)}')
                elif kind == 'p' and pend:
                    X(pend[0])
                elif kind == 'm' and pend:
                    mm32(X, *pend[1])
                    pend = None
                    if bg:
                        bg(n)
                elif kind == 's' and hf == 0 and n + 1 < len(uns):
                    if ready:
                        ready(uns[n + 1])
                    s_mm(X, uns[n + 1], (n + 1) % 2)
                    if bg:
                        bg(n)
            pend = (f'v_cvt_pk_bf16_f32 {v(pb+4*hf+3)}, {v(b+6)}, {v(b+7)}',
                    (o, v(vr + 4 * hf, 4), v(pb + 4 * hf, 4), '0' if q in first else o))
            first.discard(q)
    X(pend[0])
    mm32(X, *pend[1])


if OPT['fast']:
    pretouch()
obc = [0]


def own_bg(n):
    obc[0] += 1
    if obc[0] % 2 == 0:
        qwo.pop()


attn_units(A, units_of(0), {0, 1}, bg=own_bg)
stamp('own')
qwo.pop()
A(f'v_lshrrev_b32 v69, 5, {v(vL)}')
A(f'v_and_b32 v68, 31, {v(vL)}')
A(f'v_lshlrev_b32 v68, 6, v68')
A(f'v_lshl_add_u32 v68, v69, 3, v68')
A(f's_lshl_b32 s4, {s(sW)}, 11')
A(f's_add_u32 s4, s4, {XST}')
A(f'v_add_u32 v68, s4, v68')
A.wait(vm=tok_xt)
for q in range(4):
    A(f'ds_read_b64 {a(64+2*q, 2)}, v68 offset:{16*q}')
for d in range(1, 5):
    A(f's_cmp_ge_u32 {s(sRB)}, {d}')
    A(f's_cselect_b32 s3, {d*4096}, 0')
    A(f's_sub_u32 {s(3+d)}, {s(sFKV)}, s3')
A(f's_mov_b64 {s(rH, 2)}, {s(sWS, 2)}')
qwo.flush()
A.wait_all(ds=True)
barrier()
stamp('wo')
sk = A.new('ep')
A(f's_cmp_lg_u32 s2, 0')
A(f's_cbranch_scc1 {sk}')
A(f's_cmp_lg_u32 {s(sW)}, 3')
A(f's_cbranch_scc1 {sk}')
lp, dn = A.new('epl'), A.new('epd')
st = A.cond_begin()
A(f'v_lshrrev_b32 v3, 2, {v(vL)}')
A(f'v_lshlrev_b32 v3, 7, v3')
A(f'v_and_b32 v4, 3, {v(vL)}')
A(f'v_lshl_add_u32 v3, v4, 4, v3')
A(f's_mov_b32 s8, {HELLO}')
A('s_mov_b32 s3, 0')
A.label(lp)
A(f'buffer_load_dwordx4 v[72:75], v3, {srd(rWS)}, s8 offen sc1')
A('s_add_u32 s3, s3, 1')
A.wait_all(vm=True)
for i in range(4):
    A(f'v_xor_b32 {v(72+i)}, {s(sN)}, {v(72+i)}')
A('v_or_b32 v72, v72, v73')
A('v_or3_b32 v72, v72, v74, v75')
A('v_cmp_lt_u32 vcc, 15, v72')
A(f's_cmp_lt_u32 s3, {LIMIT}')
A(f's_cbranch_vccz {dn}')
A(f's_cbranch_scc1 {lp}')
A.label(dn)
A(f'v_mov_b32 v3, {s(sN)}')
A('s_mov_b64 exec, 1')
A(f'buffer_store_dword v3, off, {srd(rWS)}, 0 offset:{EPOCH} sc1')
A('s_mov_b64 exec, -1')
A.cond_end(st)
A.label(sk)
lp, dn = A.new('kvp'), A.new('kvd')
A('s_mov_b32 s3, 0')
A.label(lp)
for d in range(4):
    A(f's_load_dword {s(8+d)}, {s(sWS, 2)}, {s(4+d)} glc')
A('s_add_u32 s3, s3, 1')
A('s_waitcnt lgkmcnt(0)')
A(f's_xor_b32 s8, s8, {s(sN)}')
for r in (9, 10, 11):
    A(f's_xor_b32 {s(r)}, {s(r)}, {s(sN)}')
    A(f's_or_b32 s8, s8, {s(r)}')
A(f's_cbranch_scc0 {dn}')
A(f's_cmp_lt_u32 s3, {LIMIT}')
A(f's_cbranch_scc1 {lp}')
A.label(dn)
stamp('kvflag')


def halo_loads(X, d):
    X(f's_cmp_ge_u32 {s(sRB)}, {d}')
    X(f's_cselect_b32 {s(rH+2)}, 0x1000000, 0')
    X(f's_sub_u32 s3, {s(sKV)}, {d*4096}')
    t0 = 8 - 2 * d
    for T in (1, 0):
        X(f'buffer_load_dwordx4 {v(KH+4*(t0+T), 4)}, {v(vL16)}, {srd(rH)}, s3 offen offset:{T*2048} sc1')
    X('s_mov_b32 exec_lo, 0xffff')
    X('s_mov_b32 exec_hi, 0xffff')
    for u in (2, 3, 0, 1):
        t = X(f'buffer_load_dwordx4 {v(VH+8*t0+4*u, 4)}, {v(vVS)}, {srd(rH)}, s3 offen offset:{(u//2)*2048+1024+(u%2)*512} sc1')
    X('s_mov_b64 exec, -1')
    return t


W2ORD = [7 * jj + t for jj in range(4) for t in range(4)] + [7 * jj + t for jj in range(4) for t in range(4, 7)]


def w2reg(fi, n):
    m = W2ORD.index(n)
    return (72 + 8 * m if m < 23 else 32 + 8 * (m - 23)) + 4 * fi


def w2_issue(b):
    items = []
    for i, n in enumerate(W2ORD[5 * b:5 * b + 5]):
        def f(i=i, n=n):
            A(f's_add_u32 m0, {s(sRING)}, {2048*i}')
            A(f's_add_u32 {s(sBO)}, s11, {16384*n}')
            return A(f'buffer_load_dwordx4 {v(vWD)}, {srd(rW2)}, {s(sBO)} offen lds')

        def g(i=i, n=n):
            A(f's_add_u32 {s(sBO)}, s11, {16384*n + 8192 - 1024}')
            return A(f'buffer_load_dwordx4 {v(vWD)}, {srd(rW2)}, {s(sBO)} offen offset:1024 lds')
        items += [f, g]
    return items


def w2_read(b):
    return [f'ds_read_b64_tr_b16 {a(w2reg(fi, n)+2*rd, 2)}, {v(vR0+fi)} offset:{i*2048+rd*256}'
            for i, n in enumerate(W2ORD[5 * b:5 * b + 5]) for fi in range(2) for rd in range(2)]


tok_h = {1: halo_loads(A, 1), 2: halo_loads(A, 2)}
A(f's_lshl_b32 s11, {s(sW)}, 14')
A(f's_lshl_b32 s10, {s(sW)}, 17')
G2 = VH + 32
qbg = Q(slice_items(rWO, (11, WOS), (10, 0), 16))
qg2 = Q([f'v_lshlrev_b32 {v(vVS)}, 4, v0'] + gather_loads(1024, 2, G2, vVS))
bgc = [0]


def att_bg(n):
    bgc[0] += 1
    if bgc[0] == 1:
        tok_h[3] = halo_loads(A, 3)
    elif bgc[0] == OPT.get('h4', 7):
        tok_h[4] = halo_loads(A, 4)
    elif bgc[0] > OPT.get('wo0', 12):
        if qbg.q:
            qbg.pop()
        elif n >= 9:
            qg2.pop(2)


attn_units(A, [u for d in range(1, 5) for u in units_of(d)], set(), bg=att_bg, ready=lambda un: A.wait(vm=tok_h[un[4]]))
assert not qbg.q and not qg2.q, (len(qbg.q), len(qg2.q))
redo, fin = A.new('redo'), A.new('attfin')
A(f's_mov_b32 s3, {"0" if OPT["forcemax"] else "0x67800000"}')
A(f's_mov_b32 s6, 0x17800000')
A(f's_add_u32 s10, {s(sO)}, 32768')
A(f'v_max_f32 v3, {v(OA+8)}, {v(OA+24)}')
A(f'v_min_f32 v4, {v(OA+8)}, {v(OA+24)}')
A(f'v_cmp_u_f32 s[8:9], {v(OA+8)}, {v(OA+24)}')
A(f'v_cmp_nle_f32 s[4:5], s6, v4')
A(f'v_cmp_nge_f32 vcc, s3, v3')
A('s_or_b64 s[4:5], s[8:9], s[4:5]')
A('s_or_b64 vcc, vcc, s[4:5]')
A(f's_cbranch_vccnz {redo}')
A.label(fin)
C = COLD
C.label(redo)
C('s_waitcnt vmcnt(0)')
C(f'v_lshrrev_b32 v4, 5, {v(vL)}')
C(f'v_and_b32 v3, 15, {v(vL)}')
C(f'v_lshl_add_u32 v3, v4, 4, v3')
C(f'v_lshlrev_b32 {v(vVS)}, 4, v3')
for i in range(32):
    C(f'v_mov_b32 {v(G2+i)}, 0x3f803f80')
for d in (1, 2):
    halo_loads(C, d)
C('s_waitcnt vmcnt(0)')
C(f'v_mov_b32 v3, 0xff7fffff')
C(f'v_mov_b32 v4, 0xff7fffff')
mx_end, p2_end = C.new('mxend'), C.new('p2end')
for d in range(5):
    if d:
        C(f's_cmp_lt_u32 {s(sRB)}, {d}')
        C(f's_cbranch_scc1 {mx_end}')
    for un in units_of(d):
        s_mm(C, un, 0)
        for i in range(0, 16, 2):
            C(f'v_max3_f32 {v(3+un[0])}, {v(3+un[0])}, {v(SB+i)}, {v(SB+i+1)}')
C.label(mx_end)
for q in range(2):
    C(f'v_mov_b32 {v(SB)}, {v(3+q)}')
    C(f'v_permlane32_swap_b32 {v(SB)}, {v(3+q)}')
    C(f'v_max_f32 {v(3+q)}, {v(SB)}, {v(3+q)}')
fs = {0, 1}
for d in range(5):
    if d:
        C(f's_cmp_lt_u32 {s(sRB)}, {d}')
        C(f's_cbranch_scc1 {p2_end}')
    attn_units(C, units_of(d), fs, sub=3)
C('s_nop 7')
C.label(p2_end)
C('s_nop 7')
C(f'v_lshlrev_b32 {v(vVS)}, 4, v0')
for f in gather_loads(1024, 2, G2, vVS):
    f(C)
C('s_waitcnt vmcnt(0)')
C(f's_branch {fin}')
for q in range(2):
    A(f'v_rcp_f32 {v(OA+16*q+8)}, {v(OA+16*q+8)}')
for q in range(2):
    for i in range(4):
        A(f'v_pk_mul_f32 {v(OA+16*q+2*i, 2)}, {v(OA+16*q+2*i, 2)}, {v(OA+16*q+8, 2)} op_sel_hi:[1,0]')
    for i in range(4):
        A(f'v_cvt_pk_bf16_f32 {v(OA+16*q+i)}, {v(OA+16*q+2*i)}, {v(OA+16*q+2*i+1)}')
stamp('attn')
tok_o = handoff([f'buffer_store_dwordx4 {v(OA+16*q, 4)}, {v(vL16)}, {srd(rWS)}, {s((sO, 10)[q])} offen @' for q in range(2)], OPT['dmode'])

gather_check(1024, 2, G2, vVS, qg2.tok, 3)
A(f's_cmp_lt_u32 {s(sW)}, 2')
A(f's_cselect_b32 s3, 1.0, 0')
add_const_round(G2 + 16, 3)
A(f'v_lshlrev_b32 v4, 3, v0')
A(f'v_add_u32 v4, {T_MOD2}, v4')
A(f'ds_write_b64 v4, {v(G2, 2)}')
A(f'ds_write_b64 v4, {v(G2+16, 2)} offset:2048')
A(f'v_lshrrev_b32 v16, 5, {v(vL)}')
A(f'v_mul_u32_u24 v16, 768, v16')
A(f'v_sub_u32 v16, {v(vR0)}, v16')
A(f's_add_u32 s3, s11, {WOS}')
A(f's_sub_u32 s3, s3, {s(sRING)}')
A(f'v_add_u32 v16, s3, v16')
A(f'v_xor_b32 v17, 512, v16')
wor = [f'ds_read_b64_tr_b16 {a(fi*32+4*i+2*rd, 2)}, {v(16+fi)} offset:{i*2048+rd*1024}' for i in range(8) for fi in range(2) for rd in range(2)]
emit(wor[:OPT.get('wor', 0)])
A.wait(vm=tok_o)
setflag(s(sFO))
emit(wor[OPT.get('wor', 0):])
A(f's_mul_i32 s11, {s(sW)}, {448*1024}')
CG, CS, GB, X1, CB = 208, 224, 240, 184, 248
vP, vW1a, vW1b, vI, vO1, vO2, vO3 = 252, 6, 7, 8, 253, 254, 255
A(f'v_lshlrev_b32 {v(vP)}, 2, {v(vL)}')
A(f'v_lshrrev_b32 v4, 5, {v(vL)}')
A(f'v_lshlrev_b32 v4, 3, v4')
A(f's_and_b32 s3, {s(sTILE)}, 1023')
A(f's_add_u32 s3, s3, {T_MOD2}')
A(f'v_add_u32 v4, s3, v4')
for i in range(8):
    A(f'v_accvgpr_read_b32 {v(144+i)}, {a(64+i)}')
for i in range(8):
    emit(unpack2(X1 + 2 * i, 144 + i))
A.wait_all(ds=True)
barrier()
for q in range(4):
    A(f'ds_read_b64 {v(144+2*q, 2)}, v4 offset:{16*q}')
    A(f'ds_read_b64 {v(152+2*q, 2)}, v4 offset:{2048+16*q}')
    tcs = A(f'ds_read_b64 {v(GB+2*q, 2)}, v4 offset:{3072+16*q}')
A(f's_add_u32 s6, {s(sOL0)}, 4096')
A(f's_add_u32 s7, {s(sOL1)}, 4096')
stamp('prep')

OB, ACC, RX = 16, 80, 144
vpoll(vP, 8, s(sPO), 15)
stamp('oflag')
tk = {}
qo = Q()
for ti in (1, 0):
    for i in range(8):
        def f(ti=ti, i=i):
            so = ((sOL0, 6), (sOL1, 7))[ti][i // 4]
            tk[ti, i] = A(f'buffer_load_dwordx4 {v(OB+32*ti+4*i, 4)}, {v(vL16)}, {srd(rWS)}, {s(so)} offen offset:{(i%4)*1024} sc1')
        qo.add([f])
qo.pop(8)
A.wait(ds=tcs)
for i in range(8):
    emit(unpack2(CG + 2 * i, 144 + i) + unpack2(CS + 2 * i, 152 + i))
for aa in range(1, 4):
    A(f's_xor_b32 s3, {s(sW)}, {aa}')
    A(f's_mul_i32 s3, s3, {RING}')
    A(f's_add_u32 s3, s3, {SCR + (4096 if aa == 3 else 0)}')
    A(f'v_add_u32 {v(vO1+aa-1)}, s3, {v(vL16)}')


def red_write(aa):
    return [f'ds_write_b128 {v(vO1+aa-1)}, {v(ACC+16*aa+4*r, 4)} offset:{r*1024}' for r in range(4)]


def red_sync():
    A.wait_all(ds=True)
    barrier()


def red_early():
    l = red_write(3) + red_write(2) + [red_sync]
    l += [f'ds_read_b128 {v(RX+16*p+4*r, 4)}, {v(vI)} offset:{p*4096+r*1024}' for p in range(2) for r in range(4)]
    l += [red_sync]
    l += [f'v_add_f32 {v(RX+i)}, {v(RX+i)}, {v(RX+16+i)}' for i in range(16)]
    return l


def red_final(extra=(), vm=None):
    emit(red_write(1))
    for i in range(8):
        A(f'v_pk_add_f32 {v(ACC+2*i, 2)}, {v(ACC+2*i, 2)}, {v(RX+2*i, 2)}')
    emit(extra)
    A.wait(vm=vm)
    red_sync()
    t = [A(f'ds_read_b128 {v(RX+4*r, 4)}, {v(vI)} offset:{r*1024}') for r in range(4)]
    for r in range(4):
        A.wait(ds=t[r])
        for h in range(2):
            A(f'v_pk_add_f32 {v(ACC+4*r+2*h, 2)}, {v(ACC+4*r+2*h, 2)}, {v(RX+4*r+2*h, 2)}')


qr = Q(red_early())
qo.add(w1_items(1, 12) + [f'v_add_u32 {v(vI)}, {s(sRING)}, {v(vL16)}'])
for ti in (1, 0):
    for i in range(8):
        A.wait(vm=tk[ti, i])
        for fi in (1, 0):
            d = v(ACC + 32 * ti + 16 * fi, 16)
            mm32(A, d, a(32 * fi + 4 * i, 4), v(OB + 32 * ti + 4 * i, 4), '0' if i == 0 else d)
            if ti == 1:
                qo.pop()
            if ti == 0 and i >= 1:
                qr.pop(1 if i < 5 else 5)
qr.flush()
red_final([f'v_bfe_u32 v3, {v(vL)}, 4, 1', f'v_and_b32 v4, 15, {v(vL)}', 'v_lshlrev_b32 v4, 4, v4', 'v_lshl_add_u32 v15, v3, 3, v4',
           'v_lshl_add_u32 v4, v3, 14, v4', f'v_lshrrev_b32 v3, 5, {v(vL)}', 'v_lshl_add_u32 v4, v3, 8, v4'], qo.tok)
for i in range(8):
    A(f'v_pk_fma_f32 {v(X1+2*i, 2)}, {v(ACC+2*i, 2)}, {v(CG+2*i, 2)}, {v(X1+2*i, 2)}')
for i in range(8):
    A(f'v_pk_mul_f32 {v(CS+2*i, 2)}, {v(CS+2*i, 2)}, {v(X1+2*i, 2)}')
for i in range(8):
    A(f'v_cvt_pk_bf16_f32 {v(CS+i)}, {v(CS+2*i)}, {v(CS+2*i+1)}')
handoff([f'buffer_store_dwordx4 {v(CS+4*g, 4)}, v4, {srd(rWS)}, {s(sY)} offen offset:{512*g} @' for g in range(2)], OPT['dmode'])
A(f'v_pk_add_f32 {v(CG, 2)}, {v(X1, 2)}, {v(X1+2, 2)}')
A(f'v_pk_mul_f32 {v(CG+2, 2)}, {v(X1, 2)}, {v(X1, 2)}')
for i in range(1, 8):
    if i > 1:
        A(f'v_pk_add_f32 {v(CG, 2)}, {v(CG, 2)}, {v(X1+2*i, 2)}')
    A(f'v_pk_fma_f32 {v(CG+2, 2)}, {v(X1+2*i, 2)}, {v(X1+2*i, 2)}, {v(CG+2, 2)}')
A(f'v_add_f32 {v(CG)}, {v(CG)}, {v(CG+1)}')
A(f'v_add_f32 {v(CG+1)}, {v(CG+2)}, {v(CG+3)}')
A(f'v_mov_b64 {v(CG+2, 2)}, {v(CG, 2)}')
A(f'v_permlane32_swap_b32 {v(CG)}, {v(CG+2)}')
A(f'v_permlane32_swap_b32 {v(CG+1)}, {v(CG+3)}')
A(f'v_pk_add_f32 {v(CG, 2)}, {v(CG, 2)}, {v(CG+2, 2)}')
A('s_mov_b32 exec_hi, 0')
tok_y = handoff([f'buffer_store_dwordx2 {v(CG, 2)}, v15, {srd(rWS)}, {s(sST)} offen @'], OPT['dmode'])
A('s_mov_b64 exec, -1')
stamp('oproj')

A(f'v_lshrrev_b32 v16, 5, {v(vL)}')
A(f'v_lshlrev_b32 v4, 4, v16')
A(f'v_bfe_u32 v17, {v(vL)}, 2, 3')
A(f'v_add_u32 v4, v4, v17')
A(f'v_mul_u32_u24 v4, 224, v4')
A(f'v_and_b32 v17, 3, {v(vL)}')
A(f'v_lshl_add_u32 {v(vW1a)}, v17, 3, v4')
A(f'v_add_u32 {v(vW1b)}, {8*7168}, {v(vW1a)}')
A(f'v_and_b32 v18, 1, {v(vL)}')
A(f'v_lshlrev_b32 v4, 10, v18')
A(f'v_lshl_add_u32 v4, v16, 5, v4')
A(f'v_bfe_u32 v17, {v(vL)}, 4, 1')
A(f'v_lshl_add_u32 v4, v17, 3, v4')
A(f'v_add_u32 v4, {T_MOD2+1024}, v4')
A(f's_add_u32 s9, {s(sW)}, 4')
A(f's_min_u32 s9, s9, 6')
A(f's_lshl_b32 s4, {s(sW)}, 5')
A(f's_lshl_b32 s5, s9, 5')
A(f'v_add_u32 v20, s4, {v(vW1a)}')
A(f'v_add_u32 v21, s5, {v(vW1a)}')
A(f'v_add_u32 v22, s4, {v(vW1b)}')
A(f'v_add_u32 v23, s5, {v(vW1b)}')
tk = {}


def cb_reads(ks):
    b = 32 + (ks % 4) * 12
    A(f'ds_read2_b64 {v(b, 4)}, v4 offset0:{ks*8} offset1:{ks*8+2}')
    for t in range(2):
        base = (20, 21)[t] if ks < 8 else (22, 23)[t]
        for rd in range(2):
            tk[ks] = A(f'ds_read_b64_tr_b16 {v(b+4+4*t+2*rd, 2)}, {v(base)} offset:{(ks%8)*7168+rd*1792}')


qb = Q(w2_issue(0))
for ks in range(3):
    cb_reads(ks)
for ks in range(16):
    A.wait(ds=tk[ks])
    b = 32 + (ks % 4) * 12
    for t in range(2):
        mm16(24 + 4 * t, v(b + 4 + 4 * t, 4), v(b, 4), ks == 0)
    if ks + 3 < 16:
        cb_reads(ks + 3)
    if ks == OPT.get('yf', 5):
        A.wait(vm=tok_y)
        setflag(s(sFY))
    if ks > OPT.get('yf', 5):
        qb.pop()
qb.flush()
A(f'v_lshlrev_b32 v4, 6, v18')
A(f'v_lshrrev_b32 v17, 4, {v(vL)}')
A(f'v_lshl_add_u32 v4, v17, 4, v4')
A(f's_lshl_b32 s4, {s(sW)}, 7')
A(f's_lshl_b32 s5, s9, 7')
A(f's_add_u32 s4, s4, {T_CB}')
A(f's_add_u32 s5, s5, {T_CB}')
A(f'v_add_u32 v16, s4, v4')
A(f'v_add_u32 v4, s5, v4')
A(f'ds_write_b128 v16, {v(24, 4)}')
A(f'ds_write_b128 v4, {v(28, 4)}')
A(f'v_and_b32 v4, 15, {v(vL)}')
A(f'v_lshlrev_b32 v4, 6, v4')
A(f'v_lshl_add_u32 v4, v17, 4, v4')
A(f'v_add_u32 v4, {T_CB}, v4')
A.wait_all(ds=True)
barrier()
A(f'ds_read_b128 {v(CB, 4)}, v4')
stamp('cb')

YB, FA, FW, SV, SL = 16, 144, 216, 232, 200


def facc(t, u):
    r = FA + 8 * t + 4 * u
    return r if r < X1 else r + 16


vpoll(vP, 16, s(sPY), 15)
stamp('yflag')
ty = {}
qy = Q()
for ks in range(16):
    for u in range(2):
        def f(ks=ks, u=u):
            if ks % 4 == 0:
                A(f's_add_u32 {s(4+u)}, {s(sYL)}, {ks*1024 + u*16384}')
            ty[ks] = A(f'buffer_load_dwordx4 {v(YB+8*ks+4*u, 4)}, {v(vL16)}, {srd(rWS)}, {s(4+u)} offen offset:{(ks%4)*1024} sc1')
        qy.add([f])
qy.add([f'buffer_load_dwordx4 {v(SL+4*i, 4)}, {v(vL16)}, {srd(rWS)}, {s(sSTL)} offen offset:{i*1024} sc1' for i in range(4)])
qy.pop(8)
emit(w2_read(0))
stats = [lambda: A.wait(vm=qy.tok)]
for e in range(4):
    stats += [f'v_add_f32 {v(SL+e)}, {v(SL+e)}, {v(SL+4+e)}', f'v_add_f32 {v(SL+8+e)}, {v(SL+8+e)}, {v(SL+12+e)}']
stats += [f'v_add_f32 {v(SL+e)}, {v(SL+e)}, {v(SL+8+e)}' for e in range(4)]
for sw in ('32', '16'):
    stats += [f'v_mov_b32 {v(SL+4+e)}, {v(SL+e)}' for e in range(4)]
    stats += [f'v_permlane{sw}_swap_b32 {v(SL+e)}, {v(SL+4+e)}' for e in range(4)]
    stats += [f'v_add_f32 {v(SL+e)}, {v(SL+e)}, {v(SL+4+e)}' for e in range(4)]
for u in range(2):
    stats += [f'v_mul_f32 {v(SV+2*u)}, 0xbb000000, {v(SL+2*u)}',
              f'v_mul_f32 {v(SL+2*u+1)}, 0x3b000000, {v(SL+2*u+1)}',
              f'v_fma_f32 {v(SL+2*u+1)}, -{v(SV+2*u)}, {v(SV+2*u)}, {v(SL+2*u+1)}',
              f'v_max_f32 {v(SL+2*u+1)}, 0, {v(SL+2*u+1)}',
              f'v_add_f32 {v(SL+2*u+1)}, 0x3727c5ac, {v(SL+2*u+1)}',
              f'v_sqrt_f32 {v(SV+2*u+1)}, {v(SL+2*u+1)}',
              f'v_rsq_f32 {v(SL+2*u)}, {v(SL+2*u+1)}']
stats += [f'v_and_b32 v4, 15, {v(vL)}', 'v_lshlrev_b32 v4, 2, v4', f's_lshl_b32 s3, {s(sW)}, 7', f's_add_u32 s3, s3, {T_RST}', 'v_add_u32 v4, s3, v4',
          f'ds_write_b32 v4, {v(SL)}', f'ds_write_b32 v4, {v(SL+2)} offset:64']
qs = Q(stats)


def ffn1_pass(tiles, waity, fill):
    seq = [(ks, t) for ks in range(16) for t in tiles]

    def rd(n):
        ks, t = seq[n]
        base = vW1a if ks < 8 else vW1b
        return [f'ds_read_b64_tr_b16 {v(FW+4*(n%4)+2*r, 2)}, {v(base)} offset:{(ks%8)*7168+r*1792+t*32}' for r in range(2)]
    LK = 3
    tk = {}
    for n in range(LK):
        for t in rd(n):
            tk[n] = A(t)
    for n, (ks, t) in enumerate(seq):
        nxt = rd(n + LK) if n + LK < len(seq) else []
        A.wait(vm=ty[ks] if waity else None, ds=tk[n])
        for u in range(2):
            mm16(facc(t, u), v(FW + 4 * (n % 4), 4), v(YB + 8 * ks + 4 * u, 4), ks == 0)
            if nxt:
                tk[n + LK] = A(nxt[u])
            if u == 0:
                fill(n)


def ffn1_epi(tiles, sdst):
    for t in tiles:
        for u in range(2):
            for i in range(4):
                A(f'v_fmac_f32_dpp {v(facc(t, u)+i)}, {v(CB+i)}, {v(SV+2*u)} row_newbcast:{2*t+1} row_mask:0xf bank_mask:0xf')
        for u in range(2):
            for i in range(4):
                A(f'v_fmac_f32_dpp {v(facc(t, u)+i)}, {v(CB+i)}, {v(SV+2*u+1)} row_newbcast:{2*t} row_mask:0xf bank_mask:0xf')
    for t in tiles:
        emit(pack2(facc(t, 0), facc(t, 0)))
        for i in range(4):
            A(f'v_pk_max_i16 {v(facc(t, 0)+i)}, {v(facc(t, 0)+i)}, 0')
    for t in tiles:
        for r in range(2):
            A(f'v_permlane16_swap_b32 {v(facc(t, 0)+r)}, {v(facc(t, 0)+2+r)}')
    return handoff([f'buffer_store_dwordx4 {v(facc(t, 0), 4)}, {v(vL16)}, {srd(rWS)}, {sdst} offen offset:{(t%4)*1024} @' for t in tiles], OPT['fmode'])


qb = Q(w2_issue(1))


def fill1(n):
    if qy.q:
        if n % 4 < 3:
            qy.pop()
    elif qb.q:
        qb.pop()
    else:
        qs.pop(4)


ffn1_pass(range(4), True, fill1)
qb.flush()
qs.flush()
stamp('c1')
tokb = qb.tok
tf1 = ffn1_epi(range(4), s(sF))
qc = Q([lambda: A.wait(vm=tokb)] + w2_read(1))
hold = {}


def ring_step(b):
    def issue():
        A.wait_all(ds=True)
    l = [issue]
    its = w2_issue(b)

    def last():
        hold[b] = its[-1]()
    return l + its[:-1] + [last]


def flag1():
    A.wait(vm=tf1)
    setflag(s(sFF))


qc.add(ring_step(2))
qc2 = Q([flag1, lambda: A.wait(vm=hold[2])] + w2_read(2) + ring_step(3))


def fill2(n):
    if n < 28:
        qc.pop(2)
    else:
        qc2.pop(2)


ffn1_pass(range(4, 7), False, fill2)
qc.flush()
qc2.flush()
A(f's_add_u32 s4, {s(sF)}, 4096')
tf2 = ffn1_epi(range(4, 7), 's4')
barrier()
A(f's_lshl_b32 s10, {s(sW)}, 14')
for i, n in enumerate(W2ORD[20:]):
    A(f's_add_u32 m0, s10, {2048*i}')
    A(f's_add_u32 {s(sBO)}, s11, {16384*n}')
    A(f'buffer_load_dwordx4 {v(vWD)}, {srd(rW2)}, {s(sBO)} offen lds')
    A(f's_add_u32 {s(sBO)}, s11, {16384*n + 8192 - 1024}')
    A(f'buffer_load_dwordx4 {v(vWD)}, {srd(rW2)}, {s(sBO)} offen offset:1024 lds')
A(f's_sub_u32 s10, s10, {s(sRING)}')
A(f'v_add_u32 v9, s10, {v(vR0)}')
A(f'v_add_u32 v10, s10, {v(vR1)}')
w2last = [f'ds_read_b64_tr_b16 {a(w2reg(fi, n)+2*rd, 2)}, {v(9+fi)} offset:{i*2048+rd*256}'
          for i, n in enumerate(W2ORD[20:]) for fi in range(2) for rd in range(2)]
A(f's_lshr_b32 s3, {s(sTILE)}, 8')
A(f's_and_b32 s3, s3, 0x180')
A(f's_add_u32 s3, s3, {T_RST}')
A(f'v_and_b32 {v(vW1a)}, 31, {v(vL)}')
A(f'v_lshl_add_u32 v4, {v(vW1a)}, 2, s3')
trs = A(f'ds_read_b32 {v(236)}, v4')
A.wait(vm=tf2)
A(f's_add_u32 s4, {s(sFF)}, 16384')
setflag('s4')
stamp('ffn1')

NB = 16


def fbuf(n):
    return 16 + 4 * (n % NB)


A(f's_add_u32 s9, {s(sPF)}, 16384')
first = {0, 1}
base = 0
for stage, tl in enumerate((range(4), range(4, 7))):
    vpoll(vP, 8, s((sPF, 9)[stage]), 15)
    if stage == 0:
        stamp('fflag')
    seq = [(ti, jj, t) for ti in (1, 0) for jj in range(4) for t in tl]
    tk = {}

    def ld(n):
        ti, jj, t = seq[n]
        if t == tl[0]:
            A(f's_add_u32 s4, {s((sFL0, sFL1)[ti])}, {(7*jj+t)*1024}')
        tk[n] = A(f'buffer_load_dwordx4 {v(fbuf(n), 4)}, {v(vL16)}, {srd(rWS)}, s4 offen offset:{(t-tl[0])*1024} sc1')
    LK = OPT.get('lk', 12)
    for n in range(LK):
        ld(n)
    if stage == 0:
        fq = Q(w2_read(3) + [lambda: A.wait_all(ds=True)] + w2last + [x for i in range(8) for x in unpack2(CG + 2 * i, GB + i)] + [lambda: A.wait_all(ds=True)] +
               [f'v_mul_f32 {v(CG+i)}, {v(CG+i)}, {v(236)}' for i in range(16)] + [barrier])
    else:
        fq = Q(red_early())
    for n, (ti, jj, t) in enumerate(seq):
        A.wait(vm=tk[n])
        for fi in (1, 0):
            d = v(ACC + 32 * ti + 16 * fi, 16)
            mm32(A, d, a(w2reg(fi, 7 * jj + t), 4), v(fbuf(n), 4), '0' if ti in first else d)
            if fi == 1 and n + LK < len(seq):
                ld(n + LK)
            if stage == 0:
                fq.pop(2)
            elif n >= 13:
                fq.pop(1 if n < 17 else 3)
        first.discard(ti)
    fq.flush()
stamp('ffn2')
red_final([f'v_lshlrev_b32 {v(vW1a)}, 10, {v(vW1a)}', f'v_lshrrev_b32 v4, 5, {v(vL)}', f'v_lshl_add_u32 {v(vW1a)}, v4, 4, {v(vW1a)}'])
for i in range(8):
    A(f'v_pk_fma_f32 {v(X1+2*i, 2)}, {v(ACC+2*i, 2)}, {v(CG+2*i, 2)}, {v(X1+2*i, 2)}')
for i in range(8):
    A(f'v_cvt_pk_bf16_f32 {v(X1+i)}, {v(X1+2*i)}, {v(X1+2*i+1)}')
for k in range(2):
    for r in range(2):
        A(f'v_permlane32_swap_b32 {v(X1+4*k+r)}, {v(X1+4*k+2+r)}')
for k in range(2):
    A(f'buffer_store_dwordx4 {v(X1+4*k, 4)}, {v(vW1a)}, {srd(rOUT)}, {s(sTILE)} offen offset:{32*k} {"sc1" if OPT["outsc1"] else ""}')

if OPT['stamps']:
    A.wait_all(vm=True)
    NAMES_n = len(NAMES)
    A(f's_mov_b32 {s(STAMP0+NAMES_n-1)}, {s(STP)}')
    A(f's_memtime {s(STP, 2)}')
    NAMES.append('end')
    A('s_waitcnt lgkmcnt(0)')
    A('v_mov_b32 v3, 0')
    for k in range(NAMES_n):
        A(f'v_writelane_b32 v3, {s(STAMP0+k)}, {k}')
    A(f'v_writelane_b32 v3, {s(STP)}, {NAMES_n}')
    A(f'v_writelane_b32 v3, {s(sXCC)}, 30')
    A(f'v_writelane_b32 v3, {s(sFAST)}, 31')
    A(f's_lshl_b32 s3, s2, 2')
    A(f's_add_u32 s3, s3, {s(sW)}')
    A(f's_lshl_b32 s3, s3, 7')
    A(f's_add_u32 s3, s3, {STAMPS}')
    A(f'v_lshlrev_b32 v4, 2, {v(vL)}')
    A('s_mov_b32 exec_hi, 0')
    A(f'buffer_store_dword v3, v4, {srd(rWS)}, s3 offen')
if OPT['pad']:
    A.label('L_padl')
    A('s_memrealtime s[4:5]')
    A('s_waitcnt lgkmcnt(0)')
    A('s_sub_u32 s4, s4, s100')
    A(f's_cmp_lt_u32 s4, {OPT["pad"]}')
    A('s_cbranch_scc1 L_padl')
A.label('L_end')
A('s_endpgm')
A.label('L_hot_end')
A.ins += COLD.ins
body, added = A.text()

hdr = open('cdna_kernels/' + NAME + '.s.ref').read().split('\n')
hdr = [l for l in hdr if l.startswith(';') and '@launch' not in l and 'Override' not in l and 'grid=ceil' not in l]
out = '\n'.join(hdr) + f'''
; @launch grid=(256,1,1) block=(256,1,1) lds=163840
; generated by gen/gen.py (hand-written generator): one persistent launch, one workgroup per CU
.amdgcn_target "amdgcn-amd-amdhsa--gfx950"
.text
.globl {NAME}_kernel
.p2align 8
.type {NAME}_kernel,@function
{NAME}_kernel:
{body}
  s_endpgm
.fill 2048, 4, 0xbf800000
  s_endpgm
.section .rodata,"a"
.p2align 6
.amdhsa_kernel {NAME}_kernel
  .amdhsa_next_free_vgpr 512
  .amdhsa_next_free_sgpr 102
  .amdhsa_accum_offset 256
  .amdhsa_group_segment_fixed_size 0
  .amdhsa_kernarg_size 88
  .amdhsa_user_sgpr_count 2
  .amdhsa_user_sgpr_kernarg_segment_ptr 1
  .amdhsa_system_sgpr_workgroup_id_x 1
  .amdhsa_float_denorm_mode_32 3
.end_amdhsa_kernel
'''
open(sys.argv[1], 'w').write(out)
open(sys.argv[1] + '.names', 'w').write(' '.join(NAMES))
print(f'instructions: {len(A.ins)}, nops added: {added}, stamps: {len(NAMES)}')
```

```python
import re

REG_RE = re.compile(r'^(-|\|)?([vas])(?:(\d+)|\[(\d+):(\d+)\])\|?$')
TRANS = ('v_exp_f32', 'v_log_f32', 'v_rcp_f32', 'v_rsq_f32', 'v_sqrt_f32', 'v_sin_f32', 'v_cos_f32', 'v_rcp_iflag_f32')


def regs_of(op):
    op = op.strip()
    if op in ('vcc', 'vcc_lo', 'vcc_hi'):
        return {('s', 'vcc')}
    if op in ('exec', 'exec_lo', 'exec_hi'):
        return {('s', 'exec')}
    if op == 'm0':
        return {('s', 'm0')}
    m = re.match(r'^abs\((.*)\)$', op)
    if m:
        op = m.group(1)
    m = REG_RE.match(op)
    if not m:
        return set()
    k = m.group(2)
    if m.group(3) is not None:
        return {(k, int(m.group(3)))}
    return {(k, i) for i in range(int(m.group(4)), int(m.group(5)) + 1)}


class Ins:
    __slots__ = ('text', 'op', 'kind', 'w', 'r', 'label', 'target', 'passes', 'ra', 'rb', 'rc', 'data', 'uncond', 'nop', 'dpp', 'ldsdma', 'dotab')

    def __init__(self, text):
        self.text = text
        self.label = None
        self.target = None
        self.w = set()
        self.r = set()
        self.passes = 0
        self.ra = self.rb = self.rc = set()
        self.data = set()
        self.uncond = False
        self.nop = 1
        self.dpp = False
        self.ldsdma = False
        self.dotab = set()
        t = text.split(';')[0].strip()
        if t.endswith(':'):
            self.label = t[:-1]
            self.kind = 'label'
            self.op = ''
            self.nop = 0
            return
        if t.startswith('.') or not t:
            self.kind = 'dir'
            self.op = ''
            self.nop = 0
            return
        sp = t.split(None, 1)
        op = sp[0]
        rest = sp[1] if len(sp) > 1 else ''
        ops = []
        cur = ''
        d = 0
        for ch in rest:
            if ch in '[(':
                d += 1
            if ch in '])':
                d -= 1
            if ch == ',' and d == 0:
                ops.append(cur.strip())
                cur = ''
            else:
                cur += ch
        mods = ''
        if cur.strip():
            last = cur.strip().split(None, 1)
            ops.append(last[0])
            mods = last[1] if len(last) > 1 else ''
        base = re.sub(r'_(e32|e64|dpp|sdwa)$', '', op)
        self.op = base
        R = [regs_of(o) for o in ops]
        allr = lambda l: set().union(*l) if l else set()
        if base.startswith('v_mfma'):
            self.kind = 'mfma'
            self.passes = 8 if '32x32' in base else 4
            self.w = R[0]
            self.ra, self.rb, self.rc = R[1], R[2], R[3]
            self.r = R[1] | R[2] | R[3]
        elif base.startswith('v_'):
            self.kind = 'valu'
            self.dpp = op.endswith('_dpp')
            if base.startswith('v_permlane'):
                self.w = R[0] | R[1]
                self.r = R[0] | R[1]
            elif base.startswith('v_cmp'):
                self.w = R[0]
                self.r = allr(R[1:])
                assert not base.startswith('v_cmpx')
            elif base in ('v_add_co_u32', 'v_sub_co_u32', 'v_addc_co_u32'):
                self.w = R[0] | R[1]
                self.r = allr(R[2:])
            else:
                self.w = R[0]
                self.r = allr(R[1:])
                if base.startswith('v_dot'):
                    self.dotab = R[1] | R[2]
                if base.startswith('v_fmac') or base.startswith('v_dot2c') or base == 'v_writelane_b32' or self.dpp:
                    self.r |= R[0]
        elif base.startswith('ds_'):
            self.kind = 'ds'
            if base.startswith('ds_read'):
                self.w = R[0]
                self.r = allr(R[1:])
            else:
                self.r = allr(R)
        elif base.startswith('buffer_') or base.startswith('global_'):
            self.kind = 'vmem'
            lds = re.search(r'\blds\b', mods) is not None or 'load_lds' in base
            if base in ('buffer_wbl2', 'buffer_inv'):
                pass
            elif lds:
                self.ldsdma = True
                self.r = allr(R) | {('s', 'm0')}
            elif '_load' in base:
                self.w = R[0]
                self.r = allr(R[1:])
            else:
                self.r = allr(R)
                if base.endswith('x3') or base.endswith('x4'):
                    self.data = R[0] if base.startswith('buffer_') else R[1]
        elif base.startswith('s_'):
            self.kind = 'salu'
            if base == 's_nop':
                self.nop = int(ops[0], 0) + 1
            elif base.startswith('s_cbranch') or base == 's_branch':
                self.target = ops[0]
                self.uncond = base == 's_branch'
            elif base == 's_endpgm':
                self.uncond = True
            elif base.startswith('s_cmp') or base.startswith('s_bitcmp') or base in ('s_waitcnt', 's_barrier', 's_sleep', 's_setprio'):
                self.r = allr(R)
            else:
                self.w = R[0] if R else set()
                self.r = allr(R[1:])
        else:
            raise ValueError('unknown instruction: ' + text)


def need(p, c):
    n = 0
    vr = lambda s: {x for x in s if x[0] in 'va'}
    sr = lambda s: {x for x in s if x[0] == 's'}
    if p.kind == 'valu':
        pw = vr(p.w)
        if pw:
            if c.kind == 'mfma' and pw & c.r:
                n = max(n, 2)
            if c.kind == 'valu' and pw & c.r:
                if c.op.startswith('v_permlane') or c.dpp:
                    n = max(n, 2)
                if c.op in ('v_readlane_b32', 'v_readfirstlane_b32'):
                    n = max(n, 1)
                if p.op in TRANS and c.op not in TRANS:
                    n = max(n, 1)
            if p.op in TRANS and c.kind in ('ds', 'vmem') and pw & c.r:
                n = max(n, 1)
            if p.op.startswith('v_dot') and c.kind in ('valu', 'mfma', 'ds', 'vmem') and pw & (c.r | c.w):
                if not (c.op == p.op and not (pw & c.dotab)):
                    n = max(n, 3)
        ps = sr(p.w)
        if ps:
            if c.kind == 'valu' and ps & c.r:
                n = max(n, 4 if c.op in ('v_readlane_b32', 'v_writelane_b32') else 2)
            if c.kind == 'vmem' and ps & c.r:
                n = max(n, 5)
            if c.kind == 'salu' and ps & c.r:
                n = max(n, 1)
    elif p.kind == 'mfma':
        big = p.passes == 8
        if c.kind == 'mfma':
            if p.w & (c.ra | c.rb):
                n = max(n, 12 if big else 8)
            if p.w & c.rc and not (p.w == c.rc and p.passes == c.passes):
                n = max(n, 10 if big else 6)
            if p.w & c.w and not (p.w == c.rc and p.passes == c.passes):
                n = max(n, 10 if big else 6)
        elif c.kind in ('valu', 'ds', 'vmem'):
            if p.w & (c.r | c.w):
                n = max(n, 12 if big else 8)
            if c.kind == 'valu' and p.rc & c.w:
                n = max(n, 7 if big else 3)
    elif p.kind == 'vmem':
        if p.data and p.data & c.w:
            n = max(n, 2 if c.kind in ('valu', 'mfma') else 1)
    elif p.kind == 'salu':
        if ('s', 'm0') in p.w and c.ldsdma:
            n = max(n, 1)
    return n


MAXD = 13


def pad_hazards(ins):
    out = []
    added = 0
    labels_src = {}

    def worst(lst, srcs, idx, c):
        best = 0
        stack = [(idx - 1, 0, True)]
        seen = set()
        while stack:
            i, dist, fall = stack.pop()
            while i >= 0 and dist < MAXD:
                if (i, dist) in seen:
                    break
                seen.add((i, dist))
                p = lst[i]
                if p.kind == 'label':
                    for s in srcs.get(p.label, ()):
                        stack.append((s, dist, False))
                    i -= 1
                    fall = True
                    continue
                if p.kind == 'dir':
                    i -= 1
                    continue
                if p.uncond and fall:
                    break
                fall = True
                best = max(best, need(p, c) - dist)
                dist += p.nop
                i -= 1
        return best

    for c in ins:
        if c.kind not in ('label', 'dir'):
            k = worst(out, labels_src, len(out), c)
            if k > 0:
                out.append(Ins(f's_nop {k-1}'))
                added += 1
        if c.target:
            labels_src.setdefault(c.target, []).append(len(out))
        out.append(c)
    for i, c in enumerate(out):
        if c.kind in ('label', 'dir'):
            continue
        k = worst(out, labels_src, i, c)
        assert k <= 0, f'hazard across back edge at: {c.text}'
    return out, added


def cost(i, prev, busy):
    if i.kind == 'mfma':
        return 8
    if i.kind == 'valu':
        if i.op in TRANS or i.op.startswith('v_permlane'):
            return 8
        if busy and ((i.op.startswith('v_pk_') and 'f32' in i.op) or i.op.startswith('v_dot')):
            return 13
        return 4
    if i.kind == 'ds':
        c = 12 if prev == 'valu' else (8 if prev == 'ds' else 4)
        return max(c, 28) if i.op == 'ds_write_b128' else c
    if i.kind == 'vmem':
        return 16 if prev == 'valu' else (8 if prev == 'mfma' else 12)
    if i.kind == 'salu':
        return 4 * i.nop
    return 0


class Asm:
    def __init__(self):
        self.t = 0
        self.mfree = 0
        self.prev = None
        self.ins = []
        self.vm = 0
        self.vm_done = 0
        self.ds = 0
        self.ds_done = 0
        self.uid = 0

    def __call__(self, text):
        tok = None
        for t in text.split('\n'):
            t = t.strip()
            if not t:
                continue
            i = Ins(t)
            self.ins.append(i)
            if i.kind == 'mfma':
                self.t = max(self.t, self.mfree)
                self.mfree = self.t + 4 * i.passes
            self.t += cost(i, self.prev, self.t < self.mfree)
            self.prev = i.kind
            if i.kind == 'vmem':
                self.vm += 1
                tok = self.vm
            elif i.kind == 'ds':
                self.ds += 1
                tok = self.ds
        return tok

    def label(self, name):
        self.ins.append(Ins(name + ':'))

    def new(self, s):
        self.uid += 1
        return f'L_{s}_{self.uid}'

    def wait(self, vm=None, ds=None, force=False):
        parts = []
        if vm is not None and (force or vm > self.vm_done):
            n = min(self.vm - vm, 63)
            parts.append(f'vmcnt({n})')
            self.vm_done = max(self.vm_done, self.vm - n)
        if ds is not None and (force or ds > self.ds_done):
            n = min(self.ds - ds, 15)
            parts.append(f'lgkmcnt({n})')
            self.ds_done = max(self.ds_done, self.ds - n)
        if parts:
            self('s_waitcnt ' + ' '.join(parts))

    def wait_all(self, vm=False, ds=False):
        parts = []
        if vm:
            parts.append('vmcnt(0)')
            self.vm_done = self.vm
        if ds:
            parts.append('lgkmcnt(0)')
            self.ds_done = self.ds
        self('s_waitcnt ' + ' '.join(parts))

    def cond_begin(self):
        return (self.vm, self.vm_done, self.ds, self.ds_done)

    def cond_end(self, st):
        self.vm, self.vm_done, self.ds, self.ds_done = st

    def text(self):
        out, added = pad_hazards(self.ins)
        return '\n'.join(('' if i.kind == 'label' else '  ') + i.text for i in out), added


def v(i, n=1):
    return f'v{i}' if n == 1 else f'v[{i}:{i+n-1}]'


def a(i, n=1):
    return f'a{i}' if n == 1 else f'a[{i}:{i+n-1}]'


def s(i, n=1):
    return f's{i}' if n == 1 else f's[{i}:{i+n-1}]'
```

```python
import sys
from asmlib import Asm, Ins, cost, v, a, s

NAME = 'adaLN_cond__sliding_block__dense_activation_relu__prompt'
OPT = dict(stamps=0, fast=1, forcemax=0, fmode=0, dmode=0, ntx=1, ntq=0, ntw=0, touch0=1, touch1=1, chunks=17, pad=0, outsc1=0)
for arg in sys.argv[2:]:
    k, val = arg.split('=')
    OPT[k] = int(val)

EPOCH = 0
HELLO = 0x1000
FKV = 0x10000
FL = 0x30000
MODP = 0x40000
STATS = 0x80000
STAMPS = 0xC0000
KVB = 0x100000
OBUF = 0x500000
YBUF = 0x700000
FBUF = 0x900000
LH, WVH, WVL, WQL = 0, 65536, 98304, 131072
MODT = WQL
PRED1 = WQL + 4096
XST = 86016
PRED2 = XST + 8192
WOS = 90112
SCR = 114688
RING = 10240
TAB = SCR + 4 * RING
T_MOD2 = TAB
T_CB = TAB + 4608
T_RST = TAB + 6656
sC, sWS = 16, 24
rX, rWQ, rWO, rW1, rW2, rWM, rWS, rOUT = 28, 32, 36, 40, 44, 48, 52, 56
rH = 32
sW, sRB, sHQ, sJ, sRB2, sN, sXCC, sFAST, sHI = 60, 61, 62, 63, 64, 65, 66, 67, 68
(sKV, sFKV, sO, sFO, sPO, sOL0, sOL1, sTILE, sY, sST, sFY, sPY, sSTL, sYL, sF, sFF, sX, sFL0, sFL1, sBO, sRING, sIW) = (
    12, 13, 14, 15, 18, 19, 20, 21, 22, 23, 26, 27, 69, 70, 71, 72, 73, 74, 75, 76, 77, 0)
STAMP0, STP = 78, 100
LIMIT = 1 << 15
vL, vL16 = 1, 2
W1A = [5, 6, 7, 8, 9, 10, 11]
vWD, vR0, vR1, vVS = 12, 13, 14, 15

NTX = 'nt' if OPT['ntx'] else ''
NTQ = 'nt' if OPT['ntq'] else ''
NTW = 'nt' if OPT['ntw'] else ''
A = Asm()
COLD = Asm()
COLD.uid = 100000
WARM = Asm()


def srd(r):
    return s(r, 4)


NAMES = []
SETS = {1: 'rt start setup ln_pre mod h kv q own kvflag m2 attn prep oflag oproj cb yflag c1 c2 fflag d0 ffn2',
        3: 'rt start yflag a0 a8 a16 a24 c1 b8 b16 b24 c2 fflag d0 d10 d12 d21 d27 d32 d44 ffn2',
        4: 'rt start mod h0 h1 h2 h3 hw h attn prep oflag o0 o4 o8 o12 om ored oproj cb yflag',
        5: 'rt start attn pst pwor pdma pchk pflag pbar prep oflag o0 oproj k0 k8 k9 kw kf cb yflag yiss a0',
        2: 'rt start karg iss setup0 nonce pland setup x0 x1 x2 x3 ln_pre wkl wk gchk mod h kv kvst q'}
KEEP = set(SETS.get(OPT['stamps'], '').split())


def stamp(name):
    if OPT['stamps'] and name in KEEP:
        k = len(NAMES)
        assert k < 22
        if k:
            A(f's_mov_b32 {s(STAMP0+k-1)}, {s(STP)}')
        A(f's_mem{"real" if name == "rt" else ""}time {s(STP, 2)}')
        NAMES.append(name)
        if name == 'rt':
            A('s_waitcnt lgkmcnt(0)')


def barrier():
    A('s_barrier')


class Q:
    def __init__(self, items=()):
        self.q = list(items)
        self.tok = None
        self.dtok = None
        self.k = {}
        self.last = -10**9

    def add(self, items):
        self.q += list(items)

    def kind(self):
        it = self.q[0]
        return 'call' if callable(it) else Ins(it[0] if isinstance(it, tuple) else it).kind

    def pop(self, n=1):
        for _ in range(n):
            if not self.q:
                return
            kind = self.kind()
            it = self.q.pop(0)
            if callable(it):
                it()
                continue
            txt, key = it if isinstance(it, tuple) else (it, None)
            t = A(txt)
            if kind == 'vmem':
                self.tok = t
                self.last = A.t
            elif kind == 'ds':
                self.dtok = t
            if key is not None:
                self.k[key] = t

    def grp(self, n=1, pace=0):
        for _ in range(n):
            if not self.q or A.t - self.last < pace:
                return
            while self.q and self.kind() != 'vmem':
                self.pop()
            self.pop()
            while self.q and self.kind() == 'salu':
                self.pop()

    def fill(self, reserve=0, pace=0):
        while self.q:
            it = self.q[0]
            if callable(it):
                c = 4
            else:
                i = Ins(it[0] if isinstance(it, tuple) else it)
                if i.kind == 'vmem' and A.t - self.last < pace:
                    return
                c = cost(i, A.prev, True)
            if A.t + c + reserve > A.mfree:
                return
            self.pop()

    def flush(self):
        self.pop(len(self.q))


def poll_load(vaddr, soff, off, vt):
    return f'buffer_load_dword {v(vt)}, {v(vaddr)}, {srd(rWS)}, {soff} offen offset:{off} sc1'


def poll_check(tok, vaddr, soff, off, vt):
    again, chk, ok = A.new('pagain'), A.new('pchk'), A.new('pok')
    A.wait(vm=tok)
    A(f'v_cmp_ne_u32 vcc, {s(sN)}, {v(vt)}')
    A(f's_cbranch_vccnz {again}')
    A.label(ok)
    WARM.label(again)
    WARM('s_mov_b32 s1, 0')
    WARM.label(chk)
    WARM(poll_load(vaddr, soff, off, vt))
    WARM('s_add_u32 s1, s1, 1')
    WARM('s_waitcnt vmcnt(0)')
    WARM(f'v_cmp_ne_u32 vcc, {s(sN)}, {v(vt)}')
    WARM(f's_cmp_ge_u32 s1, {LIMIT}')
    WARM(f's_cbranch_vccz {ok}')
    WARM(f's_cbranch_scc0 {chk}')
    WARM(f's_branch {ok}')


def handoff(stores, fast=True):
    tok = None
    if not (OPT['fast'] and fast):
        for t in stores:
            tok = A(t.replace('@', 'sc1')) or tok
        return tok
    slow, back = A.new('slow'), A.new('back')
    A(f's_cmp_eq_u32 {s(sFAST)}, 0')
    A(f's_cbranch_scc1 {slow}')
    for t in stores:
        tok = A(t.replace('@', '')) or tok
    A.label(back)
    COLD.label(slow)
    for t in stores:
        COLD(t.replace('@', 'sc1'))
    COLD('s_nop 1')
    COLD(f's_branch {back}')
    return tok


def setflag(soff, fast=True, off=0):
    A(f'v_mov_b32 v3, {s(sN)}')
    A('s_mov_b64 exec, 1')
    handoff([f'buffer_store_dword v3, off, {srd(rWS)}, {soff} offset:{off} @'], fast)
    A('s_mov_b64 exec, -1')


def readback(va, soffs, vt):
    if OPT.get('rb', 7):
        for so in soffs:
            A(f'buffer_load_dword {v(vt)}, {v(va)}, {srd(rWS)}, {so} offen sc1')


def unpack2(dst, src):
    return [f'v_lshlrev_b32 {v(dst)}, 16, {v(src)}', f'v_and_b32 {v(dst+1)}, {s(sHI)}, {v(src)}']


def emit(l):
    t = None
    for x in l:
        t = A(x) or t
    return t


def mod_addr(lpr, va, vc, so):
    lg = lpr.bit_length() - 1
    l = [f's_bfe_u32 s3, s2, 0x20005', f's_lshl_b32 s3, s3, 7', f's_lshl_b32 {s(so)}, {s(sW)}, 5', f's_add_u32 s3, s3, {s(so)}',
         f'v_lshrrev_b32 {v(va)}, {lg}, {v(vL)}', f'v_add_u32 {v(va)}, s3, {v(va)}', f'v_lshlrev_b32 {v(vc)}, 1, {v(va)}',
         f'v_mul_u32_u24 {v(va)}, {6144 // 16}, {v(va)}', f'v_and_or_b32 {v(va)}, {v(vL)}, {lpr-1}, {v(va)}', f'v_lshlrev_b32 {v(va)}, 4, {v(va)}',
         f's_lshl_b32 {s(so)}, {s(sRB2)}, 2', f's_and_b32 s3, {s(sJ)}, 3', f's_add_u32 {s(so)}, {s(so)}, s3', f's_lshl_b32 {s(so)}, {s(so)}, {4+lg}']
    return l


def mod_loads(lpr, colbyte, va, vc, so, PW, PC):
    l = []
    for i in range(lpr // 2):
        if i:
            l.append(f's_add_u32 {s(so)}, {s(so)}, {(64//lpr)*6144}')
        l.append(f'buffer_load_dwordx4 {v(PW+4*i, 4)}, {v(va)}, {srd(rWM)}, {s(so)} offen offset:{colbyte} {NTX}')
    for i in range(lpr // 2):
        l.append(f'global_load_ushort {v(PC+i)}, {v(vc)}, {s(sC, 2)} offset:{(64//lpr)*2*i}')
    return l


def mod_finish(lpr, col0, PW, PC, ACC, UT, pred, bg=lambda: None):
    nl = lpr // 2
    lg = lpr.bit_length() - 1
    R = range(nl)
    for i in R:
        A(f'v_lshlrev_b32 {v(PC+i)}, 16, {v(PC+i)}')
    for i in R:
        A(f'v_mul_f32 {v(PC+2+i)}, 0xbfb8aa3b, {v(PC+i)}')
    for i in R:
        A(f'v_exp_f32 {v(PC+2+i)}, {v(PC+2+i)}')
    emit(unpack2(UT, PW))
    for i in R:
        A(f'v_add_f32 {v(PC+2+i)}, 1.0, {v(PC+2+i)}')
    for i in R:
        A(f'v_rcp_f32 {v(PC+2+i)}, {v(PC+2+i)}')
    emit(unpack2(UT + 2, PW + 1))
    for i in R:
        A(f'v_mul_f32 {v(PC+i)}, {v(PC+i)}, {v(PC+2+i)}')
    for i in R:
        A(f'v_cvt_pk_bf16_f32 {v(PC+i)}, {v(PC+i)}, {v(PC+i)}')
    for i in R:
        A(f'v_and_b32 {v(PC+i)}, {s(sHI)}, {v(PC+i)}')
    for i in R:
        for r in range(0 if i else 2, 4):
            emit(unpack2(UT + 2 * r, PW + 4 * i + r))
        for e in range(4):
            if i == 0:
                A(f'v_pk_mul_f32 {v(ACC+2*e, 2)}, {v(UT+2*e, 2)}, {v(PC, 2)} op_sel_hi:[1,0]')
            else:
                A(f'v_pk_fma_f32 {v(ACC+2*e, 2)}, {v(UT+2*e, 2)}, {v(PC, 2)}, {v(ACC+2*e, 2)} op_sel:[0,1,0] op_sel_hi:[1,1,1]')
    A(f'v_and_b32 v3, {lpr-1}, {v(vL)}')
    A(f'v_lshlrev_b32 v3, 5, v3')
    for e in range(4):
        A(f'v_permlane32_swap_b32 {v(ACC+e)}, {v(ACC+e+4)}')
    for e in range(2):
        A(f'v_pk_add_f32 {v(ACC+2*e, 2)}, {v(ACC+2*e, 2)}, {v(ACC+2*e+4, 2)}')
    A(f'v_lshrrev_b32 v4, 4, {v(vL)}')
    A(f'v_lshl_add_u32 v3, v4, 3, v3')
    for e in range(2):
        A(f'v_permlane16_swap_b32 {v(ACC+e)}, {v(ACC+e+2)}')
    A(f'v_pk_add_f32 {v(ACC, 2)}, {v(ACC, 2)}, {v(ACC+2, 2)}')
    A(f's_lshl_b32 s5, {s(sW)}, {5+lg}')
    A(f's_add_u32 s5, s5, {pred}')
    extra = [f'v_add_u32 v3, s5, v3', f'v_and_b32 v4, {2*lpr-1}, {v(vL)}', f'v_lshlrev_b32 v4, 4, v4']
    for sh in (8, 4, 2)[:4 - lg]:
        for e in range(2):
            A(f'v_add_f32_dpp {v(ACC+e)}, {v(ACC+e)}, {v(ACC+e)} row_ror:{sh} row_mask:0xf bank_mask:0xf')
        A(extra.pop(0))
    A(f'ds_write_b64 v3, {v(ACC, 2)}')
    emit(extra)
    A(f'v_add_u32 v3, {pred}, v4')
    bg()
    A.wait_all(ds=True)
    barrier()

    def tail():
        for i in range(4):
            A(f'ds_read_b128 {v(UT+4*i, 4)}, v3 offset:{32*lpr*i}')
        A(f's_bfe_u32 s5, s2, 0x20005')
        A(f's_mul_i32 s5, s5, 12288')
        A(f's_lshl_b32 s4, {s(sRB2)}, 2')
        A(f's_and_b32 s3, {s(sJ)}, 3')
        A(f's_add_u32 s4, s4, s3')
        A(f's_lshl_b32 s4, s4, {5+lg}')
        A(f's_add_u32 s4, s4, s5')
        A(f's_add_u32 s4, s4, {MODP + col0*4}')
        A(f's_movk_i32 s5, 0xff')
        A(f'v_mov_b32 {v(ACC)}, {s(sN)}')
        for e in range(1, 4):
            A(f'v_lshrrev_b32 {v(ACC+e)}, {8*e}, {v(ACC)}')
        A.wait_all(ds=True)
        for e in range(2):
            A(f'v_pk_add_f32 {v(UT+2*e, 2)}, {v(UT+2*e, 2)}, {v(UT+4+2*e, 2)}')
            A(f'v_pk_add_f32 {v(UT+8+2*e, 2)}, {v(UT+8+2*e, 2)}, {v(UT+12+2*e, 2)}')
        for e in range(2):
            A(f'v_pk_add_f32 {v(UT+2*e, 2)}, {v(UT+2*e, 2)}, {v(UT+8+2*e, 2)}')
        for e in range(4):
            A(f'v_bfi_b32 {v(ACC+e)}, s5, {v(ACC+e)}, {v(UT+e)}')
        A(f's_mov_b64 exec, {(1 << (2*lpr)) - 1}')
        A(f'buffer_store_dwordx4 {v(ACC, 4)}, v4, {srd(rWS)}, s4 offen sc1')
        A('s_mov_b64 exec, -1')
        A('s_nop 1')
    cond_wave(0, tail)


def gather_loads(col0, nset, G, va):
    l = []
    for st in range(nset):
        for q in range(4):
            l += [f's_mov_b32 s1, {MODP + q*12288 + (col0 + 1024*st)*4}',
                  f'buffer_load_dwordx4 {v(G+16*st+4*q, 4)}, {v(va)}, {srd(rWS)}, s1 offen sc1']
    return l


def gather_check(col0, nset, G, va, tok, T):
    chk, again, ok = A.new('gchk'), A.new('gagain'), A.new('gok')
    for e in range(4):
        A(f's_bfe_u32 {s(4+e)}, {s(sN)}, {hex(0x80000 | (8*e))}')
    A('s_mov_b32 s8, 0')
    A.wait(vm=tok)
    A.label(chk)
    n = 16 * nset
    for i in range(n):
        A(f'v_xor_b32 {v(G+i)}, {s(4+i%4)}, {v(G+i)}')
    A(f'v_or3_b32 {v(T)}, {v(G)}, {v(G+1)}, {v(G+2)}')
    for i in range(3, n - 1, 2):
        A(f'v_or3_b32 {v(T)}, {v(T)}, {v(G+i)}, {v(G+i+1)}')
    A(f'v_or_b32 {v(T)}, {v(T)}, {v(G+n-1)}')
    A(f'v_lshlrev_b32 {v(T)}, 24, {v(T)}')
    A(f'v_cmp_ne_u32 vcc, 0, {v(T)}')
    A(f's_cbranch_vccnz {again}')
    A.label(ok)
    WARM.label(again)
    WARM('s_add_u32 s8, s8, 1')
    WARM(f's_cmp_ge_u32 s8, {LIMIT}')
    WARM(f's_cbranch_scc1 {ok}')
    for f in gather_loads(col0, nset, G, va):
        WARM(f)
    WARM('s_waitcnt vmcnt(0)')
    WARM(f's_branch {chk}')
    for st in range(nset):
        g = G + 16 * st
        for e in range(2):
            A(f'v_pk_add_f32 {v(g+2*e, 2)}, {v(g+2*e, 2)}, {v(g+4+2*e, 2)}')
            A(f'v_pk_add_f32 {v(g+8+2*e, 2)}, {v(g+8+2*e, 2)}, {v(g+12+2*e, 2)}')
        for e in range(2):
            A(f'v_pk_add_f32 {v(g+2*e, 2)}, {v(g+2*e, 2)}, {v(g+8+2*e, 2)}')
        A(f'v_cvt_pk_bf16_f32 {v(g)}, {v(g)}, {v(g+1)}')
        A(f'v_cvt_pk_bf16_f32 {v(g+1)}, {v(g+2)}, {v(g+3)}')


def add_const_round(g, sadd):
    emit(unpack2(g + 4, g) + unpack2(g + 6, g + 1))
    for e in range(4):
        A(f'v_add_f32 {v(g+4+e)}, {s(sadd)}, {v(g+4+e)}')
    A(f'v_cvt_pk_bf16_f32 {v(g)}, {v(g+4)}, {v(g+5)}')
    A(f'v_cvt_pk_bf16_f32 {v(g+1)}, {v(g+6)}, {v(g+7)}')


def cond_wave(w, fn):
    sk = A.new('cw')
    A(f's_cmp_lg_u32 {s(sW)}, {w}')
    A(f's_cbranch_scc1 {sk}')
    st = A.cond_begin()
    fn()
    A.cond_end(st)
    A.label(sk)


A('s_cmp_ge_u32 s2, 256')
A('s_cbranch_scc1 L_end')
stamp('rt')
stamp('start')
if OPT['pad']:
    A('s_memrealtime s[100:101]')
A('s_load_dwordx16 s[4:19], s[0:1], 0')
A('s_load_dwordx2 s[20:21], s[0:1], 64')
A('s_load_dwordx2 s[24:25], s[0:1], 80')
A(f'v_and_b32 {v(vL)}, 63, v0')
A(f'v_lshrrev_b32 v3, 6, v0')
A(f'v_lshlrev_b32 {v(vL16)}, 4, {v(vL)}')
A(f'v_readfirstlane_b32 {s(sW)}, v3')
A(f's_and_b32 s26, s2, 7')
A(f's_lshr_b32 s27, s2, 3')
A(f's_and_b32 {s(sHQ)}, s27, 7')
A(f's_and_b32 {s(sJ)}, s27, 15')
A(f's_lshr_b32 s27, s27, 3')
A(f's_lshl_b32 s26, s26, 2')
A(f's_add_u32 {s(sRB)}, s26, s27')
A(f's_lshr_b32 {s(sRB2)}, {s(sRB)}, 1')
A(f'v_lshlrev_b32 v253, 6, {v(vL)}')
sk = A.new('cpf')
A(f's_cmp_lg_u32 {s(sW)}, 3')
A(f's_cbranch_scc1 {sk}')
A(f's_cmp_ge_u32 s2, {OPT["chunks"]*8}')
A(f's_cbranch_scc1 {sk}')
A(f's_getpc_b64 s[70:71]')
A(f's_lshr_b32 s69, s2, 3')
A(f's_lshl_b32 s69, s69, 11')
A(f'v_add_u32 v3, s69, v253')
st = A.cond_begin()
A('s_mov_b32 exec_hi, 0')
A(f'global_load_dword v255, v3, s[70:71]')
A('s_mov_b32 exec_hi, -1')
A.cond_end(st)
A.label(sk)
A(f's_getreg_b32 {s(sXCC)}, hwreg(HW_REG_XCC_ID, 0, 4)')
A(f's_mov_b32 {s(sHI)}, 0xffff0000')
for r, n in ((rX, 2097152), (rWQ, 1572864), (rWO, 524288), (rW1, 1835008), (rW2, 1835008), (rWM, 3145728), (rWS, 0x1000000), (rOUT, 2097152)):
    A(f's_mov_b32 {s(r+2)}, {n}')
    A(f's_mov_b32 {s(r+3)}, 0x20000')
A(f'v_lshrrev_b32 v5, 4, {v(vL)}')
A(f'v_and_b32 v6, 15, {v(vL)}')
A(f's_lshl_b32 s26, {s(sRB)}, 6')
A(f's_lshl_b32 s27, {s(sW)}, 4')
A(f's_add_u32 s26, s26, s27')
A(f'v_add_u32 v3, s26, v5')
A(f'v_lshlrev_b32 v3, 10, v3')
A(f'v_lshl_add_u32 v254, v6, 4, v3')
A(f'v_min_u32 v5, {31*64}, v253')
A(f'v_min_u32 v6, {23*64}, v253')
A(f's_lshl3_add_u32 s26, {s(sRB)}, {s(sHQ)}')
A(f's_lshl2_add_u32 s26, s26, {s(sW)}')
A(f's_lshl_b32 s26, s26, 11')
A(f's_lshl2_add_u32 s27, s2, {s(sW)}')
A(f's_mul_i32 s27, s27, 1536')
XF, XP, MOD, GA, PW, PC, PACC = 16, 144, 144, 208, 224, 20, 236
emit(mod_addr(2, 3, 4, 69))
A('s_waitcnt lgkmcnt(0)')
stamp('karg')
if OPT.get('wsoff'):
    A(f's_add_u32 s24, s24, {OPT["wsoff"] << 20}')
    A('s_addc_u32 s25, s25, 0')
A(f's_mov_b64 {s(rWM, 2)}, s[18:19]')
A(f's_mov_b64 {s(rX, 2)}, s[4:5]')
A(f's_mov_b64 {s(rWQ, 2)}, s[6:7]')
tok_p1 = emit(mod_loads(2, 0, 3, 4, 69, PW, PC))
vHW, vWR = 248, 252


def xloads(aa):
    A(f's_movk_i32 s4, {aa << 12}')
    for c in range(4):
        t = A(f'buffer_load_dwordx4 {v(XP+(aa*4+c)*4, 4)}, v254, {srd(rX)}, s4 offen offset:{c*256} {NTX}')
    return t


A(f'buffer_load_dword v255, v5, {srd(rX)}, s26 offen {NTX}')
if OPT.get('tq', 1) == 0:
    A(f'buffer_load_dword v255, v6, {srd(rWQ)}, s27 offen')
tok_x = [xloads(0)]
if OPT.get('tq', 1) == 1:
    A(f'buffer_load_dword v255, v6, {srd(rWQ)}, s27 offen')
stamp('iss')
A(f's_load_dword {s(sN)}, {s(sWS, 2)}, {EPOCH}')
for r, p in ((rWO, 8), (rW1, 12), (rW2, 14), (rWS, 24), (rOUT, 20)):
    A(f's_mov_b64 {s(r, 2)}, {s(p, 2)}')
A(f's_lshl_b32 s3, {s(sHQ)}, 2')
A(f's_add_u32 s3, s3, {s(sW)}')
A(f's_lshl_b32 s4, s3, 17')
A(f's_lshl_b32 s5, {s(sRB)}, 12')
A(f's_add_u32 s4, s4, s5')
A(f's_add_u32 {s(sKV)}, s4, {KVB}')
A(f's_lshl_b32 s4, s3, 7')
A(f's_add_u32 s4, s4, s5')
A(f's_add_u32 {s(sFKV)}, s4, {FKV}')
A(f's_lshl_b32 s4, {s(sRB)}, 16')
A(f's_lshl_b32 s5, s3, 10')
A(f's_add_u32 s4, s4, s5')
A(f's_add_u32 {s(sO)}, s4, {OBUF}')
A(f's_lshl_b32 s6, {s(sRB)}, 11')
A(f's_lshr_b32 s4, s3, 3')
A(f's_lshl_b32 s4, s4, 7')
A(f's_and_b32 s5, s3, 7')
A(f's_lshl_b32 s5, s5, 2')
A(f's_add_u32 s4, s4, s5')
A(f's_add_u32 s4, s4, s6')
A(f's_add_u32 {s(sFO)}, s4, {FL}')
A(f's_lshl_b32 s4, {s(sW)}, 7')
A(f's_add_u32 s4, s4, s6')
A(f's_add_u32 {s(sPO)}, s4, {FL}')
A(f's_lshr_b32 s4, {s(sW)}, 1')
A(f's_lshl_b32 s5, {s(sRB)}, 1')
A(f's_add_u32 s7, s4, s5')
A(f's_lshl_b32 s8, s7, 15')
A(f's_lshl_b32 s4, {s(sW)}, 13')
A(f's_add_u32 s4, s4, s8')
A(f's_add_u32 {s(sOL0)}, s4, {OBUF}')
A(f's_xor_b32 s4, s4, 32768')
A(f's_add_u32 {s(sOL1)}, s4, {OBUF}')
A(f's_lshl_b32 s9, {s(sHQ)}, 1')
A(f's_and_b32 s10, {s(sW)}, 1')
A(f's_add_u32 s9, s9, s10')
A(f's_lshl_b32 s4, s9, 6')
A(f's_add_u32 {s(sTILE)}, s4, s8')
A(f's_lshl_b32 s4, s9, 11')
A(f's_add_u32 s4, s4, s8')
A(f's_add_u32 {s(sY)}, s4, {YBUF}')
A(f's_lshl_b32 s4, s7, 12')
A(f's_lshl_b32 s5, s9, 8')
A(f's_add_u32 s4, s4, s5')
A(f's_add_u32 {s(sST)}, s4, {STATS}')
A(f's_and_b32 s4, s7, 1')
A(f's_lshl_b32 s4, s4, 7')
A(f's_lshl_b32 s5, s9, 2')
A(f's_add_u32 s4, s4, s5')
A(f's_add_u32 s4, s4, s6')
A(f's_add_u32 {s(sFY)}, s4, {FL+512}')
A(f's_mul_i32 s4, {s(sW)}, {28*1024}')
A(f's_add_u32 s4, s4, {FBUF}')
A(f's_mul_i32 s5, s7, {112*1024}')
A(f's_add_u32 {s(sFL0)}, s4, s5')
A(f's_xor_b32 s5, s7, 1')
A(f's_mul_i32 s5, s5, {112*1024}')
A(f's_add_u32 {s(sFL1)}, s4, s5')
A(f's_lshl_b32 s7, {s(sRB2)}, 2')
A(f's_add_u32 s7, s7, {s(sW)}')
A(f's_lshr_b32 s6, s7, 1')
A(f's_lshl_b32 s6, s6, 11')
A(f's_lshl_b32 s4, s10, 7')
A(f's_add_u32 s4, s4, s6')
A(f's_add_u32 {s(sPY)}, s4, {FL+512}')
A(f's_lshl_b32 s4, s7, 12')
A(f's_add_u32 {s(sSTL)}, s4, {STATS}')
A(f's_lshl_b32 s4, s7, 15')
A(f's_add_u32 {s(sYL)}, s4, {YBUF}')
A(f's_mul_i32 s4, s7, {112*1024}')
A(f's_mul_i32 s5, {s(sJ)}, 7168')
A(f's_add_u32 s4, s4, s5')
A(f's_add_u32 {s(sF)}, s4, {FBUF}')
A(f's_lshr_b32 s5, {s(sJ)}, 2')
A(f's_lshl_b32 s5, s5, 7')
A(f's_add_u32 s4, s6, s5')
A(f's_and_b32 s5, {s(sJ)}, 3')
A(f's_lshl_b32 s5, s5, 1')
A(f's_add_u32 s5, s5, s10')
A(f's_lshl_b32 s5, s5, 2')
A(f's_add_u32 s4, s4, s5')
A(f's_add_u32 {s(sFF)}, s4, {FL+1024}')
A(f's_mul_i32 s4, {s(sW)}, {RING}')
A(f's_add_u32 {s(sRING)}, s4, {SCR}')
A(f's_lshr_b32 s4, s2, 3')
A(f's_lshl2_add_u32 {s(sIW)}, s4, {s(sW)}')
A(f's_mul_i32 s4, {s(sJ)}, 224')
for i in range(7):
    A(f'v_add_u32 v3, {64*i}, {v(vL)}')
    A(f'v_mul_u32_u24 v4, 4682, v3')
    A(f'v_lshrrev_b32 v4, 16, v4')
    A(f'v_mul_u32_u24 v16, 14, v4')
    A(f'v_sub_u32 v3, v3, v16')
    A(f'v_bfe_u32 v16, v4, 1, 2')
    A(f'v_and_b32 v17, 0x39, v4')
    A(f'v_mad_u32_u24 v16, v17, 1, v16')
    A(f'v_and_b32 v17, 1, v4')
    A(f'v_mad_u32_u24 v16, v17, 3, v16')
    A(f'v_mul_u32_u24 v16, 3584, v16')
    A(f'v_lshl_add_u32 v3, v3, 4, v16')
    A(f's_sub_u32 s5, s4, {1024*(i%4)}')
    A(f'v_add_u32 {v(W1A[i])}, s5, v3')
vQ4 = 244
A(f'v_bfe_u32 v16, {v(vL)}, 2, 3')
A(f'v_mul_u32_u24 v4, 3072, v16')
A(f'v_lshrrev_b32 v17, 5, {v(vL)}')
A(f'v_lshl_add_u32 v4, v17, 6, v4')
A(f'v_and_b32 v3, 3, {v(vL)}')
A(f'v_lshl_add_u32 v4, v3, 4, v4')
A(f's_lshl_b32 s4, {s(sHQ)}, 7')
A(f'v_add_u32 {v(vQ4)}, s4, v4')
A(f'v_xor_b32 v4, 32, {v(vQ4)}')
A(f'v_add_u32 {v(vQ4+1)}, {24576-1024}, v4')
A(f'v_add_u32 {v(vQ4+2)}, {2*(24576-1024)}, {v(vQ4)}')
A(f'v_add_u32 {v(vQ4+3)}, {3*(24576-1024)}, v4')
A(f'v_lshlrev_b32 v4, 10, v16')
A(f'v_lshl_add_u32 v4, v17, 6, v4')
A(f'v_lshl_add_u32 v4, v3, 4, v4')
A(f'v_add_u32 {v(vWD)}, s4, v4')
A(f'v_lshrrev_b32 v4, 4, {v(vL)}')
A(f'v_lshlrev_b32 v3, 10, v4')
A(f'v_xor_b32 v4, {s(sW)}, v4')
A(f'v_and_b32 v4, 1, v4')
A(f'v_lshl_add_u32 v3, v4, 5, v3')
A(f'v_bfe_u32 v4, {v(vL)}, 2, 2')
A(f'v_lshl_add_u32 v3, v4, 6, v3')
A(f'v_and_b32 v4, 3, {v(vL)}')
A(f'v_lshl_add_u32 v3, v4, 3, v3')
A(f's_lshr_b32 s3, {s(sW)}, 1')
A(f's_lshl_b32 s3, s3, 9')
A(f'v_add_u32 {v(vWR)}, s3, v3')
A(f'v_bfe_u32 v4, {v(vL)}, 2, 2')
A(f'v_lshlrev_b32 v3, 6, v4')
A(f'v_bfe_u32 v4, {v(vL)}, 4, 1')
A(f'v_lshl_add_u32 v3, v4, 5, v3')
A(f'v_and_b32 v4, 3, {v(vL)}')
A(f'v_lshl_add_u32 v3, v4, 3, v3')
A(f'v_lshrrev_b32 v4, 5, {v(vL)}')
A(f'v_lshl_add_u32 v3, v4, 8, v3')
A(f's_lshl_b32 s3, s10, 9')
A(f's_add_u32 s3, s3, {s(sRING)}')
A(f'v_add_u32 {v(vR0)}, s3, v3')
A(f'v_xor_b32 {v(vR1)}, 512, {v(vR0)}')
A(f'v_and_b32 v16, 0xe0, v0')
A(f'v_and_b32 v17, 1, v0')
A(f'v_lshl_add_u32 v16, v17, 4, v16')
A(f'v_bfe_u32 v17, v0, 1, 4')
A(f'v_add_u32 v16, v16, v17')
A(f'v_lshlrev_b32 v16, 4, v16')
A(f'v_add_u32 v232, {MODT}, v16')
A(f'v_and_b32 v16, 15, {v(vL)}')
A(f'v_lshlrev_b32 v16, 4, v16')
A(f'v_add_u32 v233, {MODT}, v16')
A(f'v_and_b32 v3, 15, {v(vL)}')
A(f'v_lshl_add_u32 v3, v4, 4, v3')
A(f'v_lshlrev_b32 {v(vVS)}, 4, v3')
A(f'v_lshrrev_b32 v16, 4, {v(vL)}')
A(f'v_and_b32 v4, 15, {v(vL)}')
A(f's_lshl_b32 s5, {s(sW)}, 14')
A(f'v_lshl_add_u32 v3, v4, 8, s5')
A(f'v_and_b32 v4, 7, v4')
A(f'v_xor_b32 v4, v4, v16')
for aa in range(4):
    A(f'v_xor_b32 v16, {4*aa}, v4')
    A(f'v_lshl_add_u32 {v(vHW+aa)}, v16, 4, v3')
emit(mod_addr(4, 234, 235, 1))
A(f'v_add_u32 v234, s1, v234')


def mark(l, key):
    l[-1] = (l[-1], key)
    return l


def touch(rs, chunk, va, vt=255):
    return [f's_lshl2_add_u32 s1, s2, {s(sW)}', f's_mul_i32 s1, s1, {chunk}', f'buffer_load_dword {v(vt)}, {v(va)}, {srd(rs)}, s1 offen']


def touch3(rs, n, va, vt=255):
    if not OPT.get('t3', 13) & {rWQ: 1, rW1: 2, rWO: 4, rW2: 8}[rs]:
        return []
    return [f'v_min_u32 {v(va)}, {2*n-1}, {v(vL)}', f'v_lshlrev_b32 {v(vt)}, 9, {v(va)}', f'v_and_b32 {v(va)}, 1, {v(va)}',
            f'v_mul_u32_u24 {v(va)}, 448, {v(va)}', f'v_sub_u32 {v(va)}, {v(vt)}, {v(va)}', f's_mul_i32 s1, {s(sIW)}, {n*1024}',
            f'buffer_load_dword {v(vt)}, {v(va)}, {srd(rs)}, s1 offen offset:384']


def hello():
    A(f's_andn2_b32 s3, {s(sN)}, 15')
    A(f's_or_b32 s3, s3, {s(sXCC)}')
    A(f'v_mov_b32 v16, s3')
    A(f's_lshl_b32 s3, {s(sRB2)}, 7')
    A(f's_lshl2_add_u32 s3, {s(sJ)}, s3')
    A(f's_add_u32 s3, s3, {HELLO}')
    A('s_mov_b64 exec, 1')
    A(f'buffer_store_dword v16, off, {srd(rWS)}, s3 sc1')
    A('s_mov_b64 exec, -1')


def wq_items(colbyte, region, ks0, nks):
    l = []
    for g in range(nks // 4):
        l += [f's_add_u32 m0, {s(sX)}, {region + g*16384}', f's_add_u32 {s(sBO)}, s11, {colbyte + (ks0 + 4*g)*98304}']
        l += [f'buffer_load_dwordx4 {v(vQ4+n)}, {srd(rWQ)}, {s(sBO)} offen offset:{1024*n} {NTQ} lds' for n in range(4)]
    return l


A(f's_lshl_b32 {s(sX)}, {s(sW)}, 12')
A(f's_mul_i32 s11, {s(sW)}, 98304')
t3 = touch3(rWQ, 12, 229, 19)
emit(t3[:-2])
stamp('setup0')
A('s_waitcnt lgkmcnt(0)')
stamp('nonce')
A(f's_add_u32 {s(sN)}, {s(sN)}, 0x9e3779b1')
A.wait(vm=tok_p1)
stamp('pland')


def x1():
    tok_x.append(xloads(1))


mod_finish(2, 0, PW, PC, PACC, GA, PRED1, bg=x1)
stamp('setup')
D = Q()
for aa in (2, 3):
    D.add([f's_movk_i32 s4, {aa << 12}'] +
          mark([f'buffer_load_dwordx4 {v(XP+(aa*4+c)*4, 4)}, v254, {srd(rX)}, s4 offen offset:{c*256} {NTX}' for c in range(4)], aa))
D.add([x.replace('v19', 'v255') for x in t3[-2:]])
M2 = mark(['s_mov_b32 s1, 0'] + mod_loads(4, 2048, 234, 235, 1, 236, 230), 'p2')
if OPT.get('m2', 1) == 0:
    D.add(M2)
D.add(mark(wq_items(1024, LH, 0, 16), 'wk'))
D.grp(OPT.get('x0', 4))

ST, MN, G1 = 216, 224, 144
LNP = OPT.get('lnpace', 44)


def V(t):
    A(t)
    D.grp(1, LNP)


def row_allreduce(grp):
    for sh in (8, 4, 2, 1):
        for aa in grp:
            t0 = ST + 4 * (aa % 2)
            V(f'v_add_f32_dpp {v(t0)}, {v(t0)}, {v(t0)} row_ror:{sh} row_mask:0xf bank_mask:0xf')


A('s_mov_b32 s9, 0x3b000000')
A('s_mov_b32 s10, 0x3f803f80')
A('s_mov_b32 s7, 0x3f80')
A('s_mov_b32 s6, 0x3f800000')
A('v_mov_b32 v228, 0x3727c5ac')
for grp in ((0, 1), (2, 3)):
    for aa in grp:
        A.wait(vm=tok_x[aa] if aa < 2 else D.k[aa])
        stamp(f'x{aa}')
        t0 = ST + 4 * (aa % 2)
        for i in range(16):
            V(f'v_dot2_f32_bf16 {v(t0)}, {v(XP+aa*16+i)}, s10, {v(t0) if i else 0}')
    row_allreduce(grp)
    for aa in grp:
        V(f'v_mul_f32 {v(MN+aa)}, 0xbb000000, {v(ST+4*(aa%2))}')
    for aa in grp:
        b = XF + aa * 32
        t0, t1 = ST + 4 * (aa % 2), ST + 4 * (aa % 2) + 2
        for i in range(16):
            V(f'v_dot2_f32_bf16 {v(b+2*i)}, {v(XP+aa*16+i)}, s7, {v(MN+aa)}')
            V(f'v_dot2_f32_bf16 {v(b+2*i+1)}, {v(XP+aa*16+i)}, s6, {v(MN+aa)}')
        for i in range(16):
            t = t0 if i % 2 == 0 else t1
            if i < 2:
                V(f'v_pk_mul_f32 {v(t, 2)}, {v(b+2*i, 2)}, {v(b+2*i, 2)}')
            else:
                V(f'v_pk_fma_f32 {v(t, 2)}, {v(b+2*i, 2)}, {v(b+2*i, 2)}, {v(t, 2)}')
        V(f'v_pk_add_f32 {v(t0, 2)}, {v(t0, 2)}, {v(t1, 2)}')
        V(f'v_add_f32 {v(t0)}, {v(t0)}, {v(t0+1)}')
    if grp == (2, 3):
        D.flush()
        A(f'v_lshlrev_b32 v4, 4, v0')
        tok_g1 = emit(gather_loads(0, 1, G1, 4))
        D.add(mark(wq_items(2048, WVL, 0, 8), 'wvl') + mark(wq_items(2048, WVH, 8, 8), 'wvh'))
    row_allreduce(grp)
    for aa in grp:
        V(f'v_fma_f32 {v(MN+aa)}, {v(ST+4*(aa%2))}, s9, v228')
    for aa in grp:
        V(f'v_rsq_f32 {v(MN+aa)}, {v(MN+aa)}')
    for aa in grp:
        b = XF + aa * 32
        for i in range(16):
            V(f'v_pk_mul_f32 {v(b+2*i, 2)}, {v(b+2*i, 2)}, {v(MN+(aa//2)*2, 2)} op_sel:[0,{aa%2}] op_sel_hi:[1,{aa%2}]')
D.grp(OPT.get('v0', 2))
stamp('ln_pre')
A.wait(vm=D.k['wk'])
barrier()
stamp('wkl')
for ks in range(16):
    for rd in range(2):
        A(f'ds_read_b64_tr_b16 {a(4*ks+2*rd, 2)}, {v(vWR)} offset:{ks*4096+rd*256}')
D.grp(2)
stamp('wk')
gather_check(0, 1, G1, 4, tok_g1, 3)
stamp('gchk')
A(f's_cmp_ge_u32 {s(sW)}, 2')
A(f's_cselect_b32 s3, 1.0, 0')
add_const_round(G1, 3)
emit(unpack2(G1 + 4, G1) + unpack2(G1 + 6, G1 + 1))
A(f'ds_write_b128 v232, {v(G1+4, 4)}')
D.grp(2)
A.wait_all(ds=True)
barrier()
stamp('mod')
tm = []


def mod_reads(c):
    for arr in range(2):
        for hlf in range(2):
            t = A(f'ds_read_b128 {v(MOD+arr*32+c*8+hlf*4, 4)}, v233 offset:{arr*2048+c*512+hlf*256}')
    tm.append(t)


mod_reads(0)
mod_reads(1)
vH0, vH1, vB1, vB2 = 224, 225, 226, 227
A(f'v_lshrrev_b32 v254, 4, {v(vL)}')
A(f'v_and_b32 v3, 15, {v(vL)}')
A(f'v_xor_b32 v3, v3, v254')
A(f'v_lshlrev_b32 v3, 4, v3')
A(f'v_lshl_add_u32 {v(vH0)}, v254, 8, v3')
A(f'v_xor_b32 {v(vH1)}, 64, {v(vH0)}')
A(f'v_add_u32 {v(vB1)}, {WVH}, {v(vWR)}')
A(f'v_add_u32 {v(vB2)}, {WQL}, {v(vWR)}')
A(f'v_min_u32 v228, {27*64}, v253')
A(f'v_min_u32 v229, {7*64}, v253')
D.add(touch(rW1, 1792, 228) + touch(rWO, 512, 229))
if OPT.get('m2', 1) == 1:
    D.add(M2)
if OPT.get('t2', 0) == 0:
    D.add(touch(rW2, 1792, 228))
for c in range(4):
    A.wait(ds=tm[c])
    stamp(f'h{c}')
    for aa in range(4):
        b = XF + aa * 32 + c * 8
        for i in range(4):
            A(f'v_pk_fma_f32 {v(b+2*i, 2)}, {v(b+2*i, 2)}, {v(MOD+32+c*8+2*i, 2)}, {v(MOD+c*8+2*i, 2)}')
        for i in range(4):
            A(f'v_cvt_pk_bf16_f32 {v(b+i)}, {v(b+2*i)}, {v(b+2*i+1)}')
        if aa == 0 and c < 2:
            mod_reads(c + 2)
        A(f'ds_write_b128 {v(vHW+aa)}, {v(b, 4)} offset:{c*4096}')
        D.grp(1, OPT.get('hp', 50))
D.flush()
stamp('hw')
A.wait(vm=D.k['wvl'], ds=A.ds)
barrier()
stamp('h')

AK, AV, AQ, WB = 144, 160, 176, 64
QF, KO, VO, KH, VH, SB, PB, MD, MO, OA = 16, 24, 32, 48, 80, 144, 176, 192, 208, 224
PW2, PC2 = 48, 56


def hreg(u, ks):
    return v(80 + ks * 16 + u * 4, 4) if ks < 4 else a(ks * 16 + u * 4, 4)


def mm16(d, x, y, first):
    A(f'v_mfma_f32_16x16x32_bf16 {v(d, 4)}, {x}, {y}, {"0" if first else v(d, 4)}')


def kv_reads(ks):
    l = [f'ds_read_b128 {hreg(u, ks)}, {v(vH0 + ks % 2)} offset:{u*16384+ks*1024}' for u in range(4)]
    wb = WB + 4 * (ks % 4)
    off = WVL - WVH + ks * 4096 if ks < 8 else (ks - 8) * 4096
    w = [f'ds_read_b64_tr_b16 {v(wb+2*rd, 2)}, {v(vB1)} offset:{off+rd*256}' for rd in range(2)]
    return [l[0], w[0], w[1], l[1], l[2], l[3]]


fl = Q([f'v_and_b32 v60, 31, {v(vL)}', f'v_lshrrev_b32 v61, 5, {v(vL)}', 'v_lshlrev_b32 v61, 2, v61', 'v_sub_u32 v60, v60, v61',
        'v_mov_b32 v61, 0xf149f2ca', 'v_mov_b32 v62, 0'])
for i in range(16):
    fl.add([f'v_cmp_le_i32 vcc, {8*(i//4) + i % 4}, v60'] + ([f'v_mov_b32 {v(VO+4*(i//2)+2+i%2)}, s10'] if i < 8 else []) +
           [f'v_cndmask_b32 {v(MD+i)}, v61, v62, vcc', f'v_cndmask_b32 {v(MO+i)}, v62, v61, vcc'])
QL0, QH0 = OPT.get('ql0', 6), OPT.get('qh0', 12)
fl.q.insert(0, lambda: cond_wave(3, hello))
LOOK = 2
tk = {}
for ks in range(LOOK):
    for t in kv_reads(ks):
        tk[ks] = A(t)
for ks in range(16):
    nxt = kv_reads(ks + LOOK) if ks + LOOK < 16 else []
    A.wait(ds=tk[ks], vm=D.k['wvh'] if ks == 5 else None)
    if ks == 5:
        barrier()
    if ks == 8:
        barrier()
    if ks == QL0:
        D.add(mark(wq_items(0, WQL, 0, 8), 'wql'))
    if ks == QH0:
        D.add(mark(wq_items(0, WVL, 8, 8), 'wqh'))
    wb = v(WB + 4 * (ks % 4), 4)
    n = 0
    for u in range(4):
        for which in range(2):
            if which == 0:
                mm16(AK + 4 * u, a(4 * ks, 4), hreg(u, ks), ks == 0)
            else:
                mm16(AV + 4 * u, hreg(u, ks), wb, ks == 0)
            if n < len(nxt):
                tk[ks + LOOK] = A(nxt[n])
            n += 1
            res = 4 if n == 8 else 0
            if n == 8 and D.q and D.kind() == 'vmem' and len(D.q) > 1.5 * (15 - ks):
                D.pop()
            D.fill(res, 60)
            fl.fill(res)
D.flush()
assert not fl.q
stamp('kv')


def pack2(dst, acc):
    return [f'v_cvt_pk_bf16_f32 {v(dst+2*u+r)}, {v(acc+4*u+2*r)}, {v(acc+4*u+2*r+1)}' for u in range(2) for r in range(2)]


def q_reads(ks):
    wb = WB + 4 * (ks % 4)
    base, off = (vB2, ks * 4096) if ks < 8 else (vB1, WVL - WVH + (ks - 8) * 4096)
    return [f'ds_read_b64_tr_b16 {v(wb+2*rd, 2)}, {v(base)} offset:{off+rd*256}' for rd in range(2)]


def q_start():
    A.wait(vm=D.k['wql'])
    barrier()
    for ks in range(LOOK):
        for t in q_reads(ks):
            tk[ks] = A(t)


LOOK = 3
tk = {}
if QL0 == 0:
    q_start()
A('s_mov_b32 s4, 0xffff')
A('s_mov_b32 s5, 0xffff')
for T in range(2):
    emit(pack2(KO + 4 * T, AK + 8 * T))
for u in range(4):
    for r in range(2):
        A(f'v_cvt_pk_bf16_f32 {v(VO+4*u+r)}, {v(AV+4*u+2*r)}, {v(AV+4*u+2*r+1)}')
for T in range(2):
    for r in range(2):
        A(f'v_permlane16_swap_b32 {v(KO+4*T+r)}, {v(KO+4*T+2+r)}')
for T in range(2):
    A(f'buffer_store_dwordx4 {v(KO+4*T, 4)}, {v(vL16)}, {srd(rWS)}, {s(sKV)} offen offset:{T*2048} sc1')
for u in range(4):
    for r in range(2):
        A(f'v_permlane16_swap_b32 {v(VO+4*u+r)}, {v(VO+4*u+2+r)}')
for u in range(4):
    for r in range(2):
        A(f'v_permlane32_swap_b32 {v(VO+4*u+r)}, {v(VO+4*u+2+r)}')
A('s_mov_b64 exec, s[4:5]')
for u in range(4):
    tok_kv = A(f'buffer_store_dwordx4 {v(VO+4*u, 4)}, {v(vVS)}, {srd(rWS)}, {s(sKV)} offen offset:{(u//2)*2048+1024+(u%2)*512} sc1')
A('s_mov_b64 exec, -1')
if QH0 == 16:
    D.add(mark(wq_items(0, WVL, 8, 8), 'wqh'))
    D.flush()
if QL0:
    q_start()
stamp('kvst')


def w1_items(mul, add):
    l = [f's_mul_i32 {s(sBO)}, {s(sW)}, {mul*7168}', f's_add_u32 m0, {s(sBO)}, {add*7168}', f's_lshl_b32 {s(sBO)}, m0, 4']
    for i in range(7):
        if i == 4:
            l.append(f's_add_u32 m0, m0, 4096')
        l.append(f'buffer_load_dwordx4 {v(W1A[i])}, {srd(rW1)}, {s(sBO)} offen offset:{1024*(i%4)} {NTW} lds')
    return l


def ones(d):
    def f():
        A(f's_cmp_ge_u32 {s(sRB)}, {d}')
        A(f's_cselect_b32 s6, s10, 0')
    return [f, 's_mov_b32 s7, s6'] + [f'v_mov_b64 {v(VH+16*(4-d)+2*i, 2)}, s[6:7]' for i in range(8)]


fl.add([f'v_lshrrev_b32 v233, 2, {v(vL)}', 'v_lshlrev_b32 v233, 10, v233', f'v_and_b32 v234, 3, {v(vL)}', 'v_lshl_add_u32 v233, v234, 4, v233',
        f'v_and_b32 v234, 15, {v(vL)}', f'v_lshlrev_b32 v234, 2, v234'])
fl2 = Q(ones(4) + ones(3) + [lambda: A.wait(vm=D.k['p2'])] + [f'v_mov_b64 {v(PW2+2*i, 2)}, {v(236+2*i, 2)}' for i in range(4)] + [f'v_mov_b64 {v(PC2, 2)}, v[230:231]'] + ones(2) + ones(1))
W1P = OPT.get('w1pace', 120)
if OPT.get('t2', 0) == 1:
    D.add(touch(rW2, 1792, 228, 59))
D.add(touch3(rW1, 14, 60, 61) + w1_items(3, 0))
for ks in range(16):
    nxt = q_reads(ks + LOOK) if ks + LOOK < 16 else []
    A.wait(ds=tk[ks], vm=D.k['wqh'] if ks == 5 else None)
    if ks == 5:
        barrier()
    for u in range(4):
        mm16(AQ + 4 * u, v(WB + 4 * (ks % 4), 4), hreg(u, ks), ks == 0)
        if u >= 2 and nxt:
            tk[ks + LOOK] = A(nxt[u - 2])
        res = 4 if u == 3 else 0
        D.fill(res, W1P)
        fl.fill(res)
        if ks >= 4:
            fl2.fill(res)
    if ks == OPT.get('kvf', 12):
        A.wait(vm=tok_kv)
        setflag(s(sFKV), False)
fl.flush()
fl2.flush()
D.flush()
stamp('q')
D.add(mark([f's_lshl_b32 s1, {s(sRB2)}, 7', f's_add_u32 s1, s1, {HELLO}', f'buffer_load_dword v63, v234, {srd(rWS)}, s1 offen sc1'], 'hello') +
      mark([f's_lshl_b32 s1, {s(sW)}, 11', f's_add_u32 m0, s1, {XST}', f's_add_u32 s1, {s(sTILE)}, {16384-1024}',
            f'buffer_load_dwordx4 v233, {srd(rX)}, {s(sTILE)} offen lds', f'buffer_load_dwordx4 v233, {srd(rX)}, s1 offen offset:1024 lds'], 'xt'))
D.add(touch3(rWO, 4, 60, 62))
D.flush()
D.add(w1_items(3, 1) + (w1_items(3, 2) if OPT.get('w1e', 1) else []))
D.grp(OPT.get('w1a', 2))
for i in range(8):
    A(f'v_mul_f32 {v(AQ+i)}, 0x3eb8aa3b, {v(AQ+i)}')
emit(pack2(QF, AQ))
for i in range(8, 16):
    A(f'v_mul_f32 {v(AQ+i)}, 0x3eb8aa3b, {v(AQ+i)}')
for r in range(2):
    A(f'v_permlane16_swap_b32 {v(QF+r)}, {v(QF+2+r)}')
emit(pack2(QF + 4, AQ + 8))
for d in range(1, 5):
    A(f's_cmp_ge_u32 {s(sRB)}, {d}')
    A(f's_cselect_b32 s3, {d*4096}, 0')
    A(f's_sub_u32 {s(3+d)}, {s(sFKV)}, s3')
for r in range(2):
    A(f'v_permlane16_swap_b32 {v(QF+4+r)}, {v(QF+6+r)}')
A(f's_mov_b64 {s(rH, 2)}, {s(sWS, 2)}')


def mm32(X, d, x, y, c):
    X(f'v_mfma_f32_32x32x16_bf16 {d}, {x}, {y}, {c}')


def units_of(blk):
    if blk == 0:
        return [(0, KO, VO, MD, 0), (1, KO, VO, None, 0), (1, KO + 4, VO + 8, MD, 0)]
    t0 = 8 - 2 * blk
    r = []
    for t in (t0 + 1, t0):
        for q in (0, 1):
            if t < q:
                continue
            r.append((q, KH + 4 * t, VH + 8 * t, MO if t == q else None, blk))
    return r


def s_mm(X, un, buf):
    q, k, _, m, _ = un
    mm32(X, v(SB + 16 * buf, 16), v(k, 4), v(QF + 4 * q, 4), v(m, 16) if m else '0')


def attn_units(X, uns, first, sub=None, bg=None, ready=None, head=None):
    if ready:
        ready(uns[0])
    s_mm(X, uns[0], 0)
    if head:
        head()
    pend = None
    for n, un in enumerate(uns):
        q, _, vr, _, _ = un
        sb = SB + 16 * (n % 2)
        pb = PB + 8 * (n % 2)
        o = v(OA + 16 * q, 16)
        for hf in range(2):
            b = sb + 8 * hf
            if sub:
                for i in range(8):
                    X(f'v_sub_f32 {v(b+i)}, {v(b+i)}, {v(sub+q)}')
            seq = [('e', 0), ('p', 0), ('e', 1), ('e', 2), ('m', 0), ('c', 0), ('e', 3), ('e', 4), ('c', 1), ('e', 5), ('s', 0), ('e', 6), ('c', 2), ('e', 7)]
            for kind, i in seq:
                if kind == 'e':
                    X(f'v_exp_f32 {v(b+i)}, {v(b+i)}')
                elif kind == 'c':
                    X(f'v_cvt_pk_bf16_f32 {v(pb+4*hf+i)}, {v(b+2*i)}, {v(b+2*i+1)}')
                elif kind == 'p' and pend:
                    X(pend[0])
                elif kind == 'm' and pend:
                    mm32(X, *pend[1])
                    pend = None
                    if bg:
                        bg(n)
                elif kind == 's' and hf == 0 and n + 1 < len(uns):
                    if ready:
                        ready(uns[n + 1])
                    s_mm(X, uns[n + 1], (n + 1) % 2)
                    if bg:
                        bg(n)
            pend = (f'v_cvt_pk_bf16_f32 {v(pb+4*hf+3)}, {v(b+6)}, {v(b+7)}',
                    (o, v(vr + 4 * hf, 4), v(pb + 4 * hf, 4), '0' if q in first else o))
            first.discard(q)
    X(pend[0])
    mm32(X, *pend[1])


def kv_poll(X):
    for d in range(4):
        X(f's_load_dword {s(8+d)}, {s(sWS, 2)}, {s(4+d)} glc')


obc = [0]


def own_bg(n):
    obc[0] += 1
    if obc[0] == OPT.get('kp', 3):
        kv_poll(A)
    D.grp(1, W1P)


attn_units(A, units_of(0), {0, 1}, bg=own_bg)
stamp('own')
A(f's_andn2_b32 s3, {s(sN)}, 15')
A(f's_or_b32 s3, s3, {s(sXCC)}')
A.wait(vm=D.k['hello'])
A(f'v_cmp_ne_u32 vcc, s3, v63')
A(f's_cmp_eq_u64 vcc, 0')
A(f's_cselect_b32 {s(sFAST)}, 1, 0')
D.grp(OPT.get('w1b', 2))
ep, epb = A.new('ep'), A.new('epb')
A(f's_lshl2_add_u32 s3, s2, {s(sW)}')
A(f's_cmp_eq_u32 s3, 3')
A(f's_cbranch_scc1 {ep}')
A.label(epb)
lp, dn = A.new('epl'), A.new('epd')
WARM.label(ep)
WARM(f'v_lshrrev_b32 v3, 2, {v(vL)}')
WARM(f'v_lshlrev_b32 v3, 7, v3')
WARM(f'v_and_b32 v4, 3, {v(vL)}')
WARM(f'v_lshl_add_u32 v3, v4, 4, v3')
WARM(f's_mov_b32 s1, {HELLO}')
WARM('s_mov_b32 s3, 0')
WARM.label(lp)
WARM(f'buffer_load_dwordx4 v[72:75], v3, {srd(rWS)}, s1 offen sc1')
WARM('s_add_u32 s3, s3, 1')
WARM('s_waitcnt vmcnt(0)')
for i in range(4):
    WARM(f'v_xor_b32 {v(72+i)}, {s(sN)}, {v(72+i)}')
WARM('v_or_b32 v72, v72, v73')
WARM('v_or3_b32 v72, v72, v74, v75')
WARM('v_cmp_lt_u32 vcc, 15, v72')
WARM(f's_cmp_lt_u32 s3, {LIMIT}')
WARM(f's_cbranch_vccz {dn}')
WARM(f's_cbranch_scc1 {lp}')
WARM.label(dn)
WARM(f'v_mov_b32 v3, {s(sN)}')
WARM('s_mov_b64 exec, 1')
WARM(f'buffer_store_dword v3, off, {srd(rWS)}, 0 offset:{EPOCH} sc1')
WARM('s_mov_b64 exec, -1')
WARM(f's_branch {epb}')
lp, again, dn = A.new('kvp'), A.new('kva'), A.new('kvd')
A('s_mov_b32 s3, 0')
A.label(lp)
A('s_waitcnt lgkmcnt(0)')
A(f's_xor_b32 s8, s8, {s(sN)}')
for r in (9, 10, 11):
    A(f's_xor_b32 {s(r)}, {s(r)}, {s(sN)}')
    A(f's_or_b32 s8, s8, {s(r)}')
A(f's_cbranch_scc1 {again}')
A.label(dn)
WARM.label(again)
WARM('s_add_u32 s3, s3, 1')
WARM(f's_cmp_ge_u32 s3, {LIMIT}')
WARM(f's_cbranch_scc1 {dn}')
kv_poll(WARM)
WARM(f's_branch {lp}')
stamp('kvflag')
A('s_mov_b32 s8, 0xffff')
A('s_mov_b32 s9, 0xffff')


def halo_loads(X, d):
    X(f's_cmp_ge_u32 {s(sRB)}, {d}')
    X(f's_cselect_b32 {s(rH+2)}, 0x1000000, 0')
    X(f's_sub_u32 s3, {s(sKV)}, {d*4096}')
    t0 = 8 - 2 * d
    for T in (1, 0):
        X(f'buffer_load_dwordx4 {v(KH+4*(t0+T), 4)}, {v(vL16)}, {srd(rH)}, s3 offen offset:{T*2048} sc1')
    X('s_mov_b64 exec, s[8:9]')
    for u in (2, 3, 0, 1):
        t = X(f'buffer_load_dwordx4 {v(VH+8*t0+4*u, 4)}, {v(vVS)}, {srd(rH)}, s3 offen offset:{(u//2)*2048+1024+(u%2)*512} sc1')
    X('s_mov_b64 exec, -1')
    return t


tok_h = {1: halo_loads(A, 1), 2: halo_loads(A, 2)}
A(f'v_lshrrev_b32 v4, 5, {v(vL)}')
A(f'v_and_b32 v3, 31, {v(vL)}')
A(f'v_lshlrev_b32 v3, 6, v3')
A(f'v_lshl_add_u32 v3, v4, 3, v3')
A(f's_lshl_b32 s4, {s(sW)}, 11')
A(f's_add_u32 s4, s4, {XST}')
A(f'v_add_u32 v3, s4, v3')
A.wait(vm=D.k['xt'])
for q in range(4):
    A(f'ds_read_b64 {a(64+2*q, 2)}, v3 offset:{16*q}')
mod_finish(4, 1024, PW2, PC2, PB, SB + 16, PRED2)
tok_h[3] = halo_loads(A, 3)
stamp('m2')


def pretouch():
    sk = A.new('pt')
    A(f's_cmp_eq_u32 {s(sFAST)}, 0')
    A(f's_cbranch_scc1 {sk}')
    st = A.cond_begin()
    A(f'v_and_b32 v3, 31, {v(vL)}')
    A(f'v_lshlrev_b32 v3, 6, v3')
    A(f's_andn2_b32 s3, {s(sPO)}, 0x7ff')
    A(f'buffer_load_dword v4, v3, {srd(rWS)}, s3 offen sc1')
    if OPT['dmode']:
        A(f's_lshl_b32 s3, {s(sRB)}, 3')
        A(f's_add_u32 s3, s3, {s(sHQ)}')
        A(f's_lshl2_add_u32 s3, s3, {s(sW)}')
        A(f's_lshl_b32 s4, s3, 11')
        A(f's_add_u32 s5, s4, {YBUF}')
        A(f's_add_u32 s4, s4, {OBUF}')
        A(f'buffer_load_dword v4, v3, {srd(rWS)}, s4 offen sc1')
        A(f'buffer_load_dword v4, v3, {srd(rWS)}, s5 offen sc1')
        A(f'v_and_b32 v3, 192, v3')
        A(f'buffer_load_dword v4, v3, {srd(rWS)}, {s(sST)} offen sc1')
    A.cond_end(st)
    A.label(sk)


def wo_items():
    l = [f's_lshl_b32 s11, {s(sW)}, 14', f's_lshl_b32 {s(sBO)}, {s(sW)}, 17']
    for i in range(16):
        if i % 4 == 0:
            l.append(f's_add_u32 m0, s11, {WOS + 1024*i}')
        if i:
            l.append(f's_add_u32 {s(sBO)}, {s(sBO)}, {7168 if i % 4 else 8192 + 3072}')
        l.append(f'buffer_load_dwordx4 {v(vWD)}, {srd(rWO)}, {s(sBO)} offen offset:{1024*(i%4)} {NTW} lds')
    return l


G2 = VH + 32
D.add(([] if OPT.get('w1e', 1) else w1_items(3, 2)) + mark(wo_items(), 'wo') + touch3(rW2, 14, 79, 78))
qg2 = Q([f'v_lshlrev_b32 {v(vVS)}, 4, v0'] + gather_loads(1024, 2, G2, vVS))
wor = Q([f's_add_u32 s4, s11, {WOS}', f's_sub_u32 s4, s4, {s(sRING)}', f'v_add_u32 v76, s4, {v(vR0)}', f'v_add_u32 v77, s4, {v(vR1)}',
         lambda: A.wait(vm=D.k['wo'])] +
        [f'ds_read_b64_tr_b16 {a(fi*32+4*i+2*rd, 2)}, {v(76+fi)} offset:{i*2048+rd*1024}' for i in range(8) for fi in range(2) for rd in range(2)])
bgc = [0]


def att_bg(n):
    bgc[0] += 1
    if bgc[0] == OPT.get('h4', 2):
        tok_h[4] = halo_loads(A, 4)
    elif bgc[0] == OPT.get('pt', 4):
        if OPT['fast']:
            cond_wave(0, pretouch) if not OPT['dmode'] else pretouch()
    elif bgc[0] > OPT.get('wo0', 4):
        if D.q:
            D.grp()
        elif n >= 9 and qg2.q:
            qg2.grp(2)
        elif bgc[0] >= OPT.get('wr0', 36):
            wor.pop(5)


attn_units(A, [u for d in range(1, 5) for u in units_of(d)], set(), bg=att_bg, ready=lambda un: A.wait(vm=tok_h[un[4]]))
assert not D.q and not qg2.q, (len(D.q), len(qg2.q))
wor.flush()
redo, fin = A.new('redo'), A.new('attfin')
A(f's_mov_b32 s3, {"0" if OPT["forcemax"] else "0x67800000"}')
A(f's_mov_b32 s1, 0x17800000')
A(f's_add_u32 s10, {s(sO)}, 32768')
A(f'v_max_f32 {v(SB)}, {v(OA+8)}, {v(OA+24)}')
A(f'v_min_f32 {v(SB+1)}, {v(OA+8)}, {v(OA+24)}')
A(f'v_cmp_u_f32 s[6:7], {v(OA+8)}, {v(OA+24)}')
A(f'v_cmp_nle_f32 s[4:5], s1, {v(SB+1)}')
A(f'v_cmp_nge_f32 vcc, s3, {v(SB)}')
A('s_or_b64 s[4:5], s[6:7], s[4:5]')
A('s_or_b64 vcc, vcc, s[4:5]')
A(f's_cbranch_vccnz {redo}')
A.label(fin)
C = COLD
C.label(redo)
C('s_waitcnt vmcnt(0)')
C(f'v_lshrrev_b32 v4, 5, {v(vL)}')
C(f'v_and_b32 v3, 15, {v(vL)}')
C(f'v_lshl_add_u32 v3, v4, 4, v3')
C(f'v_lshlrev_b32 {v(vVS)}, 4, v3')
for i in range(32):
    C(f'v_mov_b32 {v(G2+i)}, 0x3f803f80')
for d in (1, 2):
    halo_loads(C, d)
C('s_waitcnt vmcnt(0)')
C(f'v_mov_b32 v3, 0xff7fffff')
C(f'v_mov_b32 v4, 0xff7fffff')
mx_end, p2_end = C.new('mxend'), C.new('p2end')
for d in range(5):
    if d:
        C(f's_cmp_lt_u32 {s(sRB)}, {d}')
        C(f's_cbranch_scc1 {mx_end}')
    for un in units_of(d):
        s_mm(C, un, 0)
        for i in range(0, 16, 2):
            C(f'v_max3_f32 {v(3+un[0])}, {v(3+un[0])}, {v(SB+i)}, {v(SB+i+1)}')
C.label(mx_end)
for q in range(2):
    C(f'v_mov_b32 {v(SB)}, {v(3+q)}')
    C(f'v_permlane32_swap_b32 {v(SB)}, {v(3+q)}')
    C(f'v_max_f32 {v(3+q)}, {v(SB)}, {v(3+q)}')
fs = {0, 1}
for d in range(5):
    if d:
        C(f's_cmp_lt_u32 {s(sRB)}, {d}')
        C(f's_cbranch_scc1 {p2_end}')
    attn_units(C, units_of(d), fs, sub=3)
C('s_nop 7')
C.label(p2_end)
C('s_nop 7')
C(f'v_lshlrev_b32 {v(vVS)}, 4, v0')
for f in gather_loads(1024, 2, G2, vVS):
    C(f)
C('s_waitcnt vmcnt(0)')
C(f's_branch {fin}')
for q in range(2):
    A(f'v_rcp_f32 {v(OA+16*q+8)}, {v(OA+16*q+8)}')
for q in range(2):
    for i in range(4):
        A(f'v_pk_mul_f32 {v(OA+16*q+2*i, 2)}, {v(OA+16*q+2*i, 2)}, {v(OA+16*q+8, 2)} op_sel_hi:[1,0]')
    for i in range(4):
        A(f'v_cvt_pk_bf16_f32 {v(OA+16*q+i)}, {v(OA+16*q+2*i)}, {v(OA+16*q+2*i+1)}')
stamp('attn')
tok_o = handoff([f'buffer_store_dwordx4 {v(OA+16*q, 4)}, {v(vL16)}, {srd(rWS)}, {s((sO, 10)[q])} offen @' for q in range(2)], OPT['dmode'])

W2ORD = [7 * jj + t for jj in range(4) for t in range(4)] + [7 * jj + t for jj in range(4) for t in range(4, 7)]
NA = OPT.get('na', 5)
sW2 = sKV


def w2reg(fi, m):
    return (72 + 8 * m if m < 23 else 32 + 8 * (m - 23)) + 4 * fi


def w2_dma(m, sl, off):
    return [f's_add_u32 m0, {s(sl)}, {off}', f's_add_u32 {s(sBO)}, {s(sW2)}, {16384*W2ORD[m]}',
            f'buffer_load_dwordx4 {v(vWD)}, {srd(rW2)}, {s(sBO)} offen {NTW} lds',
            (f'buffer_load_dwordx4 v250, {srd(rW2)}, {s(sBO)} offen offset:1024 {NTW} lds', ('w2', m))]


def w2_read(m, va, off):
    return [f'ds_read_b64_tr_b16 {a(w2reg(fi, m)+2*rd, 2)}, {v(va+fi)} offset:{off+rd*1024}' for fi in range(2) for rd in range(2)]


def ring_dma(b):
    return [x for i in range(5) for x in w2_dma(NA + 5 * b + i, sRING, 2048 * i)]


def ring_read(b):
    return [lambda: A.wait(vm=D.k['w2', NA + 5 * b + 4])] + [x for i in range(5) for x in w2_read(NA + 5 * b + i, vR0, 2048 * i)]


CG, CS, GB, X1 = 208, 224, 240, 184
vP, vW1a, vW1b, vO1 = 252, 6, 7, 253
A(f's_mul_i32 {s(sW2)}, {s(sW)}, {448*1024}')
A(f'v_add_u32 v250, {8192-1024}, {v(vWD)}')
for m in range(NA):
    D.add(w2_dma(m, 11, WOS + 2048 * m))
A.wait_all(ds=True)
D.grp(OPT.get('ba', 8))
stamp('pdma')
gather_check(1024, 2, G2, vVS, qg2.tok, 3)
A(f's_cmp_lt_u32 {s(sW)}, 2')
A(f's_cselect_b32 s3, 1.0, 0')
add_const_round(G2 + 16, 3)
emit(['v_and_b32 v4, 0x7c, v0', 'v_and_b32 v16, 1, v0', 'v_lshl_add_u32 v4, v16, 1, v4', 'v_bfe_u32 v16, v0, 1, 1', 'v_add_u32 v4, v4, v16',
      f's_lshr_b32 s3, {s(sW)}, 1', f's_mul_i32 s3, s3, 1088', f's_add_u32 s3, s3, {T_MOD2}', 'v_lshl_add_u32 v4, v4, 3, s3'])
A(f'ds_write_b64 v4, {v(G2, 2)}')
A(f'ds_write_b64 v4, {v(G2+16, 2)} offset:{2*1088}')
emit([f'v_and_b32 {v(vP)}, 15, {v(vL)}', f'v_lshlrev_b32 {v(vP)}, 2, {v(vP)}', f'v_and_b32 v251, 28, {v(vP)}',
      f'v_lshrrev_b32 v4, 5, {v(vL)}', f's_and_b32 s3, {s(sTILE)}, 1023', f's_add_u32 s3, s3, {T_MOD2}', f'v_lshl_add_u32 v4, v4, 4, s3',
      f's_add_u32 s4, s11, {WOS}', f's_sub_u32 s4, s4, {s(sRING)}', f'v_add_u32 v182, s4, {v(vR0)}', f'v_add_u32 v183, s4, {v(vR1)}',
      f's_add_u32 s6, {s(sOL0)}, 4096', f's_add_u32 s7, {s(sOL1)}, 4096'])
xun = [f'v_accvgpr_read_b32 {v(160+i)}, {a(64+i)}' for i in range(8)] + [x for i in range(8) for x in unpack2(X1 + 2 * i, 160 + i)]
if not OPT['dmode']:
    emit(xun)
stamp('pchk')
A.wait(vm=tok_o)
setflag(s(sFO))
stamp('pflag')
D.flush()
A.wait_all(ds=True)
barrier()
stamp('pbar')
for q in range(2):
    A(f'ds_read_b128 {v(144+4*q, 4)}, v4 offset:{32*q}')
    A(f'ds_read_b128 {v(152+4*q, 4)}, v4 offset:{2*1088+32*q}')
    tcs = A(f'ds_read_b128 {v(GB+4*q, 4)}, v4 offset:{3*1088+32*q}')
if OPT['dmode']:
    emit(xun)
cun = [x for i in range(8) for x in unpack2(CG + 2 * i, 144 + i) + unpack2(CS + 2 * i, 152 + i)]
A.wait(ds=tcs)
PO = OPT.get('po', 16)
emit(cun[:PO])
tpo = A(poll_load(251, s(sPO), 0, 3))
emit(cun[PO:])
stamp('prep')

OB, ACC, RX = 16, 80, 144


def red_sync():
    A.wait_all(ds=True)
    barrier()


poll_check(tpo, 251, s(sPO), 0, 3)
stamp('oflag')
for ti in (1, 0):
    for i in range(8):
        so = ((sOL0, 6), (sOL1, 7))[ti][i // 4]
        D.add([(f'buffer_load_dwordx4 {v(OB+32*ti+4*i, 4)}, {v(vL16)}, {srd(rWS)}, {s(so)} offen offset:{(i%4)*1024} sc1', ('o', ti, i))])
D.grp(10)
emit([x for m in range(NA) for x in w2_read(m, 182, 2048 * m)])
D.add([red_sync] + mark(w1_items(1, 12), 'w1'))


def red_addrs(base, stride, slots, vi):
    l = []
    for aa in range(1, 4):
        l += [f's_xor_b32 s3, {s(sW)}, {aa}', f's_mul_i32 s3, s3, {stride}', f's_add_u32 s3, s3, {base + slots[aa-1]}', f'v_add_u32 {v(vO1+aa-1)}, s3, {v(vL16)}']
    return l + [f's_mul_i32 s3, {s(sW)}, {stride}', f's_add_u32 s3, s3, {base}', f'v_add_u32 {v(vi)}, s3, {v(vL16)}']


emit(red_addrs(SCR, RING, (0, 0, 4096), 176))
emit([f'v_bfe_u32 v3, {v(vL)}, 4, 1', f'v_lshlrev_b32 v4, 2, {v(vP)}', 'v_lshl_add_u32 v178, v3, 3, v4',
      f'v_bfe_u32 v4, {v(vL)}, 2, 2', 'v_mul_u32_u24 v4, 448, v4', f'v_and_b32 v180, 3, {v(vL)}', 'v_lshl_add_u32 v4, v180, 3, v4',
      f'v_lshrrev_b32 v180, 5, {v(vL)}', 's_movk_i32 s4, 224', 's_movk_i32 s5, 3584',
      'v_mad_u32_u24 v179, v180, s4, v4', 'v_lshl_add_u32 v179, v3, 5, v179',
      'v_mad_u32_u24 v177, v3, s4, v4', 'v_mad_u32_u24 v177, v180, s5, v177',
      f'v_and_b32 v181, 1, {v(vL)}', 'v_mul_u32_u24 v4, 1088, v181', f'v_and_b32 v181, 48, {v(vL)}', f's_mov_b32 s4, {T_MOD2+1088}', 'v_add3_u32 v200, v4, v181, s4',
      f's_add_u32 s9, {s(sW)}, 4', 's_min_u32 s9, s9, 6', f's_lshl_b32 s4, {s(sW)}, 5', 's_lshl_b32 s5, s9, 5',
      'v_add_u32 v201, s4, v177', 'v_add_u32 v202, s5, v177', f'v_add_u32 v203, {8*7168}, v201', f'v_add_u32 v204, {8*7168}, v202',
      f's_lshl3_add_u32 s4, s4, {T_CB}', f's_lshl3_add_u32 s5, s5, {T_CB}', f'v_lshl_add_u32 v205, {v(vP)}, 2, s4', f'v_lshl_add_u32 v206, {v(vP)}, 2, s5',
      f'v_and_b32 v249, 31, {v(vL)}', f'v_lshlrev_b32 v4, 4, v249', f'v_add_u32 v248, {T_CB}, v4'])


def red_write(aa):
    return [f'ds_write_b128 {v(vO1+aa-1)}, {v(ACC+16*aa+4*r, 4)} offset:{r*1024}' for r in range(4)]


def b_mm(ti, fi, i):
    d = v(ACC + 32 * ti + 16 * fi, 16)
    mm32(A, d, a(32 * fi + 4 * i, 4), v(OB + 32 * ti + 4 * i, 4), '0' if i == 0 else d)


for i in range(8):
    A.wait(vm=D.k['o', 1, i])
    stamp(f'o{i}')
    b_mm(1, 1, i)
    D.grp()
    b_mm(1, 0, i)
qr = Q(red_write(3) + red_write(2))
for i in range(8):
    A.wait(vm=D.k['o', 0, i])
    stamp(f'o{8+i}')
    b_mm(0, 1, i)
    D.grp()
    qr.pop(1 if i else 0)
qr.flush()
D.flush()
b_mm(0, 0, 0)
red_sync()
b_mm(0, 0, 1)
emit([f'ds_read_b128 {v(RX+4*r, 4)}, v176 offset:{r*1024}' for r in range(4)])
b_mm(0, 0, 2)
t = A.ds
emit([f'ds_read_b128 {v(RX+16+4*r, 4)}, v176 offset:{4096+r*1024}' for r in range(4)])
b_mm(0, 0, 3)
A.wait(ds=t)
barrier()
w = red_write(1)
for i in range(4, 8):
    A(w[i - 4])
    b_mm(0, 0, i)
stamp('om')
for i in range(16):
    if i == 0:
        A.wait(ds=t + 4)
    A(f'v_add_f32 {v(RX+16+i)}, {v(RX+i)}, {v(RX+16+i)}')
red_sync()
t = [A(f'ds_read_b128 {v(RX+4*r, 4)}, v176 offset:{r*1024}') for r in range(4)]
for i in range(8):
    A(f'v_pk_add_f32 {v(ACC+2*i, 2)}, {v(ACC+2*i, 2)}, {v(RX+16+2*i, 2)}')
for i in range(8):
    A(f'v_pk_fma_f32 {v(X1+2*i, 2)}, {v(ACC+2*i, 2)}, {v(CG+2*i, 2)}, {v(X1+2*i, 2)}')
A.wait(ds=t[3])
for i in range(8):
    A(f'v_pk_fma_f32 {v(X1+2*i, 2)}, {v(RX+2*i, 2)}, {v(CG+2*i, 2)}, {v(X1+2*i, 2)}')
stamp('ored')
for i in range(8):
    A(f'v_pk_mul_f32 {v(CS+2*i, 2)}, {v(CS+2*i, 2)}, {v(X1+2*i, 2)}')
for i in range(8):
    A(f'v_cvt_pk_bf16_f32 {v(CS+i)}, {v(CS+2*i)}, {v(CS+2*i+1)}')
handoff([f'buffer_store_dwordx4 {v(CS+4*g, 4)}, {v(vL16)}, {srd(rWS)}, {s(sY)} offen offset:{1024*g} @' for g in range(2)], OPT['dmode'])
A(f'v_pk_add_f32 {v(CG, 2)}, {v(X1, 2)}, {v(X1+2, 2)}')
A(f'v_pk_mul_f32 {v(CG+2, 2)}, {v(X1, 2)}, {v(X1, 2)}')
for i in range(1, 8):
    if i > 1:
        A(f'v_pk_add_f32 {v(CG, 2)}, {v(CG, 2)}, {v(X1+2*i, 2)}')
    A(f'v_pk_fma_f32 {v(CG+2, 2)}, {v(X1+2*i, 2)}, {v(X1+2*i, 2)}, {v(CG+2, 2)}')
A(f'v_add_f32 {v(CG)}, {v(CG)}, {v(CG+1)}')
A(f'v_add_f32 {v(CG+1)}, {v(CG+2)}, {v(CG+3)}')
A(f'v_mov_b64 {v(CG+2, 2)}, {v(CG, 2)}')
A(f'v_mov_b32 {v(vW1a)}, v179')
A(f'v_add_u32 {v(vW1b)}, {8*7168}, v179')
A(f'v_permlane32_swap_b32 {v(CG)}, {v(CG+2)}')
A(f'v_permlane32_swap_b32 {v(CG+1)}, {v(CG+3)}')
A(f'v_pk_add_f32 {v(CG, 2)}, {v(CG, 2)}, {v(CG+2, 2)}')
A('s_mov_b32 exec_hi, 0')
tok_y = handoff([f'buffer_store_dwordx2 {v(CG, 2)}, v178, {srd(rWS)}, {s(sST)} offen @'], OPT['dmode'])
A('s_mov_b64 exec, -1')
stamp('oproj')

tk = {}
CBB, CBA = 96, 144


def cb_reads(ks):
    b = CBB + (ks % 4) * 12
    l = []
    for t in range(2):
        base = (201, 202)[t] if ks < 8 else (203, 204)[t]
        l += [f'ds_read_b64_tr_b16 {v(b+4+4*t+2*rd, 2)}, {v(base)} offset:{(ks%8)*7168+rd*1792}' for rd in range(2)]
    return [f'ds_read_b128 {v(b, 4)}, v200 offset:{ks*64}'] + l


D.add(ring_dma(0))
D.grp(OPT.get('b0', 8))
for ks in range(3):
    tk[ks] = emit(cb_reads(ks))
YF = OPT.get('yf', 2 if OPT['dmode'] else 7)
YP = OPT.get('yp', YF + 5)
for ks in range(16):
    A.wait(ds=tk[ks], vm=D.k['w1'] if ks == 8 else None)
    stamp(f'k{ks}')
    if ks == 8:
        barrier()
    b = CBB + (ks % 4) * 12
    nxt = cb_reads(ks + 3) if ks + 3 < 16 else []
    mm16(CBA, v(b, 4), v(b + 4, 4), ks == 0)
    emit(nxt[:2])
    mm16(CBA + 4, v(b, 4), v(b + 8, 4), ks == 0)
    if ks > YF:
        D.grp()
    if ks == YP:
        D.flush()
        tpy = A(poll_load(vP, s(sPY), 0, 3))
    if nxt:
        tk[ks + 3] = emit(nxt[2:])
    if ks == YF:
        stamp('kw')
        A.wait(vm=tok_y)
        setflag(s(sFY))
        stamp('kf')


def split3(dst, x0, x1, tmp, mode):
    l = [f'v_cvt_pk_bf16_f32 {v(tmp)}, {v(x0)}, {v(x1)}'] + unpack2(tmp + 1, tmp)
    l += [f'v_sub_f32 {v(x0)}, {v(x0)}, {v(tmp+1)}', f'v_sub_f32 {v(x1)}, {v(x1)}, {v(tmp+2)}']
    h0, h1 = tmp + 1, tmp + 2
    e = [h0, x0, h0, h1, x1, h1] if mode == 'a' else [h0, h0, x0, h1, h1, x1]
    l += [f'v_cvt_pk_bf16_f32 {v(dst+i)}, {v(e[2*i])}, {v(e[2*i+1])}' for i in range(3)]
    return l + [f'v_mov_b32 {v(dst+3)}, 0']


stamp('cb')

YB, FT, BX, SL = 16, [144, 160, 200, 216], 176, 200
qy = Q()
for ks in range(32):
    if ks % 4 == 0:
        qy.add([f's_add_u32 s4, {s(sYL)}, {ks*1024}'])
    qy.add([(f'buffer_load_dwordx4 {v(YB+4*ks, 4)}, {v(vL16)}, {srd(rWS)}, s4 offen offset:{(ks%4)*1024} sc1', ks)])
    if ks == 15:
        qy.add(mark([f'buffer_load_dwordx4 {v(SL+4*i, 4)}, {v(vL16)}, {srd(rWS)}, {s(sSTL)} offen offset:{i*1024} sc1' for i in range(4)], 'st'))
poll_check(tpy, vP, s(sPY), 0, 3)
stamp('yflag')
qy.grp(OPT.get('y0', 8))
stamp('yiss')
for t in range(2):
    emit(split3(152 + 4 * t, CBA + 4 * t + 1, CBA + 4 * t, 160, 'a'))
A(f'ds_write_b128 v205, {v(152, 4)}')
A(f'ds_write_b128 v206, {v(156, 4)}')
stats = [lambda: A.wait(vm=qy.k['st'])]
for e in range(4):
    stats += [f'v_add_f32 {v(SL+e)}, {v(SL+e)}, {v(SL+4+e)}', f'v_add_f32 {v(SL+8+e)}, {v(SL+8+e)}, {v(SL+12+e)}']
stats += [f'v_add_f32 {v(SL+e)}, {v(SL+e)}, {v(SL+8+e)}' for e in range(4)]
stats += [f'v_permlane16_swap_b32 {v(SL+e)}, {v(SL+2+e)}' for e in range(2)]
stats += [f'v_add_f32 {v(SL+e)}, {v(SL+e)}, {v(SL+2+e)}' for e in range(2)]
stats += [f'v_mov_b64 {v(SL+2, 2)}, {v(SL, 2)}', f's_lshl_b32 s3, {s(sW)}, 7', f's_add_u32 s3, s3, {T_RST}', f'v_lshl_add_u32 v4, v249, 2, s3']
stats += [f'v_permlane32_swap_b32 {v(SL+e)}, {v(SL+2+e)}' for e in range(2)]
stats += [f'v_add_f32 {v(SL+e)}, {v(SL+e)}, {v(SL+2+e)}' for e in range(2)]
stats += [f'v_mul_f32 {v(SL)}, 0xbb000000, {v(SL)}', f'v_mul_f32 {v(SL+1)}, 0x3b000000, {v(SL+1)}',
          f'v_fma_f32 {v(SL+1)}, -{v(SL)}, {v(SL)}, {v(SL+1)}', f'v_max_f32 {v(SL+1)}, 0, {v(SL+1)}',
          f'v_add_f32 {v(SL+2)}, 0x3727c5ac, {v(SL+1)}', f'v_sqrt_f32 {v(SL+1)}, {v(SL+2)}', f'v_rsq_f32 {v(SL+2)}, {v(SL+2)}',
          f'v_cmp_gt_u32 vcc, 32, {v(vL)}', f'ds_write_b32 v4, {v(SL+2)}',
          f'v_cndmask_b32 {v(SL)}, 0, {v(SL)}, vcc', f'v_cndmask_b32 {v(SL+1)}, 0, {v(SL+1)}, vcc']
stats += split3(BX, SL, SL + 1, SL + 4, 'b')
qs = Q(stats)
cseq = [(p, ks, 2 * p + i) for p in range(2) for ks in range(33) for i in range(2)]
NFB, CLK = 8, OPT.get('clk', 5)
tk = {}


def c_rd(n):
    p, ks, ct = cseq[n]
    b = 4 * (n % NFB)
    if ks == 32:
        return [f'ds_read_b128 {a(b, 4)}, v248 offset:{ct*512}']
    return [f'ds_read_b64_tr_b16 {a(b+2*r, 2)}, {v(vW1a if ks < 16 else vW1b)} offset:{(ks%16)*3584+r*1792+ct*64}' for r in range(2)]


def f_epi(ct):
    n = 8 if ct < 3 else 4
    return ([f'v_cvt_pk_bf16_f32 {v(FT[ct]+i)}, {v(FT[ct]+2*i)}, {v(FT[ct]+2*i+1)}' for i in range(n)] +
            [f'v_pk_max_i16 {v(FT[ct]+i)}, {v(FT[ct]+i)}, 0' for i in range(n)])


def f_stores(ts, sdst):
    return handoff([f'buffer_store_dwordx4 {v(FT[t//2]+4*(t%2), 4)}, {v(vL16)}, {srd(rWS)}, {sdst} offen offset:{(t%4)*1024} @' for t in ts], OPT['fmode'])


hold = {}
A.wait_all(ds=True)
barrier()
for n in range(CLK):
    tk[n] = emit(c_rd(n))
R = Q(ring_read(0))
R.flush()
D.add(ring_dma(1))
F1, PF1 = OPT.get('f1', 26), OPT.get('pf1', 31)
qe = Q()
for n, (p, ks, ct) in enumerate(cseq):
    i = n % 2
    if i == 0:
        A.wait(vm=qy.k[ks] if p == 0 and ks < 32 else None, ds=tk[n + 1])
        stamp('ab'[p] + str(ks))
        if (p, ks) == (0, 32):
            qs.flush()
        if (p, ks) == (1, 0):
            stamp('c1')
        if (p, ks) == (1, 1):
            D.flush()
            qe.add(f_epi(0) + f_epi(1) + [lambda: hold.update(f1=f_stores(range(4), s(sF)))])
        FREE = {2: (0, 1), 6: (1, 3), 11: (3, 5), 18: (5, 13 - NA)}
        if p == 1 and ks in FREE:
            barrier()
            assert FREE[ks][1] * 8192 <= (ks + 1) * 3584
            for q in range(*FREE[ks]):
                D.add(w2_dma(NA + 15 + q, 10, 8192 * q))
        if (p, ks) == (1, F1):
            A.wait(vm=hold['f1'])
            setflag(s(sFF))
    d = v(FT[ct], 16)
    mm32(A, d, a(4 * (n % NFB), 4), v(BX if ks == 32 else YB + 4 * ks, 4), '0' if ks == 0 else d)
    if p == 0:
        if qy.q:
            if i == 0 or ks % 4 == 1:
                qy.grp()
        else:
            D.grp()
    elif (ks, i) == (PF1, 0):
        assert not R.q
        D.flush()
        tpf = A(poll_load(251, s(sPO), 1024, 9))
    else:
        D.grp(1, OPT.get('c2pace', 60))
    if n + CLK < len(cseq):
        tk[n + CLK] = emit(c_rd(n + CLK))
    res = 4 if i else 0
    if p == 0 and ks >= 17:
        qs.fill(res)
    if qe.q:
        qe.pop(OPT.get('qe', 4))
    elif R.q:
        R.pop(OPT.get('qr', 2))
    if (p, ks, i) == (1, 1, 0):
        R.add(ring_read(1) + [lambda: A.wait(ds=R.dtok), lambda: D.add(ring_dma(2))])
        A(f's_lshl_b32 s10, {s(sW)}, 11')
assert not (D.q or R.q)
stamp('c2')

NB = 16


def fbuf(n):
    return 16 + 4 * (n % NB)


NE = 32 - OPT.get('defer', 4)
seq = [(1, m) for m in range(16)] + [(0, m) for m in range(NE - 16)] + [(1, m) for m in range(16, 28)] + [(0, m) for m in range(NE - 16, 28)]
ql = Q()
for n, (ti, m) in enumerate(seq):
    k = W2ORD[m]
    if k % 7 in (0, 4) or n == NE + 12:
        ql.add([f's_add_u32 s4, {s((sFL0, sFL1)[ti])}, {(k - k%7%4)*1024}'])
    ql.add([(f'buffer_load_dwordx4 {v(fbuf(n), 4)}, {v(vL16)}, {srd(rWS)}, s4 offen offset:{(k%7%4)*1024} sc1', n)])
LK = OPT.get('lk', 11)
A(f's_add_u32 s9, {s(sF)}, 4096')
A(f's_sub_u32 s3, s10, {s(sRING)}')
A(f'v_add_u32 v10, s3, {v(vR0)}')
A(f'v_add_u32 v11, s3, {v(vR1)}')
A(f's_lshr_b32 s3, {s(sTILE)}, 8')
A(f's_and_b32 s3, s3, 0x180')
A(f's_add_u32 s3, s3, {T_RST}')
A(f'v_lshl_add_u32 v4, v249, 2, s3')
A(f'ds_read_b32 v7, v4')
emit(f_epi(2) + f_epi(3))
F2E = OPT.get('f2e', 1)
if F2E:
    tf2 = f_stores(range(4, 7), 's9')
poll_check(tpf, 251, s(sPO), 1024, 9)
stamp('fflag')
ql.grp(8)
if not F2E:
    tf2 = f_stores(range(4, 7), 's9')
Q(ring_read(2)).flush()
emit([x for i in range(8) for x in unpack2(CS + 2 * i, GB + i)])
fq = Q([x for m in range(NA + 15, 28) for x in w2_read(m, 10, 8192 * (m - NA - 15))] + red_addrs(65536, 12288, (0, 4096, 8192), 8) +
       [f'v_lshlrev_b32 v6, 10, v249', f'v_lshrrev_b32 v4, 5, {v(vL)}', f'v_lshl_add_u32 v6, v4, 4, v6'] + [lambda: A.wait(ds=fq.dtok)] +
       [f'v_mul_f32 {v(CS+i)}, {v(CS+i)}, v7' for i in range(16)])
K2 = OPT.get('k2', NE - LK)
P2 = OPT.get('p2', K2 - 7)


def d_mm(n, fi):
    ti, m = seq[n]
    d = v(ACC + 32 * ti + 16 * fi, 16)
    mm32(A, d, a(w2reg(fi, m), 4), v(fbuf(n), 4), '0' if m == 0 else d)


def issued():
    return max(k for k in ql.k) + 1


qr = Q(red_write(3) + red_write(2))
for n in range(44):
    A.wait(vm=ql.k[n])
    stamp(f'd{n}')
    if n == (0 if F2E else 8):
        setflag(s(sFF), off=512)
    if n == K2:
        poll_check(tpf, 251, s(sPO), 1536, 9)
    if n == NE:
        assert not fq.q
        barrier()
    for fi in (1, 0):
        d_mm(n, fi)
        if (n, fi) == (P2, 0):
            tpf = A(poll_load(251, s(sPO), 1536, 9))
        elif issued() < min(n + 1 + LK, 56 if n >= K2 else NE):
            ql.grp()
        fq.fill(4)
        if n >= NE + 12 and fi == 0:
            qr.pop()
for n in range(44, 56):
    A.wait(vm=ql.k[n])
    stamp(f'd{n}')
    d_mm(n, 1)
    ql.grp()
    if n > 44 and (n % 2 or len(qr.q) > (56 - n) // 2):
        qr.pop()
assert not qr.q
qr = Q(red_write(1) + [red_sync] + [(f'ds_read_b128 {v((144, 160, 200)[p]+4*r, 4)}, v8 offset:{(2-p)*4096+r*1024}', p) for p in range(3) for r in range(4)])
for n in range(44, 56):
    d_mm(n, 0)
    if n > 45:
        qr.pop(1 if n < 51 else 3)
qr.flush()
stamp('ffn2')
A.wait(ds=qr.k[1])
for i in range(8):
    A(f'v_pk_add_f32 {v(144+2*i, 2)}, {v(144+2*i, 2)}, {v(160+2*i, 2)}')
A.wait(ds=qr.k[2])
for i in range(8):
    A(f'v_pk_add_f32 {v(200+2*i, 2)}, {v(200+2*i, 2)}, {v(ACC+2*i, 2)}')
for k in range(2):
    for i in range(4 * k, 4 * k + 4):
        A(f'v_pk_add_f32 {v(144+2*i, 2)}, {v(144+2*i, 2)}, {v(200+2*i, 2)}')
    for i in range(4 * k, 4 * k + 4):
        A(f'v_pk_fma_f32 {v(X1+2*i, 2)}, {v(144+2*i, 2)}, {v(CS+2*i, 2)}, {v(X1+2*i, 2)}')
    for i in range(4):
        A(f'v_cvt_pk_bf16_f32 {v(160+4*k+i)}, {v(X1+8*k+2*i)}, {v(X1+8*k+2*i+1)}')
    for r in range(2):
        A(f'v_permlane32_swap_b32 {v(160+4*k+r)}, {v(160+4*k+2+r)}')
    A(f'buffer_store_dwordx4 {v(160+4*k, 4)}, v6, {srd(rOUT)}, {s(sTILE)} offen offset:{32*k} {"sc1" if OPT["outsc1"] else ""}')

if OPT['stamps']:
    A.wait_all(vm=True)
    NAMES_n = len(NAMES)
    A(f's_mov_b32 {s(STAMP0+NAMES_n-1)}, {s(STP)}')
    A(f's_memtime {s(STP, 2)}')
    NAMES.append('end')
    A('s_waitcnt lgkmcnt(0)')
    A('v_mov_b32 v3, 0')
    for k in range(NAMES_n):
        A(f'v_writelane_b32 v3, {s(STAMP0+k)}, {k}')
    A(f'v_writelane_b32 v3, {s(STP)}, {NAMES_n}')
    A(f'v_writelane_b32 v3, {s(sXCC)}, 30')
    A(f'v_writelane_b32 v3, {s(sFAST)}, 31')
    A(f's_lshl_b32 s3, s2, 2')
    A(f's_add_u32 s3, s3, {s(sW)}')
    A(f's_lshl_b32 s3, s3, 7')
    A(f's_add_u32 s3, s3, {STAMPS}')
    A(f'v_lshlrev_b32 v4, 2, {v(vL)}')
    A('s_mov_b32 exec_hi, 0')
    A(f'buffer_store_dword v3, v4, {srd(rWS)}, s3 offen')
if OPT['pad']:
    A.label('L_padl')
    A('s_memrealtime s[4:5]')
    A('s_waitcnt lgkmcnt(0)')
    A('s_sub_u32 s4, s4, s100')
    A(f's_cmp_lt_u32 s4, {OPT["pad"]}')
    A('s_cbranch_scc1 L_padl')
A.label('L_end')
A('s_endpgm')
A.ins += WARM.ins
A.label('L_hot_end')
A.ins += COLD.ins
body, added = A.text()

hdr = open('cdna_kernels/' + NAME + '.s.ref').read().split('\n')
hdr = [l for l in hdr if l.startswith(';') and '@launch' not in l and 'Override' not in l and 'grid=ceil' not in l]
out = '\n'.join(hdr) + f'''
; @launch grid=(256,1,1) block=(256,1,1) lds=163840
; generated by gen/gen.py (hand-written generator): one persistent launch, one workgroup per CU
.amdgcn_target "amdgcn-amd-amdhsa--gfx950"
.text
.globl {NAME}_kernel
.p2align 8
.type {NAME}_kernel,@function
{NAME}_kernel:
{body}
  s_endpgm
.fill 2048, 4, 0xbf800000
  s_endpgm
.section .rodata,"a"
.p2align 6
.amdhsa_kernel {NAME}_kernel
  .amdhsa_next_free_vgpr 512
  .amdhsa_next_free_sgpr 102
  .amdhsa_accum_offset 256
  .amdhsa_group_segment_fixed_size 0
  .amdhsa_kernarg_size 88
  .amdhsa_user_sgpr_count 2
  .amdhsa_user_sgpr_kernarg_segment_ptr 1
  .amdhsa_system_sgpr_workgroup_id_x 1
  .amdhsa_float_denorm_mode_32 3
.end_amdhsa_kernel
'''
open(sys.argv[1], 'w').write(out)
open(sys.argv[1] + '.names', 'w').write(' '.join(NAMES))
print(f'instructions: {len(A.ins)}, nops added: {added}, stamps: {len(NAMES)}')
```

```python
import sys
from asmlib import Asm, Ins, cost, v, a, s

NAME = 'adaLN_cond__sliding_block__dense_activation_relu__prompt'
OPT = dict(stamps=0, fast=1, forcemax=0, fmode=0, dmode=0, ntx=1, ntq=0, ntw=0, touch0=1, touch1=1, chunks=17, pad=0, outsc1=0)
for arg in sys.argv[2:]:
    k, val = arg.split('=')
    OPT[k] = val if k == 'probe' else int(val)

EPOCH = 0
HELLO = 0x1000
FKV = 0x10000
FL = 0x30000
MODP = 0x40000
STATS = 0x80000
STAMPS = 0xC0000
KVB = 0x100000
OBUF = 0x500000
YBUF = 0x700000
FBUF = 0x900000
LH, WVH, WVL, WQL = 0, 65536, 98304, 131072
MODT = WQL
PRED1 = WQL + 4096
XST = 86016
PRED2 = XST + 8192
WOS = 90112
SCR = 114688
RING = 10240
TAB = SCR + 4 * RING
T_MOD2 = TAB
T_CB = TAB + 4608
T_RST = TAB + 6656
sC, sWS = 16, 24
rX, rWQ, rWO, rW1, rW2, rWM, rWS, rOUT = 28, 32, 36, 40, 44, 48, 52, 56
rH = 32
sW, sRB, sHQ, sJ, sRB2, sN, sXCC, sFAST, sHI = 60, 61, 62, 63, 64, 65, 66, 67, 68
(sKV, sFKV, sO, sFO, sPO, sOL0, sOL1, sTILE, sY, sST, sFY, sPY, sSTL, sYL, sF, sFF, sX, sFL0, sFL1, sBO, sRING, sIW) = (
    12, 13, 14, 15, 18, 19, 20, 21, 22, 23, 26, 27, 69, 70, 71, 72, 73, 74, 75, 76, 77, 0)
STAMP0, STP = 78, 100
LIMIT = 1 << 15
vL, vL16 = 1, 2
W1A = [5, 6, 7, 8, 9, 10, 11]
vWD, vR0, vR1, vVS = 12, 13, 14, 15

NTX = 'nt' if OPT['ntx'] else ''
NTQ = 'nt' if OPT['ntq'] else ''
NTW = 'nt' if OPT['ntw'] else ''
A = Asm()
COLD = Asm()
COLD.uid = 100000
WARM = Asm()


def srd(r):
    return s(r, 4)


NAMES = []
SETS = {1: 'rt start setup ln_pre mod h kv q own kvflag m2 attn prep oflag oproj cb yflag c1 c2 fflag d0 ffn2',
        3: 'rt start yflag a0 a8 a16 a24 c1 b8 b16 b24 c2 fflag d0 d10 d12 d21 d27 d32 d44 ffn2',
        4: 'rt start mod h0 h1 h2 h3 hw h attn prep oflag o0 o4 o8 o12 om ored oproj cb yflag',
        5: 'rt start attn pst pwor pdma pchk pflag pbar prep oflag o0 oproj k0 k8 k9 kw kf cb yflag yiss a0',
        2: 'rt start karg iss setup0 nonce pland setup x0 x1 x2 x3 ln_pre wkl wk gchk mod h kv kvst q'}
KEEP = set(SETS.get(OPT['stamps'], '').split())


def stamp(name):
    if OPT.get('probe') == name:
        A(f's_mem{"" if OPT.get("pcyc") else "real"}time s[98:99]')
    if OPT['stamps'] and name in KEEP:
        k = len(NAMES)
        assert k < 22
        if k:
            A(f's_mov_b32 {s(STAMP0+k-1)}, {s(STP)}')
        A(f's_mem{"real" if name == "rt" else ""}time {s(STP, 2)}')
        NAMES.append(name)
        if name == 'rt':
            A('s_waitcnt lgkmcnt(0)')


def barrier():
    A('s_barrier')


class Q:
    def __init__(self, items=()):
        self.q = list(items)
        self.tok = None
        self.dtok = None
        self.k = {}
        self.last = -10**9

    def add(self, items):
        self.q += list(items)

    def kind(self):
        it = self.q[0]
        return 'call' if callable(it) else Ins(it[0] if isinstance(it, tuple) else it).kind

    def pop(self, n=1):
        for _ in range(n):
            if not self.q:
                return
            kind = self.kind()
            it = self.q.pop(0)
            if callable(it):
                it()
                continue
            txt, key = it if isinstance(it, tuple) else (it, None)
            t = A(txt)
            if kind == 'vmem':
                self.tok = t
                self.last = A.t
            elif kind == 'ds':
                self.dtok = t
            if key is not None:
                self.k[key] = t

    def grp(self, n=1, pace=0):
        for _ in range(n):
            if not self.q or A.t - self.last < pace:
                return
            while self.q and self.kind() != 'vmem':
                self.pop()
            self.pop()
            while self.q and self.kind() == 'salu':
                self.pop()

    def fill(self, reserve=0, pace=0):
        while self.q:
            it = self.q[0]
            if callable(it):
                c = 4
            else:
                i = Ins(it[0] if isinstance(it, tuple) else it)
                if i.kind == 'vmem' and A.t - self.last < pace:
                    return
                c = cost(i, A.prev, True)
            if A.t + c + reserve > A.mfree:
                return
            self.pop()

    def flush(self):
        self.pop(len(self.q))


def poll_load(vaddr, soff, off, vt):
    return f'buffer_load_dword {v(vt)}, {v(vaddr)}, {srd(rWS)}, {soff} offen offset:{off} sc1'


def poll_check(tok, vaddr, soff, off, vt):
    again, chk, ok = A.new('pagain'), A.new('pchk'), A.new('pok')
    A.wait(vm=tok)
    A(f'v_cmp_ne_u32 vcc, {s(sN)}, {v(vt)}')
    A(f's_cbranch_vccnz {again}')
    A.label(ok)
    WARM.label(again)
    WARM('s_mov_b32 s1, 0')
    WARM.label(chk)
    WARM(poll_load(vaddr, soff, off, vt))
    WARM('s_add_u32 s1, s1, 1')
    WARM('s_waitcnt vmcnt(0)')
    WARM(f'v_cmp_ne_u32 vcc, {s(sN)}, {v(vt)}')
    WARM(f's_cmp_ge_u32 s1, {LIMIT}')
    WARM(f's_cbranch_vccz {ok}')
    WARM(f's_cbranch_scc0 {chk}')
    WARM(f's_branch {ok}')


def handoff(stores, fast=True):
    tok = None
    if not (OPT['fast'] and fast):
        for t in stores:
            tok = A(t.replace('@', 'sc1')) or tok
        return tok
    slow, back = A.new('slow'), A.new('back')
    A(f's_cmp_eq_u32 {s(sFAST)}, 0')
    A(f's_cbranch_scc1 {slow}')
    for t in stores:
        tok = A(t.replace('@', '')) or tok
    A.label(back)
    COLD.label(slow)
    for t in stores:
        COLD(t.replace('@', 'sc1'))
    COLD('s_nop 1')
    COLD(f's_branch {back}')
    return tok


def setflag(soff, fast=True, off=0):
    A(f'v_mov_b32 v3, {s(sN)}')
    A('s_mov_b64 exec, 1')
    handoff([f'buffer_store_dword v3, off, {srd(rWS)}, {soff} offset:{off} @'], fast)
    A('s_mov_b64 exec, -1')


def readback(va, soffs, vt):
    if OPT.get('rb', 7):
        for so in soffs:
            A(f'buffer_load_dword {v(vt)}, {v(va)}, {srd(rWS)}, {so} offen sc1')


def unpack2(dst, src):
    return [f'v_lshlrev_b32 {v(dst)}, 16, {v(src)}', f'v_and_b32 {v(dst+1)}, {s(sHI)}, {v(src)}']


def emit(l):
    t = None
    for x in l:
        t = A(x) or t
    return t


def mod_addr(lpr, va, vc, so):
    lg = lpr.bit_length() - 1
    l = [f's_bfe_u32 s3, s2, 0x20005', f's_lshl_b32 s3, s3, 7', f's_lshl_b32 {s(so)}, {s(sW)}, 5', f's_add_u32 s3, s3, {s(so)}',
         f'v_lshrrev_b32 {v(va)}, {lg}, {v(vL)}', f'v_add_u32 {v(va)}, s3, {v(va)}', f'v_lshlrev_b32 {v(vc)}, 1, {v(va)}',
         f'v_mul_u32_u24 {v(va)}, {6144 // 16}, {v(va)}', f'v_and_or_b32 {v(va)}, {v(vL)}, {lpr-1}, {v(va)}', f'v_lshlrev_b32 {v(va)}, 4, {v(va)}',
         f's_lshl_b32 {s(so)}, {s(sRB2)}, 2', f's_and_b32 s3, {s(sJ)}, 3', f's_add_u32 {s(so)}, {s(so)}, s3', f's_lshl_b32 {s(so)}, {s(so)}, {4+lg}']
    return l


def mod_loads(lpr, colbyte, va, vc, so, PW, PC):
    l = []
    for i in range(lpr // 2):
        if i:
            l.append(f's_add_u32 {s(so)}, {s(so)}, {(64//lpr)*6144}')
        l.append(f'buffer_load_dwordx4 {v(PW+4*i, 4)}, {v(va)}, {srd(rWM)}, {s(so)} offen offset:{colbyte} {NTX}')
    for i in range(lpr // 2):
        l.append(f'global_load_ushort {v(PC+i)}, {v(vc)}, {s(sC, 2)} offset:{(64//lpr)*2*i}')
    return l


def mod_finish(lpr, col0, PW, PC, ACC, UT, pred, bg=lambda: None):
    nl = lpr // 2
    lg = lpr.bit_length() - 1
    R = range(nl)
    for i in R:
        A(f'v_lshlrev_b32 {v(PC+i)}, 16, {v(PC+i)}')
    for i in R:
        A(f'v_mul_f32 {v(PC+2+i)}, 0xbfb8aa3b, {v(PC+i)}')
    for i in R:
        A(f'v_exp_f32 {v(PC+2+i)}, {v(PC+2+i)}')
    emit(unpack2(UT, PW))
    for i in R:
        A(f'v_add_f32 {v(PC+2+i)}, 1.0, {v(PC+2+i)}')
    for i in R:
        A(f'v_rcp_f32 {v(PC+2+i)}, {v(PC+2+i)}')
    emit(unpack2(UT + 2, PW + 1))
    for i in R:
        A(f'v_mul_f32 {v(PC+i)}, {v(PC+i)}, {v(PC+2+i)}')
    for i in R:
        A(f'v_cvt_pk_bf16_f32 {v(PC+i)}, {v(PC+i)}, {v(PC+i)}')
    for i in R:
        A(f'v_and_b32 {v(PC+i)}, {s(sHI)}, {v(PC+i)}')
    for i in R:
        for r in range(0 if i else 2, 4):
            emit(unpack2(UT + 2 * r, PW + 4 * i + r))
        for e in range(4):
            if i == 0:
                A(f'v_pk_mul_f32 {v(ACC+2*e, 2)}, {v(UT+2*e, 2)}, {v(PC, 2)} op_sel_hi:[1,0]')
            else:
                A(f'v_pk_fma_f32 {v(ACC+2*e, 2)}, {v(UT+2*e, 2)}, {v(PC, 2)}, {v(ACC+2*e, 2)} op_sel:[0,1,0] op_sel_hi:[1,1,1]')
    A(f'v_and_b32 v3, {lpr-1}, {v(vL)}')
    A(f'v_lshlrev_b32 v3, 5, v3')
    for e in range(4):
        A(f'v_permlane32_swap_b32 {v(ACC+e)}, {v(ACC+e+4)}')
    for e in range(2):
        A(f'v_pk_add_f32 {v(ACC+2*e, 2)}, {v(ACC+2*e, 2)}, {v(ACC+2*e+4, 2)}')
    A(f'v_lshrrev_b32 v4, 4, {v(vL)}')
    A(f'v_lshl_add_u32 v3, v4, 3, v3')
    for e in range(2):
        A(f'v_permlane16_swap_b32 {v(ACC+e)}, {v(ACC+e+2)}')
    A(f'v_pk_add_f32 {v(ACC, 2)}, {v(ACC, 2)}, {v(ACC+2, 2)}')
    A(f's_lshl_b32 s5, {s(sW)}, {5+lg}')
    A(f's_add_u32 s5, s5, {pred}')
    extra = [f'v_add_u32 v3, s5, v3', f'v_and_b32 v4, {2*lpr-1}, {v(vL)}', f'v_lshlrev_b32 v4, 4, v4']
    for sh in (8, 4, 2)[:4 - lg]:
        for e in range(2):
            A(f'v_add_f32_dpp {v(ACC+e)}, {v(ACC+e)}, {v(ACC+e)} row_ror:{sh} row_mask:0xf bank_mask:0xf')
        A(extra.pop(0))
    A(f'ds_write_b64 v3, {v(ACC, 2)}')
    emit(extra)
    A(f'v_add_u32 v3, {pred}, v4')
    bg()
    A.wait_all(ds=True)
    barrier()

    def tail():
        for i in range(4):
            A(f'ds_read_b128 {v(UT+4*i, 4)}, v3 offset:{32*lpr*i}')
        A(f's_bfe_u32 s5, s2, 0x20005')
        A(f's_mul_i32 s5, s5, 12288')
        A(f's_lshl_b32 s4, {s(sRB2)}, 2')
        A(f's_and_b32 s3, {s(sJ)}, 3')
        A(f's_add_u32 s4, s4, s3')
        A(f's_lshl_b32 s4, s4, {5+lg}')
        A(f's_add_u32 s4, s4, s5')
        A(f's_add_u32 s4, s4, {MODP + col0*4}')
        A(f's_movk_i32 s5, 0xff')
        A(f'v_mov_b32 {v(ACC)}, {s(sN)}')
        for e in range(1, 4):
            A(f'v_lshrrev_b32 {v(ACC+e)}, {8*e}, {v(ACC)}')
        A.wait_all(ds=True)
        for e in range(2):
            A(f'v_pk_add_f32 {v(UT+2*e, 2)}, {v(UT+2*e, 2)}, {v(UT+4+2*e, 2)}')
            A(f'v_pk_add_f32 {v(UT+8+2*e, 2)}, {v(UT+8+2*e, 2)}, {v(UT+12+2*e, 2)}')
        for e in range(2):
            A(f'v_pk_add_f32 {v(UT+2*e, 2)}, {v(UT+2*e, 2)}, {v(UT+8+2*e, 2)}')
        for e in range(4):
            A(f'v_bfi_b32 {v(ACC+e)}, s5, {v(ACC+e)}, {v(UT+e)}')
        A(f's_mov_b64 exec, {(1 << (2*lpr)) - 1}')
        A(f'buffer_store_dwordx4 {v(ACC, 4)}, v4, {srd(rWS)}, s4 offen sc1')
        A('s_mov_b64 exec, -1')
        A('s_nop 1')
    cond_wave(0, tail)


def gather_loads(col0, nset, G, va):
    l = []
    for st in range(nset):
        for q in range(4):
            l += [f's_mov_b32 s1, {MODP + q*12288 + (col0 + 1024*st)*4}',
                  f'buffer_load_dwordx4 {v(G+16*st+4*q, 4)}, {v(va)}, {srd(rWS)}, s1 offen sc1']
    return l


def gather_check(col0, nset, G, va, tok, T):
    chk, again, ok = A.new('gchk'), A.new('gagain'), A.new('gok')
    for e in range(4):
        A(f's_bfe_u32 {s(4+e)}, {s(sN)}, {hex(0x80000 | (8*e))}')
    A('s_mov_b32 s8, 0')
    A.wait(vm=tok)
    A.label(chk)
    n = 16 * nset
    for i in range(n):
        A(f'v_xor_b32 {v(G+i)}, {s(4+i%4)}, {v(G+i)}')
    A(f'v_or3_b32 {v(T)}, {v(G)}, {v(G+1)}, {v(G+2)}')
    for i in range(3, n - 1, 2):
        A(f'v_or3_b32 {v(T)}, {v(T)}, {v(G+i)}, {v(G+i+1)}')
    A(f'v_or_b32 {v(T)}, {v(T)}, {v(G+n-1)}')
    A(f'v_lshlrev_b32 {v(T)}, 24, {v(T)}')
    A(f'v_cmp_ne_u32 vcc, 0, {v(T)}')
    A(f's_cbranch_vccnz {again}')
    A.label(ok)
    WARM.label(again)
    WARM('s_add_u32 s8, s8, 1')
    WARM(f's_cmp_ge_u32 s8, {LIMIT}')
    WARM(f's_cbranch_scc1 {ok}')
    for f in gather_loads(col0, nset, G, va):
        WARM(f)
    WARM('s_waitcnt vmcnt(0)')
    WARM(f's_branch {chk}')
    for st in range(nset):
        g = G + 16 * st
        for e in range(2):
            A(f'v_pk_add_f32 {v(g+2*e, 2)}, {v(g+2*e, 2)}, {v(g+4+2*e, 2)}')
            A(f'v_pk_add_f32 {v(g+8+2*e, 2)}, {v(g+8+2*e, 2)}, {v(g+12+2*e, 2)}')
        for e in range(2):
            A(f'v_pk_add_f32 {v(g+2*e, 2)}, {v(g+2*e, 2)}, {v(g+8+2*e, 2)}')
        A(f'v_cvt_pk_bf16_f32 {v(g)}, {v(g)}, {v(g+1)}')
        A(f'v_cvt_pk_bf16_f32 {v(g+1)}, {v(g+2)}, {v(g+3)}')


def add_const_round(g, sadd):
    emit(unpack2(g + 4, g) + unpack2(g + 6, g + 1))
    for e in range(4):
        A(f'v_add_f32 {v(g+4+e)}, {s(sadd)}, {v(g+4+e)}')
    A(f'v_cvt_pk_bf16_f32 {v(g)}, {v(g+4)}, {v(g+5)}')
    A(f'v_cvt_pk_bf16_f32 {v(g+1)}, {v(g+6)}, {v(g+7)}')


def cond_wave(w, fn):
    sk = A.new('cw')
    A(f's_cmp_lg_u32 {s(sW)}, {w}')
    A(f's_cbranch_scc1 {sk}')
    st = A.cond_begin()
    fn()
    A.cond_end(st)
    A.label(sk)


A('s_cmp_ge_u32 s2, 256')
A('s_cbranch_scc1 L_end')
stamp('rt')
stamp('start')
if OPT['pad']:
    A('s_memrealtime s[100:101]')
    A('s_memtime s[96:97]')
A('s_load_dwordx16 s[4:19], s[0:1], 0')
A('s_load_dwordx2 s[20:21], s[0:1], 64')
A('s_load_dwordx2 s[24:25], s[0:1], 80')
A(f'v_and_b32 {v(vL)}, 63, v0')
A(f'v_lshrrev_b32 v3, 6, v0')
A(f'v_lshlrev_b32 {v(vL16)}, 4, {v(vL)}')
A(f'v_readfirstlane_b32 {s(sW)}, v3')
A(f's_and_b32 s26, s2, 7')
A(f's_lshr_b32 s27, s2, 3')
A(f's_and_b32 {s(sHQ)}, s27, 7')
A(f's_and_b32 {s(sJ)}, s27, 15')
A(f's_lshr_b32 s27, s27, 3')
A(f's_lshl_b32 s26, s26, 2')
A(f's_add_u32 {s(sRB)}, s26, s27')
A(f's_lshr_b32 {s(sRB2)}, {s(sRB)}, 1')
A(f'v_lshlrev_b32 v253, 6, {v(vL)}')
sk = A.new('cpf')
A(f's_cmp_lg_u32 {s(sW)}, 3')
A(f's_cbranch_scc1 {sk}')
A(f's_cmp_ge_u32 s2, {OPT["chunks"]*8}')
A(f's_cbranch_scc1 {sk}')
A(f's_getpc_b64 s[70:71]')
A(f's_lshr_b32 s69, s2, 3')
A(f's_lshl_b32 s69, s69, 11')
A(f'v_add_u32 v3, s69, v253')
st = A.cond_begin()
A('s_mov_b32 exec_hi, 0')
A(f'global_load_dword v255, v3, s[70:71]')
A('s_mov_b32 exec_hi, -1')
A.cond_end(st)
A.label(sk)
A(f's_getreg_b32 {s(sXCC)}, hwreg(HW_REG_XCC_ID, 0, 4)')
A(f's_mov_b32 {s(sHI)}, 0xffff0000')
for r, n in ((rX, 2097152), (rWQ, 1572864), (rWO, 524288), (rW1, 1835008), (rW2, 1835008), (rWM, 3145728), (rWS, 0x1000000), (rOUT, 2097152)):
    A(f's_mov_b32 {s(r+2)}, {n}')
    A(f's_mov_b32 {s(r+3)}, 0x20000')
A(f'v_lshrrev_b32 v5, 4, {v(vL)}')
A(f'v_and_b32 v6, 15, {v(vL)}')
A(f's_lshl_b32 s26, {s(sRB)}, 6')
A(f's_lshl_b32 s27, {s(sW)}, 4')
A(f's_add_u32 s26, s26, s27')
A(f'v_add_u32 v3, s26, v5')
A(f'v_lshlrev_b32 v3, 10, v3')
A(f'v_lshl_add_u32 v254, v6, 4, v3')
A(f'v_min_u32 v5, {31*64}, v253')
A(f'v_min_u32 v6, {23*64}, v253')
A(f's_lshl3_add_u32 s26, {s(sRB)}, {s(sHQ)}')
A(f's_lshl2_add_u32 s26, s26, {s(sW)}')
A(f's_lshl_b32 s26, s26, 11')
A(f's_lshl2_add_u32 s27, s2, {s(sW)}')
A(f's_mul_i32 s27, s27, 1536')
XF, XP, MOD, GA, PW, PC, PACC = 16, 144, 144, 208, 224, 20, 236
emit(mod_addr(2, 3, 4, 69))
A('s_waitcnt lgkmcnt(0)')
stamp('karg')
if OPT.get('wsoff'):
    A(f's_add_u32 s24, s24, {OPT["wsoff"] << 20}')
    A('s_addc_u32 s25, s25, 0')
A(f's_mov_b64 {s(rWM, 2)}, s[18:19]')
A(f's_mov_b64 {s(rX, 2)}, s[4:5]')
A(f's_mov_b64 {s(rWQ, 2)}, s[6:7]')
tok_p1 = emit(mod_loads(2, 0, 3, 4, 69, PW, PC))
vHW, vWR = 248, 252


def xloads(aa):
    A(f's_movk_i32 s4, {aa << 12}')
    for c in range(4):
        t = A(f'buffer_load_dwordx4 {v(XP+(aa*4+c)*4, 4)}, v254, {srd(rX)}, s4 offen offset:{c*256} {NTX}')
    return t


A(f'buffer_load_dword v255, v5, {srd(rX)}, s26 offen {NTX}')
if OPT.get('tq', 1) == 0:
    A(f'buffer_load_dword v255, v6, {srd(rWQ)}, s27 offen')
tok_x = [xloads(0)]
if OPT.get('tq', 1) == 1:
    A(f'buffer_load_dword v255, v6, {srd(rWQ)}, s27 offen')
stamp('iss')
A(f's_load_dword {s(sN)}, {s(sWS, 2)}, {EPOCH}')
for r, p in ((rWO, 8), (rW1, 12), (rW2, 14), (rWS, 24), (rOUT, 20)):
    A(f's_mov_b64 {s(r, 2)}, {s(p, 2)}')
A(f's_lshl_b32 s3, {s(sHQ)}, 2')
A(f's_add_u32 s3, s3, {s(sW)}')
A(f's_lshl_b32 s4, s3, 17')
A(f's_lshl_b32 s5, {s(sRB)}, 12')
A(f's_add_u32 s4, s4, s5')
A(f's_add_u32 {s(sKV)}, s4, {KVB}')
A(f's_lshl_b32 s4, s3, 7')
A(f's_add_u32 s4, s4, s5')
A(f's_add_u32 {s(sFKV)}, s4, {FKV}')
A(f's_lshl_b32 s4, {s(sRB)}, 16')
A(f's_lshl_b32 s5, s3, 10')
A(f's_add_u32 s4, s4, s5')
A(f's_add_u32 {s(sO)}, s4, {OBUF}')
A(f's_lshl_b32 s6, {s(sRB)}, 11')
A(f's_lshr_b32 s4, s3, 3')
A(f's_lshl_b32 s4, s4, 7')
A(f's_and_b32 s5, s3, 7')
A(f's_lshl_b32 s5, s5, 2')
A(f's_add_u32 s4, s4, s5')
A(f's_add_u32 s4, s4, s6')
A(f's_add_u32 {s(sFO)}, s4, {FL}')
A(f's_lshl_b32 s4, {s(sW)}, 7')
A(f's_add_u32 s4, s4, s6')
A(f's_add_u32 {s(sPO)}, s4, {FL}')
A(f's_lshr_b32 s4, {s(sW)}, 1')
A(f's_lshl_b32 s5, {s(sRB)}, 1')
A(f's_add_u32 s7, s4, s5')
A(f's_lshl_b32 s8, s7, 15')
A(f's_lshl_b32 s4, {s(sW)}, 13')
A(f's_add_u32 s4, s4, s8')
A(f's_add_u32 {s(sOL0)}, s4, {OBUF}')
A(f's_xor_b32 s4, s4, 32768')
A(f's_add_u32 {s(sOL1)}, s4, {OBUF}')
A(f's_lshl_b32 s9, {s(sHQ)}, 1')
A(f's_and_b32 s10, {s(sW)}, 1')
A(f's_add_u32 s9, s9, s10')
A(f's_lshl_b32 s4, s9, 6')
A(f's_add_u32 {s(sTILE)}, s4, s8')
A(f's_lshl_b32 s4, s9, 11')
A(f's_add_u32 s4, s4, s8')
A(f's_add_u32 {s(sY)}, s4, {YBUF}')
A(f's_lshl_b32 s4, s7, 12')
A(f's_lshl_b32 s5, s9, 8')
A(f's_add_u32 s4, s4, s5')
A(f's_add_u32 {s(sST)}, s4, {STATS}')
A(f's_and_b32 s4, s7, 1')
A(f's_lshl_b32 s4, s4, 7')
A(f's_lshl_b32 s5, s9, 2')
A(f's_add_u32 s4, s4, s5')
A(f's_add_u32 s4, s4, s6')
A(f's_add_u32 {s(sFY)}, s4, {FL+512}')
A(f's_mul_i32 s4, {s(sW)}, {28*1024}')
A(f's_add_u32 s4, s4, {FBUF}')
A(f's_mul_i32 s5, s7, {112*1024}')
A(f's_add_u32 {s(sFL0)}, s4, s5')
A(f's_xor_b32 s5, s7, 1')
A(f's_mul_i32 s5, s5, {112*1024}')
A(f's_add_u32 {s(sFL1)}, s4, s5')
A(f's_lshl_b32 s7, {s(sRB2)}, 2')
A(f's_add_u32 s7, s7, {s(sW)}')
A(f's_lshr_b32 s6, s7, 1')
A(f's_lshl_b32 s6, s6, 11')
A(f's_lshl_b32 s4, s10, 7')
A(f's_add_u32 s4, s4, s6')
A(f's_add_u32 {s(sPY)}, s4, {FL+512}')
A(f's_lshl_b32 s4, s7, 12')
A(f's_add_u32 {s(sSTL)}, s4, {STATS}')
A(f's_lshl_b32 s4, s7, 15')
A(f's_add_u32 {s(sYL)}, s4, {YBUF}')
A(f's_mul_i32 s4, s7, {112*1024}')
A(f's_mul_i32 s5, {s(sJ)}, 7168')
A(f's_add_u32 s4, s4, s5')
A(f's_add_u32 {s(sF)}, s4, {FBUF}')
A(f's_lshr_b32 s5, {s(sJ)}, 2')
A(f's_lshl_b32 s5, s5, 7')
A(f's_add_u32 s4, s6, s5')
A(f's_and_b32 s5, {s(sJ)}, 3')
A(f's_lshl_b32 s5, s5, 1')
A(f's_add_u32 s5, s5, s10')
A(f's_lshl_b32 s5, s5, 2')
A(f's_add_u32 s4, s4, s5')
A(f's_add_u32 {s(sFF)}, s4, {FL+1024}')
A(f's_mul_i32 s4, {s(sW)}, {RING}')
A(f's_add_u32 {s(sRING)}, s4, {SCR}')
A(f's_lshr_b32 s4, s2, 3')
A(f's_lshl2_add_u32 {s(sIW)}, s4, {s(sW)}')
A(f's_mul_i32 s4, {s(sJ)}, 224')
for i in range(7):
    A(f'v_add_u32 v3, {64*i}, {v(vL)}')
    A(f'v_mul_u32_u24 v4, 4682, v3')
    A(f'v_lshrrev_b32 v4, 16, v4')
    A(f'v_mul_u32_u24 v16, 14, v4')
    A(f'v_sub_u32 v3, v3, v16')
    A(f'v_bfe_u32 v16, v4, 1, 2')
    A(f'v_and_b32 v17, 0x39, v4')
    A(f'v_mad_u32_u24 v16, v17, 1, v16')
    A(f'v_and_b32 v17, 1, v4')
    A(f'v_mad_u32_u24 v16, v17, 3, v16')
    A(f'v_mul_u32_u24 v16, 3584, v16')
    A(f'v_lshl_add_u32 v3, v3, 4, v16')
    A(f's_sub_u32 s5, s4, {1024*(i%4)}')
    A(f'v_add_u32 {v(W1A[i])}, s5, v3')
vQ4 = 244
A(f'v_bfe_u32 v16, {v(vL)}, 2, 3')
A(f'v_mul_u32_u24 v4, 3072, v16')
A(f'v_lshrrev_b32 v17, 5, {v(vL)}')
A(f'v_lshl_add_u32 v4, v17, 6, v4')
A(f'v_and_b32 v3, 3, {v(vL)}')
A(f'v_lshl_add_u32 v4, v3, 4, v4')
A(f's_lshl_b32 s4, {s(sHQ)}, 7')
A(f'v_add_u32 {v(vQ4)}, s4, v4')
A(f'v_xor_b32 v4, 32, {v(vQ4)}')
A(f'v_add_u32 {v(vQ4+1)}, {24576-1024}, v4')
A(f'v_add_u32 {v(vQ4+2)}, {2*(24576-1024)}, {v(vQ4)}')
A(f'v_add_u32 {v(vQ4+3)}, {3*(24576-1024)}, v4')
A(f'v_lshlrev_b32 v4, 10, v16')
A(f'v_lshl_add_u32 v4, v17, 6, v4')
A(f'v_lshl_add_u32 v4, v3, 4, v4')
A(f'v_add_u32 {v(vWD)}, s4, v4')
A(f'v_lshrrev_b32 v4, 4, {v(vL)}')
A(f'v_lshlrev_b32 v3, 10, v4')
A(f'v_xor_b32 v4, {s(sW)}, v4')
A(f'v_and_b32 v4, 1, v4')
A(f'v_lshl_add_u32 v3, v4, 5, v3')
A(f'v_bfe_u32 v4, {v(vL)}, 2, 2')
A(f'v_lshl_add_u32 v3, v4, 6, v3')
A(f'v_and_b32 v4, 3, {v(vL)}')
A(f'v_lshl_add_u32 v3, v4, 3, v3')
A(f's_lshr_b32 s3, {s(sW)}, 1')
A(f's_lshl_b32 s3, s3, 9')
A(f'v_add_u32 {v(vWR)}, s3, v3')
A(f'v_bfe_u32 v4, {v(vL)}, 2, 2')
A(f'v_lshlrev_b32 v3, 6, v4')
A(f'v_bfe_u32 v4, {v(vL)}, 4, 1')
A(f'v_lshl_add_u32 v3, v4, 5, v3')
A(f'v_and_b32 v4, 3, {v(vL)}')
A(f'v_lshl_add_u32 v3, v4, 3, v3')
A(f'v_lshrrev_b32 v4, 5, {v(vL)}')
A(f'v_lshl_add_u32 v3, v4, 8, v3')
A(f's_lshl_b32 s3, s10, 9')
A(f's_add_u32 s3, s3, {s(sRING)}')
A(f'v_add_u32 {v(vR0)}, s3, v3')
A(f'v_xor_b32 {v(vR1)}, 512, {v(vR0)}')
A(f'v_and_b32 v16, 0xe0, v0')
A(f'v_and_b32 v17, 1, v0')
A(f'v_lshl_add_u32 v16, v17, 4, v16')
A(f'v_bfe_u32 v17, v0, 1, 4')
A(f'v_add_u32 v16, v16, v17')
A(f'v_lshlrev_b32 v16, 4, v16')
A(f'v_add_u32 v232, {MODT}, v16')
A(f'v_and_b32 v16, 15, {v(vL)}')
A(f'v_lshlrev_b32 v16, 4, v16')
A(f'v_add_u32 v233, {MODT}, v16')
A(f'v_and_b32 v3, 15, {v(vL)}')
A(f'v_lshl_add_u32 v3, v4, 4, v3')
A(f'v_lshlrev_b32 {v(vVS)}, 4, v3')
A(f'v_lshrrev_b32 v16, 4, {v(vL)}')
A(f'v_and_b32 v4, 15, {v(vL)}')
A(f's_lshl_b32 s5, {s(sW)}, 14')
A(f'v_lshl_add_u32 v3, v4, 8, s5')
A(f'v_and_b32 v4, 7, v4')
A(f'v_xor_b32 v4, v4, v16')
for aa in range(4):
    A(f'v_xor_b32 v16, {4*aa}, v4')
    A(f'v_lshl_add_u32 {v(vHW+aa)}, v16, 4, v3')
emit(mod_addr(4, 234, 235, 1))
A(f'v_add_u32 v234, s1, v234')


def mark(l, key):
    l[-1] = (l[-1], key)
    return l


def touch(rs, chunk, va, vt=255):
    return [f's_lshl2_add_u32 s1, s2, {s(sW)}', f's_mul_i32 s1, s1, {chunk}', f'buffer_load_dword {v(vt)}, {v(va)}, {srd(rs)}, s1 offen']


def touch3(rs, n, va, vt=255):
    if not OPT.get('t3', 13) & {rWQ: 1, rW1: 2, rWO: 4, rW2: 8}[rs]:
        return []
    return [f'v_min_u32 {v(va)}, {2*n-1}, {v(vL)}', f'v_lshlrev_b32 {v(vt)}, 9, {v(va)}', f'v_and_b32 {v(va)}, 1, {v(va)}',
            f'v_mul_u32_u24 {v(va)}, 448, {v(va)}', f'v_sub_u32 {v(va)}, {v(vt)}, {v(va)}', f's_mul_i32 s1, {s(sIW)}, {n*1024}',
            f'buffer_load_dword {v(vt)}, {v(va)}, {srd(rs)}, s1 offen offset:384']


def hello():
    A(f's_andn2_b32 s3, {s(sN)}, 15')
    A(f's_or_b32 s3, s3, {s(sXCC)}')
    A(f'v_mov_b32 v16, s3')
    A(f's_lshl_b32 s3, {s(sRB2)}, 7')
    A(f's_lshl2_add_u32 s3, {s(sJ)}, s3')
    A(f's_add_u32 s3, s3, {HELLO}')
    A('s_mov_b64 exec, 1')
    A(f'buffer_store_dword v16, off, {srd(rWS)}, s3 sc1')
    A('s_mov_b64 exec, -1')


def wq_items(colbyte, region, ks0, nks):
    l = []
    for g in range(nks // 4):
        l += [f's_add_u32 m0, {s(sX)}, {region + g*16384}', f's_add_u32 {s(sBO)}, s11, {colbyte + (ks0 + 4*g)*98304}']
        l += [f'buffer_load_dwordx4 {v(vQ4+n)}, {srd(rWQ)}, {s(sBO)} offen offset:{1024*n} {NTQ} lds' for n in range(4)]
    return l


A(f's_lshl_b32 {s(sX)}, {s(sW)}, 12')
A(f's_mul_i32 s11, {s(sW)}, 98304')
t3 = touch3(rWQ, 12, 229, 19)
emit(t3[:-2])
stamp('setup0')
A('s_waitcnt lgkmcnt(0)')
stamp('nonce')
A(f's_add_u32 {s(sN)}, {s(sN)}, 0x9e3779b1')
A.wait(vm=tok_p1)
stamp('pland')


def x1():
    tok_x.append(xloads(1))


mod_finish(2, 0, PW, PC, PACC, GA, PRED1, bg=x1)
stamp('setup')
D = Q()
for aa in (2, 3):
    D.add([f's_movk_i32 s4, {aa << 12}'] +
          mark([f'buffer_load_dwordx4 {v(XP+(aa*4+c)*4, 4)}, v254, {srd(rX)}, s4 offen offset:{c*256} {NTX}' for c in range(4)], aa))
D.add([x.replace('v19', 'v255') for x in t3[-2:]])
M2 = mark(['s_mov_b32 s1, 0'] + mod_loads(4, 2048, 234, 235, 1, 236, 230), 'p2')
if OPT.get('m2', 1) == 0:
    D.add(M2)
D.add(mark(wq_items(1024, LH, 0, 16), 'wk'))
D.grp(OPT.get('x0', 4))

ST, MN, G1 = 216, 224, 144
LNP = OPT.get('lnpace', 44)


def V(t):
    A(t)
    D.grp(1, LNP)


def row_allreduce(grp):
    for sh in (8, 4, 2, 1):
        for aa in grp:
            t0 = ST + 4 * (aa % 2)
            V(f'v_add_f32_dpp {v(t0)}, {v(t0)}, {v(t0)} row_ror:{sh} row_mask:0xf bank_mask:0xf')


A('s_mov_b32 s9, 0x3b000000')
A('s_mov_b32 s10, 0x3f803f80')
A('s_mov_b32 s7, 0x3f80')
A('s_mov_b32 s6, 0x3f800000')
A('v_mov_b32 v228, 0x3727c5ac')
for grp in ((0, 1), (2, 3)):
    for aa in grp:
        A.wait(vm=tok_x[aa] if aa < 2 else D.k[aa])
        stamp(f'x{aa}')
        t0 = ST + 4 * (aa % 2)
        for i in range(16):
            V(f'v_dot2_f32_bf16 {v(t0)}, {v(XP+aa*16+i)}, s10, {v(t0) if i else 0}')
    row_allreduce(grp)
    for aa in grp:
        V(f'v_mul_f32 {v(MN+aa)}, 0xbb000000, {v(ST+4*(aa%2))}')
    for aa in grp:
        b = XF + aa * 32
        t0, t1 = ST + 4 * (aa % 2), ST + 4 * (aa % 2) + 2
        for i in range(16):
            V(f'v_dot2_f32_bf16 {v(b+2*i)}, {v(XP+aa*16+i)}, s7, {v(MN+aa)}')
            V(f'v_dot2_f32_bf16 {v(b+2*i+1)}, {v(XP+aa*16+i)}, s6, {v(MN+aa)}')
        for i in range(16):
            t = t0 if i % 2 == 0 else t1
            if i < 2:
                V(f'v_pk_mul_f32 {v(t, 2)}, {v(b+2*i, 2)}, {v(b+2*i, 2)}')
            else:
                V(f'v_pk_fma_f32 {v(t, 2)}, {v(b+2*i, 2)}, {v(b+2*i, 2)}, {v(t, 2)}')
        V(f'v_pk_add_f32 {v(t0, 2)}, {v(t0, 2)}, {v(t1, 2)}')
        V(f'v_add_f32 {v(t0)}, {v(t0)}, {v(t0+1)}')
    if grp == (2, 3):
        D.flush()
        A(f'v_lshlrev_b32 v4, 4, v0')
        tok_g1 = emit(gather_loads(0, 1, G1, 4))
        D.add(mark(wq_items(2048, WVL, 0, 8), 'wvl') + mark(wq_items(2048, WVH, 8, 8), 'wvh'))
    row_allreduce(grp)
    for aa in grp:
        V(f'v_fma_f32 {v(MN+aa)}, {v(ST+4*(aa%2))}, s9, v228')
    for aa in grp:
        V(f'v_rsq_f32 {v(MN+aa)}, {v(MN+aa)}')
    for aa in grp:
        b = XF + aa * 32
        for i in range(16):
            V(f'v_pk_mul_f32 {v(b+2*i, 2)}, {v(b+2*i, 2)}, {v(MN+(aa//2)*2, 2)} op_sel:[0,{aa%2}] op_sel_hi:[1,{aa%2}]')
D.grp(OPT.get('v0', 2))
stamp('ln_pre')
A.wait(vm=D.k['wk'])
barrier()
stamp('wkl')
for ks in range(16):
    for rd in range(2):
        A(f'ds_read_b64_tr_b16 {a(4*ks+2*rd, 2)}, {v(vWR)} offset:{ks*4096+rd*256}')
D.grp(2)
stamp('wk')
gather_check(0, 1, G1, 4, tok_g1, 3)
stamp('gchk')
A(f's_cmp_ge_u32 {s(sW)}, 2')
A(f's_cselect_b32 s3, 1.0, 0')
add_const_round(G1, 3)
emit(unpack2(G1 + 4, G1) + unpack2(G1 + 6, G1 + 1))
A(f'ds_write_b128 v232, {v(G1+4, 4)}')
D.grp(2)
A.wait_all(ds=True)
barrier()
stamp('mod')
tm = []


def mod_reads(c):
    for arr in range(2):
        for hlf in range(2):
            t = A(f'ds_read_b128 {v(MOD+arr*32+c*8+hlf*4, 4)}, v233 offset:{arr*2048+c*512+hlf*256}')
    tm.append(t)


mod_reads(0)
mod_reads(1)
vH0, vH1, vB1, vB2 = 224, 225, 226, 227
A(f'v_lshrrev_b32 v254, 4, {v(vL)}')
A(f'v_and_b32 v3, 15, {v(vL)}')
A(f'v_xor_b32 v3, v3, v254')
A(f'v_lshlrev_b32 v3, 4, v3')
A(f'v_lshl_add_u32 {v(vH0)}, v254, 8, v3')
A(f'v_xor_b32 {v(vH1)}, 64, {v(vH0)}')
A(f'v_add_u32 {v(vB1)}, {WVH}, {v(vWR)}')
A(f'v_add_u32 {v(vB2)}, {WQL}, {v(vWR)}')
A(f'v_min_u32 v228, {27*64}, v253')
A(f'v_min_u32 v229, {7*64}, v253')
D.add(touch(rW1, 1792, 228) + touch(rWO, 512, 229))
if OPT.get('m2', 1) == 1:
    D.add(M2)
if OPT.get('t2', 0) == 0:
    D.add(touch(rW2, 1792, 228))
for c in range(4):
    A.wait(ds=tm[c])
    stamp(f'h{c}')
    for aa in range(4):
        b = XF + aa * 32 + c * 8
        for i in range(4):
            A(f'v_pk_fma_f32 {v(b+2*i, 2)}, {v(b+2*i, 2)}, {v(MOD+32+c*8+2*i, 2)}, {v(MOD+c*8+2*i, 2)}')
        for i in range(4):
            A(f'v_cvt_pk_bf16_f32 {v(b+i)}, {v(b+2*i)}, {v(b+2*i+1)}')
        if aa == 0 and c < 2:
            mod_reads(c + 2)
        A(f'ds_write_b128 {v(vHW+aa)}, {v(b, 4)} offset:{c*4096}')
        D.grp(1, OPT.get('hp', 50))
D.flush()
stamp('hw')
A.wait(vm=D.k['wvl'], ds=A.ds)
barrier()
stamp('h')

AK, AV, AQ, WB = 144, 160, 176, 64
QF, KO, VO, KH, VH, SB, PB, MD, MO, OA = 16, 24, 32, 48, 80, 144, 176, 192, 208, 224
PW2, PC2 = 48, 56


def hreg(u, ks):
    return v(80 + ks * 16 + u * 4, 4) if ks < 4 else a(ks * 16 + u * 4, 4)


def mm16(d, x, y, first):
    A(f'v_mfma_f32_16x16x32_bf16 {v(d, 4)}, {x}, {y}, {"0" if first else v(d, 4)}')


def kv_reads(ks):
    l = [f'ds_read_b128 {hreg(u, ks)}, {v(vH0 + ks % 2)} offset:{u*16384+ks*1024}' for u in range(4)]
    wb = WB + 4 * (ks % 4)
    off = WVL - WVH + ks * 4096 if ks < 8 else (ks - 8) * 4096
    w = [f'ds_read_b64_tr_b16 {v(wb+2*rd, 2)}, {v(vB1)} offset:{off+rd*256}' for rd in range(2)]
    return [l[0], w[0], w[1], l[1], l[2], l[3]]


fl = Q([f'v_and_b32 v60, 31, {v(vL)}', f'v_lshrrev_b32 v61, 5, {v(vL)}', 'v_lshlrev_b32 v61, 2, v61', 'v_sub_u32 v60, v60, v61',
        'v_mov_b32 v61, 0xf149f2ca', 'v_mov_b32 v62, 0'])
for i in range(16):
    fl.add([f'v_cmp_le_i32 vcc, {8*(i//4) + i % 4}, v60'] + ([f'v_mov_b32 {v(VO+4*(i//2)+2+i%2)}, s10'] if i < 8 else []) +
           [f'v_cndmask_b32 {v(MD+i)}, v61, v62, vcc', f'v_cndmask_b32 {v(MO+i)}, v62, v61, vcc'])
QL0, QH0 = OPT.get('ql0', 6), OPT.get('qh0', 12)
fl.q.insert(0, lambda: cond_wave(3, hello))
LOOK = 2
tk = {}
for ks in range(LOOK):
    for t in kv_reads(ks):
        tk[ks] = A(t)
for ks in range(16):
    nxt = kv_reads(ks + LOOK) if ks + LOOK < 16 else []
    A.wait(ds=tk[ks], vm=D.k['wvh'] if ks == 5 else None)
    if ks == 5:
        barrier()
    if ks == 8:
        barrier()
    if ks == QL0:
        D.add(mark(wq_items(0, WQL, 0, 8), 'wql'))
    if ks == QH0:
        D.add(mark(wq_items(0, WVL, 8, 8), 'wqh'))
    wb = v(WB + 4 * (ks % 4), 4)
    n = 0
    for u in range(4):
        for which in range(2):
            if which == 0:
                mm16(AK + 4 * u, a(4 * ks, 4), hreg(u, ks), ks == 0)
            else:
                mm16(AV + 4 * u, hreg(u, ks), wb, ks == 0)
            if n < len(nxt):
                tk[ks + LOOK] = A(nxt[n])
            n += 1
            res = 4 if n == 8 else 0
            if n == 8 and D.q and D.kind() == 'vmem' and len(D.q) > 1.5 * (15 - ks):
                D.pop()
            D.fill(res, 60)
            fl.fill(res)
D.flush()
assert not fl.q
stamp('kv')


def pack2(dst, acc):
    return [f'v_cvt_pk_bf16_f32 {v(dst+2*u+r)}, {v(acc+4*u+2*r)}, {v(acc+4*u+2*r+1)}' for u in range(2) for r in range(2)]


def q_reads(ks):
    wb = WB + 4 * (ks % 4)
    base, off = (vB2, ks * 4096) if ks < 8 else (vB1, WVL - WVH + (ks - 8) * 4096)
    return [f'ds_read_b64_tr_b16 {v(wb+2*rd, 2)}, {v(base)} offset:{off+rd*256}' for rd in range(2)]


def q_start():
    A.wait(vm=D.k['wql'])
    barrier()
    for ks in range(LOOK):
        for t in q_reads(ks):
            tk[ks] = A(t)


LOOK = 3
tk = {}
if QL0 == 0:
    q_start()
A('s_mov_b32 s4, 0xffff')
A('s_mov_b32 s5, 0xffff')
for T in range(2):
    emit(pack2(KO + 4 * T, AK + 8 * T))
for u in range(4):
    for r in range(2):
        A(f'v_cvt_pk_bf16_f32 {v(VO+4*u+r)}, {v(AV+4*u+2*r)}, {v(AV+4*u+2*r+1)}')
for T in range(2):
    for r in range(2):
        A(f'v_permlane16_swap_b32 {v(KO+4*T+r)}, {v(KO+4*T+2+r)}')
for T in range(2):
    A(f'buffer_store_dwordx4 {v(KO+4*T, 4)}, {v(vL16)}, {srd(rWS)}, {s(sKV)} offen offset:{T*2048} sc1')
for u in range(4):
    for r in range(2):
        A(f'v_permlane16_swap_b32 {v(VO+4*u+r)}, {v(VO+4*u+2+r)}')
for u in range(4):
    for r in range(2):
        A(f'v_permlane32_swap_b32 {v(VO+4*u+r)}, {v(VO+4*u+2+r)}')
A('s_mov_b64 exec, s[4:5]')
for u in range(4):
    tok_kv = A(f'buffer_store_dwordx4 {v(VO+4*u, 4)}, {v(vVS)}, {srd(rWS)}, {s(sKV)} offen offset:{(u//2)*2048+1024+(u%2)*512} sc1')
A('s_mov_b64 exec, -1')
if QH0 == 16:
    D.add(mark(wq_items(0, WVL, 8, 8), 'wqh'))
    D.flush()
if QL0:
    q_start()
stamp('kvst')


def w1_items(mul, add):
    l = [f's_mul_i32 {s(sBO)}, {s(sW)}, {mul*7168}', f's_add_u32 m0, {s(sBO)}, {add*7168}', f's_lshl_b32 {s(sBO)}, m0, 4']
    for i in range(7):
        if i == 4:
            l.append(f's_add_u32 m0, m0, 4096')
        l.append(f'buffer_load_dwordx4 {v(W1A[i])}, {srd(rW1)}, {s(sBO)} offen offset:{1024*(i%4)} {NTW} lds')
    return l


def ones(d):
    def f():
        A(f's_cmp_ge_u32 {s(sRB)}, {d}')
        A(f's_cselect_b32 s6, s10, 0')
    return [f, 's_mov_b32 s7, s6'] + [f'v_mov_b64 {v(VH+16*(4-d)+2*i, 2)}, s[6:7]' for i in range(8)]


fl.add([f'v_lshrrev_b32 v233, 2, {v(vL)}', 'v_lshlrev_b32 v233, 10, v233', f'v_and_b32 v234, 3, {v(vL)}', 'v_lshl_add_u32 v233, v234, 4, v233',
        f'v_and_b32 v234, 15, {v(vL)}', f'v_lshlrev_b32 v234, 2, v234'])
fl2 = Q(ones(4) + ones(3) + [lambda: A.wait(vm=D.k['p2'])] + [f'v_mov_b64 {v(PW2+2*i, 2)}, {v(236+2*i, 2)}' for i in range(4)] + [f'v_mov_b64 {v(PC2, 2)}, v[230:231]'] + ones(2) + ones(1))
W1P = OPT.get('w1pace', 120)
if OPT.get('t2', 0) == 1:
    D.add(touch(rW2, 1792, 228, 59))
D.add(touch3(rW1, 14, 60, 61) + w1_items(3, 0))
for ks in range(16):
    nxt = q_reads(ks + LOOK) if ks + LOOK < 16 else []
    A.wait(ds=tk[ks], vm=D.k['wqh'] if ks == 5 else None)
    if ks == 5:
        barrier()
    for u in range(4):
        mm16(AQ + 4 * u, v(WB + 4 * (ks % 4), 4), hreg(u, ks), ks == 0)
        if u >= 2 and nxt:
            tk[ks + LOOK] = A(nxt[u - 2])
        res = 4 if u == 3 else 0
        D.fill(res, W1P)
        fl.fill(res)
        if ks >= 4:
            fl2.fill(res)
    if ks == OPT.get('kvf', 12):
        A.wait(vm=tok_kv)
        setflag(s(sFKV), False)
fl.flush()
fl2.flush()
D.flush()
stamp('q')
D.add(mark([f's_lshl_b32 s1, {s(sRB2)}, 7', f's_add_u32 s1, s1, {HELLO}', f'buffer_load_dword v63, v234, {srd(rWS)}, s1 offen sc1'], 'hello') +
      mark([f's_lshl_b32 s1, {s(sW)}, 11', f's_add_u32 m0, s1, {XST}', f's_add_u32 s1, {s(sTILE)}, {16384-1024}',
            f'buffer_load_dwordx4 v233, {srd(rX)}, {s(sTILE)} offen lds', f'buffer_load_dwordx4 v233, {srd(rX)}, s1 offen offset:1024 lds'], 'xt'))
D.add(touch3(rWO, 4, 60, 62))
D.flush()
D.add(w1_items(3, 1) + (w1_items(3, 2) if OPT.get('w1e', 1) else []))
D.grp(OPT.get('w1a', 2))
for i in range(8):
    A(f'v_mul_f32 {v(AQ+i)}, 0x3eb8aa3b, {v(AQ+i)}')
emit(pack2(QF, AQ))
for i in range(8, 16):
    A(f'v_mul_f32 {v(AQ+i)}, 0x3eb8aa3b, {v(AQ+i)}')
for r in range(2):
    A(f'v_permlane16_swap_b32 {v(QF+r)}, {v(QF+2+r)}')
emit(pack2(QF + 4, AQ + 8))
for d in range(1, 5):
    A(f's_cmp_ge_u32 {s(sRB)}, {d}')
    A(f's_cselect_b32 s3, {d*4096}, 0')
    A(f's_sub_u32 {s(3+d)}, {s(sFKV)}, s3')
for r in range(2):
    A(f'v_permlane16_swap_b32 {v(QF+4+r)}, {v(QF+6+r)}')
A(f's_mov_b64 {s(rH, 2)}, {s(sWS, 2)}')


def mm32(X, d, x, y, c):
    X(f'v_mfma_f32_32x32x16_bf16 {d}, {x}, {y}, {c}')


def units_of(blk):
    if blk == 0:
        return [(0, KO, VO, MD, 0), (1, KO, VO, None, 0), (1, KO + 4, VO + 8, MD, 0)]
    t0 = 8 - 2 * blk
    r = []
    for t in (t0 + 1, t0):
        for q in (0, 1):
            if t < q:
                continue
            r.append((q, KH + 4 * t, VH + 8 * t, MO if t == q else None, blk))
    return r


def s_mm(X, un, buf):
    q, k, _, m, _ = un
    mm32(X, v(SB + 16 * buf, 16), v(k, 4), v(QF + 4 * q, 4), v(m, 16) if m else '0')


def attn_units(X, uns, first, sub=None, bg=None, ready=None, head=None):
    if ready:
        ready(uns[0])
    s_mm(X, uns[0], 0)
    if head:
        head()
    pend = None
    for n, un in enumerate(uns):
        q, _, vr, _, _ = un
        sb = SB + 16 * (n % 2)
        pb = PB + 8 * (n % 2)
        o = v(OA + 16 * q, 16)
        for hf in range(2):
            b = sb + 8 * hf
            if sub:
                for i in range(8):
                    X(f'v_sub_f32 {v(b+i)}, {v(b+i)}, {v(sub+q)}')
            seq = [('e', 0), ('p', 0), ('e', 1), ('e', 2), ('m', 0), ('c', 0), ('e', 3), ('e', 4), ('c', 1), ('e', 5), ('s', 0), ('e', 6), ('c', 2), ('e', 7)]
            for kind, i in seq:
                if kind == 'e':
                    X(f'v_exp_f32 {v(b+i)}, {v(b+i)}')
                elif kind == 'c':
                    X(f'v_cvt_pk_bf16_f32 {v(pb+4*hf+i)}, {v(b+2*i)}, {v(b+2*i+1)}')
                elif kind == 'p' and pend:
                    X(pend[0])
                elif kind == 'm' and pend:
                    mm32(X, *pend[1])
                    pend = None
                    if bg:
                        bg(n)
                elif kind == 's' and hf == 0 and n + 1 < len(uns):
                    if ready:
                        ready(uns[n + 1])
                    s_mm(X, uns[n + 1], (n + 1) % 2)
                    if bg:
                        bg(n)
            pend = (f'v_cvt_pk_bf16_f32 {v(pb+4*hf+3)}, {v(b+6)}, {v(b+7)}',
                    (o, v(vr + 4 * hf, 4), v(pb + 4 * hf, 4), '0' if q in first else o))
            first.discard(q)
    X(pend[0])
    mm32(X, *pend[1])


def kv_poll(X):
    for d in range(4):
        X(f's_load_dword {s(8+d)}, {s(sWS, 2)}, {s(4+d)} glc')


obc = [0]


def own_bg(n):
    obc[0] += 1
    if obc[0] == OPT.get('kp', 3):
        kv_poll(A)
    D.grp(1, W1P)


attn_units(A, units_of(0), {0, 1}, bg=own_bg)
stamp('own')
A(f's_andn2_b32 s3, {s(sN)}, 15')
A(f's_or_b32 s3, s3, {s(sXCC)}')
A.wait(vm=D.k['hello'])
A(f'v_cmp_ne_u32 vcc, s3, v63')
A(f's_cmp_eq_u64 vcc, 0')
A(f's_cselect_b32 {s(sFAST)}, 1, 0')
D.grp(OPT.get('w1b', 2))
ep, epb = A.new('ep'), A.new('epb')
A(f's_lshl2_add_u32 s3, s2, {s(sW)}')
A(f's_cmp_eq_u32 s3, 3')
A(f's_cbranch_scc1 {ep}')
A.label(epb)
lp, dn = A.new('epl'), A.new('epd')
WARM.label(ep)
WARM(f'v_lshrrev_b32 v3, 2, {v(vL)}')
WARM(f'v_lshlrev_b32 v3, 7, v3')
WARM(f'v_and_b32 v4, 3, {v(vL)}')
WARM(f'v_lshl_add_u32 v3, v4, 4, v3')
WARM(f's_mov_b32 s1, {HELLO}')
WARM('s_mov_b32 s3, 0')
WARM.label(lp)
WARM(f'buffer_load_dwordx4 v[72:75], v3, {srd(rWS)}, s1 offen sc1')
WARM('s_add_u32 s3, s3, 1')
WARM('s_waitcnt vmcnt(0)')
for i in range(4):
    WARM(f'v_xor_b32 {v(72+i)}, {s(sN)}, {v(72+i)}')
WARM('v_or_b32 v72, v72, v73')
WARM('v_or3_b32 v72, v72, v74, v75')
WARM('v_cmp_lt_u32 vcc, 15, v72')
WARM(f's_cmp_lt_u32 s3, {LIMIT}')
WARM(f's_cbranch_vccz {dn}')
WARM(f's_cbranch_scc1 {lp}')
WARM.label(dn)
WARM(f'v_mov_b32 v3, {s(sN)}')
WARM('s_mov_b64 exec, 1')
WARM(f'buffer_store_dword v3, off, {srd(rWS)}, 0 offset:{EPOCH} sc1')
WARM('s_mov_b64 exec, -1')
WARM(f's_branch {epb}')
lp, again, dn = A.new('kvp'), A.new('kva'), A.new('kvd')
A('s_mov_b32 s3, 0')
A.label(lp)
A('s_waitcnt lgkmcnt(0)')
A(f's_xor_b32 s8, s8, {s(sN)}')
for r in (9, 10, 11):
    A(f's_xor_b32 {s(r)}, {s(r)}, {s(sN)}')
    A(f's_or_b32 s8, s8, {s(r)}')
A(f's_cbranch_scc1 {again}')
A.label(dn)
WARM.label(again)
WARM('s_add_u32 s3, s3, 1')
WARM(f's_cmp_ge_u32 s3, {LIMIT}')
WARM(f's_cbranch_scc1 {dn}')
kv_poll(WARM)
WARM(f's_branch {lp}')
stamp('kvflag')
A('s_mov_b32 s8, 0xffff')
A('s_mov_b32 s9, 0xffff')


def halo_loads(X, d):
    X(f's_cmp_ge_u32 {s(sRB)}, {d}')
    X(f's_cselect_b32 {s(rH+2)}, 0x1000000, 0')
    X(f's_sub_u32 s3, {s(sKV)}, {d*4096}')
    t0 = 8 - 2 * d
    for T in (1, 0):
        X(f'buffer_load_dwordx4 {v(KH+4*(t0+T), 4)}, {v(vL16)}, {srd(rH)}, s3 offen offset:{T*2048} sc1')
    X('s_mov_b64 exec, s[8:9]')
    for u in (2, 3, 0, 1):
        t = X(f'buffer_load_dwordx4 {v(VH+8*t0+4*u, 4)}, {v(vVS)}, {srd(rH)}, s3 offen offset:{(u//2)*2048+1024+(u%2)*512} sc1')
    X('s_mov_b64 exec, -1')
    return t


tok_h = {1: halo_loads(A, 1), 2: halo_loads(A, 2)}
A(f'v_lshrrev_b32 v4, 5, {v(vL)}')
A(f'v_and_b32 v3, 31, {v(vL)}')
A(f'v_lshlrev_b32 v3, 6, v3')
A(f'v_lshl_add_u32 v3, v4, 3, v3')
A(f's_lshl_b32 s4, {s(sW)}, 11')
A(f's_add_u32 s4, s4, {XST}')
A(f'v_add_u32 v3, s4, v3')
A.wait(vm=D.k['xt'])
for q in range(4):
    A(f'ds_read_b64 {a(64+2*q, 2)}, v3 offset:{16*q}')
mod_finish(4, 1024, PW2, PC2, PB, SB + 16, PRED2)
tok_h[3] = halo_loads(A, 3)
stamp('m2')


def pretouch():
    sk = A.new('pt')
    A(f's_cmp_eq_u32 {s(sFAST)}, 0')
    A(f's_cbranch_scc1 {sk}')
    st = A.cond_begin()
    A(f'v_and_b32 v3, 31, {v(vL)}')
    A(f'v_lshlrev_b32 v3, 6, v3')
    A(f's_andn2_b32 s3, {s(sPO)}, 0x7ff')
    A(f'buffer_load_dword v4, v3, {srd(rWS)}, s3 offen sc1')
    if OPT['dmode']:
        A(f's_lshl_b32 s3, {s(sRB)}, 3')
        A(f's_add_u32 s3, s3, {s(sHQ)}')
        A(f's_lshl2_add_u32 s3, s3, {s(sW)}')
        A(f's_lshl_b32 s4, s3, 11')
        A(f's_add_u32 s5, s4, {YBUF}')
        A(f's_add_u32 s4, s4, {OBUF}')
        A(f'buffer_load_dword v4, v3, {srd(rWS)}, s4 offen sc1')
        A(f'buffer_load_dword v4, v3, {srd(rWS)}, s5 offen sc1')
        A(f'v_and_b32 v3, 192, v3')
        A(f'buffer_load_dword v4, v3, {srd(rWS)}, {s(sST)} offen sc1')
    A.cond_end(st)
    A.label(sk)


def wo_items():
    l = [f's_lshl_b32 s11, {s(sW)}, 14', f's_lshl_b32 {s(sBO)}, {s(sW)}, 17']
    for i in range(16):
        if i % 4 == 0:
            l.append(f's_add_u32 m0, s11, {WOS + 1024*i}')
        if i:
            l.append(f's_add_u32 {s(sBO)}, {s(sBO)}, {7168 if i % 4 else 8192 + 3072}')
        l.append(f'buffer_load_dwordx4 {v(vWD)}, {srd(rWO)}, {s(sBO)} offen offset:{1024*(i%4)} {NTW} lds')
    return l


G2 = VH + 32
D.add(([] if OPT.get('w1e', 1) else w1_items(3, 2)) + mark(wo_items(), 'wo') + touch3(rW2, 14, 79, 78))
qg2 = Q([f'v_lshlrev_b32 {v(vVS)}, 4, v0'] + gather_loads(1024, 2, G2, vVS))
wor = Q([f's_add_u32 s4, s11, {WOS}', f's_sub_u32 s4, s4, {s(sRING)}', f'v_add_u32 v76, s4, {v(vR0)}', f'v_add_u32 v77, s4, {v(vR1)}',
         lambda: A.wait(vm=D.k['wo'])] +
        [f'ds_read_b64_tr_b16 {a(fi*32+4*i+2*rd, 2)}, {v(76+fi)} offset:{i*2048+rd*1024}' for i in range(8) for fi in range(2) for rd in range(2)])
bgc = [0]


def att_bg(n):
    bgc[0] += 1
    if bgc[0] == OPT.get('h4', 2):
        tok_h[4] = halo_loads(A, 4)
    elif bgc[0] == OPT.get('pt', 4):
        if OPT['fast']:
            cond_wave(0, pretouch) if not OPT['dmode'] else pretouch()
    elif bgc[0] > OPT.get('wo0', 4):
        if D.q:
            D.grp()
        elif n >= 9 and qg2.q:
            qg2.grp(2)
        elif bgc[0] >= OPT.get('wr0', 36):
            wor.pop(5)


attn_units(A, [u for d in range(1, 5) for u in units_of(d)], set(), bg=att_bg, ready=lambda un: A.wait(vm=tok_h[un[4]]))
assert not D.q and not qg2.q, (len(D.q), len(qg2.q))
wor.flush()
redo, fin = A.new('redo'), A.new('attfin')
A(f's_mov_b32 s3, {"0" if OPT["forcemax"] else "0x67800000"}')
A(f's_mov_b32 s1, 0x17800000')
A(f's_add_u32 s10, {s(sO)}, 32768')
A(f'v_max_f32 {v(SB)}, {v(OA+8)}, {v(OA+24)}')
A(f'v_min_f32 {v(SB+1)}, {v(OA+8)}, {v(OA+24)}')
A(f'v_cmp_u_f32 s[6:7], {v(OA+8)}, {v(OA+24)}')
A(f'v_cmp_nle_f32 s[4:5], s1, {v(SB+1)}')
A(f'v_cmp_nge_f32 vcc, s3, {v(SB)}')
A('s_or_b64 s[4:5], s[6:7], s[4:5]')
A('s_or_b64 vcc, vcc, s[4:5]')
A(f's_cbranch_vccnz {redo}')
A.label(fin)
C = COLD
C.label(redo)
C('s_waitcnt vmcnt(0)')
C(f'v_lshrrev_b32 v4, 5, {v(vL)}')
C(f'v_and_b32 v3, 15, {v(vL)}')
C(f'v_lshl_add_u32 v3, v4, 4, v3')
C(f'v_lshlrev_b32 {v(vVS)}, 4, v3')
for i in range(32):
    C(f'v_mov_b32 {v(G2+i)}, 0x3f803f80')
for d in (1, 2):
    halo_loads(C, d)
C('s_waitcnt vmcnt(0)')
C(f'v_mov_b32 v3, 0xff7fffff')
C(f'v_mov_b32 v4, 0xff7fffff')
mx_end, p2_end = C.new('mxend'), C.new('p2end')
for d in range(5):
    if d:
        C(f's_cmp_lt_u32 {s(sRB)}, {d}')
        C(f's_cbranch_scc1 {mx_end}')
    for un in units_of(d):
        s_mm(C, un, 0)
        for i in range(0, 16, 2):
            C(f'v_max3_f32 {v(3+un[0])}, {v(3+un[0])}, {v(SB+i)}, {v(SB+i+1)}')
C.label(mx_end)
for q in range(2):
    C(f'v_mov_b32 {v(SB)}, {v(3+q)}')
    C(f'v_permlane32_swap_b32 {v(SB)}, {v(3+q)}')
    C(f'v_max_f32 {v(3+q)}, {v(SB)}, {v(3+q)}')
fs = {0, 1}
for d in range(5):
    if d:
        C(f's_cmp_lt_u32 {s(sRB)}, {d}')
        C(f's_cbranch_scc1 {p2_end}')
    attn_units(C, units_of(d), fs, sub=3)
C('s_nop 7')
C.label(p2_end)
C('s_nop 7')
C(f'v_lshlrev_b32 {v(vVS)}, 4, v0')
for f in gather_loads(1024, 2, G2, vVS):
    C(f)
C('s_waitcnt vmcnt(0)')
C(f's_branch {fin}')
for q in range(2):
    A(f'v_rcp_f32 {v(OA+16*q+8)}, {v(OA+16*q+8)}')
for q in range(2):
    for i in range(4):
        A(f'v_pk_mul_f32 {v(OA+16*q+2*i, 2)}, {v(OA+16*q+2*i, 2)}, {v(OA+16*q+8, 2)} op_sel_hi:[1,0]')
    for i in range(4):
        A(f'v_cvt_pk_bf16_f32 {v(OA+16*q+i)}, {v(OA+16*q+2*i)}, {v(OA+16*q+2*i+1)}')
stamp('attn')
tok_o = handoff([f'buffer_store_dwordx4 {v(OA+16*q, 4)}, {v(vL16)}, {srd(rWS)}, {s((sO, 10)[q])} offen @' for q in range(2)], OPT['dmode'])

W2ORD = [7 * jj + t for jj in range(4) for t in range(4)] + [7 * jj + t for jj in range(4) for t in range(4, 7)]
NA = OPT.get('na', 5)
sW2 = sKV


def w2reg(fi, m):
    return (72 + 8 * m if m < 23 else 32 + 8 * (m - 23)) + 4 * fi


def w2_dma(m, sl, off):
    return [f's_add_u32 m0, {s(sl)}, {off}', f's_add_u32 {s(sBO)}, {s(sW2)}, {16384*W2ORD[m]}',
            f'buffer_load_dwordx4 {v(vWD)}, {srd(rW2)}, {s(sBO)} offen {NTW} lds',
            (f'buffer_load_dwordx4 v250, {srd(rW2)}, {s(sBO)} offen offset:1024 {NTW} lds', ('w2', m))]


def w2_read(m, va, off):
    return [f'ds_read_b64_tr_b16 {a(w2reg(fi, m)+2*rd, 2)}, {v(va+fi)} offset:{off+rd*1024}' for fi in range(2) for rd in range(2)]


def ring_dma(b):
    return [x for i in range(5) for x in w2_dma(NA + 5 * b + i, sRING, 2048 * i)]


def ring_read(b):
    return [lambda: A.wait(vm=D.k['w2', NA + 5 * b + 4])] + [x for i in range(5) for x in w2_read(NA + 5 * b + i, vR0, 2048 * i)]


CG, CS, GB, X1 = 208, 224, 240, 184
vP, vW1a, vW1b, vO1 = 252, 6, 7, 253
A(f's_mul_i32 {s(sW2)}, {s(sW)}, {448*1024}')
A(f'v_add_u32 v250, {8192-1024}, {v(vWD)}')
for m in range(NA):
    D.add(w2_dma(m, 11, WOS + 2048 * m))
A.wait_all(ds=True)
D.grp(OPT.get('ba', 8))
stamp('pdma')
gather_check(1024, 2, G2, vVS, qg2.tok, 3)
A(f's_cmp_lt_u32 {s(sW)}, 2')
A(f's_cselect_b32 s3, 1.0, 0')
add_const_round(G2 + 16, 3)
emit(['v_and_b32 v4, 0x7c, v0', 'v_and_b32 v16, 1, v0', 'v_lshl_add_u32 v4, v16, 1, v4', 'v_bfe_u32 v16, v0, 1, 1', 'v_add_u32 v4, v4, v16',
      f's_lshr_b32 s3, {s(sW)}, 1', f's_mul_i32 s3, s3, 1088', f's_add_u32 s3, s3, {T_MOD2}', 'v_lshl_add_u32 v4, v4, 3, s3'])
A(f'ds_write_b64 v4, {v(G2, 2)}')
A(f'ds_write_b64 v4, {v(G2+16, 2)} offset:{2*1088}')
emit([f'v_and_b32 {v(vP)}, 15, {v(vL)}', f'v_lshlrev_b32 {v(vP)}, 2, {v(vP)}', f'v_and_b32 v251, 28, {v(vP)}',
      f'v_lshrrev_b32 v4, 5, {v(vL)}', f's_and_b32 s3, {s(sTILE)}, 1023', f's_add_u32 s3, s3, {T_MOD2}', f'v_lshl_add_u32 v4, v4, 4, s3',
      f's_add_u32 s4, s11, {WOS}', f's_sub_u32 s4, s4, {s(sRING)}', f'v_add_u32 v182, s4, {v(vR0)}', f'v_add_u32 v183, s4, {v(vR1)}',
      f's_add_u32 s6, {s(sOL0)}, 4096', f's_add_u32 s7, {s(sOL1)}, 4096'])
xun = [f'v_accvgpr_read_b32 {v(160+i)}, {a(64+i)}' for i in range(8)] + [x for i in range(8) for x in unpack2(X1 + 2 * i, 160 + i)]
if not OPT['dmode']:
    emit(xun)
stamp('pchk')
A.wait(vm=tok_o)
setflag(s(sFO))
stamp('pflag')
D.flush()
A.wait_all(ds=True)
barrier()
stamp('pbar')
for q in range(2):
    A(f'ds_read_b128 {v(144+4*q, 4)}, v4 offset:{32*q}')
    A(f'ds_read_b128 {v(152+4*q, 4)}, v4 offset:{2*1088+32*q}')
    tcs = A(f'ds_read_b128 {v(GB+4*q, 4)}, v4 offset:{3*1088+32*q}')
if OPT['dmode']:
    emit(xun)
cun = [x for i in range(8) for x in unpack2(CG + 2 * i, 144 + i) + unpack2(CS + 2 * i, 152 + i)]
A.wait(ds=tcs)
PO = OPT.get('po', 16)
emit(cun[:PO])
tpo = A(poll_load(251, s(sPO), 0, 3))
emit(cun[PO:])
stamp('prep')

OB, ACC, RX = 16, 80, 144


def red_sync():
    A.wait_all(ds=True)
    barrier()


poll_check(tpo, 251, s(sPO), 0, 3)
stamp('oflag')
for ti in (1, 0):
    for i in range(8):
        so = ((sOL0, 6), (sOL1, 7))[ti][i // 4]
        D.add([(f'buffer_load_dwordx4 {v(OB+32*ti+4*i, 4)}, {v(vL16)}, {srd(rWS)}, {s(so)} offen offset:{(i%4)*1024} sc1', ('o', ti, i))])
D.grp(10)
emit([x for m in range(NA) for x in w2_read(m, 182, 2048 * m)])
D.add([red_sync] + mark(w1_items(1, 12), 'w1'))


def red_addrs(base, stride, slots, vi):
    l = []
    for aa in range(1, 4):
        l += [f's_xor_b32 s3, {s(sW)}, {aa}', f's_mul_i32 s3, s3, {stride}', f's_add_u32 s3, s3, {base + slots[aa-1]}', f'v_add_u32 {v(vO1+aa-1)}, s3, {v(vL16)}']
    return l + [f's_mul_i32 s3, {s(sW)}, {stride}', f's_add_u32 s3, s3, {base}', f'v_add_u32 {v(vi)}, s3, {v(vL16)}']


emit(red_addrs(SCR, RING, (0, 0, 4096), 176))
emit([f'v_bfe_u32 v3, {v(vL)}, 4, 1', f'v_lshlrev_b32 v4, 2, {v(vP)}', 'v_lshl_add_u32 v178, v3, 3, v4',
      f'v_bfe_u32 v4, {v(vL)}, 2, 2', 'v_mul_u32_u24 v4, 448, v4', f'v_and_b32 v180, 3, {v(vL)}', 'v_lshl_add_u32 v4, v180, 3, v4',
      f'v_lshrrev_b32 v180, 5, {v(vL)}', 's_movk_i32 s4, 224', 's_movk_i32 s5, 3584',
      'v_mad_u32_u24 v179, v180, s4, v4', 'v_lshl_add_u32 v179, v3, 5, v179',
      'v_mad_u32_u24 v177, v3, s4, v4', 'v_mad_u32_u24 v177, v180, s5, v177',
      f'v_and_b32 v181, 1, {v(vL)}', 'v_mul_u32_u24 v4, 1088, v181', f'v_and_b32 v181, 48, {v(vL)}', f's_mov_b32 s4, {T_MOD2+1088}', 'v_add3_u32 v200, v4, v181, s4',
      f's_add_u32 s9, {s(sW)}, 4', 's_min_u32 s9, s9, 6', f's_lshl_b32 s4, {s(sW)}, 5', 's_lshl_b32 s5, s9, 5',
      'v_add_u32 v201, s4, v177', 'v_add_u32 v202, s5, v177', f'v_add_u32 v203, {8*7168}, v201', f'v_add_u32 v204, {8*7168}, v202',
      f's_lshl3_add_u32 s4, s4, {T_CB}', f's_lshl3_add_u32 s5, s5, {T_CB}', f'v_lshl_add_u32 v205, {v(vP)}, 2, s4', f'v_lshl_add_u32 v206, {v(vP)}, 2, s5',
      f'v_and_b32 v249, 31, {v(vL)}', f'v_lshlrev_b32 v4, 4, v249', f'v_add_u32 v248, {T_CB}, v4'])


def red_write(aa):
    return [f'ds_write_b128 {v(vO1+aa-1)}, {v(ACC+16*aa+4*r, 4)} offset:{r*1024}' for r in range(4)]


def b_mm(ti, fi, i):
    d = v(ACC + 32 * ti + 16 * fi, 16)
    mm32(A, d, a(32 * fi + 4 * i, 4), v(OB + 32 * ti + 4 * i, 4), '0' if i == 0 else d)


for i in range(8):
    A.wait(vm=D.k['o', 1, i])
    stamp(f'o{i}')
    b_mm(1, 1, i)
    D.grp()
    b_mm(1, 0, i)
qr = Q(red_write(3) + red_write(2))
for i in range(8):
    A.wait(vm=D.k['o', 0, i])
    stamp(f'o{8+i}')
    b_mm(0, 1, i)
    D.grp()
    qr.pop(1 if i else 0)
qr.flush()
D.flush()
b_mm(0, 0, 0)
red_sync()
b_mm(0, 0, 1)
emit([f'ds_read_b128 {v(RX+4*r, 4)}, v176 offset:{r*1024}' for r in range(4)])
b_mm(0, 0, 2)
t = A.ds
emit([f'ds_read_b128 {v(RX+16+4*r, 4)}, v176 offset:{4096+r*1024}' for r in range(4)])
b_mm(0, 0, 3)
A.wait(ds=t)
barrier()
w = red_write(1)
for i in range(4, 8):
    A(w[i - 4])
    b_mm(0, 0, i)
stamp('om')
for i in range(16):
    if i == 0:
        A.wait(ds=t + 4)
    A(f'v_add_f32 {v(RX+16+i)}, {v(RX+i)}, {v(RX+16+i)}')
red_sync()
t = [A(f'ds_read_b128 {v(RX+4*r, 4)}, v176 offset:{r*1024}') for r in range(4)]
for i in range(8):
    A(f'v_pk_add_f32 {v(ACC+2*i, 2)}, {v(ACC+2*i, 2)}, {v(RX+16+2*i, 2)}')
for i in range(8):
    A(f'v_pk_fma_f32 {v(X1+2*i, 2)}, {v(ACC+2*i, 2)}, {v(CG+2*i, 2)}, {v(X1+2*i, 2)}')
A.wait(ds=t[3])
for i in range(8):
    A(f'v_pk_fma_f32 {v(X1+2*i, 2)}, {v(RX+2*i, 2)}, {v(CG+2*i, 2)}, {v(X1+2*i, 2)}')
stamp('ored')
for i in range(8):
    A(f'v_pk_mul_f32 {v(CS+2*i, 2)}, {v(CS+2*i, 2)}, {v(X1+2*i, 2)}')
for i in range(8):
    A(f'v_cvt_pk_bf16_f32 {v(CS+i)}, {v(CS+2*i)}, {v(CS+2*i+1)}')
handoff([f'buffer_store_dwordx4 {v(CS+4*g, 4)}, {v(vL16)}, {srd(rWS)}, {s(sY)} offen offset:{1024*g} @' for g in range(2)], OPT['dmode'])
A(f'v_pk_add_f32 {v(CG, 2)}, {v(X1, 2)}, {v(X1+2, 2)}')
A(f'v_pk_mul_f32 {v(CG+2, 2)}, {v(X1, 2)}, {v(X1, 2)}')
for i in range(1, 8):
    if i > 1:
        A(f'v_pk_add_f32 {v(CG, 2)}, {v(CG, 2)}, {v(X1+2*i, 2)}')
    A(f'v_pk_fma_f32 {v(CG+2, 2)}, {v(X1+2*i, 2)}, {v(X1+2*i, 2)}, {v(CG+2, 2)}')
A(f'v_add_f32 {v(CG)}, {v(CG)}, {v(CG+1)}')
A(f'v_add_f32 {v(CG+1)}, {v(CG+2)}, {v(CG+3)}')
A(f'v_mov_b64 {v(CG+2, 2)}, {v(CG, 2)}')
A(f'v_mov_b32 {v(vW1a)}, v179')
A(f'v_add_u32 {v(vW1b)}, {8*7168}, v179')
A(f'v_permlane32_swap_b32 {v(CG)}, {v(CG+2)}')
A(f'v_permlane32_swap_b32 {v(CG+1)}, {v(CG+3)}')
A(f'v_pk_add_f32 {v(CG, 2)}, {v(CG, 2)}, {v(CG+2, 2)}')
A('s_mov_b32 exec_hi, 0')
tok_y = handoff([f'buffer_store_dwordx2 {v(CG, 2)}, v178, {srd(rWS)}, {s(sST)} offen @'], OPT['dmode'])
A('s_mov_b64 exec, -1')
stamp('oproj')

tk = {}
CBB, CBA = 96, 144


def cb_reads(ks):
    b = CBB + (ks % 4) * 12
    l = []
    for t in range(2):
        base = (201, 202)[t] if ks < 8 else (203, 204)[t]
        l += [f'ds_read_b64_tr_b16 {v(b+4+4*t+2*rd, 2)}, {v(base)} offset:{(ks%8)*7168+rd*1792}' for rd in range(2)]
    return [f'ds_read_b128 {v(b, 4)}, v200 offset:{ks*64}'] + l


D.add(ring_dma(0))
D.grp(OPT.get('b0', 8))
for ks in range(3):
    tk[ks] = emit(cb_reads(ks))
YF = OPT.get('yf', 2 if OPT['dmode'] else 7)
YP = OPT.get('yp', YF + 5)
for ks in range(16):
    A.wait(ds=tk[ks], vm=D.k['w1'] if ks == 8 else None)
    stamp(f'k{ks}')
    if ks == 8:
        barrier()
    b = CBB + (ks % 4) * 12
    nxt = cb_reads(ks + 3) if ks + 3 < 16 else []
    mm16(CBA, v(b, 4), v(b + 4, 4), ks == 0)
    emit(nxt[:2])
    mm16(CBA + 4, v(b, 4), v(b + 8, 4), ks == 0)
    if ks > YF:
        D.grp()
    if ks == YP:
        D.flush()
        tpy = A(poll_load(vP, s(sPY), 0, 3))
    if nxt:
        tk[ks + 3] = emit(nxt[2:])
    if ks == YF:
        stamp('kw')
        A.wait(vm=tok_y)
        setflag(s(sFY))
        stamp('kf')


def split3(dst, x0, x1, tmp, mode):
    l = [f'v_cvt_pk_bf16_f32 {v(tmp)}, {v(x0)}, {v(x1)}'] + unpack2(tmp + 1, tmp)
    l += [f'v_sub_f32 {v(x0)}, {v(x0)}, {v(tmp+1)}', f'v_sub_f32 {v(x1)}, {v(x1)}, {v(tmp+2)}']
    h0, h1 = tmp + 1, tmp + 2
    e = [h0, x0, h0, h1, x1, h1] if mode == 'a' else [h0, h0, x0, h1, h1, x1]
    l += [f'v_cvt_pk_bf16_f32 {v(dst+i)}, {v(e[2*i])}, {v(e[2*i+1])}' for i in range(3)]
    return l + [f'v_mov_b32 {v(dst+3)}, 0']


stamp('cb')

YB, FT, BX, SL = 16, [144, 160, 200, 216], 176, 200
qy = Q()
for ks in range(32):
    if ks % 4 == 0:
        qy.add([f's_add_u32 s4, {s(sYL)}, {ks*1024}'])
    qy.add([(f'buffer_load_dwordx4 {v(YB+4*ks, 4)}, {v(vL16)}, {srd(rWS)}, s4 offen offset:{(ks%4)*1024} sc1', ks)])
    if ks == 15:
        qy.add(mark([f'buffer_load_dwordx4 {v(SL+4*i, 4)}, {v(vL16)}, {srd(rWS)}, {s(sSTL)} offen offset:{i*1024} sc1' for i in range(4)], 'st'))
poll_check(tpy, vP, s(sPY), 0, 3)
stamp('yflag')
qy.grp(OPT.get('y0', 8))
stamp('yiss')
for t in range(2):
    emit(split3(152 + 4 * t, CBA + 4 * t + 1, CBA + 4 * t, 160, 'a'))
A(f'ds_write_b128 v205, {v(152, 4)}')
A(f'ds_write_b128 v206, {v(156, 4)}')
stats = [lambda: A.wait(vm=qy.k['st'])]
for e in range(4):
    stats += [f'v_add_f32 {v(SL+e)}, {v(SL+e)}, {v(SL+4+e)}', f'v_add_f32 {v(SL+8+e)}, {v(SL+8+e)}, {v(SL+12+e)}']
stats += [f'v_add_f32 {v(SL+e)}, {v(SL+e)}, {v(SL+8+e)}' for e in range(4)]
stats += [f'v_permlane16_swap_b32 {v(SL+e)}, {v(SL+2+e)}' for e in range(2)]
stats += [f'v_add_f32 {v(SL+e)}, {v(SL+e)}, {v(SL+2+e)}' for e in range(2)]
stats += [f'v_mov_b64 {v(SL+2, 2)}, {v(SL, 2)}', f's_lshl_b32 s3, {s(sW)}, 7', f's_add_u32 s3, s3, {T_RST}', f'v_lshl_add_u32 v4, v249, 2, s3']
stats += [f'v_permlane32_swap_b32 {v(SL+e)}, {v(SL+2+e)}' for e in range(2)]
stats += [f'v_add_f32 {v(SL+e)}, {v(SL+e)}, {v(SL+2+e)}' for e in range(2)]
stats += [f'v_mul_f32 {v(SL)}, 0xbb000000, {v(SL)}', f'v_mul_f32 {v(SL+1)}, 0x3b000000, {v(SL+1)}',
          f'v_fma_f32 {v(SL+1)}, -{v(SL)}, {v(SL)}, {v(SL+1)}', f'v_max_f32 {v(SL+1)}, 0, {v(SL+1)}',
          f'v_add_f32 {v(SL+2)}, 0x3727c5ac, {v(SL+1)}', f'v_sqrt_f32 {v(SL+1)}, {v(SL+2)}', f'v_rsq_f32 {v(SL+2)}, {v(SL+2)}',
          f'v_cmp_gt_u32 vcc, 32, {v(vL)}', f'ds_write_b32 v4, {v(SL+2)}',
          f'v_cndmask_b32 {v(SL)}, 0, {v(SL)}, vcc', f'v_cndmask_b32 {v(SL+1)}, 0, {v(SL+1)}, vcc']
stats += split3(BX, SL, SL + 1, SL + 4, 'b')
qs = Q(stats)
cseq = [(p, ks, 2 * p + i) for p in range(2) for ks in range(33) for i in range(2)]
NFB, CLK = 8, OPT.get('clk', 5)
tk = {}


def c_rd(n):
    p, ks, ct = cseq[n]
    b = 4 * (n % NFB)
    if ks == 32:
        return [f'ds_read_b128 {a(b, 4)}, v248 offset:{ct*512}']
    return [f'ds_read_b64_tr_b16 {a(b+2*r, 2)}, {v(vW1a if ks < 16 else vW1b)} offset:{(ks%16)*3584+r*1792+ct*64}' for r in range(2)]


def f_epi(ct):
    n = 8 if ct < 3 else 4
    return ([f'v_cvt_pk_bf16_f32 {v(FT[ct]+i)}, {v(FT[ct]+2*i)}, {v(FT[ct]+2*i+1)}' for i in range(n)] +
            [f'v_pk_max_i16 {v(FT[ct]+i)}, {v(FT[ct]+i)}, 0' for i in range(n)])


def f_stores(ts, sdst):
    return handoff([f'buffer_store_dwordx4 {v(FT[t//2]+4*(t%2), 4)}, {v(vL16)}, {srd(rWS)}, {sdst} offen offset:{(t%4)*1024} @' for t in ts], OPT['fmode'])


hold = {}
A.wait_all(ds=True)
barrier()
for n in range(CLK):
    tk[n] = emit(c_rd(n))
R = Q(ring_read(0))
R.flush()
D.add(ring_dma(1))
F1, PF1 = OPT.get('f1', 26), OPT.get('pf1', 31)
qe = Q()
for n, (p, ks, ct) in enumerate(cseq):
    i = n % 2
    if i == 0:
        A.wait(vm=qy.k[ks] if p == 0 and ks < 32 else None, ds=tk[n + 1])
        stamp('ab'[p] + str(ks))
        if (p, ks) == (0, 32):
            qs.flush()
        if (p, ks) == (1, 0):
            stamp('c1')
        if (p, ks) == (1, 1):
            D.flush()
            qe.add(f_epi(0) + f_epi(1) + [lambda: hold.update(f1=f_stores(range(4), s(sF)))])
        FREE = {2: (0, 1), 6: (1, 3), 11: (3, 5), 18: (5, 13 - NA)}
        if p == 1 and ks in FREE:
            barrier()
            assert FREE[ks][1] * 8192 <= (ks + 1) * 3584
            for q in range(*FREE[ks]):
                D.add(w2_dma(NA + 15 + q, 10, 8192 * q))
        if (p, ks) == (1, F1):
            A.wait(vm=hold['f1'])
            setflag(s(sFF))
    d = v(FT[ct], 16)
    mm32(A, d, a(4 * (n % NFB), 4), v(BX if ks == 32 else YB + 4 * ks, 4), '0' if ks == 0 else d)
    if p == 0:
        if qy.q:
            if i == 0 or ks % 4 == 1:
                qy.grp()
        else:
            D.grp()
    elif (ks, i) == (PF1, 0):
        assert not R.q
        D.flush()
        tpf = A(poll_load(251, s(sPO), 1024, 9))
    else:
        D.grp(1, OPT.get('c2pace', 60))
    if n + CLK < len(cseq):
        tk[n + CLK] = emit(c_rd(n + CLK))
    res = 4 if i else 0
    if p == 0 and ks >= 17:
        qs.fill(res)
    if qe.q:
        qe.pop(OPT.get('qe', 4))
    elif R.q:
        R.pop(OPT.get('qr', 2))
    if (p, ks, i) == (1, 1, 0):
        R.add(ring_read(1) + [lambda: A.wait(ds=R.dtok), lambda: D.add(ring_dma(2))])
        A(f's_lshl_b32 s10, {s(sW)}, 11')
assert not (D.q or R.q)
stamp('c2')

NB = 16


def fbuf(n):
    return 16 + 4 * (n % NB)


NE = 32 - OPT.get('defer', 4)
seq = [(1, m) for m in range(16)] + [(0, m) for m in range(NE - 16)] + [(1, m) for m in range(16, 28)] + [(0, m) for m in range(NE - 16, 28)]
ql = Q()
for n, (ti, m) in enumerate(seq):
    k = W2ORD[m]
    if k % 7 in (0, 4) or n == NE + 12:
        ql.add([f's_add_u32 s4, {s((sFL0, sFL1)[ti])}, {(k - k%7%4)*1024}'])
    ql.add([(f'buffer_load_dwordx4 {v(fbuf(n), 4)}, {v(vL16)}, {srd(rWS)}, s4 offen offset:{(k%7%4)*1024} sc1', n)])
LK = OPT.get('lk', 11)
A(f's_add_u32 s9, {s(sF)}, 4096')
A(f's_sub_u32 s3, s10, {s(sRING)}')
A(f'v_add_u32 v10, s3, {v(vR0)}')
A(f'v_add_u32 v11, s3, {v(vR1)}')
A(f's_lshr_b32 s3, {s(sTILE)}, 8')
A(f's_and_b32 s3, s3, 0x180')
A(f's_add_u32 s3, s3, {T_RST}')
A(f'v_lshl_add_u32 v4, v249, 2, s3')
A(f'ds_read_b32 v7, v4')
emit(f_epi(2) + f_epi(3))
F2E = OPT.get('f2e', 1)
if F2E:
    tf2 = f_stores(range(4, 7), 's9')
poll_check(tpf, 251, s(sPO), 1024, 9)
stamp('fflag')
ql.grp(8)
if not F2E:
    tf2 = f_stores(range(4, 7), 's9')
Q(ring_read(2)).flush()
emit([x for i in range(8) for x in unpack2(CS + 2 * i, GB + i)])
fq = Q([x for m in range(NA + 15, 28) for x in w2_read(m, 10, 8192 * (m - NA - 15))] + red_addrs(65536, 12288, (0, 4096, 8192), 8) +
       [f'v_lshlrev_b32 v6, 10, v249', f'v_lshrrev_b32 v4, 5, {v(vL)}', f'v_lshl_add_u32 v6, v4, 4, v6'] + [lambda: A.wait(ds=fq.dtok)] +
       [f'v_mul_f32 {v(CS+i)}, {v(CS+i)}, v7' for i in range(16)])
K2 = OPT.get('k2', NE - LK)
P2 = OPT.get('p2', K2 - 7)


def d_mm(n, fi):
    ti, m = seq[n]
    d = v(ACC + 32 * ti + 16 * fi, 16)
    mm32(A, d, a(w2reg(fi, m), 4), v(fbuf(n), 4), '0' if m == 0 else d)


def issued():
    return max(k for k in ql.k) + 1


qr = Q(red_write(3) + red_write(2))
for n in range(44):
    A.wait(vm=ql.k[n])
    stamp(f'd{n}')
    if n == (0 if F2E else 8):
        setflag(s(sFF), off=512)
    if n == K2:
        poll_check(tpf, 251, s(sPO), 1536, 9)
    if n == NE:
        assert not fq.q
        barrier()
    for fi in (1, 0):
        d_mm(n, fi)
        if (n, fi) == (P2, 0):
            tpf = A(poll_load(251, s(sPO), 1536, 9))
        elif issued() < min(n + 1 + LK, 56 if n >= K2 else NE):
            ql.grp()
        fq.fill(4)
        if n >= NE + 12 and fi == 0:
            qr.pop()
for n in range(44, 56):
    A.wait(vm=ql.k[n])
    stamp(f'd{n}')
    d_mm(n, 1)
    ql.grp()
    if n > 44 and (n % 2 or len(qr.q) > (56 - n) // 2):
        qr.pop()
assert not qr.q
qr = Q(red_write(1) + [red_sync] + [(f'ds_read_b128 {v((144, 160, 200)[p]+4*r, 4)}, v8 offset:{(2-p)*4096+r*1024}', p) for p in range(3) for r in range(4)])
for n in range(44, 56):
    d_mm(n, 0)
    if n > 45:
        qr.pop(1 if n < 51 else 3)
qr.flush()
stamp('ffn2')
A.wait(ds=qr.k[1])
for i in range(8):
    A(f'v_pk_add_f32 {v(144+2*i, 2)}, {v(144+2*i, 2)}, {v(160+2*i, 2)}')
A.wait(ds=qr.k[2])
for i in range(8):
    A(f'v_pk_add_f32 {v(200+2*i, 2)}, {v(200+2*i, 2)}, {v(ACC+2*i, 2)}')
for k in range(2):
    for i in range(4 * k, 4 * k + 4):
        A(f'v_pk_add_f32 {v(144+2*i, 2)}, {v(144+2*i, 2)}, {v(200+2*i, 2)}')
    for i in range(4 * k, 4 * k + 4):
        A(f'v_pk_fma_f32 {v(X1+2*i, 2)}, {v(144+2*i, 2)}, {v(CS+2*i, 2)}, {v(X1+2*i, 2)}')
    for i in range(4):
        A(f'v_cvt_pk_bf16_f32 {v(160+4*k+i)}, {v(X1+8*k+2*i)}, {v(X1+8*k+2*i+1)}')
    for r in range(2):
        A(f'v_permlane32_swap_b32 {v(160+4*k+r)}, {v(160+4*k+2+r)}')
    A(f'buffer_store_dwordx4 {v(160+4*k, 4)}, v6, {srd(rOUT)}, {s(sTILE)} offen offset:{32*k} {"sc1" if OPT["outsc1"] else ""}')

if OPT['stamps']:
    A.wait_all(vm=True)
    NAMES_n = len(NAMES)
    A(f's_mov_b32 {s(STAMP0+NAMES_n-1)}, {s(STP)}')
    A(f's_memtime {s(STP, 2)}')
    NAMES.append('end')
    A('s_waitcnt lgkmcnt(0)')
    A('v_mov_b32 v3, 0')
    for k in range(NAMES_n):
        A(f'v_writelane_b32 v3, {s(STAMP0+k)}, {k}')
    A(f'v_writelane_b32 v3, {s(STP)}, {NAMES_n}')
    A(f'v_writelane_b32 v3, {s(sXCC)}, 30')
    A(f'v_writelane_b32 v3, {s(sFAST)}, 31')
    A(f's_lshl_b32 s3, s2, 2')
    A(f's_add_u32 s3, s3, {s(sW)}')
    A(f's_lshl_b32 s3, s3, 7')
    A(f's_add_u32 s3, s3, {STAMPS}')
    A(f'v_lshlrev_b32 v4, 2, {v(vL)}')
    A('s_mov_b32 exec_hi, 0')
    A(f'buffer_store_dword v3, v4, {srd(rWS)}, s3 offen')
if OPT['pad']:
    A.wait_all(vm=True)
    stamp('end')
    A('s_waitcnt lgkmcnt(0)')
    A(f's_mov_b32 s6, {OPT["pad"]}')
    if OPT.get('probe'):
        if OPT.get('pcyc'):
            A('s_sub_u32 s98, s98, s96')
            A('s_mul_i32 s98, s98, 2731')
            A('s_lshr_b32 s98, s98, 16')
        else:
            A('s_sub_u32 s98, s98, s100')
        if OPT.get('pwg') is not None:
            A(f's_cmp_eq_u32 s2, {OPT["pwg"]}')
            A('s_cselect_b32 s98, s98, 0')
        A('s_add_u32 s6, s6, s98')
    A.label('L_padl')
    A('s_memrealtime s[4:5]')
    A('s_waitcnt lgkmcnt(0)')
    A('s_sub_u32 s4, s4, s100')
    A(f's_cmp_lt_u32 s4, s6')
    A('s_cbranch_scc1 L_padl')
A.label('L_end')
A('s_endpgm')
A.ins += WARM.ins
A.label('L_hot_end')
A.ins += COLD.ins
body, added = A.text()

hdr = open('cdna_kernels/' + NAME + '.s.ref').read().split('\n')
hdr = [l for l in hdr if l.startswith(';') and '@launch' not in l and 'Override' not in l and 'grid=ceil' not in l]
out = '\n'.join(hdr) + f'''
; @launch grid=(256,1,1) block=(256,1,1) lds=163840
; generated by gen/gen.py (hand-written generator): one persistent launch, one workgroup per CU
.amdgcn_target "amdgcn-amd-amdhsa--gfx950"
.text
.globl {NAME}_kernel
.p2align 8
.type {NAME}_kernel,@function
{NAME}_kernel:
{body}
  s_endpgm
.fill 2048, 4, 0xbf800000
  s_endpgm
.section .rodata,"a"
.p2align 6
.amdhsa_kernel {NAME}_kernel
  .amdhsa_next_free_vgpr 512
  .amdhsa_next_free_sgpr 102
  .amdhsa_accum_offset 256
  .amdhsa_group_segment_fixed_size 0
  .amdhsa_kernarg_size 88
  .amdhsa_user_sgpr_count 2
  .amdhsa_user_sgpr_kernarg_segment_ptr 1
  .amdhsa_system_sgpr_workgroup_id_x 1
  .amdhsa_float_denorm_mode_32 3
.end_amdhsa_kernel
'''
open(sys.argv[1], 'w').write(out)
open(sys.argv[1] + '.names', 'w').write(' '.join(NAMES))
print(f'instructions: {len(A.ins)}, nops added: {added}, stamps: {len(NAMES)}')
```

```python
import sys
from asmlib import Asm, Ins, cost, v, a, s

NAME = 'adaLN_cond__sliding_block__dense_activation_relu__prompt'
OPT = dict(stamps=0, fast=1, forcemax=0, fmode=0, dmode=0, ntx=1, ntq=0, ntw=0, touch0=1, touch1=1, chunks=17, pad=0, outsc1=0)
for arg in sys.argv[2:]:
    k, val = arg.split('=')
    OPT[k] = val if k == 'probe' else int(val)

EPOCH = 0
HELLO = 0x1000
FKV = 0x10000
FL = 0x30000
MODP = 0x40000
STATS = 0x80000
STAMPS = 0xC0000
KVB = 0x100000
OBUF = 0x500000
YBUF = 0x700000
FBUF = 0x900000
LH, WVH, WVL, WQL = 0, 65536, 98304, 131072
MODT = WQL
PRED1 = WQL + 4096
IMG0, IMG1 = 0, 65536
WOS = IMG0
PRED2 = WQL + 8192
SCR = 131072
RING = 6144
TAB = SCR + 4 * RING
T_MOD2 = TAB
T_CB = TAB + 2560
T_RST = TAB + 4608
sC, sWS = 16, 24
rX, rWQ, rWO, rW1, rW2, rWM, rWS, rOUT = 28, 32, 36, 40, 44, 48, 52, 56
rH = 32
sW, sRB, sHQ, sJ, sRB2, sN, sXCC, sFAST, sHI = 60, 61, 62, 63, 64, 65, 66, 67, 68
(sKV, sFKV, sO, sFO, sPO, sOL, sDL, sTILE, sY, sST, sFY, sPY, sSTL, sYL, sF, sFF, sX, sFL0, sFL1, sBO, sRING, sIW) = (
    12, 13, 14, 15, 18, 19, 20, 21, 22, 23, 26, 27, 69, 70, 71, 72, 73, 74, 75, 76, 77, 0)
STAMP0, STP = 78, 100
LIMIT = 1 << 15
vL, vL16 = 1, 2
W1A, WOA = 5, 9
vG2, vWD, vRB, vOS, vVS = 11, 12, 13, 14, 15

NTX = 'nt' if OPT['ntx'] else ''
NTQ = 'nt' if OPT['ntq'] else ''
NTW = 'nt' if OPT['ntw'] else ''
A = Asm()
COLD = Asm()
COLD.uid = 100000
WARM = Asm()


def srd(r):
    return s(r, 4)


NAMES = []
SETS = {1: 'rt start setup ln_pre mod h kv q m2 own kvflag attn prep oflag o0 oproj yflag c1 c2 fflag d0 ffn2',
        3: 'rt start yflag a0 a8 a16 a24 c1 b8 b16 b24 c2 fflag d0 d7 d14 d21 d28 d35 d42 d49 ffn2',
        4: 'rt start mod h0 h1 h2 h3 hw h attn prep oflag o0 o4 o8 o12 om oproj cb yflag',
        6: 'rt start q m2 own kvflag u1 u2 u3 u4 u5 u6 u7 u9 u11 u13 u15 u17 uend attn',
        5: 'rt start attn pchk pbar k0 kw kf k16 prep oflag cb o0 om oproj yw yf yp yflag yiss a0',
        9: 'rt start',
        2: 'rt start karg iss setup0 nonce pland setup x0 x1 x2 x3 ln_pre wkl wk gchk mod h kv kvst q'}
KEEP = set(SETS.get(OPT['stamps'], '').split())


def stamp(name):
    if OPT.get('probe') == name:
        A(f's_mem{"" if OPT.get("pcyc") else "real"}time s[98:99]')
    if OPT['stamps'] and name in KEEP:
        k = len(NAMES)
        assert k < 22
        if k:
            A(f's_mov_b32 {s(STAMP0+k-1)}, {s(STP)}')
        A(f's_mem{"real" if name == "rt" or OPT.get("rts") else ""}time {s(STP, 2)}')
        NAMES.append(name)
        if name == 'rt':
            A('s_waitcnt lgkmcnt(0)')


def barrier():
    A('s_barrier')


class Q:
    def __init__(self, items=()):
        self.q = list(items)
        self.tok = None
        self.dtok = None
        self.k = {}
        self.last = -10**9

    def add(self, items):
        self.q += list(items)

    def kind(self):
        it = self.q[0]
        return 'call' if callable(it) else Ins(it[0] if isinstance(it, tuple) else it).kind

    def pop(self, n=1):
        for _ in range(n):
            if not self.q:
                return
            kind = self.kind()
            it = self.q.pop(0)
            if callable(it):
                it()
                continue
            txt, key = it if isinstance(it, tuple) else (it, None)
            t = A(txt)
            if kind == 'vmem':
                self.tok = t
                self.last = A.t
            elif kind == 'ds':
                self.dtok = t
            if key is not None:
                self.k[key] = t

    def grp(self, n=1, pace=0):
        for _ in range(n):
            if not self.q or A.t - self.last < pace:
                return
            while self.q and self.kind() != 'vmem':
                self.pop()
            self.pop()
            while self.q and self.kind() == 'salu':
                self.pop()

    def fill(self, reserve=0, pace=0):
        while self.q:
            it = self.q[0]
            if callable(it):
                c = 4
            else:
                i = Ins(it[0] if isinstance(it, tuple) else it)
                if i.kind == 'vmem' and A.t - self.last < pace:
                    return
                c = cost(i, A.prev, True)
            if A.t + c + reserve > A.mfree:
                return
            self.pop()

    def flush(self):
        self.pop(len(self.q))


def poll_load(vaddr, soff, off, vt):
    return f'buffer_load_dword {v(vt)}, {v(vaddr)}, {srd(rWS)}, {soff} offen offset:{off} sc1'


def poll_check(tok, vaddr, soff, off, vt):
    again, chk, ok = A.new('pagain'), A.new('pchk'), A.new('pok')
    A.wait(vm=tok)
    A(f'v_cmp_ne_u32 vcc, {s(sN)}, {v(vt)}')
    A(f's_cbranch_vccnz {again}')
    A.label(ok)
    WARM.label(again)
    WARM('s_mov_b32 s1, 0')
    WARM.label(chk)
    WARM(poll_load(vaddr, soff, off, vt))
    WARM('s_add_u32 s1, s1, 1')
    WARM('s_waitcnt vmcnt(0)')
    WARM(f'v_cmp_ne_u32 vcc, {s(sN)}, {v(vt)}')
    WARM(f's_cmp_ge_u32 s1, {LIMIT}')
    WARM(f's_cbranch_vccz {ok}')
    WARM(f's_cbranch_scc0 {chk}')
    WARM(f's_branch {ok}')


def handoff(stores, fast=True):
    tok = None
    if not (OPT['fast'] and fast):
        for t in stores:
            tok = A(t.replace('@', 'sc1')) or tok
        return tok
    slow, back = A.new('slow'), A.new('back')
    A(f's_cmp_eq_u32 {s(sFAST)}, 0')
    A(f's_cbranch_scc1 {slow}')
    for t in stores:
        tok = A(t.replace('@', '')) or tok
    A.label(back)
    COLD.label(slow)
    for t in stores:
        COLD(t.replace('@', 'sc1'))
    COLD('s_nop 1')
    COLD(f's_branch {back}')
    return tok


def setflag(soff, fast=True, off=0):
    A(f'v_mov_b32 v3, {s(sN)}')
    A('s_mov_b64 exec, 1')
    handoff([f'buffer_store_dword v3, off, {srd(rWS)}, {soff} offset:{off} @'], fast)
    A('s_mov_b64 exec, -1')


def readback(va, soffs, vt):
    if OPT.get('rb', 7):
        for so in soffs:
            A(f'buffer_load_dword {v(vt)}, {v(va)}, {srd(rWS)}, {so} offen sc1')


def unpack2(dst, src):
    return [f'v_lshlrev_b32 {v(dst)}, 16, {v(src)}', f'v_and_b32 {v(dst+1)}, {s(sHI)}, {v(src)}']


def emit(l):
    t = None
    for x in l:
        t = A(x) or t
    return t


def mod_addr(lpr, va, vc, so):
    lg = lpr.bit_length() - 1
    l = [f's_bfe_u32 s3, s2, 0x20005', f's_lshl_b32 s3, s3, 7', f's_lshl_b32 {s(so)}, {s(sW)}, 5', f's_add_u32 s3, s3, {s(so)}',
         f'v_lshrrev_b32 {v(va)}, {lg}, {v(vL)}', f'v_add_u32 {v(va)}, s3, {v(va)}', f'v_lshlrev_b32 {v(vc)}, 1, {v(va)}',
         f'v_mul_u32_u24 {v(va)}, {6144 // 16}, {v(va)}', f'v_and_or_b32 {v(va)}, {v(vL)}, {lpr-1}, {v(va)}', f'v_lshlrev_b32 {v(va)}, 4, {v(va)}',
         f's_lshl_b32 {s(so)}, {s(sRB2)}, 2', f's_and_b32 s3, {s(sJ)}, 3', f's_add_u32 {s(so)}, {s(so)}, s3', f's_lshl_b32 {s(so)}, {s(so)}, {4+lg}']
    return l


def mod_loads(lpr, colbyte, va, vc, so, PW, PC):
    l = []
    for i in range(lpr // 2):
        if i:
            l.append(f's_add_u32 {s(so)}, {s(so)}, {(64//lpr)*6144}')
        l.append(f'buffer_load_dwordx4 {v(PW+4*i, 4)}, {v(va)}, {srd(rWM)}, {s(so)} offen offset:{colbyte} {NTX}')
    for i in range(lpr // 2):
        l.append(f'global_load_ushort {v(PC+i)}, {v(vc)}, {s(sC, 2)} offset:{(64//lpr)*2*i}')
    return l


def mod_finish(lpr, col0, PW, PC, ACC, UT, pred, bg=lambda: None):
    nl = lpr // 2
    lg = lpr.bit_length() - 1
    R = range(nl)
    for i in R:
        A(f'v_lshlrev_b32 {v(PC+i)}, 16, {v(PC+i)}')
    for i in R:
        A(f'v_mul_f32 {v(PC+2+i)}, 0xbfb8aa3b, {v(PC+i)}')
    for i in R:
        A(f'v_exp_f32 {v(PC+2+i)}, {v(PC+2+i)}')
    emit(unpack2(UT, PW))
    for i in R:
        A(f'v_add_f32 {v(PC+2+i)}, 1.0, {v(PC+2+i)}')
    for i in R:
        A(f'v_rcp_f32 {v(PC+2+i)}, {v(PC+2+i)}')
    emit(unpack2(UT + 2, PW + 1))
    for i in R:
        A(f'v_mul_f32 {v(PC+i)}, {v(PC+i)}, {v(PC+2+i)}')
    for i in R:
        A(f'v_cvt_pk_bf16_f32 {v(PC+i)}, {v(PC+i)}, {v(PC+i)}')
    for i in R:
        A(f'v_and_b32 {v(PC+i)}, {s(sHI)}, {v(PC+i)}')
    for i in R:
        for r in range(0 if i else 2, 4):
            emit(unpack2(UT + 2 * r, PW + 4 * i + r))
        for e in range(4):
            if i == 0:
                A(f'v_pk_mul_f32 {v(ACC+2*e, 2)}, {v(UT+2*e, 2)}, {v(PC, 2)} op_sel_hi:[1,0]')
            else:
                A(f'v_pk_fma_f32 {v(ACC+2*e, 2)}, {v(UT+2*e, 2)}, {v(PC, 2)}, {v(ACC+2*e, 2)} op_sel:[0,1,0] op_sel_hi:[1,1,1]')
    A(f'v_and_b32 v3, {lpr-1}, {v(vL)}')
    A(f'v_lshlrev_b32 v3, 5, v3')
    for e in range(4):
        A(f'v_permlane32_swap_b32 {v(ACC+e)}, {v(ACC+e+4)}')
    for e in range(2):
        A(f'v_pk_add_f32 {v(ACC+2*e, 2)}, {v(ACC+2*e, 2)}, {v(ACC+2*e+4, 2)}')
    A(f'v_lshrrev_b32 v4, 4, {v(vL)}')
    A(f'v_lshl_add_u32 v3, v4, 3, v3')
    for e in range(2):
        A(f'v_permlane16_swap_b32 {v(ACC+e)}, {v(ACC+e+2)}')
    A(f'v_pk_add_f32 {v(ACC, 2)}, {v(ACC, 2)}, {v(ACC+2, 2)}')
    A(f's_lshl_b32 s5, {s(sW)}, {5+lg}')
    A(f's_add_u32 s5, s5, {pred}')
    extra = [f'v_add_u32 v3, s5, v3', f'v_and_b32 v4, {2*lpr-1}, {v(vL)}', f'v_lshlrev_b32 v4, 4, v4']
    for sh in (8, 4, 2)[:4 - lg]:
        for e in range(2):
            A(f'v_add_f32_dpp {v(ACC+e)}, {v(ACC+e)}, {v(ACC+e)} row_ror:{sh} row_mask:0xf bank_mask:0xf')
        A(extra.pop(0))
    A(f'ds_write_b64 v3, {v(ACC, 2)}')
    emit(extra)
    A(f'v_add_u32 v3, {pred}, v4')
    bg()
    A.wait_all(ds=True)
    barrier()

    def tail():
        for i in range(4):
            A(f'ds_read_b128 {v(UT+4*i, 4)}, v3 offset:{32*lpr*i}')
        A(f's_bfe_u32 s5, s2, 0x20005')
        A(f's_mul_i32 s5, s5, 12288')
        A(f's_lshl_b32 s4, {s(sRB2)}, 2')
        A(f's_and_b32 s3, {s(sJ)}, 3')
        A(f's_add_u32 s4, s4, s3')
        A(f's_lshl_b32 s4, s4, {5+lg}')
        A(f's_add_u32 s4, s4, s5')
        A(f's_add_u32 s4, s4, {MODP + col0*4}')
        A(f's_movk_i32 s5, 0xff')
        A(f'v_mov_b32 {v(ACC)}, {s(sN)}')
        for e in range(1, 4):
            A(f'v_lshrrev_b32 {v(ACC+e)}, {8*e}, {v(ACC)}')
        A.wait_all(ds=True)
        for e in range(2):
            A(f'v_pk_add_f32 {v(UT+2*e, 2)}, {v(UT+2*e, 2)}, {v(UT+4+2*e, 2)}')
            A(f'v_pk_add_f32 {v(UT+8+2*e, 2)}, {v(UT+8+2*e, 2)}, {v(UT+12+2*e, 2)}')
        for e in range(2):
            A(f'v_pk_add_f32 {v(UT+2*e, 2)}, {v(UT+2*e, 2)}, {v(UT+8+2*e, 2)}')
        for e in range(4):
            A(f'v_bfi_b32 {v(ACC+e)}, s5, {v(ACC+e)}, {v(UT+e)}')
        A(f's_mov_b64 exec, {(1 << (2*lpr)) - 1}')
        A(f'buffer_store_dwordx4 {v(ACC, 4)}, v4, {srd(rWS)}, s4 offen sc1')
        A('s_mov_b64 exec, -1')
        A('s_nop 1')
    cond_wave(0, tail)


def gather_loads(sets, G):
    l = []
    for st, (col0, va) in enumerate(sets):
        for q in range(4):
            l += [f's_mov_b32 s1, {MODP + q*12288 + col0*4}',
                  f'buffer_load_dwordx4 {v(G+16*st+4*q, 4)}, {v(va)}, {srd(rWS)}, s1 offen sc1']
    return l


def gather_check(sets, G, tok, T):
    chk, again, ok = A.new('gchk'), A.new('gagain'), A.new('gok')
    for e in range(4):
        A(f's_bfe_u32 {s(4+e)}, {s(sN)}, {hex(0x80000 | (8*e))}')
    A('s_mov_b32 s8, 0')
    A.wait(vm=tok)
    A.label(chk)
    nset = len(sets)
    n = 16 * nset
    for i in range(n):
        A(f'v_xor_b32 {v(G+i)}, {s(4+i%4)}, {v(G+i)}')
    A(f'v_or3_b32 {v(T)}, {v(G)}, {v(G+1)}, {v(G+2)}')
    for i in range(3, n - 1, 2):
        A(f'v_or3_b32 {v(T)}, {v(T)}, {v(G+i)}, {v(G+i+1)}')
    A(f'v_or_b32 {v(T)}, {v(T)}, {v(G+n-1)}')
    A(f'v_lshlrev_b32 {v(T)}, 24, {v(T)}')
    A(f'v_cmp_ne_u32 vcc, 0, {v(T)}')
    A(f's_cbranch_vccnz {again}')
    A.label(ok)
    WARM.label(again)
    WARM('s_add_u32 s8, s8, 1')
    WARM(f's_cmp_ge_u32 s8, {LIMIT}')
    WARM(f's_cbranch_scc1 {ok}')
    for f in gather_loads(sets, G):
        WARM(f)
    WARM('s_waitcnt vmcnt(0)')
    WARM(f's_branch {chk}')
    for st in range(nset):
        g = G + 16 * st
        for e in range(2):
            A(f'v_pk_add_f32 {v(g+2*e, 2)}, {v(g+2*e, 2)}, {v(g+4+2*e, 2)}')
            A(f'v_pk_add_f32 {v(g+8+2*e, 2)}, {v(g+8+2*e, 2)}, {v(g+12+2*e, 2)}')
        for e in range(2):
            A(f'v_pk_add_f32 {v(g+2*e, 2)}, {v(g+2*e, 2)}, {v(g+8+2*e, 2)}')
        A(f'v_cvt_pk_bf16_f32 {v(g)}, {v(g)}, {v(g+1)}')
        A(f'v_cvt_pk_bf16_f32 {v(g+1)}, {v(g+2)}, {v(g+3)}')


def add_const_round(g, sadd):
    emit(unpack2(g + 4, g) + unpack2(g + 6, g + 1))
    for e in range(4):
        A(f'v_add_f32 {v(g+4+e)}, {s(sadd)}, {v(g+4+e)}')
    A(f'v_cvt_pk_bf16_f32 {v(g)}, {v(g+4)}, {v(g+5)}')
    A(f'v_cvt_pk_bf16_f32 {v(g+1)}, {v(g+6)}, {v(g+7)}')


def cond_wave(w, fn):
    sk = A.new('cw')
    A(f's_cmp_lg_u32 {s(sW)}, {w}')
    A(f's_cbranch_scc1 {sk}')
    st = A.cond_begin()
    fn()
    A.cond_end(st)
    A.label(sk)


A('s_cmp_ge_u32 s2, 256')
A('s_cbranch_scc1 L_end')
stamp('rt')
stamp('start')
if OPT['pad']:
    A('s_memrealtime s[100:101]')
    A('s_memtime s[96:97]')
A('s_load_dwordx16 s[4:19], s[0:1], 0')
A('s_load_dwordx2 s[20:21], s[0:1], 64')
A('s_load_dwordx2 s[24:25], s[0:1], 80')
A(f'v_and_b32 {v(vL)}, 63, v0')
A(f'v_lshrrev_b32 v3, 6, v0')
A(f'v_lshlrev_b32 {v(vL16)}, 4, {v(vL)}')
A(f'v_readfirstlane_b32 {s(sW)}, v3')
A(f's_and_b32 s26, s2, 7')
A(f's_lshr_b32 s27, s2, 3')
A(f's_and_b32 {s(sHQ)}, s27, 7')
A(f's_and_b32 {s(sJ)}, s27, 15')
A(f's_lshr_b32 s27, s27, 3')
A(f's_lshl_b32 s26, s26, 2')
A(f's_add_u32 {s(sRB)}, s26, s27')
A(f's_lshr_b32 {s(sRB2)}, {s(sRB)}, 1')
A(f'v_lshlrev_b32 v253, 6, {v(vL)}')
sk = A.new('cpf')
A(f's_cmp_lg_u32 {s(sW)}, 3')
A(f's_cbranch_scc1 {sk}')
A(f's_cmp_ge_u32 s2, {OPT["chunks"]*8}')
A(f's_cbranch_scc1 {sk}')
A(f's_getpc_b64 s[70:71]')
A(f's_lshr_b32 s69, s2, 3')
A(f's_lshl_b32 s69, s69, 11')
A(f'v_add_u32 v3, s69, v253')
st = A.cond_begin()
A('s_mov_b32 exec_hi, 0')
A(f'global_load_dword v255, v3, s[70:71]')
A('s_mov_b32 exec_hi, -1')
A.cond_end(st)
A.label(sk)
A(f's_getreg_b32 {s(sXCC)}, hwreg(HW_REG_XCC_ID, 0, 4)')
A(f's_mov_b32 {s(sHI)}, 0xffff0000')
for r, n in ((rX, 2097152), (rWQ, 1572864), (rWO, 524288), (rW1, 1835008), (rW2, 1835008), (rWM, 3145728), (rWS, 0x1000000), (rOUT, 2097152)):
    A(f's_mov_b32 {s(r+2)}, {n}')
    A(f's_mov_b32 {s(r+3)}, 0x20000')
A(f'v_lshrrev_b32 v5, 4, {v(vL)}')
A(f'v_and_b32 v6, 15, {v(vL)}')
A(f's_lshl_b32 s26, {s(sRB)}, 6')
A(f's_lshl_b32 s27, {s(sW)}, 4')
A(f's_add_u32 s26, s26, s27')
A(f'v_add_u32 v3, s26, v5')
A(f'v_lshlrev_b32 v3, 10, v3')
A(f'v_lshl_add_u32 v254, v6, 4, v3')
A(f'v_min_u32 v5, {31*64}, v253')
A(f'v_min_u32 v6, {23*64}, v253')
A(f's_lshl3_add_u32 s26, {s(sRB)}, {s(sHQ)}')
A(f's_lshl2_add_u32 s26, s26, {s(sW)}')
A(f's_lshl_b32 s26, s26, 11')
A(f's_lshl2_add_u32 s27, s2, {s(sW)}')
A(f's_mul_i32 s27, s27, 1536')
XF, XP, MOD, GA, PW, PC, PACC = 16, 144, 144, 208, 224, 20, 236
emit(mod_addr(2, 3, 4, 69))
A('s_waitcnt lgkmcnt(0)')
stamp('karg')
if OPT.get('wsoff'):
    A(f's_add_u32 s24, s24, {OPT["wsoff"] << 20}')
    A('s_addc_u32 s25, s25, 0')
A(f's_mov_b64 {s(rWM, 2)}, s[18:19]')
A(f's_mov_b64 {s(rX, 2)}, s[4:5]')
A(f's_mov_b64 {s(rWQ, 2)}, s[6:7]')
tok_p1 = emit(mod_loads(2, 0, 3, 4, 69, PW, PC))
vHW, vWR = 248, 252


def xloads(aa):
    A(f's_movk_i32 s4, {aa << 12}')
    for c in range(4):
        t = A(f'buffer_load_dwordx4 {v(XP+(aa*4+c)*4, 4)}, v254, {srd(rX)}, s4 offen offset:{c*256} {NTX}')
    return t


A(f'buffer_load_dword v255, v5, {srd(rX)}, s26 offen {NTX}')
if OPT.get('tq', 1) == 0:
    A(f'buffer_load_dword v255, v6, {srd(rWQ)}, s27 offen')
tok_x = [xloads(0)]
if OPT.get('tq', 1) == 1:
    A(f'buffer_load_dword v255, v6, {srd(rWQ)}, s27 offen')
stamp('iss')
A(f's_load_dword {s(sN)}, {s(sWS, 2)}, {EPOCH}')
for r, p in ((rWO, 8), (rW1, 12), (rW2, 14), (rWS, 24), (rOUT, 20)):
    A(f's_mov_b64 {s(r, 2)}, {s(p, 2)}')
A(f's_lshl2_add_u32 s3, {s(sHQ)}, {s(sW)}')
A(f's_lshl_b32 s4, s3, 17')
A(f's_lshl_b32 s5, {s(sRB)}, 12')
A(f's_add_u32 s4, s4, s5')
A(f's_add_u32 {s(sKV)}, s4, {KVB}')
A(f's_lshl_b32 s4, s3, 7')
A(f's_add_u32 s4, s4, s5')
A(f's_add_u32 {s(sFKV)}, s4, {FKV}')
A(f's_lshl_b32 s8, {s(sRB)}, 16')
A(f's_lshl_b32 s5, s3, 9')
A(f's_add_u32 s4, s8, s5')
A(f's_add_u32 {s(sO)}, s4, {OBUF}')
A(f's_lshl_b32 s4, {s(sW)}, 14')
A(f's_add_u32 s4, s4, s8')
A(f's_add_u32 {s(sOL)}, s4, {OBUF}')
A(f's_lshl_b32 s6, {s(sRB)}, 9')
A(f's_add_u32 {s(sPO)}, s6, {FL}')
A(f's_lshl2_add_u32 {s(sFO)}, s3, {s(sPO)}')
A(f's_lshr_b32 s11, {s(sW)}, 1')
A(f's_lshl1_add_u32 s7, {s(sRB)}, s11')
A(f's_lshl_b32 s8, s7, 15')
A(f's_and_b32 s10, {s(sW)}, 1')
A(f's_lshl1_add_u32 s9, {s(sHQ)}, s10')
A(f's_lshl_b32 s4, {s(sHQ)}, 7')
A(f's_add_u32 s4, s4, {s(sOL)}')
A(f's_sub_u32 {s(sTILE)}, s4, {OBUF}')
A(f's_lshl4_add_u32 s4, {s(sHQ)}, s10')
A(f's_lshl_b32 s4, s4, 8')
A(f's_add_u32 s4, s4, s8')
A(f's_add_u32 {s(sY)}, s4, {YBUF}')
A(f's_lshl4_add_u32 s4, s7, s9')
A(f's_lshl_b32 s4, s4, 7')
A(f's_add_u32 {s(sST)}, s4, {STATS}')
A(f's_lshl4_add_u32 s4, s11, s9')
A(f's_lshl2_add_u32 s4, s4, {s(sPO)}')
A(f's_add_u32 {s(sFY)}, s4, 128')
A(f's_mul_i32 s4, s11, {56*512}')
A(f's_mul_i32 s5, s10, {26*512}')
A(f's_add_u32 s4, s4, s5')
A(f's_lshl_b32 {s(sFL1)}, s4, 5')
A(f's_mul_i32 s5, {s(sRB)}, {4*57344}')
A(f's_add_u32 s4, s4, s5')
A(f's_add_u32 {s(sFL0)}, s4, {FBUF}')
A(f's_lshl_b32 s4, s10, 12')
A(f's_add_u32 {s(sDL)}, s4, 2048')
A(f's_lshl2_add_u32 s7, {s(sRB2)}, {s(sW)}')
A(f's_lshr_b32 s6, s7, 1')
A(f's_lshl_b32 s6, s6, 9')
A(f's_lshl_b32 s4, s10, 6')
A(f's_add_u32 s4, s4, s6')
A(f's_add_u32 {s(sPY)}, s4, {FL+128}')
A(f's_lshl_b32 s4, s7, 11')
A(f's_add_u32 {s(sSTL)}, s4, {STATS}')
A(f's_lshl_b32 s4, s7, 15')
A(f's_add_u32 {s(sYL)}, s4, {YBUF}')
A(f's_mul_i32 s4, s7, {112*1024}')
A(f's_lshl_b32 s5, {s(sJ)}, 12')
A(f's_add_u32 s4, s4, s5')
A(f's_add_u32 {s(sF)}, s4, {FBUF}')
A(f's_lshl1_add_u32 s5, {s(sJ)}, s10')
A(f's_lshl2_add_u32 s4, s5, s6')
A(f's_add_u32 {s(sFF)}, s4, {FL+256}')
A(f's_mul_i32 s4, {s(sW)}, {RING}')
A(f's_add_u32 {s(sRING)}, s4, {SCR}')
A(f's_lshr_b32 s4, s2, 3')
A(f's_lshl2_add_u32 {s(sIW)}, s4, {s(sW)}')
vQ4 = 244
A(f'v_bfe_u32 v16, {v(vL)}, 2, 3')
A(f'v_mul_u32_u24 v4, 3072, v16')
A(f'v_lshrrev_b32 v17, 5, {v(vL)}')
A(f'v_lshl_add_u32 v4, v17, 6, v4')
A(f'v_and_b32 v3, 3, {v(vL)}')
A(f'v_lshl_add_u32 v4, v3, 4, v4')
A(f's_lshl_b32 s4, {s(sHQ)}, 7')
A(f'v_add_u32 {v(vQ4)}, s4, v4')
A(f'v_xor_b32 v4, 32, {v(vQ4)}')
A(f'v_add_u32 {v(vQ4+1)}, {24576-1024}, v4')
A(f'v_add_u32 {v(vQ4+2)}, {2*(24576-1024)}, {v(vQ4)}')
A(f'v_add_u32 {v(vQ4+3)}, {3*(24576-1024)}, v4')
A(f'v_lshlrev_b32 v4, 10, v16')
A(f'v_lshl_add_u32 v4, v17, 6, v4')
A(f'v_lshl_add_u32 v4, v3, 4, v4')
A(f'v_add_u32 {v(vWD)}, s4, v4')
A(f'v_bfe_u32 v4, {v(vL)}, 4, 1')
A(f'v_lshlrev_b32 v4, 5, v4')
A(f'v_xor_b32 {v(WOA)}, v4, {v(vWD)}')
A(f'v_add_u32 {v(WOA+1)}, 7168, {v(WOA)}')
A(f'v_add_u32 {v(vWD)}, 15360, {v(WOA)}')
A(f'v_mul_u32_u24 v4, 3584, v16')
A(f'v_lshl_add_u32 v4, v17, 6, v4')
A(f'v_lshl_add_u32 v4, v3, 4, v4')
A(f's_lshl_b32 s4, {s(sJ)}, 8')
A(f'v_add_u32 {v(W1A)}, s4, v4')
for i in range(1, 4):
    A(f'v_add_u32 {v(W1A+i)}, {i*(28672-1024)}, {v(W1A)}')
A(f'v_lshrrev_b32 v4, 4, {v(vL)}')
A(f'v_lshlrev_b32 v3, 10, v4')
A(f'v_xor_b32 v4, {s(sW)}, v4')
A(f'v_and_b32 v4, 1, v4')
A(f'v_lshl_add_u32 v3, v4, 5, v3')
A(f'v_bfe_u32 v4, {v(vL)}, 2, 2')
A(f'v_lshl_add_u32 v3, v4, 6, v3')
A(f'v_and_b32 v4, 3, {v(vL)}')
A(f'v_lshl_add_u32 v3, v4, 3, v3')
A(f's_lshr_b32 s3, {s(sW)}, 1')
A(f's_lshl_b32 s3, s3, 9')
A(f'v_add_u32 {v(vWR)}, s3, v3')
A(f'v_bfe_u32 v4, {v(vL)}, 2, 2')
A(f'v_lshlrev_b32 v3, 6, v4')
A(f'v_bfe_u32 v4, {v(vL)}, 4, 1')
A(f'v_lshl_add_u32 v3, v4, 5, v3')
A(f'v_and_b32 v4, 3, {v(vL)}')
A(f'v_lshl_add_u32 v3, v4, 3, v3')
A(f'v_lshrrev_b32 v4, 5, {v(vL)}')
A(f'v_lshl_add_u32 {v(vRB)}, v4, 8, v3')
A(f'v_and_b32 v16, 0xe0, v0')
A(f'v_and_b32 v17, 1, v0')
A(f'v_lshl_add_u32 v16, v17, 4, v16')
A(f'v_bfe_u32 v17, v0, 1, 4')
A(f'v_add_u32 v16, v16, v17')
A(f'v_lshlrev_b32 v16, 4, v16')
A(f'v_add_u32 v232, {MODT}, v16')
A(f'v_and_b32 v16, 15, {v(vL)}')
A(f'v_lshlrev_b32 v16, 4, v16')
A(f'v_add_u32 v233, {MODT}, v16')
A(f'v_and_b32 v3, 15, {v(vL)}')
A(f'v_lshl_add_u32 v3, v4, 4, v3')
A(f'v_lshlrev_b32 {v(vVS)}, 4, v3')
A(f'v_bfe_u32 v16, {v(vL)}, 4, 1')
A(f'v_lshl_add_u32 {v(vOS)}, v16, 14, {v(vVS)}')
A(f'v_mul_u32_u24 v16, 6144, v16')
A(f'v_and_b32 v17, 15, {v(vL)}')
A(f'v_lshl_add_u32 v16, v17, 4, v16')
A(f's_lshl_b32 s4, {s(sHQ)}, 8')
A(f'v_add_u32 {v(vG2)}, s4, v16')
A(f'v_lshrrev_b32 v16, 4, {v(vL)}')
A(f'v_and_b32 v4, 15, {v(vL)}')
A(f's_lshl_b32 s5, {s(sW)}, 14')
A(f'v_lshl_add_u32 v3, v4, 8, s5')
A(f'v_and_b32 v4, 7, v4')
A(f'v_xor_b32 v4, v4, v16')
for aa in range(4):
    A(f'v_xor_b32 v16, {4*aa}, v4')
    A(f'v_lshl_add_u32 {v(vHW+aa)}, v16, 4, v3')
emit(mod_addr(4, 234, 235, 1))
A(f'v_add_u32 v234, s1, v234')


def mark(l, key):
    l[-1] = (l[-1], key)
    return l


def touch(rs, chunk, va, vt=255):
    return [f's_lshl2_add_u32 s1, s2, {s(sW)}', f's_mul_i32 s1, s1, {chunk}', f'buffer_load_dword {v(vt)}, {v(va)}, {srd(rs)}, s1 offen']


def touch3(rs, n, va, vt=255):
    if not OPT.get('t3', 13) & {rWQ: 1, rW1: 2, rWO: 4, rW2: 8}[rs]:
        return []
    return [f'v_min_u32 {v(va)}, {2*n-1}, {v(vL)}', f'v_lshlrev_b32 {v(vt)}, 9, {v(va)}', f'v_and_b32 {v(va)}, 1, {v(va)}',
            f'v_mul_u32_u24 {v(va)}, 448, {v(va)}', f'v_sub_u32 {v(va)}, {v(vt)}, {v(va)}', f's_mul_i32 s1, {s(sIW)}, {n*1024}',
            f'buffer_load_dword {v(vt)}, {v(va)}, {srd(rs)}, s1 offen offset:384']


def hello():
    A(f's_andn2_b32 s3, {s(sN)}, 15')
    A(f's_or_b32 s3, s3, {s(sXCC)}')
    A(f'v_mov_b32 v16, s3')
    A(f's_lshl_b32 s3, {s(sRB2)}, 7')
    A(f's_lshl2_add_u32 s3, {s(sJ)}, s3')
    A(f's_add_u32 s3, s3, {HELLO}')
    A('s_mov_b64 exec, 1')
    A(f'buffer_store_dword v16, off, {srd(rWS)}, s3 sc1')
    A('s_mov_b64 exec, -1')


def wq_items(colbyte, region, ks0, nks):
    l = []
    for g in range(nks // 4):
        l += [f's_add_u32 m0, {s(sX)}, {region + g*16384}', f's_add_u32 {s(sBO)}, s11, {colbyte + (ks0 + 4*g)*98304}']
        l += [f'buffer_load_dwordx4 {v(vQ4+n)}, {srd(rWQ)}, {s(sBO)} offen offset:{1024*n} {NTQ} lds' for n in range(4)]
    return l


A(f's_lshl_b32 {s(sX)}, {s(sW)}, 12')
A(f's_mul_i32 s11, {s(sW)}, 98304')
emit([f'v_lshrrev_b32 v16, 3, {v(vL)}', f'v_and_b32 v17, 0x70, {v(vL16)}', 'v_lshl_add_u32 v231, v16, 10, v17'])
t3 = touch3(rWQ, 12, 229, 19)
emit(t3[:-2])
stamp('setup0')
if OPT.get('x1e', 1):
    tok_x.append(xloads(1))
A('s_waitcnt lgkmcnt(0)')
stamp('nonce')
A(f's_add_u32 {s(sN)}, {s(sN)}, 0x9e3779b1')
A.wait(vm=tok_p1)
stamp('pland')


D = Q()
for aa in (2, 3):
    D.add([f's_movk_i32 {s(sBO)}, {aa << 12}'] +
          mark([f'buffer_load_dwordx4 {v(XP+(aa*4+c)*4, 4)}, v254, {srd(rX)}, {s(sBO)} offen offset:{c*256} {NTX}' for c in range(4)], aa))


def x1():
    if OPT.get('x1e', 1):
        D.grp(OPT.get('x2n', 4))
    else:
        tok_x.append(xloads(1))


mod_finish(2, 0, PW, PC, PACC, GA, PRED1, bg=x1)
stamp('setup')
D.add([f'buffer_load_dwordx4 v[208:211], v231, {srd(rX)}, {s(sTILE)} offen {NTX}', f's_add_u32 s1, {s(sTILE)}, 8192',
       f'buffer_load_dwordx4 v[212:215], v231, {srd(rX)}, s1 offen {NTX}'])
D.add([x.replace('v19', 'v255') for x in t3[-2:]])
M2 = mark(['s_mov_b32 s1, 0'] + mod_loads(4, 2048, 234, 235, 1, 236, 230), 'p2')
if OPT.get('m2', 1) == 0:
    D.add(M2)
D.add(mark(wq_items(1024, LH, 0, 16), 'wk'))
D.grp(OPT.get('x0', 4))

ST, MN, G1 = 216, 224, 144
LNP = OPT.get('lnpace', 44)


def V(t):
    A(t)
    D.grp(1, LNP)


def row_allreduce(grp):
    for sh in (8, 4, 2, 1):
        for aa in grp:
            t0 = ST + 4 * (aa % 2)
            V(f'v_add_f32_dpp {v(t0)}, {v(t0)}, {v(t0)} row_ror:{sh} row_mask:0xf bank_mask:0xf')


A('s_mov_b32 s9, 0x3b000000')
A('s_mov_b32 s10, 0x3f803f80')
A('s_mov_b32 s7, 0x3f80')
A('s_mov_b32 s6, 0x3f800000')
A('v_mov_b32 v228, 0x3727c5ac')
for grp in ((0, 1), (2, 3)):
    for aa in grp:
        A.wait(vm=tok_x[aa] if aa < 2 else D.k[aa])
        stamp(f'x{aa}')
        t0 = ST + 4 * (aa % 2)
        for i in range(16):
            V(f'v_dot2_f32_bf16 {v(t0)}, {v(XP+aa*16+i)}, s10, {v(t0) if i else 0}')
    row_allreduce(grp)
    for aa in grp:
        V(f'v_mul_f32 {v(MN+aa)}, 0xbb000000, {v(ST+4*(aa%2))}')
    for aa in grp:
        b = XF + aa * 32
        t0, t1 = ST + 4 * (aa % 2), ST + 4 * (aa % 2) + 2
        for i in range(16):
            V(f'v_dot2_f32_bf16 {v(b+2*i)}, {v(XP+aa*16+i)}, s7, {v(MN+aa)}')
            V(f'v_dot2_f32_bf16 {v(b+2*i+1)}, {v(XP+aa*16+i)}, s6, {v(MN+aa)}')
        for i in range(16):
            t = t0 if i % 2 == 0 else t1
            if i < 2:
                V(f'v_pk_mul_f32 {v(t, 2)}, {v(b+2*i, 2)}, {v(b+2*i, 2)}')
            else:
                V(f'v_pk_fma_f32 {v(t, 2)}, {v(b+2*i, 2)}, {v(b+2*i, 2)}, {v(t, 2)}')
        V(f'v_pk_add_f32 {v(t0, 2)}, {v(t0, 2)}, {v(t1, 2)}')
        V(f'v_add_f32 {v(t0)}, {v(t0)}, {v(t0+1)}')
    if grp == (2, 3):
        D.flush()
        A(f'v_lshlrev_b32 v4, 4, v0')
        tok_g1 = emit(gather_loads([(0, 4)], G1))
        D.add(mark(wq_items(2048, WVL, 0, 8), 'wvl') + mark(wq_items(2048, WVH, 8, 8), 'wvh'))
    row_allreduce(grp)
    for aa in grp:
        V(f'v_fma_f32 {v(MN+aa)}, {v(ST+4*(aa%2))}, s9, v228')
    for aa in grp:
        V(f'v_rsq_f32 {v(MN+aa)}, {v(MN+aa)}')
    for aa in grp:
        b = XF + aa * 32
        for i in range(16):
            V(f'v_pk_mul_f32 {v(b+2*i, 2)}, {v(b+2*i, 2)}, {v(MN+(aa//2)*2, 2)} op_sel:[0,{aa%2}] op_sel_hi:[1,{aa%2}]')
D.grp(OPT.get('v0', 2))
stamp('ln_pre')
A.wait(vm=D.k['wk'])
barrier()
stamp('wkl')
for ks in range(16):
    for rd in range(2):
        A(f'ds_read_b64_tr_b16 {a(4*ks+2*rd, 2)}, {v(vWR)} offset:{ks*4096+rd*256}')
D.grp(2)
stamp('wk')
gather_check([(0, 4)], G1, tok_g1, 3)
stamp('gchk')
A(f's_cmp_ge_u32 {s(sW)}, 2')
A(f's_cselect_b32 s3, 1.0, 0')
add_const_round(G1, 3)
emit(unpack2(G1 + 4, G1) + unpack2(G1 + 6, G1 + 1))
A(f'ds_write_b128 v232, {v(G1+4, 4)}')
D.grp(2)
A.wait_all(ds=True)
barrier()
stamp('mod')
tm = []


def mod_reads(c):
    for arr in range(2):
        for hlf in range(2):
            t = A(f'ds_read_b128 {v(MOD+arr*32+c*8+hlf*4, 4)}, v233 offset:{arr*2048+c*512+hlf*256}')
    tm.append(t)


mod_reads(0)
mod_reads(1)
vH0, vH1, vB1, vB2 = 224, 225, 226, 227
A(f'v_lshrrev_b32 v254, 4, {v(vL)}')
A(f'v_and_b32 v3, 15, {v(vL)}')
A(f'v_xor_b32 v3, v3, v254')
A(f'v_lshlrev_b32 v3, 4, v3')
A(f'v_lshl_add_u32 {v(vH0)}, v254, 8, v3')
A(f'v_xor_b32 {v(vH1)}, 64, {v(vH0)}')
A(f'v_add_u32 {v(vB1)}, {WVH}, {v(vWR)}')
A(f'v_add_u32 {v(vB2)}, {WQL}, {v(vWR)}')
A(f'v_min_u32 v228, {27*64}, v253')
A(f'v_min_u32 v229, {7*64}, v253')
D.add(touch(rWO, 512, 229) + (touch(rW1, 1792, 228) if OPT.get('tw1', 0) == 0 else []) + [f'buffer_load_dword v255, v229, {srd(rWS)}, {s(sPO)} offen sc1'])
if OPT.get('m2', 1) == 1:
    D.add(M2)
if OPT.get('tw2', 0) == 0:
    D.add(touch(rW2, 1792, 228))
for c in range(4):
    A.wait(ds=tm[c])
    stamp(f'h{c}')
    for aa in range(4):
        b = XF + aa * 32 + c * 8
        for i in range(4):
            A(f'v_pk_fma_f32 {v(b+2*i, 2)}, {v(b+2*i, 2)}, {v(MOD+32+c*8+2*i, 2)}, {v(MOD+c*8+2*i, 2)}')
        for i in range(4):
            A(f'v_cvt_pk_bf16_f32 {v(b+i)}, {v(b+2*i)}, {v(b+2*i+1)}')
        if aa == 0 and c < 2:
            mod_reads(c + 2)
        A(f'ds_write_b128 {v(vHW+aa)}, {v(b, 4)} offset:{c*4096}')
        D.grp(1, OPT.get('hp', 50))
D.flush()
stamp('hw')
A.wait(vm=D.k['wvl'], ds=A.ds)
barrier()
stamp('h')

AK, AV, AQ, WB = 144, 160, 176, 64
QF, KO, VO, KH, VH, SB, PB, MD, MO, OA = 16, 24, 32, 48, 80, 144, 176, 192, 208, 224
PW2, PC2 = 48, 56


def hreg(u, ks):
    return v(80 + ks * 16 + u * 4, 4) if ks < 4 else a(ks * 16 + u * 4, 4)


def mm16(d, x, y, first):
    A(f'v_mfma_f32_16x16x32_bf16 {v(d, 4)}, {x}, {y}, {"0" if first else v(d, 4)}')


def kv_reads(ks):
    l = [f'ds_read_b128 {hreg(u, ks)}, {v(vH0 + ks % 2)} offset:{u*16384+ks*1024}' for u in range(4)]
    wb = WB + 4 * (ks % 4)
    off = WVL - WVH + ks * 4096 if ks < 8 else (ks - 8) * 4096
    w = [f'ds_read_b64_tr_b16 {v(wb+2*rd, 2)}, {v(vB1)} offset:{off+rd*256}' for rd in range(2)]
    return [l[0], w[0], w[1], l[1], l[2], l[3]]


fl = Q([f'v_mov_b64 {v(52+2*i, 2)}, {v(208+2*i, 2)}' for i in range(4)] + [f'v_add_u32 v51, {s(sRING)}, {v(vL16)}', f'v_and_b32 v60, 31, {v(vL)}', f'v_lshrrev_b32 v61, 5, {v(vL)}', 'v_lshlrev_b32 v61, 2, v61', 'v_sub_u32 v60, v60, v61',
        'v_mov_b32 v61, 0xf149f2ca', 'v_mov_b32 v62, 0'])
for i in range(16):
    fl.add([f'v_cmp_le_i32 vcc, {8*(i//4) + i % 4}, v60'] + ([f'v_mov_b32 {v(VO+8*(i//4)+4+i%4)}, s10'] if i < 8 else []) +
           [f'v_cndmask_b32 {v(MD+i)}, v61, v62, vcc', f'v_cndmask_b32 {v(MO+i)}, v62, v61, vcc'])
QL0, QH0 = OPT.get('ql0', 6), OPT.get('qh0', 12)
fl.q.insert(0, lambda: cond_wave(3, hello))
fl.add([f'v_bfe_u32 v48, {v(vL)}, 4, 1', f'v_lshl_add_u32 v48, v48, 9, {v(vVS)}',
        f'v_and_b32 v50, 15, {v(vL)}', f'v_lshlrev_b32 v50, 2, v50'])
LOOK = 2
tk = {}
for ks in range(LOOK):
    for t in kv_reads(ks):
        tk[ks] = A(t)
for ks in range(16):
    nxt = kv_reads(ks + LOOK) if ks + LOOK < 16 else []
    A.wait(ds=tk[ks], vm=D.k['wvh'] if ks == 5 else None)
    if ks == 5:
        barrier()
    if ks == 8:
        barrier()
    if ks == QL0:
        D.add(mark(wq_items(0, WQL, 0, 8), 'wql'))
    if ks == QH0:
        D.add(touch3(rWO, 4, 17, 18) + mark(wq_items(0, WVL, 8, 8), 'wqh'))
    wb = v(WB + 4 * (ks % 4), 4)
    n = 0
    for u in range(4):
        for which in range(2):
            if which == 0:
                mm16(AK + 4 * u, a(4 * ks, 4), hreg(u, ks), ks == 0)
            else:
                mm16(AV + 4 * u, hreg(u, ks), wb, ks == 0)
            if n < len(nxt):
                tk[ks + LOOK] = A(nxt[n])
            n += 1
            res = 4 if n == 8 else 0
            if n == 8 and D.q and D.kind() == 'vmem' and len(D.q) > 1.5 * (15 - ks):
                D.pop()
            D.fill(res, 60)
            fl.fill(res)
D.flush()
assert not fl.q
stamp('kv')


def pack2(dst, acc):
    return [f'v_cvt_pk_bf16_f32 {v(dst+2*u+r)}, {v(acc+4*u+2*r)}, {v(acc+4*u+2*r+1)}' for u in range(2) for r in range(2)]


def q_reads(ks):
    wb = WB + 4 * (ks % 4)
    base, off = (vB2, ks * 4096) if ks < 8 else (vB1, WVL - WVH + (ks - 8) * 4096)
    return [f'ds_read_b64_tr_b16 {v(wb+2*rd, 2)}, {v(base)} offset:{off+rd*256}' for rd in range(2)]


def q_start():
    A.wait(vm=D.k['wql'])
    barrier()
    for ks in range(LOOK):
        for t in q_reads(ks):
            tk[ks] = A(t)


LOOK = 3
tk = {}
def kv_store(r, T, off, va):
    return A(f'buffer_store_dwordx4 {v(r, 4)}, {v(va)}, {srd(rWS)}, {s(sKV)} offen offset:{T*2048+off} sc1')


def swaps(kind, r):
    return [f'v_permlane{kind}_swap_b32 {v(r+i)}, {v(r+2+i)}' for i in range(2)]


emit(pack2(KO, AK) + pack2(KO + 4, AK + 8) + swaps(16, KO))
kv_store(KO, 0, 0, vL16)
emit(swaps(16, KO + 4) + pack2(VO, AV) + pack2(VO + 8, AV + 8))
kv_store(KO + 4, 1, 0, vL16)
emit(swaps(16, VO) + swaps(16, VO + 8) + swaps(32, VO))
kv_store(VO, 0, 1024, 48)
emit(swaps(32, VO + 8))
q_start()
tok_kv = kv_store(VO + 8, 1, 1024, 48)
stamp('kvst')


def w1_items(img, gs=range(4)):
    l = []
    for g in gs:
        l += [f's_add_u32 m0, {s(sX)}, {img*65536 + g*16384}', f's_mul_i32 {s(sBO)}, {s(sX)}, 28', f's_add_u32 {s(sBO)}, {s(sBO)}, {g*458752 + img*128}']
        l += [f'buffer_load_dwordx4 {v(W1A+i)}, {srd(rW1)}, {s(sBO)} offen offset:{1024*i} {NTW} lds' for i in range(4)]
    return l


def wo_items(gs):
    l = []
    for g in gs:
        l += [f's_add_u32 m0, {s(sX)}, {WOS + g*16384}', f's_lshl3_add_u32 {s(sBO)}, {s(sX)}, {g*131072}']
        for i in range(4):
            if i == 2:
                l.append(f's_add_u32 {s(sBO)}, {s(sBO)}, 14336')
            l.append(f'buffer_load_dwordx4 {v(WOA+i%2)}, {srd(rWO)}, {s(sBO)} offen offset:{1024*i} {NTW} lds')
    return l


def ones(d):
    def f():
        A(f's_cmp_ge_u32 {s(sRB)}, {d}')
        A(f's_cselect_b32 s6, s10, 0')
    return [f, 's_mov_b32 s7, s6'] + [f'v_mov_b64 {v(VH+16*(4-d)+2*i, 2)}, s[6:7]' for i in range(8)]


fl.add([f'v_permlane16_swap_b32 {v(VO+8*T+i)}, {v(VO+8*T+4+i)}' for T in range(2) for i in range(4)])
fl.add([f'v_bfe_u32 v16, {v(vL)}, 4, 1', f'v_lshrrev_b32 v19, 5, {v(vL)}', f'v_lshl_add_u32 v48, v16, 8, {v(vRB)}', 'v_mul_u32_u24 v19, 0x700, v19',
        'v_add_u32 v48, v19, v48', 'v_xor_b32 v49, 32, v48'])
fl2 = Q(ones(4) + ones(3) + ones(2) + ones(1))
W1P = OPT.get('w1pace', 60)
D.add(mark([f's_lshl_b32 s1, {s(sRB2)}, 7', f's_add_u32 s1, s1, {HELLO}', f'buffer_load_dword v63, v50, {srd(rWS)}, s1 offen sc1'], 'hello'))
D.add(mark(wo_items((0, 1)), 'woa') + mark(wo_items((2, 3)), 'wo') + touch3(rW1, 14, 60, 61))


def idle_w1():
    A(f's_cmp_lt_u32 {s(sJ)}, 14')
    A(f's_cselect_b32 {s(rW1+2)}, 1835008, 0')


if OPT.get('tw1', 0) == 1:
    D.add(touch(rW1, 1792, 228, 61))
if OPT.get('tw2', 0) == 1:
    D.add(touch(rW2, 1792, 228, 61))
D2 = Q()
NI = OPT.get('ni', 4)
D.add(([idle_w1] if NI else []) + w1_items(1, range(min(NI, 2))))
D.last = A.t + OPT.get('w10', 100)
for ks in range(16):
    nxt = q_reads(ks + LOOK) if ks + LOOK < 16 else []
    A.wait(ds=tk[ks], vm=D.k['wqh'] if ks == 5 else None)
    if ks == 5:
        barrier()
    for u in range(4):
        mm16(AQ + 4 * u, v(WB + 4 * (ks % 4), 4), hreg(u, ks), ks == 0)
        if u >= 2 and nxt:
            tk[ks + LOOK] = A(nxt[u - 2])
        res = 4 if u == 3 else 0
        if u == 0 and ks >= OPT.get('q0', 3) and D.q and D.kind() == 'vmem':
            D.pop()
        D.fill(res, 10**6)
        fl.fill(res)
        if ks >= 4:
            fl2.fill(res)
    if ks == OPT.get('kvf', 12):
        A(f'v_mov_b32 v3, {s(sN)}')
        A.wait(vm=tok_kv)
        A('s_mov_b64 exec, 0xffff')
        A(f'buffer_store_dword v3, v50, {srd(rWS)}, {s(sFKV)} offen sc1')
        A('s_mov_b64 exec, -1')
fl.flush()
fl2.flush()
stamp('q')
D.grp(OPT.get('w1a', 2))
for i in range(8):
    A(f'v_mul_f32 {v(AQ+i)}, 0x3eb8aa3b, {v(AQ+i)}')
emit(pack2(QF, AQ))
for i in range(8, 16):
    A(f'v_mul_f32 {v(AQ+i)}, 0x3eb8aa3b, {v(AQ+i)}')
for r in range(2):
    A(f'v_permlane16_swap_b32 {v(QF+r)}, {v(QF+2+r)}')
emit(pack2(QF + 4, AQ + 8))
D.grp()
for r in range(2):
    A(f'v_permlane16_swap_b32 {v(QF+4+r)}, {v(QF+6+r)}')
A(f's_mov_b64 {s(rH, 2)}, {s(sWS, 2)}')
A(f's_andn2_b32 s3, {s(sN)}, 15')
A(f's_or_b32 s3, s3, {s(sXCC)}')
A.wait(vm=D.k['hello'])
A(f'v_cmp_ne_u32 vcc, s3, v63')
A(f's_cmp_eq_u64 vcc, 0')
A(f's_cselect_b32 {s(sFAST)}, 1, 0')
D.grp()


def m2bg():
    D.grp(2)
    A.wait(vm=D.k['woa'])


mod_finish(4, 1024, 236, 230, PB, SB + 16, PRED2, bg=m2bg)
D.add(w1_items(1, range(2, max(NI, 2))))
for d in range(1, 5):
    A(f's_cmp_ge_u32 {s(sRB)}, {d}')
    A(f's_cselect_b32 s3, {d*4096}, 0')
    A(f's_sub_u32 {s(3+d)}, {s(sFKV)}, s3')
A('ds_write_b128 v51, v[52:55]')
A('ds_write_b128 v51, v[56:59] offset:1024')
stamp('m2')


def mm32(X, d, x, y, c):
    X(f'v_mfma_f32_32x32x16_bf16 {d}, {x}, {y}, {c}')


def units_of(blk):
    if blk == 0:
        return [(0, KO, VO, MD, 0), (1, KO, VO, None, 0), (1, KO + 4, VO + 8, MD, 0)]
    t0 = 8 - 2 * blk
    r = []
    for t in (t0 + 1, t0):
        for q in (0, 1):
            if t < q:
                continue
            r.append((q, KH + 4 * t, VH + 8 * t, MO if t == q else None, blk))
    return r


def s_mm(X, un, buf):
    q, k, _, m, _ = un
    mm32(X, v(SB + 16 * buf, 16), v(k, 4), v(QF + 4 * q, 4), v(m, 16) if m else '0')


def attn_units(X, uns, first, sub=None, bg=None, ready=None, head=None):
    if ready:
        ready(uns[0])
    s_mm(X, uns[0], 0)
    if head:
        head()
    pend = None
    for n, un in enumerate(uns):
        q, _, vr, _, _ = un
        if X is A:
            stamp(f'u{n}')
        sb = SB + 16 * (n % 2)
        pb = PB + 8 * (n % 2)
        o = v(OA + 16 * q, 16)
        for hf in range(2):
            b = sb + 8 * hf
            if sub:
                for i in range(8):
                    X(f'v_sub_f32 {v(b+i)}, {v(b+i)}, {v(sub+q)}')
            seq = [('e', 0), ('p', 0), ('e', 1), ('e', 2), ('m', 0), ('c', 0), ('e', 3), ('e', 4), ('c', 1), ('e', 5), ('s', 0), ('e', 6), ('c', 2), ('e', 7)]
            for kind, i in seq:
                if kind == 'e':
                    X(f'v_exp_f32 {v(b+i)}, {v(b+i)}')
                elif kind == 'c':
                    X(f'v_cvt_pk_bf16_f32 {v(pb+4*hf+i)}, {v(b+2*i)}, {v(b+2*i+1)}')
                elif kind == 'p' and pend:
                    X(pend[0])
                elif kind == 'm' and pend:
                    mm32(X, *pend[1])
                    pend = None
                    if bg:
                        bg(n)
                elif kind == 's' and hf == 0 and n + 1 < len(uns):
                    if ready:
                        ready(uns[n + 1])
                    s_mm(X, uns[n + 1], (n + 1) % 2)
                    if bg:
                        bg(n)
            pend = (f'v_cvt_pk_bf16_f32 {v(pb+4*hf+3)}, {v(b+6)}, {v(b+7)}',
                    (o, v(vr + 4 * hf, 4), v(pb + 4 * hf, 4), '0' if q in first else o))
            first.discard(q)
    X(pend[0])
    mm32(X, *pend[1])


def kv_poll(X):
    for d in range(4):
        X(f's_load_dword {s(8+d)}, {s(sWS, 2)}, {s(4+d)} glc')


ep, epb = A.new('ep'), A.new('epb')
A(f's_lshl2_add_u32 s3, s2, {s(sW)}')
A(f's_cmp_eq_u32 s3, 3')
A(f's_cbranch_scc1 {ep}')
A.label(epb)
lp, dn = A.new('epl'), A.new('epd')
WARM.label(ep)
WARM(f'v_lshrrev_b32 v3, 2, {v(vL)}')
WARM(f'v_lshlrev_b32 v3, 7, v3')
WARM(f'v_and_b32 v4, 3, {v(vL)}')
WARM(f'v_lshl_add_u32 v3, v4, 4, v3')
WARM(f's_mov_b32 s1, {HELLO}')
WARM('s_mov_b32 s3, 0')
WARM.label(lp)
WARM(f'buffer_load_dwordx4 v[72:75], v3, {srd(rWS)}, s1 offen sc1')
WARM('s_add_u32 s3, s3, 1')
WARM('s_waitcnt vmcnt(0)')
for i in range(4):
    WARM(f'v_xor_b32 {v(72+i)}, {s(sN)}, {v(72+i)}')
WARM('v_or_b32 v72, v72, v73')
WARM('v_or3_b32 v72, v72, v74, v75')
WARM('v_cmp_lt_u32 vcc, 15, v72')
WARM(f's_cmp_lt_u32 s3, {LIMIT}')
WARM(f's_cbranch_vccz {dn}')
WARM(f's_cbranch_scc1 {lp}')
WARM.label(dn)
WARM(f'v_mov_b32 v3, {s(sN)}')
WARM('s_mov_b64 exec, 1')
WARM(f'buffer_store_dword v3, off, {srd(rWS)}, 0 offset:{EPOCH} sc1')
WARM('s_mov_b64 exec, -1')
WARM(f's_branch {epb}')


def kv_wait():
    stamp('own')
    lp, again, dn = A.new('kvp'), A.new('kva'), A.new('kvd')
    A('s_mov_b32 s3, 0')
    A.label(lp)
    A('s_waitcnt lgkmcnt(0)')
    A(f's_xor_b32 s8, s8, {s(sN)}')
    for r in (9, 10, 11):
        A(f's_xor_b32 {s(r)}, {s(r)}, {s(sN)}')
        A(f's_or_b32 s8, s8, {s(r)}')
    A(f's_cbranch_scc1 {again}')
    A.label(dn)
    WARM.label(again)
    WARM('s_add_u32 s3, s3, 1')
    WARM(f's_cmp_ge_u32 s3, {LIMIT}')
    WARM(f's_cbranch_scc1 {dn}')
    kv_poll(WARM)
    WARM(f's_branch {lp}')
    stamp('kvflag')
    A('s_mov_b32 s8, 0xffff')
    A('s_mov_b32 s9, 0xffff')


def halo_loads(X, d):
    X(f's_cmp_ge_u32 {s(sRB)}, {d}')
    X(f's_cselect_b32 {s(rH+2)}, 0x1000000, 0')
    X(f's_sub_u32 s3, {s(sKV)}, {d*4096}')
    t0 = 8 - 2 * d
    for T in (1, 0):
        X(f'buffer_load_dwordx4 {v(KH+4*(t0+T), 4)}, {v(vL16)}, {srd(rH)}, s3 offen offset:{T*2048} sc1')
    X('s_mov_b64 exec, s[8:9]')
    for u in (2, 3, 0, 1):
        t = X(f'buffer_load_dwordx4 {v(VH+8*t0+4*u, 4)}, {v(vVS)}, {srd(rH)}, s3 offen offset:{(u//2)*2048+1024+(u%2)*512} sc1')
    X('s_mov_b64 exec, -1')
    return t


SETS2 = [(1536, vVS), (1024, vG2)]
G2 = VH + 32
qg2 = Q([f'v_lshlrev_b32 {v(vVS)}, 4, v0'] + [x.replace('s1', 's4') for x in gather_loads(SETS2, G2)])
wor = Q([f'ds_read_b64_tr_b16 {a(16*ks+4*tl+2*rd, 2)}, {v(48+tl%2)} offset:{WOS+ks*4096+rd*1024+(tl//2)*512}' for ks in range(16) for tl in range(4) for rd in range(2)])
sW2, sW2b = sFL1, 11
SLOT = {}


def kunit(u):
    return 8 * ((u % 7) // 2) + 4 * (u // 7), (u % 7) % 2


def w2_dma(m, q):
    SLOT[m] = q
    k, odd = kunit(m // 2)
    return [f's_add_u32 m0, {s(sRING)}, {2048*q}' if q < 3 else f's_add_u32 m0, {s(sFKV)}, {8192*(q-3)}',
            f's_add_u32 {s(sBO)}, {s(sW2b if odd else sW2)}, {16384*k + 8192*(m%2)}',
            f'buffer_load_dwordx4 {v(WOA)}, {srd(rW2)}, {s(sBO)} offen {NTW} lds',
            (f'buffer_load_dwordx4 {v(vWD)}, {srd(rW2)}, {s(sBO)} offen offset:1024 {NTW} lds', ('w2', m))]


def lds_sync():
    A.wait_all(ds=True)
    barrier()


bgc = [0]
tok_h = {0: 0}
HS = [-1, OPT.get('h3', 1), OPT.get('h4', 5)]


def att_bg(n):
    bgc[0] += 1
    c = bgc[0]
    if c in HS:
        d = HS.index(c) + 2
        assert d < 4 or not wor.q
        tok_h[d] = halo_loads(A, d)
    elif wor.q:
        wor.pop(8)
    elif c > HS[2]:
        if n >= 12 and qg2.q:
            qg2.grp(OPT.get('g2n', 2))
        else:
            D.grp(1, OPT.get('apace', 50))


WR = OPT.get('wr', 9)
for i in range(16):
    if i == OPT.get('kp', 0):
        kv_poll(A)
    if i == WR:
        kv_wait()
        tok_h[1] = halo_loads(A, 1)
    if i == WR + OPT.get('wr2', 2):
        tok_h[2] = halo_loads(A, 2)
    if i == 8:
        A.wait(vm=D.k['wo'])
        barrier()
    wor.pop(8)
    if i < WR:
        D.grp(1, OPT.get('wrp', 100))
assert not any('v228' in str(x) for x in D.q)
TW2 = [f'v_lshlrev_b32 v77, 6, {v(vL)}', f'v_min_u32 v77, {27*64}, v77'] + touch(rW2, 1792, 77, 76)
D.add([idle_w1] + w1_items(1, range(NI, 4)) + [lds_sync] + w1_items(0, (0, 1)) + (TW2 if OPT.get('tw2', 0) == 2 else []) + mark(w1_items(0, (2, 3)), 'w1') +
      (TW2 if OPT.get('tw2', 0) == 3 else []) + touch3(rW2, 14, 79, 78) +
      [f's_lshl4_add_u32 {s(sW2b)}, {s(sDL)}, {s(sW2)}', f's_lshl_b32 {s(sFKV)}, {s(sW)}, 11'])
attn_units(A, [u for d in range(5) for u in units_of(d)], {0, 1}, bg=att_bg, ready=lambda un: A.wait(vm=tok_h[un[4]]))
print('left after attention:', sum(1 for x in D.q if 'buffer' in str(x)))
D.flush()
assert not D.q and not qg2.q, (len(D.q), len(qg2.q))
stamp('uend')
redo, fin = A.new('redo'), A.new('attfin')
A(f's_mov_b32 s3, {"0" if OPT["forcemax"] else "0x67800000"}')
A(f's_mov_b32 s1, 0x17800000')
A(f's_add_u32 {s(sRB2)}, {s(sO)}, 32768')
A(f'v_max_f32 {v(SB)}, {v(OA+8)}, {v(OA+24)}')
A(f'v_min_f32 {v(SB+1)}, {v(OA+8)}, {v(OA+24)}')
A(f'v_cmp_u_f32 s[6:7], {v(OA+8)}, {v(OA+24)}')
A(f'v_cmp_nle_f32 s[4:5], s1, {v(SB+1)}')
A(f'v_cmp_nge_f32 vcc, s3, {v(SB)}')
A('s_or_b64 s[4:5], s[6:7], s[4:5]')
A('s_or_b64 vcc, vcc, s[4:5]')
A(f's_cbranch_vccnz {redo}')
A.label(fin)
C = COLD
C.label(redo)
C('s_waitcnt vmcnt(0)')
C(f'v_lshrrev_b32 v4, 5, {v(vL)}')
C(f'v_and_b32 v3, 15, {v(vL)}')
C(f'v_lshl_add_u32 v3, v4, 4, v3')
C(f'v_lshlrev_b32 {v(vVS)}, 4, v3')
for i in range(32):
    C(f'v_mov_b32 {v(G2+i)}, 0x3f803f80')
for d in (1, 2):
    halo_loads(C, d)
C('s_waitcnt vmcnt(0)')
C(f'v_mov_b32 v3, 0xff7fffff')
C(f'v_mov_b32 v4, 0xff7fffff')
mx_end, p2_end = C.new('mxend'), C.new('p2end')
for d in range(5):
    if d:
        C(f's_cmp_lt_u32 {s(sRB)}, {d}')
        C(f's_cbranch_scc1 {mx_end}')
    for un in units_of(d):
        s_mm(C, un, 0)
        for i in range(0, 16, 2):
            C(f'v_max3_f32 {v(3+un[0])}, {v(3+un[0])}, {v(SB+i)}, {v(SB+i+1)}')
C.label(mx_end)
for q in range(2):
    C(f'v_mov_b32 {v(SB)}, {v(3+q)}')
    C(f'v_permlane32_swap_b32 {v(SB)}, {v(3+q)}')
    C(f'v_max_f32 {v(3+q)}, {v(SB)}, {v(3+q)}')
fs = {0, 1}
for d in range(5):
    if d:
        C(f's_cmp_lt_u32 {s(sRB)}, {d}')
        C(f's_cbranch_scc1 {p2_end}')
    attn_units(C, units_of(d), fs, sub=3)
C('s_nop 7')
C.label(p2_end)
C('s_nop 7')
C(f'v_lshlrev_b32 {v(vVS)}, 4, v0')
for f in gather_loads(SETS2, G2):
    C(f)
C('s_waitcnt vmcnt(0)')
C(f's_branch {fin}')
for q in range(2):
    A(f'v_rcp_f32 {v(OA+16*q+8)}, {v(OA+16*q+8)}')
for q in range(2):
    for i in range(4):
        A(f'v_pk_mul_f32 {v(OA+16*q+2*i, 2)}, {v(OA+16*q+2*i, 2)}, {v(OA+16*q+8, 2)} op_sel_hi:[1,0]')
    for i in range(4):
        A(f'v_cvt_pk_bf16_f32 {v(OA+16*q+i)}, {v(OA+16*q+2*i)}, {v(OA+16*q+2*i+1)}')
    tok_o = A(f'buffer_store_dwordx4 {v(OA+16*q, 4)}, {v(vOS)}, {srd(rWS)}, {s((sO, sRB2)[q])} offen sc1')
stamp('attn')


CG, CS, GB, X1 = 208, 224, 240, 184
vP, vPF, vT32, vYS, vCB = 252, 251, 249, 253, 248
R = Q()
for m in range(2):
    D.add(w2_dma(m, m + 1))
D.flush()
gather_check(SETS2, G2, qg2.tok, 4)
A(f's_cmp_ge_u32 {s(sW)}, 2')
A(f's_cselect_b32 s3, 1.0, 0')
add_const_round(G2, 3)
emit(['v_and_b32 v16, 3, v0', 'v_bfe_u32 v17, v0, 2, 1', 'v_lshl_add_u32 v16, v16, 1, v17', 'v_and_or_b32 v4, v0, 24, v16',
      's_movk_i32 s4, 0x78', 'v_and_or_b32 v16, v0, s4, v16',
      f's_lshr_b32 s5, {s(sW)}, 1', f's_mul_i32 s3, s5, 1088', f's_add_u32 s3, s3, {T_MOD2}', 'v_lshl_add_u32 v16, v16, 3, s3',
      f's_mov_b32 s3, {T_MOD2+2176}', 'v_lshl_add_u32 v4, v4, 3, s3'])
A(f'ds_write_b64 v16, {v(G2, 2)}')
A(f'ds_write_b64 v4, {v(G2+16, 2)}')
emit([f's_and_b32 s7, {s(sW)}, 1', 's_lshl_b32 s7, s7, 9', 's_lshl_b32 s3, s5, 16', 's_add_u32 s3, s3, s7', f'v_add_u32 v201, s3, {v(vRB)}',
      f'v_lshrrev_b32 v203, 5, {v(vL)}', f'v_and_b32 v16, 1, {v(vL)}', 'v_mul_u32_u24 v16, 1088, v16', 'v_lshl_add_u32 v16, v203, 4, v16', f'v_add_u32 v200, {T_MOD2}, v16',
      f'v_and_b32 {v(vT32)}, 31, {v(vL)}', f'v_lshlrev_b32 {v(vP)}, 2, {v(vT32)}'])
stamp('pchk')
A.wait(vm=D.k['w1'], ds=A.ds)
barrier()
stamp('pbar')
tk = {}
CBB, CBA = 96, 144
OB, BA = 16, 80


def w1off(ks, rd):
    return (ks // 2) * 4096 + (ks % 2) * 1024 + rd * 2048


def cb_reads(ks):
    b = CBB + (ks % 6) * 8
    return [f'ds_read_b128 {v(b, 4)}, v200 offset:{ks*32}'] + [f'ds_read_b64_tr_b16 {v(b+4+2*rd, 2)}, v201 offset:{w1off(ks, rd)}' for rd in range(2)]


def split3(dst, x0, x1, tmp, mode):
    l = [f'v_cvt_pk_bf16_f32 {v(tmp)}, {v(x0)}, {v(x1)}'] + unpack2(tmp + 1, tmp)
    l += [f'v_sub_f32 {v(x0)}, {v(x0)}, {v(tmp+1)}', f'v_sub_f32 {v(x1)}, {v(x1)}, {v(tmp+2)}']
    h0, h1 = tmp + 1, tmp + 2
    e = [h0, x0, h0, h1, x1, h1] if mode == 'a' else [h0, h0, x0, h1, h1, x1]
    l += [f'v_cvt_pk_bf16_f32 {v(dst+i)}, {v(e[2*i])}, {v(e[2*i+1])}' for i in range(3)]
    return l + [f'v_mov_b32 {v(dst+3)}, 0']


for ks in range(5):
    tk[ks] = emit(cb_reads(ks))
emit([f's_add_u32 {s(4+i)}, {s(sOL)}, {4096*(i+1)}' for i in range(3)])
qo = Q([(f'buffer_load_dwordx4 {v(OB+4*i, 4)}, {v(vL16)}, {srd(rWS)}, {s((sOL, 4, 5, 6)[i//4])} offen offset:{(i%4)*1024} sc1', i) for i in range(16)])
OF = OPT.get('of', 1)
OP = OPT.get('op', OF + 9)
OC = OPT.get('oc', OP + 9)
for ks in range(32):
    if ks % 2 == 0:
        A.wait(ds=tk[ks + 1])
    stamp(f'k{ks}')
    b = CBB + (ks % 6) * 8
    mm32(A, v(CBA, 16), v(b, 4), v(b + 4, 4), v(CBA, 16) if ks else '0')
    if ks == OP:
        tpo = A(poll_load(vP, s(sPO), 0, 3))
    if ks + 5 < 32:
        tk[ks + 5] = emit(cb_reads(ks + 5))
    if ks == OF:
        stamp('kw')
        A.wait(vm=tok_o)
        setflag(s(sFO))
        stamp('kf')
    if ks == OC:
        stamp('prep')
        poll_check(tpo, vP, s(sPO), 0, 3)
        stamp('oflag')
        qo.grp(OPT.get('o0', 10))
stamp('cb')

emit([f'v_and_b32 v96, 48, {v(vL)}', f'v_add_u32 v97, {T_MOD2+2176}, v96', f's_lshl_b32 s3, {s(sHQ)}, 7', f's_add_u32 s3, s3, {T_MOD2+1088}', 'v_add_u32 v98, s3, v96',
      f'v_and_b32 v101, 15, {v(vL)}', f'v_lshrrev_b32 v102, 1, v96', f'v_lshl_add_u32 v102, v101, 7, v102', f'v_add_u32 v102, {s(sRING)}, v102'])
for tl in range(4):
    A(f'ds_read_b64 {v(120+2*tl, 2)}, v102 offset:{32*tl}')
for p in range(2):
    A(f'ds_read_b128 {v(104+4*p, 4)}, v97 offset:{64*p}')
    A(f'ds_read_b128 {v(112+4*p, 4)}, v98 offset:{64*p}')
    tcs = A(f'ds_read_b128 {v(GB+4*p, 4)}, v97 offset:{128+64*p}')


def w2reg(u, tl):
    return 32 + 16 * u + 4 * tl


def w2_read(ms):
    l = [lambda: A.wait(vm=D.k['w2', ms[-1]])]
    for m in ms:
        q = SLOT[m]
        va, off = (180, 2048 * q) if q < 3 else ((182, 8192 * (q - 3)) if q < 11 else (10, 8192 * (q - 11)))
        l += mark([f'ds_read_b64_tr_b16 {a(w2reg(m//2, tl)+2*(m%2), 2)}, {v(va+tl%2)} offset:{off+(tl//2)*512}' for tl in range(4)], ('r', m))
    return l


free = []
nxt_m = [2]
unread = [0, 1]


def w2_more(limit=28):
    if not D.q and free and nxt_m[0] < limit:
        D.add(w2_dma(nxt_m[0], free.pop(0)))
        unread.append(nxt_m[0])
        nxt_m[0] += 1


def turn(k):
    ms = [unread.pop(0) for _ in range(k)]
    R.add(w2_read(ms) + [lambda: A.wait(ds=R.dtok), lambda: free.extend(SLOT[m] for m in ms)])


def refill():
    while free:
        w2_more()
        D.flush()


fb = Q([f'v_bfe_u32 v99, {v(vL)}, 4, 1', f'v_lshl_add_u32 v100, v99, 8, {v(vRB)}', 'v_mul_u32_u24 v103, 768, v203', 'v_add_u32 v100, v100, v103',
        f'v_add_u32 v180, {s(sRING)}, v100', 'v_xor_b32 v181, 32, v180',
        f'v_lshlrev_b32 v103, 4, {v(vT32)}', f'v_add_u32 {v(vCB)}, {T_CB}, v103', f's_lshl_b32 s3, {s(sW)}, 9', f'v_add_u32 v202, s3, {v(vCB)}'] +
       split3(160, CBA + 1, CBA, 164, 'a') + [lambda: A.wait(ds=tcs), lambda: free.append(0)] +
       [x for i in range(8) for x in unpack2(X1 + 2 * i, 120 + i) + unpack2(CG + 2 * i, 104 + i) + unpack2(CS + 2 * i, 112 + i)] +
       [
        f'v_lshlrev_b32 {v(vYS)}, 5, v96', f'v_lshl_add_u32 {v(vYS)}, v101, 4, {v(vYS)}', 'v_lshlrev_b32 v178, 6, v203', 'v_lshl_add_u32 v178, v101, 2, v178'])
late = ['v_lshl_add_u32 v179, v99, 7, v178', f'v_add_u32 v182, {s(sFKV)}, v100', 'v_xor_b32 v183, 32, v182',
        'v_mul_u32_u24 v103, 57344, v99', f'v_lshl_add_u32 {v(vYS)}, v178, 2, v103',
        'v_lshlrev_b32 v103, 10, v101', 'v_lshl_add_u32 v103, v99, 5, v103', 'v_lshl_add_u32 v177, v203, 4, v103',
        f's_lshr_b32 s3, {s(sDL)}, 1', f'v_add_u32 v250, s3, {v(vL16)}',
        f's_lshr_b32 s3, {s(sTILE)}, 8', 's_and_b32 s3, s3, 0x1c0', f's_add_u32 s3, s3, {T_RST}', 'v_lshl_add_u32 v176, v101, 2, s3',
        f'v_add_u32 v10, {IMG1}, v182', f'v_add_u32 v11, {IMG1}, v183',
        f'v_add_u32 v14, {IMG1}, {v(vRB)}', f'v_and_b32 v254, 60, {v(vP)}',
        f's_mul_i32 s3, {s(sW)}, 28', 's_andn2_b32 s3, s3, 7', f'v_and_b32 v103, 28, {v(vP)}', f'v_add_u32 {v(vPF)}, s3, v103']
fb.pop(19)
A(f'ds_write_b128 v202, {v(160, 4)}')
for ks in range(16):
    A.wait(vm=qo.k[ks])
    stamp(f'o{ks}')
    if ks == 5:
        turn(2)
    for tl in range(4):
        mm16(BA + 4 * tl, a(16 * ks + 4 * tl, 4), v(OB + 4 * ks, 4), ks == 0)
        if tl == 0 and qo.q:
            qo.grp()
        elif tl == 0:
            w2_more()
            D.grp()
        else:
            R.fill(8 if tl == 3 else 4)
            fb.fill(4 if tl == 3 else 0)
fb.flush()
R.flush()
D.flush()
A(f's_cmp_lt_u32 {s(sJ)}, 14')
A(f's_cselect_b32 {s(rH+2)}, 0x1000000, 0')
stamp('om')
for p in range(2):
    for i in range(4 * p, 4 * p + 4):
        A(f'v_pk_fma_f32 {v(X1+2*i, 2)}, {v(BA+2*i, 2)}, {v(CG+2*i, 2)}, {v(X1+2*i, 2)}')
    for i in range(4 * p, 4 * p + 4):
        A(f'v_pk_mul_f32 {v(CS+2*i, 2)}, {v(CS+2*i, 2)}, {v(X1+2*i, 2)}')
    for i in range(4):
        A(f'v_cvt_pk_bf16_f32 {v(CS+8*p+i)}, {v(CS+8*p+2*i)}, {v(CS+8*p+2*i+1)}')
    A(f'buffer_store_dwordx4 {v(CS+8*p, 4)}, {v(vYS)}, {srd(rWS)}, {s(sY)} offen offset:{2048*p} sc1')
A(f'v_pk_add_f32 {v(CG, 2)}, {v(X1, 2)}, {v(X1+2, 2)}')
A(f'v_pk_mul_f32 {v(CG+2, 2)}, {v(X1, 2)}, {v(X1, 2)}')
for i in range(1, 8):
    if i > 1:
        A(f'v_pk_add_f32 {v(CG, 2)}, {v(CG, 2)}, {v(X1+2*i, 2)}')
    A(f'v_pk_fma_f32 {v(CG+2, 2)}, {v(X1+2*i, 2)}, {v(X1+2*i, 2)}, {v(CG+2, 2)}')
A(f'v_add_f32 {v(CG)}, {v(CG)}, {v(CG+1)}')
A(f'v_add_f32 {v(CG+1)}, {v(CG+2)}, {v(CG+3)}')
emit(late[:2])
A(f'v_permlane32_swap_b32 {v(CG)}, {v(CG+1)}')
A(f'v_add_f32 {v(CG)}, {v(CG)}, {v(CG+1)}')
A(f'v_mov_b32 {v(CG+1)}, {v(CG)}')
A(f'v_permlane16_swap_b32 {v(CG)}, {v(CG+1)}')
A(f'v_add_f32 {v(CG)}, {v(CG)}, {v(CG+1)}')
tok_y = A(f'buffer_store_dword {v(CG)}, v178, {srd(rWS)}, {s(sST)} offen sc1')
stamp('oproj')

refill()
emit(late[2:])
if OPT.get('yt1', 1):
    turn(OPT.get('yn', 2))
    R.flush()
    refill()
stamp('yw')
A.wait(vm=tok_y)
setflag(s(sFY))
stamp('yf')
if OPT.get('yt2', 1) == 2:
    turn(1)
    R.flush()
    tpy = A(poll_load(254, s(sPY), 0, 3))
if OPT.get('yt2', 1):
    turn(len(unread))
    R.flush()
if OPT.get('yt2', 1) != 2:
    tpy = A(poll_load(254, s(sPY), 0, 3))
refill()
stamp('yp')

YB, FT, BX, SL = 16, [144, 160, 200, 216], 232, 204
qy = Q()
for ks in range(32):
    if ks % 4 == 0:
        qy.add([f's_add_u32 s4, {s(sYL)}, {ks*1024}'])
    qy.add([(f'buffer_load_dwordx4 {v(YB+4*ks, 4)}, {v(vL16)}, {srd(rH)}, s4 offen offset:{(ks%4)*1024} sc1', ks)])
qt = Q([f'buffer_load_dword {v(SL+i)}, v179, {srd(rWS)}, {s(sSTL)} offen offset:{i*256} sc1' for i in range(8)])
poll_check(tpy, 254, s(sPY), 0, 3)
stamp('yflag')
qy.grp(OPT.get('y0', 8))
stamp('yiss')
stats = [lambda: A.wait(vm=qt.tok)]
stats += [f'v_add_f32 {v(SL+e)}, {v(SL+e)}, {v(SL+4+e)}' for e in range(4)]
stats += [f'v_add_f32 {v(SL+e)}, {v(SL+e)}, {v(SL+2+e)}' for e in range(2)]
stats += [f'v_add_f32 {v(SL)}, {v(SL)}, {v(SL+1)}', f'v_mov_b32 {v(SL+1)}, {v(SL)}',
          f's_lshl_b32 s3, {s(sW)}, 7', f's_add_u32 s3, s3, {T_RST}', f'v_add_u32 v4, s3, {v(vP)}', f'v_permlane32_swap_b32 {v(SL)}, {v(SL+1)}']
stats += [f'v_mul_f32 {v(SL)}, 0xbb000000, {v(SL)}', f'v_mul_f32 {v(SL+1)}, 0x3b000000, {v(SL+1)}',
          f'v_fma_f32 {v(SL+1)}, -{v(SL)}, {v(SL)}, {v(SL+1)}', f'v_max_f32 {v(SL+1)}, 0, {v(SL+1)}',
          f'v_add_f32 {v(SL+2)}, 0x3727c5ac, {v(SL+1)}', f'v_sqrt_f32 {v(SL+1)}, {v(SL+2)}', f'v_rsq_f32 {v(SL+2)}, {v(SL+2)}',
          f'v_cmp_gt_u32 vcc, 32, {v(vL)}', f'ds_write_b32 v4, {v(SL+2)}',
          f'v_cndmask_b32 {v(SL)}, 0, {v(SL)}, vcc', f'v_cndmask_b32 {v(SL+1)}, 0, {v(SL+1)}, vcc']
stats += split3(BX, SL, SL + 1, SL + 4, 'b')
qs = Q(stats)
cseq = [(p, ks, 2 * p + i) for p in range(2) for ks in range(33) for i in range(2)]
NFB, CLK = 8, OPT.get('clk', 5)
tk = {}


def c_rd(n):
    p, ks, ct = cseq[n]
    b = 4 * (n % NFB)
    if ks == 32:
        return [f'ds_read_b128 {a(b, 4)}, {v(vCB)} offset:{ct*512}']
    return [f'ds_read_b64_tr_b16 {a(b+2*r, 2)}, {v((vRB, 14)[p])} offset:{w1off(ks, r)+(ct%2)*512}' for r in range(2)]


hold = {}


def f_epi(t):
    r = FT[t // 2] + 4 * (t % 2)
    src = FT[t // 2] + 8 * (t % 2)
    return ([f'v_cvt_pk_bf16_f32 {v(r+i)}, {v(src+2*i)}, {v(src+2*i+1)}' for i in range(4)] + [f'v_pk_max_i16 {v(r+i)}, {v(r+i)}, 0' for i in range(4)] +
            [f'buffer_store_dwordx4 {v(r, 4)}, {v(vYS)}, {srd(rH)}, {s(sF)} offen offset:{t*512} sc1'])


for n in range(CLK):
    tk[n] = emit(c_rd(n))
turn(len(unread))
R.flush()
print('w2 k-steps requested before FFN1:', nxt_m[0])
F1, PF1, CB1 = OPT.get('f1', 26), OPT.get('pf1', 31), OPT.get('cb1', 25)
MC = OPT.get('mc', 28)
qe = Q()
for n, (p, ks, ct) in enumerate(cseq):
    i = n % 2
    if i == 0:
        A.wait(vm=qy.k[ks] if p == 0 and ks < 32 else None, ds=tk[n + 1])
        stamp('ab'[p] + str(ks))
        if (p, ks) == (0, CB1):
            barrier()
            free += list(range(3, 3 + (CB1 + 1) // 4))
        if (p, ks) == (0, 32):
            qs.flush()
        if (p, ks) == (1, 0):
            stamp('c1')
            barrier()
            free += list(range(3 + (CB1 + 1) // 4, 11))
        if (p, ks) == (1, 1):
            D.flush()
            hold['pre'] = len(unread)
            for t in range(4):
                qe.add(f_epi(t))
        if (p, ks) == (1, OPT.get('t1', 6)):
            for _ in range(hold['pre'] // 2):
                turn(2)
        FREE = {11: (11, 14), 19: (14, 16)}
        if p == 1 and ks in FREE:
            barrier()
            free += list(range(*FREE[ks]))
        if (p, ks) == (1, F1):
            assert not qe.q
            A.wait(vm=qe.tok)
            setflag(s(sFF))
    d = v(FT[ct], 16)
    mm32(A, d, a(4 * (n % NFB), 4), v(BX if ks == 32 else YB + 4 * ks, 4), '0' if ks == 0 else d)
    if p == 0 and (qy.q or qt.q):
        if i == 0:
            qy.grp()
        elif ks >= 4:
            qt.grp()
    elif (p, ks, i) == (1, PF1, 0):
        D.flush()
        tpf = A(poll_load(vPF, s(sPO), 256, 255))
    elif qe.q and qe.kind() == 'vmem':
        qe.pop()
    elif (p, ks) < (1, PF1):
        w2_more(MC)
        D.grp(1, OPT.get('c2pace', 60))
    if n + CLK < len(cseq):
        tk[n + CLK] = emit(c_rd(n + CLK))
    res = 4 if i else 0
    if p == 0 and ks >= 18:
        qs.fill(res)
    for _ in range(OPT.get('qe', 2)):
        if qe.q and qe.kind() != 'vmem':
            qe.pop()
    R.fill(res)
R.flush()
stamp('c2')

NB, ACC, vO1 = 16, 80, 5
INB = IMG1


def fbuf(n):
    return 16 + 4 * (n % NB)


DF = OPT.get('defer', 3)
NE = 28 - DF
seq = ([(aa, u) for aa in (3, 2, 1) for u in range(7)] + [(0, u) for u in range(7 - DF)] +
       [(aa, u) for aa in (3, 2, 1) for u in range(7, 14)] + [(0, u) for u in range(7 - DF, 14)])
ql = Q()
for n, (aa, u) in enumerate(seq):
    k, odd = kunit(u)
    if not odd or n == NE + 21:
        ql.add([f's_add_u32 s4, {s(5+aa)}, {k*512}'])
    ql.add([(f'buffer_load_dwordx4 {v(fbuf(n), 4)}, {v(250 if odd else vL16)}, {srd(rWS)}, s4 offen sc1', n)])
LK = OPT.get('lk', 11)
A(f'ds_read_b32 v176, v176')
for aa in (3, 2, 1, 0):
    A(f's_xor_b32 s3, {s(sW)}, {aa}')
    A(f's_mul_i32 s3, s3, 57344')
    A(f's_add_u32 {s(5+aa)}, s3, {s(sFL0)}')
F2N = OPT.get('f2n', 4)
e2 = Q([x for t in range(4, 8) for x in f_epi(t)])
e2.pop(9 * F2N)
poll_check(tpf, vPF, s(sPO), 256, 255)
stamp('fflag')
ql.grp(OPT.get('l0', 8))
e2.flush()
NF2 = 0 if F2N == 4 else OPT.get('l0', 8)
turn(min(len(unread), OPT.get('t2n', 6)))
R.flush()


W64 = OPT.get('w64', 1)


def red_write(aa):
    if W64:
        return [f'ds_write_b64 {v(vO1+aa-1)}, {v(ACC+16*aa+2*r, 2)} offset:{r*512}' for r in range(8)]
    return [f'ds_write_b128 {v(vO1+aa-1)}, {v(ACC+16*aa+4*r, 4)} offset:{r*1024}' for r in range(4)]


ra = [f'v_lshlrev_b32 v15, {3 if W64 else 4}, {v(vL)}']
for aa in range(1, 4):
    ra += [f's_xor_b32 s3, {s(sW)}, {aa}', f's_mul_i32 s3, s3, 12288', f's_add_u32 s3, s3, {INB + (aa-1)*4096}', f'v_add_u32 {v(vO1+aa-1)}, s3, v15']
ra += [f's_mul_i32 s3, {s(sW)}, 12288', f's_add_u32 s3, s3, {INB}', f'v_add_u32 v8, s3, v15']
fq = Q([x for i in range(8) for x in unpack2(CS + 2 * i, GB + i)] + ra + [f'v_mul_f32 {v(CS+i)}, {v(CS+i)}, v176' for i in range(16)])
K2 = OPT.get('k2', NE - LK + 1)
P2 = OPT.get('p2', K2 - 6)
T3 = OPT.get('t3n', NE - 6)
print('w2 k-steps requested before FFN2:', nxt_m[0])


def issued():
    return max(k for k in ql.k) + 1


if unread:
    turn(len(unread))
qr = Q()
P = (144, 160, 200)
RS = OPT.get('rsn', 1)
for n, (aa, u) in enumerate(seq):
    A.wait(vm=ql.k[n], ds=R.k['r', 2 * u + 1])
    stamp(f'd{n}')
    if n == NF2:
        setflag(s(sFF), off=128)
    if n == K2:
        poll_check(tpf, vPF, s(sPO), 384, 255)
    if n == T3 and unread:
        assert nxt_m[0] == 28 and not D.q
        turn(len(unread))
    if n == NE + 7:
        assert not (R.q or fq.q)
        lds_sync()
    if n in (NE + 7, NE + 14, NE + 21):
        qr.add(red_write(3 - (n - NE - 7) // 7))
    if n == NE + 21 + OPT.get('rs', 5):
        assert not qr.q
        lds_sync()
        if W64:
            R.add([(f'ds_read2st64_b64 {v(P[p]+4*r, 4)}, v8 offset0:{p*8+2*r} offset1:{p*8+2*r+1}', ('p', r)) for r in range(4) for p in range(3)])
        else:
            R.add([(f'ds_read_b128 {v(P[p]+4*r, 4)}, v8 offset:{p*4096+r*1024}', ('p', r)) for r in range(4) for p in range(3)])
        for r in range(RS):
            fq.add([lambda r=r: A.wait(ds=R.k['p', r])] + [f'v_add_f32 {v(P[0]+4*r+i)}, {v(P[0]+4*r+i)}, {v(P[1]+4*r+i)}' for i in range(4)] +
                   [f'v_add_f32 {v(P[0]+4*r+i)}, {v(P[0]+4*r+i)}, {v(P[2]+4*r+i)}' for i in range(4)] +
                   [f'v_fmac_f32 {v(X1+4*r+i)}, {v(P[0]+4*r+i)}, {v(CS+4*r+i)}' for i in range(4)])
    for tl in range(4):
        mm16(ACC + 16 * aa + 4 * tl, a(w2reg(u, tl), 4), v(fbuf(n), 4), u == 0)
        res = 4 if tl == 3 else 0
        if tl in (0, 2):
            if (n, tl) == (P2, 2):
                tpf = A(poll_load(vPF, s(sPO), 384, 255))
            elif issued() < min(n + 1 + LK, 56 if n >= K2 else NE):
                ql.grp()
            else:
                w2_more()
                D.grp()
        if (tl == 3 or (W64 and tl == 1 and n not in (NE + 7, NE + 14, NE + 21))) and qr.q:
            qr.pop()
        R.fill(res)
        if not R.q or n < NE:
            fq.fill(res)
assert not (R.q or D.q or qr.q)
stamp('ffn2')
fq.flush()
for r in range(RS, 4):
    A.wait(ds=R.k['p', r])
    for src in (P[1], P[2]):
        for h in range(2):
            A(f'v_pk_add_f32 {v(P[0]+4*r+2*h, 2)}, {v(P[0]+4*r+2*h, 2)}, {v(src+4*r+2*h, 2)}')
for r in range(RS, 4):
    for h in range(2):
        A(f'v_pk_add_f32 {v(ACC+4*r+2*h, 2)}, {v(ACC+4*r+2*h, 2)}, {v(P[0]+4*r+2*h, 2)}')
for k in range(2):
    for i in range(4 * k, 4 * k + 4):
        A(f'v_pk_fma_f32 {v(X1+2*i, 2)}, {v(ACC+2*i, 2)}, {v(CS+2*i, 2)}, {v(X1+2*i, 2)}')
    for i in range(4):
        A(f'v_cvt_pk_bf16_f32 {v(160+4*k+i)}, {v(X1+8*k+2*i)}, {v(X1+8*k+2*i+1)}')
    for r in range(2):
        A(f'v_permlane16_swap_b32 {v(160+4*k+r)}, {v(160+4*k+2+r)}')
    A(f'buffer_store_dwordx4 {v(160+4*k, 4)}, v177, {srd(rOUT)}, {s(sTILE)} offen offset:{64*k}')

if OPT['stamps']:
    A.wait_all(vm=True)
    NAMES_n = len(NAMES)
    A(f's_mov_b32 {s(STAMP0+NAMES_n-1)}, {s(STP)}')
    A(f's_mem{"real" if OPT.get("rts") else ""}time {s(STP, 2)}')
    A('s_memrealtime s[4:5]')
    NAMES.append('end')
    A('s_waitcnt lgkmcnt(0)')
    A('v_mov_b32 v3, 0')
    for k in range(NAMES_n):
        A(f'v_writelane_b32 v3, {s(STAMP0+k)}, {k}')
    A(f'v_writelane_b32 v3, {s(STP)}, {NAMES_n}')
    A(f'v_writelane_b32 v3, s4, 29')
    A(f'v_writelane_b32 v3, {s(sXCC)}, 30')
    A(f'v_writelane_b32 v3, {s(sFAST)}, 31')
    A(f's_lshl_b32 s3, s2, 2')
    A(f's_add_u32 s3, s3, {s(sW)}')
    A(f's_lshl_b32 s3, s3, 7')
    A(f's_add_u32 s3, s3, {STAMPS}')
    A(f'v_lshlrev_b32 v4, 2, {v(vL)}')
    A('s_mov_b32 exec_hi, 0')
    A(f'buffer_store_dword v3, v4, {srd(rWS)}, s3 offen')
if OPT['pad']:
    A.wait_all(vm=True)
    stamp('end')
    A('s_waitcnt lgkmcnt(0)')
    A(f's_mov_b32 s6, {OPT["pad"]}')
    if OPT.get('probe'):
        if OPT.get('pcyc'):
            A('s_sub_u32 s98, s98, s96')
            A('s_mul_i32 s98, s98, 2731')
            A('s_lshr_b32 s98, s98, 16')
        else:
            A('s_sub_u32 s98, s98, s100')
        if OPT.get('pwg') is not None:
            A(f's_cmp_eq_u32 s2, {OPT["pwg"]}')
            A('s_cselect_b32 s98, s98, 0')
        A('s_add_u32 s6, s6, s98')
    A.label('L_padl')
    A('s_memrealtime s[4:5]')
    A('s_waitcnt lgkmcnt(0)')
    A('s_sub_u32 s4, s4, s100')
    A(f's_cmp_lt_u32 s4, s6')
    A('s_cbranch_scc1 L_padl')
A.label('L_end')
A('s_endpgm')
A.ins += WARM.ins
A.label('L_hot_end')
A.ins += COLD.ins
body, added = A.text()

hdr = open('cdna_kernels/' + NAME + '.s.ref').read().split('\n')
hdr = [l for l in hdr if l.startswith(';') and '@launch' not in l and 'Override' not in l and 'grid=ceil' not in l]
out = '\n'.join(hdr) + f'''
; @launch grid=(256,1,1) block=(256,1,1) lds=163840
; generated by gen/gen.py (hand-written generator): one persistent launch, one workgroup per CU
.amdgcn_target "amdgcn-amd-amdhsa--gfx950"
.text
.globl {NAME}_kernel
.p2align 8
.type {NAME}_kernel,@function
{NAME}_kernel:
{body}
  s_endpgm
.fill 2048, 4, 0xbf800000
  s_endpgm
.section .rodata,"a"
.p2align 6
.amdhsa_kernel {NAME}_kernel
  .amdhsa_next_free_vgpr 512
  .amdhsa_next_free_sgpr 102
  .amdhsa_accum_offset 256
  .amdhsa_group_segment_fixed_size 0
  .amdhsa_kernarg_size 88
  .amdhsa_user_sgpr_count 2
  .amdhsa_user_sgpr_kernarg_segment_ptr 1
  .amdhsa_system_sgpr_workgroup_id_x 1
  .amdhsa_float_denorm_mode_32 3
.end_amdhsa_kernel
'''
open(sys.argv[1], 'w').write(out)
open(sys.argv[1] + '.names', 'w').write(' '.join(NAMES))
print(f'instructions: {len(A.ins)}, nops added: {added}, stamps: {len(NAMES)}')
```

```python
import re

REG_RE = re.compile(r'^(-|\|)?([vas])(?:(\d+)|\[(\d+):(\d+)\])\|?$')
TRANS = ('v_exp_f32', 'v_log_f32', 'v_rcp_f32', 'v_rsq_f32', 'v_sqrt_f32', 'v_sin_f32', 'v_cos_f32', 'v_rcp_iflag_f32')


def regs_of(op):
    op = op.strip()
    if op in ('vcc', 'vcc_lo', 'vcc_hi'):
        return {('s', 'vcc')}
    if op in ('exec', 'exec_lo', 'exec_hi'):
        return {('s', 'exec')}
    if op == 'm0':
        return {('s', 'm0')}
    m = re.match(r'^abs\((.*)\)$', op)
    if m:
        op = m.group(1)
    m = REG_RE.match(op)
    if not m:
        return set()
    k = m.group(2)
    if m.group(3) is not None:
        return {(k, int(m.group(3)))}
    return {(k, i) for i in range(int(m.group(4)), int(m.group(5)) + 1)}


class Ins:
    __slots__ = ('text', 'op', 'kind', 'w', 'r', 'label', 'target', 'passes', 'ra', 'rb', 'rc', 'data', 'uncond', 'nop', 'dpp', 'ldsdma', 'dotab')

    def __init__(self, text):
        self.text = text
        self.label = None
        self.target = None
        self.w = set()
        self.r = set()
        self.passes = 0
        self.ra = self.rb = self.rc = set()
        self.data = set()
        self.uncond = False
        self.nop = 1
        self.dpp = False
        self.ldsdma = False
        self.dotab = set()
        t = text.split(';')[0].strip()
        if t.endswith(':'):
            self.label = t[:-1]
            self.kind = 'label'
            self.op = ''
            self.nop = 0
            return
        if t.startswith('.') or not t:
            self.kind = 'dir'
            self.op = ''
            self.nop = 0
            return
        sp = t.split(None, 1)
        op = sp[0]
        rest = sp[1] if len(sp) > 1 else ''
        ops = []
        cur = ''
        d = 0
        for ch in rest:
            if ch in '[(':
                d += 1
            if ch in '])':
                d -= 1
            if ch == ',' and d == 0:
                ops.append(cur.strip())
                cur = ''
            else:
                cur += ch
        mods = ''
        if cur.strip():
            last = cur.strip().split(None, 1)
            ops.append(last[0])
            mods = last[1] if len(last) > 1 else ''
        base = re.sub(r'_(e32|e64|dpp|sdwa)$', '', op)
        self.op = base
        R = [regs_of(o) for o in ops]
        allr = lambda l: set().union(*l) if l else set()
        if base.startswith('v_mfma'):
            self.kind = 'mfma'
            self.passes = 8 if '32x32' in base else 4
            self.w = R[0]
            self.ra, self.rb, self.rc = R[1], R[2], R[3]
            self.r = R[1] | R[2] | R[3]
        elif base.startswith('v_'):
            self.kind = 'valu'
            self.dpp = op.endswith('_dpp')
            if base.startswith('v_permlane'):
                self.w = R[0] | R[1]
                self.r = R[0] | R[1]
            elif base.startswith('v_cmp'):
                self.w = R[0]
                self.r = allr(R[1:])
                assert not base.startswith('v_cmpx')
            elif base in ('v_add_co_u32', 'v_sub_co_u32', 'v_addc_co_u32'):
                self.w = R[0] | R[1]
                self.r = allr(R[2:])
            else:
                self.w = R[0]
                self.r = allr(R[1:])
                if base.startswith('v_dot'):
                    self.dotab = R[1] | R[2]
                if base.startswith('v_fmac') or base.startswith('v_dot2c') or base == 'v_writelane_b32' or self.dpp:
                    self.r |= R[0]
        elif base.startswith('ds_'):
            self.kind = 'ds'
            if base.startswith('ds_read'):
                self.w = R[0]
                self.r = allr(R[1:])
            else:
                self.r = allr(R)
        elif base.startswith('buffer_') or base.startswith('global_'):
            self.kind = 'vmem'
            lds = re.search(r'\blds\b', mods) is not None or 'load_lds' in base
            if base in ('buffer_wbl2', 'buffer_inv'):
                pass
            elif lds:
                self.ldsdma = True
                self.r = allr(R) | {('s', 'm0')}
            elif '_load' in base:
                self.w = R[0]
                self.r = allr(R[1:])
            else:
                self.r = allr(R)
                if base.endswith('x3') or base.endswith('x4'):
                    self.data = R[0] if base.startswith('buffer_') else R[1]
        elif base.startswith('s_'):
            self.kind = 'salu'
            if base == 's_nop':
                self.nop = int(ops[0], 0) + 1
            elif base.startswith('s_cbranch') or base == 's_branch':
                self.target = ops[0]
                self.uncond = base == 's_branch'
            elif base == 's_endpgm':
                self.uncond = True
            elif base.startswith('s_cmp') or base.startswith('s_bitcmp') or base in ('s_waitcnt', 's_barrier', 's_sleep', 's_setprio'):
                self.r = allr(R)
            else:
                self.w = R[0] if R else set()
                self.r = allr(R[1:])
        else:
            raise ValueError('unknown instruction: ' + text)


def need(p, c):
    n = 0
    vr = lambda s: {x for x in s if x[0] in 'va'}
    sr = lambda s: {x for x in s if x[0] == 's'}
    if p.kind == 'valu':
        pw = vr(p.w)
        if pw:
            if c.kind == 'mfma' and pw & c.r:
                n = max(n, 2)
            if c.kind == 'valu' and pw & c.r:
                if c.op.startswith('v_permlane') or c.dpp:
                    n = max(n, 2)
                if c.op in ('v_readlane_b32', 'v_readfirstlane_b32'):
                    n = max(n, 1)
                if p.op in TRANS and c.op not in TRANS:
                    n = max(n, 1)
            if p.op in TRANS and c.kind in ('ds', 'vmem') and pw & c.r:
                n = max(n, 1)
            if p.op.startswith('v_dot') and c.kind in ('valu', 'mfma', 'ds', 'vmem') and pw & (c.r | c.w):
                if not (c.op == p.op and not (pw & c.dotab)):
                    n = max(n, 3)
        ps = sr(p.w)
        if ps:
            if c.kind == 'valu' and ps & c.r:
                n = max(n, 4 if c.op in ('v_readlane_b32', 'v_writelane_b32') else 2)
            if c.kind == 'vmem' and ps & c.r:
                n = max(n, 5)
            if c.kind == 'salu' and ps & c.r:
                n = max(n, 1)
    elif p.kind == 'mfma':
        big = p.passes == 8
        if c.kind == 'mfma':
            if p.w & (c.ra | c.rb):
                n = max(n, 12 if big else 8)
            if p.w & c.rc and not (p.w == c.rc and p.passes == c.passes):
                n = max(n, 10 if big else 6)
            if p.w & c.w and not (p.w == c.rc and p.passes == c.passes):
                n = max(n, 10 if big else 6)
        elif c.kind in ('valu', 'ds', 'vmem'):
            if p.w & (c.r | c.w):
                n = max(n, 12 if big else 8)
            if c.kind == 'valu' and p.rc & c.w:
                n = max(n, 7 if big else 3)
    elif p.kind == 'vmem':
        if p.data and p.data & c.w:
            n = max(n, 2 if c.kind in ('valu', 'mfma') else 1)
    elif p.kind == 'salu':
        if ('s', 'm0') in p.w and c.ldsdma:
            n = max(n, 1)
    return n


MAXD = 13


def pad_hazards(ins):
    out = []
    added = 0
    labels_src = {}

    def worst(lst, srcs, idx, c):
        best = 0
        stack = [(idx - 1, 0, True)]
        seen = set()
        while stack:
            i, dist, fall = stack.pop()
            while i >= 0 and dist < MAXD:
                if (i, dist) in seen:
                    break
                seen.add((i, dist))
                p = lst[i]
                if p.kind == 'label':
                    for s in srcs.get(p.label, ()):
                        stack.append((s, dist, False))
                    i -= 1
                    fall = True
                    continue
                if p.kind == 'dir':
                    i -= 1
                    continue
                if p.uncond and fall:
                    break
                fall = True
                best = max(best, need(p, c) - dist)
                dist += p.nop
                i -= 1
        return best

    for c in ins:
        if c.kind not in ('label', 'dir'):
            k = worst(out, labels_src, len(out), c)
            if k > 0:
                out.append(Ins(f's_nop {k-1}'))
                added += 1
        if c.target:
            labels_src.setdefault(c.target, []).append(len(out))
        out.append(c)
    for i, c in enumerate(out):
        if c.kind in ('label', 'dir'):
            continue
        k = worst(out, labels_src, i, c)
        assert k <= 0, f'hazard across back edge at: {c.text}'
    return out, added


def cost(i, prev, busy):
    if i.kind == 'mfma':
        return 8
    if i.kind == 'valu':
        if i.op in TRANS or i.op.startswith('v_permlane'):
            return 8
        if busy and ((i.op.startswith('v_pk_') and 'f32' in i.op) or i.op.startswith('v_dot')):
            return 13
        return 4
    if i.kind == 'ds':
        c = 12 if prev == 'valu' else (8 if prev == 'ds' else 4)
        return max(c, 28) if i.op == 'ds_write_b128' else c
    if i.kind == 'vmem':
        return 16 if prev == 'valu' else (8 if prev == 'mfma' else 12)
    if i.kind == 'salu':
        return 4 * i.nop
    return 0


class Asm:
    def __init__(self):
        self.t = 0
        self.drop = None
        self.mfree = 0
        self.prev = None
        self.ins = []
        self.vm = 0
        self.vm_done = 0
        self.ds = 0
        self.ds_done = 0
        self.uid = 0

    def __call__(self, text):
        tok = None
        for t in text.split('\n'):
            t = t.strip()
            if not t:
                continue
            i = Ins(t)
            if i.kind == 'vmem' and self.drop and self.drop(t):
                tok = self.vm
                continue
            self.ins.append(i)
            if i.kind == 'mfma':
                self.t = max(self.t, self.mfree)
                self.mfree = self.t + 4 * i.passes
            self.t += cost(i, self.prev, self.t < self.mfree)
            self.prev = i.kind
            if i.kind == 'vmem':
                self.vm += 1
                tok = self.vm
            elif i.kind == 'ds':
                self.ds += 1
                tok = self.ds
        return tok

    def label(self, name):
        self.ins.append(Ins(name + ':'))

    def new(self, s):
        self.uid += 1
        return f'L_{s}_{self.uid}'

    def wait(self, vm=None, ds=None, force=False):
        parts = []
        if vm is not None and (force or vm > self.vm_done):
            n = min(self.vm - vm, 63)
            parts.append(f'vmcnt({n})')
            self.vm_done = max(self.vm_done, self.vm - n)
        if ds is not None and (force or ds > self.ds_done):
            n = min(self.ds - ds, 15)
            parts.append(f'lgkmcnt({n})')
            self.ds_done = max(self.ds_done, self.ds - n)
        if parts:
            self('s_waitcnt ' + ' '.join(parts))

    def wait_all(self, vm=False, ds=False):
        parts = []
        if vm:
            parts.append('vmcnt(0)')
            self.vm_done = self.vm
        if ds:
            parts.append('lgkmcnt(0)')
            self.ds_done = self.ds
        self('s_waitcnt ' + ' '.join(parts))

    def cond_begin(self):
        return (self.vm, self.vm_done, self.ds, self.ds_done)

    def cond_end(self, st):
        self.vm, self.vm_done, self.ds, self.ds_done = st

    def text(self):
        out, added = pad_hazards(self.ins)
        return '\n'.join(('' if i.kind == 'label' else '  ') + i.text for i in out), added


def v(i, n=1):
    return f'v{i}' if n == 1 else f'v[{i}:{i+n-1}]'


def a(i, n=1):
    return f'a{i}' if n == 1 else f'a[{i}:{i+n-1}]'


def s(i, n=1):
    return f's{i}' if n == 1 else f's[{i}:{i+n-1}]'
```

```python
import sys
from asmlib import Asm, Ins, cost, v, a, s

NAME = 'adaLN_cond__sliding_block__dense_activation_relu__prompt'
OPT = dict(stamps=0, fast=1, forcemax=0, fmode=0, dmode=0, ntx=1, ntq=0, ntw=0, touch0=1, touch1=1, chunks=17, pad=0, outsc1=2)
for arg in sys.argv[2:]:
    k, val = arg.split('=')
    OPT[k] = val if k == 'probe' else int(val)

EPOCH = 0
HELLO = 0x1000
FKV = 0x10000
FL = 0x30000
MODP = 0x40000
STATS = 0x80000
STAMPS = 0xC0000
KVB = 0x100000
OBUF = 0x500000
YBUF = 0x700000
FBUF = 0x900000
LH, WVH, WVL, WQL = 0, 65536, 98304, 131072
MODT = WQL
PRED1 = WQL + 4096
IMG0, IMG1 = 0, 65536
WOS = IMG0
PRED2 = WQL + 8192
SCR = 131072
RING = 6144
TAB = SCR + 4 * RING
T_MOD2 = TAB
T_CB = TAB + 2560
T_RST = TAB + 4608
T_Z = TAB + 5120 + 128
sC, sWS = 16, 24
rX, rWQ, rWO, rW1, rW2, rWM, rWS, rOUT = 28, 32, 36, 40, 44, 48, 52, 56
rH = 32
sW, sRB, sHQ, sJ, sRB2, sN, sXCC, sFAST, sHI = 60, 61, 62, 63, 64, 65, 66, 67, 68
(sKV, sFKV, sO, sFO, sPO, sOL, sDL, sTILE, sY, sST, sFY, sPY, sSTL, sYL, sF, sFF, sX, sFL0, sFL1, sBO, sRING, sIW) = (
    12, 13, 14, 15, 18, 19, 20, 21, 22, 23, 26, 27, 69, 70, 71, 72, 73, 74, 75, 76, 77, 0)
STAMP0, STP = 78, 100
LIMIT = 1 << 15
vL, vL16 = 1, 2
W1A, WOA = 5, 9
vG2, vWD, vRB, vOS, vVS = 11, 12, 13, 14, 15

NTX = 'nt' if OPT['ntx'] else ''
NTY = ('', 'nt', 'sc1')[OPT.get('nty', 1)]
NTQ = 'nt' if OPT['ntq'] else ''
NTW = 'nt' if OPT['ntw'] else ''
A = Asm()
if OPT.get('drop'):
    DROP = {1: lambda t: 's[32:35]' in t and 'lds' in t, 2: lambda t: 's[36:39]' in t and 'lds' in t, 3: lambda t: 's[40:43]' in t and 'lds' in t,
            4: lambda t: 's[44:47]' in t and 'lds' in t, 5: lambda t: t.startswith('buffer_load_dword ') and 's[52:55]' not in t,
            6: lambda t: 'load_dwordx4' in t and 's[32:35]' in t and 's3 ' in t, 7: lambda t: 'load_dwordx4' in t and 's[32:35]' in t and 's4 ' in t,
            8: lambda t: 'store_dwordx4' in t and 's[32:35]' in t, 9: lambda t: 'store_dwordx4' in t and 's12 ' in t,
            10: lambda t: 'load_dwordx4' in t and 's[52:55], s4 offen sc1' in t and ', v15,' not in t and ', v11,' not in t,
            11: lambda t: 'lds' in t, 12: lambda t: 's[28:31]' in t, 13: lambda t: 's[48:51]' in t and 'offset:2048' in t,
            14: lambda t: 'store_dwordx4' in t and 's4 ' not in t, 15: lambda t: 's[56:59]' in t}
    A.drop = DROP[OPT['drop']]
COLD = Asm()
COLD.uid = 100000
WARM = Asm()


def srd(r):
    return s(r, 4)


NAMES = []
SETS = {1: 'rt start setup ln_pre mod h kv q m2 own kvflag attn prep oflag o0 oproj yflag c1 e0 c2 d0 ffn2',
        3: 'rt start yflag a0 a16 c1 b16 e0 fw fflag e16 e24 c2 d0 d7 d14 d21 d28 d35 d42 d49 ffn2',
        4: 'rt start mod h0 h1 h2 h3 hw h attn prep oflag o0 o4 o8 o12 om oproj cb yflag',
        6: 'rt start q m2 own kvflag u1 u2 u3 u4 u5 u6 u7 u9 u11 u13 u15 u17 uend attn',
        5: 'rt start attn pchk pbar kw kf kp prep oflag cb o0 om oproj yw yf yp yc yflag yiss a0',
        9: 'rt start',
        2: 'rt start karg iss setup0 nonce pland setup x0 x1 x2 x3 ln_pre wkl wk gchk mod h kv kvst q'}
KEEP = set(SETS.get(OPT['stamps'], '').split())


def stamp(name):
    if OPT.get('probe') == name:
        A(f's_mem{"" if OPT.get("pcyc") else "real"}time s[98:99]')
    if OPT['stamps'] and name in KEEP:
        k = len(NAMES)
        assert k < 22
        if k:
            A(f's_mov_b32 {s(STAMP0+k-1)}, {s(STP)}')
        A(f's_mem{"real" if name == "rt" or OPT.get("rts") else ""}time {s(STP, 2)}')
        NAMES.append(name)
        if name == 'rt':
            A('s_waitcnt lgkmcnt(0)')


def barrier():
    A('s_barrier')


class Q:
    def __init__(self, items=()):
        self.q = list(items)
        self.tok = None
        self.dtok = None
        self.k = {}
        self.last = -10**9

    def add(self, items):
        self.q += list(items)

    def kind(self):
        it = self.q[0]
        return 'call' if callable(it) else Ins(it[0] if isinstance(it, tuple) else it).kind

    def pop(self, n=1):
        for _ in range(n):
            if not self.q:
                return
            kind = self.kind()
            it = self.q.pop(0)
            if callable(it):
                it()
                continue
            txt, key = it if isinstance(it, tuple) else (it, None)
            t = A(txt)
            if kind == 'vmem':
                self.tok = t
                self.last = A.t
            elif kind == 'ds':
                self.dtok = t
            if key is not None:
                self.k[key] = t

    def grp(self, n=1, pace=0):
        for _ in range(n):
            if not self.q or A.t - self.last < pace:
                return
            while self.q and self.kind() != 'vmem':
                self.pop()
            self.pop()
            while self.q and self.kind() == 'salu':
                self.pop()

    def fill(self, reserve=0, pace=0):
        while self.q:
            it = self.q[0]
            if callable(it):
                c = 4
            else:
                i = Ins(it[0] if isinstance(it, tuple) else it)
                if i.kind == 'vmem' and A.t - self.last < pace:
                    return
                c = cost(i, A.prev, True)
            if A.t + c + reserve > A.mfree:
                return
            self.pop()

    def flush(self):
        self.pop(len(self.q))


def poll_load(vaddr, soff, off, vt):
    return f'buffer_load_dword {v(vt)}, {v(vaddr)}, {srd(rWS)}, {soff} offen offset:{off} sc1'


def poll_check(tok, vaddr, soff, off, vt):
    again, chk, ok = A.new('pagain'), A.new('pchk'), A.new('pok')
    A.wait(vm=tok)
    A(f'v_cmp_ne_u32 vcc, {s(sN)}, {v(vt)}')
    A(f's_cbranch_vccnz {again}')
    A.label(ok)
    WARM.label(again)
    WARM('s_mov_b32 s1, 0')
    WARM.label(chk)
    WARM(poll_load(vaddr, soff, off, vt))
    WARM('s_add_u32 s1, s1, 1')
    WARM('s_waitcnt vmcnt(0)')
    WARM(f'v_cmp_ne_u32 vcc, {s(sN)}, {v(vt)}')
    WARM(f's_cmp_ge_u32 s1, {LIMIT}')
    WARM(f's_cbranch_vccz {ok}')
    WARM(f's_cbranch_scc0 {chk}')
    WARM(f's_branch {ok}')


def handoff(stores, fast=True):
    tok = None
    if not (OPT['fast'] and fast):
        for t in stores:
            tok = A(t.replace('@', 'sc1')) or tok
        return tok
    slow, back = A.new('slow'), A.new('back')
    A(f's_cmp_eq_u32 {s(sFAST)}, 0')
    A(f's_cbranch_scc1 {slow}')
    for t in stores:
        tok = A(t.replace('@', '')) or tok
    A.label(back)
    COLD.label(slow)
    for t in stores:
        COLD(t.replace('@', 'sc1'))
    COLD('s_nop 1')
    COLD(f's_branch {back}')
    return tok


def setflag(soff, fast=True, off=0):
    A(f'v_mov_b32 v3, {s(sN)}')
    A('s_mov_b64 exec, 1')
    handoff([f'buffer_store_dword v3, off, {srd(rWS)}, {soff} offset:{off} @'], fast)
    A('s_mov_b64 exec, -1')


def readback(va, soffs, vt):
    if OPT.get('rb', 7):
        for so in soffs:
            A(f'buffer_load_dword {v(vt)}, {v(va)}, {srd(rWS)}, {so} offen sc1')


def unpack2(dst, src):
    return [f'v_lshlrev_b32 {v(dst)}, 16, {v(src)}', f'v_and_b32 {v(dst+1)}, {s(sHI)}, {v(src)}']


def emit(l):
    t = None
    for x in l:
        t = A(x) or t
    return t


def mod_addr(lpr, va, vc, so):
    lg = lpr.bit_length() - 1
    l = [f's_bfe_u32 s3, s2, 0x20005', f's_lshl_b32 s3, s3, 7', f's_lshl_b32 {s(so)}, {s(sW)}, 5', f's_add_u32 s3, s3, {s(so)}',
         f'v_lshrrev_b32 {v(va)}, {lg}, {v(vL)}', f'v_add_u32 {v(va)}, s3, {v(va)}', f'v_lshlrev_b32 {v(vc)}, 1, {v(va)}',
         f'v_mul_u32_u24 {v(va)}, {6144 // 16}, {v(va)}', f'v_and_or_b32 {v(va)}, {v(vL)}, {lpr-1}, {v(va)}', f'v_lshlrev_b32 {v(va)}, 4, {v(va)}',
         f's_lshl_b32 {s(so)}, {s(sRB2)}, 2', f's_and_b32 s3, {s(sHQ)}, 3', f's_add_u32 {s(so)}, {s(so)}, s3', f's_lshl_b32 {s(so)}, {s(so)}, {4+lg}']
    return l


def mod_loads(lpr, colbyte, va, vc, so, PW, PC):
    l = []
    for i in range(lpr // 2):
        if i:
            l.append(f's_add_u32 {s(so)}, {s(so)}, {(64//lpr)*6144}')
        l.append(f'buffer_load_dwordx4 {v(PW+4*i, 4)}, {v(va)}, {srd(rWM)}, {s(so)} offen offset:{colbyte} {NTX}')
    for i in range(lpr // 2):
        l.append(f'global_load_ushort {v(PC+i)}, {v(vc)}, {s(sC, 2)} offset:{(64//lpr)*2*i}')
    return l


def mod_dest(lpr, col0, so, TG):
    lg = lpr.bit_length() - 1
    return [f's_bfe_u32 s5, s2, 0x20005', f's_mul_i32 s5, s5, 12288', f's_and_b32 s3, {s(sHQ)}, 3', f's_lshl2_add_u32 {s(so)}, {s(sRB2)}, s3',
            f's_lshl_b32 {s(so)}, {s(so)}, {5+lg}', f's_add_u32 {s(so)}, {s(so)}, s5', f's_add_u32 {s(so)}, {s(so)}, {MODP + col0*4}',
            f'v_mov_b32 {v(TG)}, {s(sN)}'] + [f'v_lshrrev_b32 {v(TG+e)}, {8*e}, {v(TG)}' for e in range(1, 4)]


def mod_finish(lpr, col0, PW, PC, ACC, UT, pred, bg=lambda: None, pre=None, tw=0):
    nl = lpr // 2
    lg = lpr.bit_length() - 1
    R = range(nl)
    for i in R:
        A(f'v_lshlrev_b32 {v(PC+i)}, 16, {v(PC+i)}')
    for i in R:
        A(f'v_mul_f32 {v(PC+2+i)}, 0xbfb8aa3b, {v(PC+i)}')
    for i in R:
        A(f'v_exp_f32 {v(PC+2+i)}, {v(PC+2+i)}')
    emit(unpack2(UT, PW))
    for i in R:
        A(f'v_add_f32 {v(PC+2+i)}, 1.0, {v(PC+2+i)}')
    for i in R:
        A(f'v_rcp_f32 {v(PC+2+i)}, {v(PC+2+i)}')
    emit(unpack2(UT + 2, PW + 1))
    for i in R:
        A(f'v_mul_f32 {v(PC+i)}, {v(PC+i)}, {v(PC+2+i)}')
    for i in R:
        A(f'v_cvt_pk_bf16_f32 {v(PC+i)}, {v(PC+i)}, {v(PC+i)}')
    for i in R:
        A(f'v_and_b32 {v(PC+i)}, {s(sHI)}, {v(PC+i)}')
    for i in R:
        for r in range(0 if i else 2, 4):
            emit(unpack2(UT + 2 * r, PW + 4 * i + r))
        for e in range(4):
            if i == 0:
                A(f'v_pk_mul_f32 {v(ACC+2*e, 2)}, {v(UT+2*e, 2)}, {v(PC, 2)} op_sel_hi:[1,0]')
            else:
                A(f'v_pk_fma_f32 {v(ACC+2*e, 2)}, {v(UT+2*e, 2)}, {v(PC, 2)}, {v(ACC+2*e, 2)} op_sel:[0,1,0] op_sel_hi:[1,1,1]')
    A(f'v_and_b32 v3, {lpr-1}, {v(vL)}')
    A(f'v_lshlrev_b32 v3, 5, v3')
    for e in range(4):
        A(f'v_permlane32_swap_b32 {v(ACC+e)}, {v(ACC+e+4)}')
    for e in range(2):
        A(f'v_pk_add_f32 {v(ACC+2*e, 2)}, {v(ACC+2*e, 2)}, {v(ACC+2*e+4, 2)}')
    A(f'v_lshrrev_b32 v4, 4, {v(vL)}')
    A(f'v_lshl_add_u32 v3, v4, 3, v3')
    for e in range(2):
        A(f'v_permlane16_swap_b32 {v(ACC+e)}, {v(ACC+e+2)}')
    A(f'v_pk_add_f32 {v(ACC, 2)}, {v(ACC, 2)}, {v(ACC+2, 2)}')
    A(f's_lshl_b32 s5, {s(sW)}, {5+lg}')
    A(f's_add_u32 s5, s5, {pred}')
    extra = [f'v_add_u32 v3, s5, v3', f'v_and_b32 v4, {2*lpr-1}, {v(vL)}', f'v_lshlrev_b32 v4, 4, v4']
    for sh in (8, 4, 2)[:4 - lg]:
        for e in range(2):
            A(f'v_add_f32_dpp {v(ACC+e)}, {v(ACC+e)}, {v(ACC+e)} row_ror:{sh} row_mask:0xf bank_mask:0xf')
        A(extra.pop(0))
    A(f'ds_write_b64 v3, {v(ACC, 2)}')
    emit(extra)
    A(f'v_add_u32 v3, {pred}, v4')
    bg()
    A.wait_all(ds=True)
    barrier()

    def tail():
        for i in range(4):
            A(f'ds_read_b128 {v(UT+4*i, 4)}, v3 offset:{32*lpr*i}')
        so, TG = pre or (4, ACC)
        if not pre:
            emit(mod_dest(lpr, col0, so, TG))
        A(f's_movk_i32 s5, 0xff')
        A.wait_all(ds=True)
        for e in range(2):
            A(f'v_pk_add_f32 {v(UT+2*e, 2)}, {v(UT+2*e, 2)}, {v(UT+4+2*e, 2)}')
            A(f'v_pk_add_f32 {v(UT+8+2*e, 2)}, {v(UT+8+2*e, 2)}, {v(UT+12+2*e, 2)}')
        for e in range(2):
            A(f'v_pk_add_f32 {v(UT+2*e, 2)}, {v(UT+2*e, 2)}, {v(UT+8+2*e, 2)}')
        for e in range(4):
            A(f'v_bfi_b32 {v(ACC+e)}, s5, {v(TG+e)}, {v(UT+e)}')
        A(f's_mov_b64 exec, {(1 << (2*lpr)) - 1}')
        A(f'buffer_store_dwordx4 {v(ACC, 4)}, v4, {srd(rWS)}, {s(so)} offen sc1')
        A('s_mov_b64 exec, -1')
        A('s_nop 1')
    cond_wave(tw, tail)


def gather_loads(sets, G):
    l = []
    for st, (col0, va) in enumerate(sets):
        for q in range(4):
            l += [f's_mov_b32 s1, {MODP + q*12288 + col0*4}',
                  f'buffer_load_dwordx4 {v(G+16*st+4*q, 4)}, {v(va)}, {srd(rWS)}, s1 offen sc1']
    return l


def gather_check(sets, G, tok, T):
    chk, again, ok = A.new('gchk'), A.new('gagain'), A.new('gok')
    for e in range(4):
        A(f's_bfe_u32 {s(4+e)}, {s(sN)}, {hex(0x80000 | (8*e))}')
    A('s_mov_b32 s8, 0')
    A.wait(vm=tok)
    A.label(chk)
    nset = len(sets)
    n = 16 * nset
    for i in range(n):
        A(f'v_xor_b32 {v(G+i)}, {s(4+i%4)}, {v(G+i)}')
    A(f'v_or3_b32 {v(T)}, {v(G)}, {v(G+1)}, {v(G+2)}')
    for i in range(3, n - 1, 2):
        A(f'v_or3_b32 {v(T)}, {v(T)}, {v(G+i)}, {v(G+i+1)}')
    A(f'v_or_b32 {v(T)}, {v(T)}, {v(G+n-1)}')
    A(f'v_lshlrev_b32 {v(T)}, 24, {v(T)}')
    A(f'v_cmp_ne_u32 vcc, 0, {v(T)}')
    A(f's_cbranch_vccnz {again}')
    A.label(ok)
    WARM.label(again)
    WARM('s_add_u32 s8, s8, 1')
    WARM(f's_cmp_ge_u32 s8, {LIMIT}')
    WARM(f's_cbranch_scc1 {ok}')
    for f in gather_loads(sets, G):
        WARM(f)
    WARM('s_waitcnt vmcnt(0)')
    WARM(f's_branch {chk}')
    for st in range(nset):
        g = G + 16 * st
        for e in range(2):
            A(f'v_pk_add_f32 {v(g+2*e, 2)}, {v(g+2*e, 2)}, {v(g+4+2*e, 2)}')
            A(f'v_pk_add_f32 {v(g+8+2*e, 2)}, {v(g+8+2*e, 2)}, {v(g+12+2*e, 2)}')
        for e in range(2):
            A(f'v_pk_add_f32 {v(g+2*e, 2)}, {v(g+2*e, 2)}, {v(g+8+2*e, 2)}')
        A(f'v_cvt_pk_bf16_f32 {v(g)}, {v(g)}, {v(g+1)}')
        A(f'v_cvt_pk_bf16_f32 {v(g+1)}, {v(g+2)}, {v(g+3)}')


def add_const_round(g, sadd):
    emit(unpack2(g + 4, g) + unpack2(g + 6, g + 1))
    for e in range(4):
        A(f'v_add_f32 {v(g+4+e)}, {s(sadd)}, {v(g+4+e)}')
    A(f'v_cvt_pk_bf16_f32 {v(g)}, {v(g+4)}, {v(g+5)}')
    A(f'v_cvt_pk_bf16_f32 {v(g+1)}, {v(g+6)}, {v(g+7)}')


def cond_wave(w, fn):
    sk = A.new('cw')
    A(f's_cmp_lg_u32 {s(sW)}, {w}')
    A(f's_cbranch_scc1 {sk}')
    st = A.cond_begin()
    fn()
    A.cond_end(st)
    A.label(sk)


A('s_cmp_ge_u32 s2, 256')
A('s_cbranch_scc1 L_end')
stamp('rt')
stamp('start')
if OPT['pad']:
    A('s_memrealtime s[100:101]')
    A('s_memtime s[96:97]')
A('s_load_dwordx16 s[4:19], s[0:1], 0')
A('s_load_dwordx2 s[20:21], s[0:1], 64')
A('s_load_dwordx2 s[24:25], s[0:1], 80')
A(f'v_and_b32 {v(vL)}, 63, v0')
A(f'v_lshrrev_b32 v3, 6, v0')
A(f'v_lshlrev_b32 {v(vL16)}, 4, {v(vL)}')
A(f'v_readfirstlane_b32 {s(sW)}, v3')
A(f's_and_b32 s26, s2, 7')
A(f's_lshr_b32 s27, s2, 3')
A(f's_and_b32 {s(sHQ)}, s27, 7')
A(f's_and_b32 {s(sJ)}, s27, 15')
A(f's_lshr_b32 s27, s27, 3')
A(f's_lshl_b32 s26, s26, 2')
A(f's_add_u32 {s(sRB)}, s26, s27')
A(f's_lshr_b32 {s(sRB2)}, {s(sRB)}, 1')
A(f'v_lshlrev_b32 v253, 6, {v(vL)}')
sk = A.new('cpf')
A(f's_cmp_lg_u32 {s(sW)}, 3')
A(f's_cbranch_scc1 {sk}')
A(f's_cmp_ge_u32 s2, {OPT["chunks"]*8}')
A(f's_cbranch_scc1 {sk}')
A(f's_getpc_b64 s[70:71]')
A(f's_lshr_b32 s69, s2, 3')
A(f's_lshl_b32 s69, s69, 11')
A(f'v_add_u32 v3, s69, v253')
st = A.cond_begin()
A('s_mov_b32 exec_hi, 0')
A(f'global_load_dword v255, v3, s[70:71]')
A('s_mov_b32 exec_hi, -1')
A.cond_end(st)
A.label(sk)
A(f's_getreg_b32 {s(sXCC)}, hwreg(HW_REG_XCC_ID, 0, 4)')
A(f's_mov_b32 {s(sHI)}, 0xffff0000')
for r, n in ((rX, 2097152), (rWQ, 1572864), (rWO, 524288), (rW1, 1835008), (rW2, 1835008), (rWM, 3145728), (rWS, 0x1000000), (rOUT, 2097152)):
    A(f's_mov_b32 {s(r+2)}, {n}')
    A(f's_mov_b32 {s(r+3)}, 0x20000')
A(f'v_lshrrev_b32 v5, 4, {v(vL)}')
A(f'v_and_b32 v6, 15, {v(vL)}')
A(f's_lshl_b32 s26, {s(sRB)}, 6')
A(f's_lshl_b32 s27, {s(sW)}, 4')
A(f's_add_u32 s26, s26, s27')
A(f'v_add_u32 v3, s26, v5')
A(f'v_lshlrev_b32 v3, 10, v3')
A(f'v_lshl_add_u32 v254, v6, 4, v3')
A(f'v_min_u32 v24, {31*64}, v253')
A(f'v_min_u32 v25, {23*64}, v253')
A(f's_lshl3_add_u32 s26, {s(sRB)}, {s(sHQ)}')
A(f's_lshl2_add_u32 s26, s26, {s(sW)}')
A(f's_lshl_b32 {s(sBO)}, s26, 11')
A(f's_lshl2_add_u32 s27, s2, {s(sW)}')
A(f's_mul_i32 {s(sFAST)}, s27, 1536')
XF, XP, MOD, GA, PW, PC, PACC = 16, 144, 144, 208, 224, 20, 236
emit(mod_addr(2, 3, 4, 69))
A('s_waitcnt lgkmcnt(0)')
stamp('karg')
if OPT.get('wsoff'):
    A(f's_add_u32 s24, s24, {OPT["wsoff"] << 20}')
    A('s_addc_u32 s25, s25, 0')
A(f's_mov_b64 {s(rWM, 2)}, s[18:19]')
A(f's_mov_b64 {s(rX, 2)}, s[4:5]')
A(f's_mov_b64 {s(rWQ, 2)}, s[6:7]')
tok_p1 = emit(mod_loads(2, 0, 3, 4, 69, PW, PC))
vHW, vWR = 248, 252


def xloads(aa):
    A(f's_movk_i32 s4, {aa << 12}')
    for c in range(4):
        t = A(f'buffer_load_dwordx4 {v(XP+(aa*4+c)*4, 4)}, v254, {srd(rX)}, s4 offen offset:{c*256} {NTY}')
    return t


tok_x = []
SO = {0: ('xab', '', ''), 1: ('x', 'ab', ''), 2: ('x', 'a', 'b'), 3: ('', 'xab', ''), 4: ('x', 'ba', ''), 5: ('xb', 'a', ''), 6: ('', 'xb', 'a'), 7: ('x', 'b', 'a')}[OPT.get('so', 4)]


def first_loads(which):
    for c in which:
        if c == 'x':
            A(f'buffer_load_dword v255, v24, {srd(rX)}, s78 offen {NTX}'.replace('s78', s(sBO)))
        elif c == 'b':
            A(f'buffer_load_dword v255, v25, {srd(rWQ)}, {s(sFAST)} offen')
        else:
            tok_x.append(xloads(0))


first_loads(SO[0])
stamp('iss')
A(f's_load_dword {s(sN)}, {s(sWS, 2)}, {EPOCH}')
for r, p in ((rWO, 8), (rW1, 12), (rW2, 14), (rWS, 24), (rOUT, 20)):
    A(f's_mov_b64 {s(r, 2)}, {s(p, 2)}')
if OPT.get('idle3', 1):
    A(f's_lshr_b32 s3, {s(sJ)}, 3')
    A(f's_cmp_gt_u32 {s(sHQ)}, 3')
    A(f's_subb_u32 {s(sJ)}, {s(sJ)}, s3')
    A(f's_add_u32 s3, s3, 14')
    A(f's_cmp_eq_u32 {s(sHQ)}, 3')
    A(f's_cselect_b32 {s(sJ)}, s3, {s(sJ)}')
A(f's_lshl2_add_u32 s3, {s(sHQ)}, {s(sW)}')
A(f's_lshl_b32 s4, s3, 17')
A(f's_lshl_b32 s5, {s(sRB)}, 12')
A(f's_add_u32 s4, s4, s5')
A(f's_add_u32 {s(sKV)}, s4, {KVB}')
A(f's_lshl_b32 s4, s3, 7')
A(f's_add_u32 s4, s4, s5')
A(f's_add_u32 {s(sFKV)}, s4, {FKV}')
A(f's_lshl_b32 s8, {s(sRB)}, 16')
A(f's_lshl_b32 s5, s3, 9')
A(f's_add_u32 s4, s8, s5')
A(f's_add_u32 {s(sO)}, s4, {OBUF}')
A(f's_lshl_b32 s4, {s(sW)}, 14')
A(f's_add_u32 s4, s4, s8')
A(f's_add_u32 {s(sOL)}, s4, {OBUF}')
A(f's_lshl_b32 s6, {s(sRB)}, 10')
A(f's_add_u32 {s(sPO)}, s6, {FL}')
A(f's_lshl2_add_u32 {s(sFO)}, s3, {s(sPO)}')
A(f's_lshr_b32 s11, {s(sW)}, 1')
A(f's_lshl1_add_u32 s7, {s(sRB)}, s11')
A(f's_lshl_b32 s8, s7, 15')
A(f's_and_b32 s10, {s(sW)}, 1')
A(f's_lshl1_add_u32 s9, {s(sHQ)}, s10')
A(f's_lshl_b32 s4, {s(sHQ)}, 7')
A(f's_add_u32 s4, s4, {s(sOL)}')
A(f's_sub_u32 {s(sTILE)}, s4, {OBUF}')
A(f's_lshl4_add_u32 s4, {s(sHQ)}, s10')
A(f's_lshl_b32 s4, s4, 8')
A(f's_add_u32 s4, s4, s8')
A(f's_add_u32 {s(sY)}, s4, {YBUF}')
A(f's_lshl4_add_u32 s4, s7, s9')
A(f's_lshl_b32 s4, s4, 7')
A(f's_add_u32 {s(sST)}, s4, {STATS}')
A(f's_lshl4_add_u32 s4, s11, s9')
A(f's_lshl2_add_u32 s4, s4, {s(sPO)}')
A(f's_add_u32 {s(sFY)}, s4, 128')
A(f's_mul_i32 s4, s11, {56*512}')
A(f's_mul_i32 s5, s10, {26*512}')
A(f's_add_u32 s4, s4, s5')
A(f's_lshl_b32 {s(sFL1)}, s4, 5')
A(f's_mul_i32 s5, {s(sRB)}, {4*57344}')
A(f's_add_u32 s4, s4, s5')
A(f's_add_u32 {s(sFL0)}, s4, {FBUF}')
A(f's_lshl_b32 s4, s10, 12')
A(f's_add_u32 {s(sDL)}, s4, 2048')
first_loads(SO[1])
A(f's_lshl2_add_u32 s7, {s(sRB2)}, {s(sW)}')
A(f's_lshr_b32 s6, s7, 1')
A(f's_lshl_b32 s6, s6, 10')
A(f's_lshl_b32 s4, s10, 6')
A(f's_add_u32 s4, s4, s6')
A(f's_add_u32 {s(sPY)}, s4, {FL+128}')
A(f's_lshl_b32 s4, s7, 11')
A(f's_add_u32 {s(sSTL)}, s4, {STATS}')
A(f's_lshl_b32 s4, s7, 15')
A(f's_add_u32 {s(sYL)}, s4, {YBUF}')
A(f's_mul_i32 s4, s7, {112*1024}')
A(f's_lshl_b32 s5, {s(sJ)}, 12')
A(f's_add_u32 s4, s4, s5')
A(f's_add_u32 {s(sF)}, s4, {FBUF}')
A(f's_lshl1_add_u32 s5, {s(sJ)}, s10')
A(f's_lshl2_add_u32 s4, s5, s6')
A(f's_add_u32 {s(sFF)}, s4, {FL+256}')
A(f's_mul_i32 s4, {s(sW)}, {RING}')
A(f's_add_u32 {s(sRING)}, s4, {SCR}')
A(f's_lshr_b32 s4, s2, 3')
A(f's_lshl2_add_u32 {s(sIW)}, s4, {s(sW)}')
vQ4 = 244
A(f'v_bfe_u32 v16, {v(vL)}, 2, 3')
A(f'v_mul_u32_u24 v4, 3072, v16')
A(f'v_lshrrev_b32 v17, 5, {v(vL)}')
A(f'v_lshl_add_u32 v4, v17, 6, v4')
A(f'v_and_b32 v3, 3, {v(vL)}')
A(f'v_lshl_add_u32 v4, v3, 4, v4')
A(f's_lshl_b32 s4, {s(sHQ)}, 7')
A(f'v_add_u32 {v(vQ4)}, s4, v4')
A(f'v_xor_b32 v4, 32, {v(vQ4)}')
A(f'v_add_u32 {v(vQ4+1)}, {24576-1024}, v4')
A(f'v_add_u32 {v(vQ4+2)}, {2*(24576-1024)}, {v(vQ4)}')
A(f'v_add_u32 {v(vQ4+3)}, {3*(24576-1024)}, v4')
A(f'v_lshlrev_b32 v4, 10, v16')
A(f'v_lshl_add_u32 v4, v17, 6, v4')
A(f'v_lshl_add_u32 v4, v3, 4, v4')
A(f'v_add_u32 {v(vWD)}, s4, v4')
A(f'v_bfe_u32 v4, {v(vL)}, 4, 1')
A(f'v_lshlrev_b32 v4, 5, v4')
A(f'v_xor_b32 {v(WOA)}, v4, {v(vWD)}')
A(f'v_add_u32 {v(WOA+1)}, 7168, {v(WOA)}')
A(f'v_add_u32 {v(vWD)}, 15360, {v(WOA)}')
A(f'v_mul_u32_u24 v4, 3584, v16')
A(f'v_lshl_add_u32 v4, v17, 6, v4')
A(f'v_lshl_add_u32 v4, v3, 4, v4')
A(f's_lshl_b32 s4, {s(sJ)}, 8')
A(f'v_add_u32 {v(W1A)}, s4, v4')
for i in range(1, 4):
    A(f'v_add_u32 {v(W1A+i)}, {i*(28672-1024)}, {v(W1A)}')
first_loads(SO[2])
A(f'v_lshrrev_b32 v4, 4, {v(vL)}')
A(f'v_lshlrev_b32 v3, 10, v4')
A(f'v_xor_b32 v4, {s(sW)}, v4')
A(f'v_and_b32 v4, 1, v4')
A(f'v_lshl_add_u32 v3, v4, 5, v3')
A(f'v_bfe_u32 v4, {v(vL)}, 2, 2')
A(f'v_lshl_add_u32 v3, v4, 6, v3')
A(f'v_and_b32 v4, 3, {v(vL)}')
A(f'v_lshl_add_u32 v3, v4, 3, v3')
A(f's_lshr_b32 s3, {s(sW)}, 1')
A(f's_lshl_b32 s3, s3, 9')
A(f'v_add_u32 {v(vWR)}, s3, v3')
A(f'v_bfe_u32 v4, {v(vL)}, 2, 2')
A(f'v_lshlrev_b32 v3, 6, v4')
A(f'v_bfe_u32 v4, {v(vL)}, 4, 1')
A(f'v_lshl_add_u32 v3, v4, 5, v3')
A(f'v_and_b32 v4, 3, {v(vL)}')
A(f'v_lshl_add_u32 v3, v4, 3, v3')
A(f'v_lshrrev_b32 v4, 5, {v(vL)}')
A(f'v_lshl_add_u32 {v(vRB)}, v4, 8, v3')
A(f'v_and_b32 v16, 0xe0, v0')
A(f'v_and_b32 v17, 1, v0')
A(f'v_lshl_add_u32 v16, v17, 4, v16')
A(f'v_bfe_u32 v17, v0, 1, 4')
A(f'v_add_u32 v16, v16, v17')
A(f'v_lshlrev_b32 v16, 4, v16')
A(f'v_add_u32 v232, {MODT}, v16')
A(f'v_and_b32 v16, 15, {v(vL)}')
A(f'v_lshlrev_b32 v16, 4, v16')
A(f'v_add_u32 v233, {MODT}, v16')
A(f'v_and_b32 v3, 15, {v(vL)}')
A(f'v_lshl_add_u32 v3, v4, 4, v3')
A(f'v_lshlrev_b32 {v(vVS)}, 4, v3')
A(f'v_bfe_u32 v16, {v(vL)}, 4, 1')
A(f'v_lshl_add_u32 {v(vOS)}, v16, 14, {v(vVS)}')
A(f's_mul_i32 s5, s11, 6144')
A(f's_lshl_b32 s4, s9, 7')
A(f's_add_u32 s4, s4, s5')
A(f'v_and_b32 v17, 7, {v(vL)}')
A(f'v_lshl_add_u32 {v(vG2)}, v17, 4, s4')
A(f'v_lshrrev_b32 v16, 4, {v(vL)}')
A(f'v_and_b32 v4, 15, {v(vL)}')
A(f's_lshl_b32 s5, {s(sW)}, 14')
A(f'v_lshl_add_u32 v3, v4, 8, s5')
A(f'v_and_b32 v4, 7, v4')
A(f'v_xor_b32 v4, v4, v16')
for aa in range(4):
    A(f'v_xor_b32 v16, {4*aa}, v4')
    A(f'v_lshl_add_u32 {v(vHW+aa)}, v16, 4, v3')
emit(mod_addr(4, 234, 235, 1))
A(f'v_add_u32 v234, s1, v234')


def mark(l, key):
    l[-1] = (l[-1], key)
    return l


def touch(rs, chunk, va, vt=255):
    return [f's_lshl2_add_u32 s1, s2, {s(sW)}', f's_mul_i32 s1, s1, {chunk}', f'buffer_load_dword {v(vt)}, {v(va)}, {srd(rs)}, s1 offen']


def touch3(rs, n, va, vt=255):
    if not OPT.get('t3', 1) & {rWQ: 1, rW1: 2, rWO: 4, rW2: 8}[rs]:
        return []
    return [f'v_min_u32 {v(va)}, {2*n-1}, {v(vL)}', f'v_lshlrev_b32 {v(vt)}, 9, {v(va)}', f'v_and_b32 {v(va)}, 1, {v(va)}',
            f'v_mul_u32_u24 {v(va)}, 448, {v(va)}', f'v_sub_u32 {v(va)}, {v(vt)}, {v(va)}', f's_mul_i32 s1, {s(sIW)}, {n*1024}',
            f'buffer_load_dword {v(vt)}, {v(va)}, {srd(rs)}, s1 offen offset:384']


def hello():
    A(f's_andn2_b32 s3, {s(sN)}, 15')
    A(f's_or_b32 s3, s3, {s(sXCC)}')
    A(f'v_mov_b32 v16, s3')
    A(f's_lshl_b32 s3, {s(sRB2)}, 7')
    A(f's_lshl2_add_u32 s3, {s(sJ)}, s3')
    A(f's_add_u32 s3, s3, {HELLO}')
    A('s_mov_b64 exec, 1')
    A(f'buffer_store_dword v16, off, {srd(rWS)}, s3 sc1')
    A('s_mov_b64 exec, -1')


def wq_items(colbyte, region, ks0, nks):
    l = []
    for g in range(nks // 4):
        l += [f's_add_u32 m0, {s(sX)}, {region + g*16384}', f's_add_u32 {s(sBO)}, s11, {colbyte + (ks0 + 4*g)*98304}']
        l += [f'buffer_load_dwordx4 {v(vQ4+n)}, {srd(rWQ)}, {s(sBO)} offen offset:{1024*n} {NTQ} lds' for n in range(4)]
    return l


A(f's_lshl_b32 {s(sX)}, {s(sW)}, 12')
A(f's_mul_i32 s11, {s(sW)}, 98304')
emit([f'v_lshrrev_b32 v16, 3, {v(vL)}', f'v_and_b32 v17, 0x70, {v(vL16)}', 'v_lshl_add_u32 v231, v16, 10, v17'])
t3 = touch3(rWQ, 12, 229, 19)
emit(t3[:-2])
stamp('setup0')
if OPT.get('x1e', 1):
    tok_x.append(xloads(1))
A('s_waitcnt lgkmcnt(0)')
stamp('nonce')
A(f's_add_u32 {s(sN)}, {s(sN)}, 0x9e3779b1')
emit(mod_dest(2, 0, 8, 28))
A.wait(vm=tok_p1)
stamp('pland')


D = Q()
for aa in (2, 3):
    D.add([f's_movk_i32 {s(sBO)}, {aa << 12}'] +
          mark([f'buffer_load_dwordx4 {v(XP+(aa*4+c)*4, 4)}, v254, {srd(rX)}, {s(sBO)} offen offset:{c*256} {NTY}' for c in range(4)], aa))


def x1():
    if OPT.get('x1e', 1):
        D.grp(OPT.get('x2n', 4))
    else:
        tok_x.append(xloads(1))


mod_finish(2, 0, PW, PC, PACC, GA, PRED1, bg=x1, pre=(8, 28))
stamp('setup')
D.add([f'buffer_load_dwordx4 v[208:211], v231, {srd(rX)}, {s(sTILE)} offen {NTY}', f's_add_u32 s1, {s(sTILE)}, 8192',
       f'buffer_load_dwordx4 v[212:215], v231, {srd(rX)}, s1 offen {NTY}'])
T3Q = [x.replace('v19', 'v255') for x in t3[-2:]]
if OPT.get('t3p', 0) == 0:
    D.add(T3Q)
else:
    D.q = T3Q + D.q
M2 = mark(['s_mov_b32 s1, 0'] + mod_loads(4, 2048, 234, 235, 1, 236, 230), 'p2')
if OPT.get('m2', 1) == 0:
    D.add(M2)
D.add(mark(wq_items(1024, LH, 0, 16), 'wk'))
D.grp(OPT.get('x0', 4))

ST, MN, G1 = 216, 224, 144
LNP = OPT.get('lnpace', 56)


def V(t):
    A(t)
    D.grp(1, LNP)


def row_allreduce(grp):
    for sh in (8, 4, 2, 1):
        for aa in grp:
            t0 = ST + 4 * (aa % 2)
            V(f'v_add_f32_dpp {v(t0)}, {v(t0)}, {v(t0)} row_ror:{sh} row_mask:0xf bank_mask:0xf')


A('s_mov_b32 s9, 0x3b000000')
A('s_mov_b32 s10, 0x3f803f80')
A('s_mov_b32 s7, 0x3f80')
A('s_mov_b32 s6, 0x3f800000')
A('v_mov_b32 v228, 0x3727c5ac')
for grp in ((0, 1), (2, 3)):
    for aa in grp:
        A.wait(vm=tok_x[aa] if aa < 2 else D.k[aa])
        stamp(f'x{aa}')
        t0 = ST + 4 * (aa % 2)
        for i in range(16):
            V(f'v_dot2_f32_bf16 {v(t0)}, {v(XP+aa*16+i)}, s10, {v(t0) if i else 0}')
    row_allreduce(grp)
    for aa in grp:
        V(f'v_mul_f32 {v(MN+aa)}, 0xbb000000, {v(ST+4*(aa%2))}')
    for aa in grp:
        b = XF + aa * 32
        t0, t1 = ST + 4 * (aa % 2), ST + 4 * (aa % 2) + 2
        for i in range(16):
            V(f'v_dot2_f32_bf16 {v(b+2*i)}, {v(XP+aa*16+i)}, s7, {v(MN+aa)}')
            V(f'v_dot2_f32_bf16 {v(b+2*i+1)}, {v(XP+aa*16+i)}, s6, {v(MN+aa)}')
        for i in range(16):
            t = t0 if i % 2 == 0 else t1
            if i < 2:
                V(f'v_pk_mul_f32 {v(t, 2)}, {v(b+2*i, 2)}, {v(b+2*i, 2)}')
            else:
                V(f'v_pk_fma_f32 {v(t, 2)}, {v(b+2*i, 2)}, {v(b+2*i, 2)}, {v(t, 2)}')
        V(f'v_pk_add_f32 {v(t0, 2)}, {v(t0, 2)}, {v(t1, 2)}')
        V(f'v_add_f32 {v(t0)}, {v(t0)}, {v(t0+1)}')
    if grp == (2, 3):
        D.flush()
        A(f'v_lshlrev_b32 v4, 4, v0')
        tok_g1 = emit(gather_loads([(0, 4)], G1))
        D.add(mark(wq_items(2048, WVL, 0, 8), 'wvl') + mark(wq_items(2048, WVH, 8, 8), 'wvh'))
    row_allreduce(grp)
    for aa in grp:
        V(f'v_fma_f32 {v(MN+aa)}, {v(ST+4*(aa%2))}, s9, v228')
    for aa in grp:
        V(f'v_rsq_f32 {v(MN+aa)}, {v(MN+aa)}')
    for aa in grp:
        b = XF + aa * 32
        for i in range(16):
            V(f'v_pk_mul_f32 {v(b+2*i, 2)}, {v(b+2*i, 2)}, {v(MN+(aa//2)*2, 2)} op_sel:[0,{aa%2}] op_sel_hi:[1,{aa%2}]')
D.grp(OPT.get('v0', 6))
stamp('ln_pre')
WKR = [f'ds_read_b64_tr_b16 {a(4*ks+2*rd, 2)}, {v(vWR)} offset:{ks*4096+rd*256}' for ks in range(16) for rd in range(2)]
MO1 = OPT.get('mo', 0)
if not MO1:
    A.wait(vm=D.k['wk'])
    barrier()
    stamp('wkl')
    emit(WKR)
    D.grp(2)
    stamp('wk')
gather_check([(0, 4)], G1, tok_g1, 3)
stamp('gchk')
A(f's_cmp_ge_u32 {s(sW)}, 2')
A(f's_cselect_b32 s3, 1.0, 0')
add_const_round(G1, 3)
emit(unpack2(G1 + 4, G1) + unpack2(G1 + 6, G1 + 1))
A(f'ds_write_b128 v232, {v(G1+4, 4)}')
D.grp(2)
A.wait_all(ds=True)
barrier()
stamp('mod')
tm = []


def mod_reads(c):
    for arr in range(2):
        for hlf in range(2):
            t = A(f'ds_read_b128 {v(MOD+arr*32+c*8+hlf*4, 4)}, v233 offset:{arr*2048+c*512+hlf*256}')
    tm.append(t)


mod_reads(0)
if MO1:
    emit(WKR)
    twk = A.ds
    D.grp(2)
mod_reads(1)
vH0, vH1, vB1, vB2 = 224, 225, 226, 227
A(f'v_lshrrev_b32 v254, 4, {v(vL)}')
A(f'v_and_b32 v3, 15, {v(vL)}')
A(f'v_xor_b32 v3, v3, v254')
A(f'v_lshlrev_b32 v3, 4, v3')
A(f'v_lshl_add_u32 {v(vH0)}, v254, 8, v3')
A(f'v_xor_b32 {v(vH1)}, 64, {v(vH0)}')
A(f'v_add_u32 {v(vB1)}, {WVH}, {v(vWR)}')
A(f'v_add_u32 {v(vB2)}, {WQL}, {v(vWR)}')
A(f'v_min_u32 v228, {27*64}, v253')
A(f'v_min_u32 v229, {7*64}, v253')
A(f'v_lshrrev_b32 v3, 4, v0')
A(f'v_min_u32 v3, 9, v3')
A(f'v_lshlrev_b32 v3, 6, v3')
D.add(touch(rWO, 512, 229) + (touch(rW1, 1792, 228) if OPT.get('tw1', 0) == 0 else []) + [f'buffer_load_dword v255, v3, {srd(rWS)}, {s(sPO)} offen sc1'])
if OPT.get('m2', 1) == 1:
    D.add(M2)
if OPT.get('tw2', 0) == 0:
    D.add(touch(rW2, 1792, 228))
for c in range(4):
    A.wait(ds=tm[c])
    stamp(f'h{c}')
    for aa in range(4):
        b = XF + aa * 32 + c * 8
        for i in range(4):
            A(f'v_pk_fma_f32 {v(b+2*i, 2)}, {v(b+2*i, 2)}, {v(MOD+32+c*8+2*i, 2)}, {v(MOD+c*8+2*i, 2)}')
        for i in range(4):
            A(f'v_cvt_pk_bf16_f32 {v(b+i)}, {v(b+2*i)}, {v(b+2*i+1)}')
        if aa == 0 and c < 2:
            mod_reads(c + 2)
        if MO1 and (c, aa) == (0, 0):
            A.wait(ds=twk)
            barrier()
        A(f'ds_write_b128 {v(vHW+aa)}, {v(b, 4)} offset:{c*4096}')
        D.grp(1, OPT.get('hp', 50))
D.flush()
stamp('hw')
A.wait(vm=D.k['wvl'], ds=A.ds)
barrier()
stamp('h')

AK, AV, AQ, WB = 144, 160, 176, 64
QF, KO, VO, KH, VH, SB, PB, MD, MO, OA = 16, 24, 32, 48, 80, 144, 176, 192, 208, 224
PW2, PC2 = 48, 56


def hreg(u, ks):
    return v(80 + ks * 16 + u * 4, 4) if ks < 4 else a(ks * 16 + u * 4, 4)


def mm16(d, x, y, first):
    A(f'v_mfma_f32_16x16x32_bf16 {v(d, 4)}, {x}, {y}, {"0" if first else v(d, 4)}')


CH = OPT.get('ch', 4)
VB = [WB, WB + 4, WB + 8, WB + 12] + ([AQ, AQ + 4] if CH & 1 else [])


def kv_reads(ks):
    l = [f'ds_read_b128 {hreg(u, ks)}, {v(vH0 + ks % 2)} offset:{u*16384+ks*1024}' for u in range(4)]
    wb = VB[ks % len(VB)]
    off = WVL - WVH + ks * 4096 if ks < 8 else (ks - 8) * 4096
    w = [f'ds_read_b64_tr_b16 {v(wb+2*rd, 2)}, {v(vB1)} offset:{off+rd*256}' for rd in range(2)]
    return [l[0], w[0], w[1], l[1], l[2], l[3]]


fl = Q([f'v_mov_b64 {v(52+2*i, 2)}, {v(208+2*i, 2)}' for i in range(4)] + [f'v_add_u32 v51, {s(sRING)}, {v(vL16)}', f'v_and_b32 v60, 31, {v(vL)}', f'v_lshrrev_b32 v61, 5, {v(vL)}', 'v_lshlrev_b32 v61, 2, v61', 'v_sub_u32 v60, v60, v61',
        'v_mov_b32 v61, 0xf149f2ca', 'v_mov_b32 v62, 0'])
ONE = 'v232' if OPT.get('one', 1) else 's10'
fl.add([f'v_and_b32 v233, 11, {v(vL)}', 'v_cmp_eq_u32 vcc, 0, v233', 'v_mov_b32 v233, s10', 'v_cndmask_b32 v232, v62, v233, vcc'])
for i in range(16):
    fl.add([f'v_cmp_le_i32 vcc, {8*(i//4) + i % 4}, v60'] + ([f'v_mov_b32 {v(VO+8*(i//4)+4+i%4)}, {ONE}'] if i < 8 else []) +
           [f'v_cndmask_b32 {v(MD+i)}, v61, v62, vcc', f'v_cndmask_b32 {v(MO+i)}, v62, v61, vcc'])
QL0, QH0 = OPT.get('ql0', 2), OPT.get('qh0', 8)
fl.q.insert(0, lambda: cond_wave(3, hello))
fl.add([f'v_bfe_u32 v48, {v(vL)}, 4, 1', f'v_lshl_add_u32 v48, v48, 9, {v(vVS)}',
        f'v_and_b32 v50, 15, {v(vL)}', f'v_lshlrev_b32 v50, 2, v50'])
if CH & 1:
    tk = {}
    for ks in range(2):
        for t in kv_reads(ks):
            tk[ks] = A(t)
    todo = Q([(t, ks) for ks in range(2, 16) for t in kv_reads(ks)])
    todo.pop(OPT.get('kvp', 6))
    for kp in range(0, 16, 2):
        A.wait(ds=tk.get(kp + 1) or todo.k[kp + 1], vm=D.k['wvh'] if kp == 4 else None)
        assert not any(k <= kp + 1 for _, k in todo.q)
        if kp in (4, 8):
            barrier()
        for ks in (kp, kp + 1):
            if ks == QL0:
                D.add(mark(wq_items(0, WQL, 0, 8), 'wql'))
            if ks == QH0:
                D.add(touch3(rWO, 4, 17, 18) + mark(wq_items(0, WVL, 8, 8), 'wqh'))
        n = 0
        for u in range(4):
            for which in range(2):
                for ks in (kp, kp + 1):
                    if which == 0:
                        mm16(AK + 4 * u, a(4 * ks, 4), hreg(u, ks), ks == 0)
                    else:
                        mm16(AV + 4 * u, hreg(u, ks), v(VB[ks % 6], 4), ks == 0)
                    n += 1
                    res = 4 if n == 16 else 0
                    if todo.q and n % 4 and not ('tr_b16' in todo.q[0][0] and todo.q[0][1] >= kp + 6):
                        todo.pop()
                    elif n % 8 == 0 and D.q and D.kind() == 'vmem' and len(D.q) > 1.5 * (14 - kp):
                        D.pop()
                    D.fill(res, 60)
                    fl.fill(res)
else:
    LOOK = 2
    tk = {}
    for ks in range(LOOK):
        for t in kv_reads(ks):
            tk[ks] = A(t)
    for ks in range(16):
        nxt = kv_reads(ks + LOOK) if ks + LOOK < 16 else []
        A.wait(ds=tk[ks], vm=D.k['wvh'] if ks == 5 else None)
        if ks == 5:
            barrier()
        if ks == 8:
            barrier()
        if ks == QL0:
            D.add(mark(wq_items(0, WQL, 0, 8), 'wql'))
        if ks == QH0:
            D.add(touch3(rWO, 4, 17, 18) + mark(wq_items(0, WVL, 8, 8), 'wqh'))
        wb = v(WB + 4 * (ks % 4), 4)
        n = 0
        for u in range(4):
            for which in range(2):
                if which == 0:
                    mm16(AK + 4 * u, a(4 * ks, 4), hreg(u, ks), ks == 0)
                else:
                    mm16(AV + 4 * u, hreg(u, ks), wb, ks == 0)
                if n < len(nxt):
                    tk[ks + LOOK] = A(nxt[n])
                n += 1
                res = 4 if n == 8 else 0
                if n == 8 and D.q and D.kind() == 'vmem' and len(D.q) > 1.5 * (15 - ks):
                    D.pop()
                D.fill(res, 60)
                fl.fill(res)
D.flush()
assert not fl.q
stamp('kv')


def pack2(dst, acc):
    return [f'v_cvt_pk_bf16_f32 {v(dst+2*u+r)}, {v(acc+4*u+2*r)}, {v(acc+4*u+2*r+1)}' for u in range(2) for r in range(2)]


QB = [WB, WB + 4, WB + 8, WB + 12, 144, 148]


def q_reads(ks):
    wb = QB[ks % 6] if CH & 2 else WB + 4 * (ks % 4)
    base, off = (vB2, ks * 4096) if ks < 8 else (vB1, WVL - WVH + (ks - 8) * 4096)
    return [f'ds_read_b64_tr_b16 {v(wb+2*rd, 2)}, {v(base)} offset:{off+rd*256}' for rd in range(2)]


def q_start():
    A.wait(vm=D.k['wql'])
    barrier()
    for ks in range(LOOK):
        for t in q_reads(ks):
            tk[ks] = A(t)


LOOK = 3
tk = {}
def kv_store(r, T, off, va):
    return A(f'buffer_store_dwordx4 {v(r, 4)}, {v(va)}, {srd(rWS)}, {s(sKV)} offen offset:{T*2048+off} sc1')


def swaps(kind, r):
    return [f'v_permlane{kind}_swap_b32 {v(r+i)}, {v(r+2+i)}' for i in range(2)]


emit(pack2(KO, AK) + pack2(KO + 4, AK + 8) + swaps(16, KO))
kv_store(KO, 0, 0, vL16)
emit(swaps(16, KO + 4) + pack2(VO, AV) + pack2(VO + 8, AV + 8))
kv_store(KO + 4, 1, 0, vL16)
emit(swaps(16, VO) + swaps(16, VO + 8) + swaps(32, VO))
kv_store(VO, 0, 1024, 48)
emit(swaps(32, VO + 8))
q_start()
tok_kv = kv_store(VO + 8, 1, 1024, 48)
stamp('kvst')


def w1_items(img, gs=range(4)):
    l = []
    for g in gs:
        l += [f's_add_u32 m0, {s(sX)}, {img*65536 + g*16384}', f's_mul_i32 {s(sBO)}, {s(sX)}, 28', f's_add_u32 {s(sBO)}, {s(sBO)}, {g*458752 + img*128}']
        l += [f'buffer_load_dwordx4 {v(W1A+i)}, {srd(rW1)}, {s(sBO)} offen offset:{1024*i} {NTW} lds' for i in range(4)]
    return l


def wo_items(gs):
    l = []
    for g in gs:
        l += [f's_add_u32 m0, {s(sX)}, {WOS + g*16384}', f's_lshl3_add_u32 {s(sBO)}, {s(sX)}, {g*131072}']
        for i in range(4):
            if i == 2:
                l.append(f's_add_u32 {s(sBO)}, {s(sBO)}, 14336')
            l.append(f'buffer_load_dwordx4 {v(WOA+i%2)}, {srd(rWO)}, {s(sBO)} offen offset:{1024*i} {NTW} lds')
    return l


def ones(d):
    def f():
        A(f's_cmp_ge_u32 {s(sRB)}, {d}')
        A(f's_cselect_b32 s6, s10, 0')
    r = VH + 16 * (4 - d)
    if OPT.get('one', 1):
        return [f, f'v_and_b32 {v(r)}, s6, v232', f'v_and_b32 {v(r+1)}, s6, v232'] + [f'v_mov_b64 {v(r+2*i, 2)}, {v(r, 2)}' for i in range(1, 8)]
    return [f, 's_mov_b32 s7, s6'] + [f'v_mov_b64 {v(r+2*i, 2)}, s[6:7]' for i in range(8)]


fl.add([f'v_permlane16_swap_b32 {v(VO+8*T+i)}, {v(VO+8*T+4+i)}' for T in range(2) for i in range(4)])
fl.add([f'v_bfe_u32 v16, {v(vL)}, 4, 1', f'v_lshrrev_b32 v19, 5, {v(vL)}', f'v_lshl_add_u32 v48, v16, 8, {v(vRB)}', 'v_mul_u32_u24 v19, 0x700, v19',
        'v_add_u32 v48, v19, v48', 'v_xor_b32 v49, 32, v48'])
fl2 = Q(ones(4) + ones(3) + ones(2) + ones(1))
W1P = OPT.get('w1pace', 60)
D.add(mark([f's_lshl_b32 s1, {s(sRB2)}, 7', f's_add_u32 s1, s1, {HELLO}', f'buffer_load_dword v63, v50, {srd(rWS)}, s1 offen sc1'], 'hello'))
D.add(mark(wo_items((0, 1)), 'woa') + mark(wo_items((2, 3)), 'wo') + touch3(rW1, 14, 60, 61))


def idle_w1():
    A(f's_cmp_lt_u32 {s(sJ)}, 14')
    A(f's_cselect_b32 {s(rW1+2)}, 1835008, 0')


NI = OPT.get('ni', 4)
D.add(([idle_w1] if NI else []) + w1_items(1, range(min(NI, 2))))
D.last = A.t + OPT.get('w10', 100)
def kv_flag():
    A(f'v_mov_b32 v3, {s(sN)}')
    A.wait(vm=tok_kv)
    A('s_mov_b64 exec, 0xffff')
    A(f'buffer_store_dword v3, v50, {srd(rWS)}, {s(sFKV)} offen sc1')
    A('s_mov_b64 exec, -1')


if CH & 2:
    for kp in range(0, 16, 2):
        A.wait(ds=tk[kp + 1], vm=D.k['wqh'] if kp == 4 else None)
        if kp == 4:
            barrier()
        nxt = [(t, ks) for ks in (kp + 3, kp + 4) if ks < 16 for t in q_reads(ks)]
        n = 0
        for u in range(4):
            for ks in (kp, kp + 1):
                mm16(AQ + 4 * u, v(QB[ks % 6], 4), hreg(u, ks), ks == 0)
                n += 1
                res = 4 if n == 8 else 0
                if n % 4 == 1:
                    if kp + n // 4 >= OPT.get('q0', 3) and D.q and D.kind() == 'vmem':
                        D.pop()
                elif nxt and n % 4:
                    t, k = nxt.pop(0)
                    tk[k] = A(t)
                D.fill(res, 10**6)
                fl.fill(res)
                if kp >= 4:
                    fl2.fill(res)
        if kp == OPT.get('kvf', 12):
            kv_flag()
else:
    for ks in range(16):
        nxt = q_reads(ks + LOOK) if ks + LOOK < 16 else []
        A.wait(ds=tk[ks], vm=D.k['wqh'] if ks == 5 else None)
        if ks == 5:
            barrier()
        for u in range(4):
            mm16(AQ + 4 * u, v(WB + 4 * (ks % 4), 4), hreg(u, ks), ks == 0)
            if u >= 2 and nxt:
                tk[ks + LOOK] = A(nxt[u - 2])
            res = 4 if u == 3 else 0
            if u == 0 and ks >= OPT.get('q0', 3) and D.q and D.kind() == 'vmem':
                D.pop()
            D.fill(res, 10**6)
            fl.fill(res)
            if ks >= 4:
                fl2.fill(res)
        if ks == OPT.get('kvf', 12):
            kv_flag()
fl.flush()
fl2.flush()
stamp('q')
D.grp(OPT.get('w1a', 2))
A('s_mov_b32 s4, 0x3eb8aa3b')
A('s_mov_b32 s5, 0x3eb8aa3b')
for i in range(4):
    A(f'v_pk_mul_f32 {v(AQ+2*i, 2)}, {v(AQ+2*i, 2)}, s[4:5]')
emit(pack2(QF, AQ))
for i in range(4, 8):
    A(f'v_pk_mul_f32 {v(AQ+2*i, 2)}, {v(AQ+2*i, 2)}, s[4:5]')
for r in range(2):
    A(f'v_permlane16_swap_b32 {v(QF+r)}, {v(QF+2+r)}')
emit(pack2(QF + 4, AQ + 8))
D.grp()
for r in range(2):
    A(f'v_permlane16_swap_b32 {v(QF+4+r)}, {v(QF+6+r)}')
A(f's_mov_b64 {s(rH, 2)}, {s(sWS, 2)}')
again, chk, ok = A.new('hagain'), A.new('hchk'), A.new('hok')
A(f's_andn2_b32 s3, {s(sN)}, 15')
A(f's_or_b32 s3, s3, {s(sXCC)}')
A(f's_mov_b32 {s(sFAST)}, 1')
A.wait(vm=D.k['hello'])
A(f'v_cmp_ne_u32 vcc, s3, v63')
A(f's_cbranch_vccnz {again}')
A.label(ok)
WARM.label(again)
WARM(f's_lshl_b32 s4, {s(sRB2)}, 7')
WARM(f's_add_u32 s4, s4, {HELLO}')
WARM('s_mov_b32 s5, 0')
WARM.label(chk)
WARM(f'buffer_load_dword v63, v50, {srd(rWS)}, s4 offen sc1')
WARM('s_add_u32 s5, s5, 1')
WARM('s_waitcnt vmcnt(0)')
WARM('v_cmp_ne_u32 vcc, s3, v63')
WARM('v_xor_b32 v63, s3, v63')
WARM('s_cmp_eq_u64 vcc, 0')
WARM(f's_cselect_b32 {s(sFAST)}, 1, 0')
WARM('v_cmp_lt_u32 vcc, 15, v63')
WARM(f's_cmp_ge_u32 s5, {LIMIT}')
WARM(f's_cbranch_vccz {ok}')
WARM(f's_cbranch_scc0 {chk}')
WARM(f's_branch {ok}')
D.grp()


def m2bg():
    D.grp(2)
    A.wait(vm=D.k['woa'])


mod_finish(4, 1024, 236, 230, PB, SB + 16, PRED2, bg=m2bg)
D.add(w1_items(1, range(2, max(NI, 2))))
for d in range(1, 5):
    A(f's_cmp_ge_u32 {s(sRB)}, {d}')
    A(f's_cselect_b32 s3, {d*4096}, 0')
    A(f's_sub_u32 {s(3+d)}, {s(sFKV)}, s3')
A('ds_write_b128 v51, v[52:55]')
A('ds_write_b128 v51, v[56:59] offset:1024')
stamp('m2')


def mm32(X, d, x, y, c):
    X(f'v_mfma_f32_32x32x16_bf16 {d}, {x}, {y}, {c}')


def units_of(blk):
    if blk == 0:
        return [(0, KO, VO, MD, 0), (1, KO, VO, None, 0), (1, KO + 4, VO + 8, MD, 0)]
    t0 = 8 - 2 * blk
    r = []
    for t in (t0 + 1, t0):
        for q in (0, 1):
            if t < q:
                continue
            r.append((q, KH + 4 * t, VH + 8 * t, MO if t == q else None, blk))
    return r


def s_mm(X, un, buf):
    q, k, _, m, _ = un
    mm32(X, v(SB + 16 * buf, 16), v(k, 4), v(QF + 4 * q, 4), v(m, 16) if m else '0')


def attn_units(X, uns, first, sub=None, bg=None, ready=None, head=None):
    if ready:
        ready(uns[0])
    s_mm(X, uns[0], 0)
    if head:
        head()
    pend = None
    for n, un in enumerate(uns):
        q, _, vr, _, _ = un
        if X is A:
            stamp(f'u{n}')
        sb = SB + 16 * (n % 2)
        pb = PB + 8 * (n % 2)
        o = v(OA + 16 * q, 16)
        for hf in range(2):
            b = sb + 8 * hf
            if sub:
                for i in range(8):
                    X(f'v_sub_f32 {v(b+i)}, {v(b+i)}, {v(sub+q)}')
            seq = [('e', 0), ('p', 0), ('e', 1), ('e', 2), ('m', 0), ('c', 0), ('e', 3), ('e', 4), ('c', 1), ('e', 5), ('s', 0), ('e', 6), ('c', 2), ('e', 7)]
            for kind, i in seq:
                if kind == 'e':
                    X(f'v_exp_f32 {v(b+i)}, {v(b+i)}')
                elif kind == 'c':
                    X(f'v_cvt_pk_bf16_f32 {v(pb+4*hf+i)}, {v(b+2*i)}, {v(b+2*i+1)}')
                elif kind == 'p' and pend:
                    X(pend[0])
                elif kind == 'm' and pend:
                    mm32(X, *pend[1])
                    pend = None
                    if bg:
                        bg(n)
                elif kind == 's' and hf == 0 and n + 1 < len(uns):
                    if ready:
                        ready(uns[n + 1])
                    s_mm(X, uns[n + 1], (n + 1) % 2)
                    if bg:
                        bg(n)
            pend = (f'v_cvt_pk_bf16_f32 {v(pb+4*hf+3)}, {v(b+6)}, {v(b+7)}',
                    (o, v(vr + 4 * hf, 4), v(pb + 4 * hf, 4), '0' if q in first else o))
            first.discard(q)
    X(pend[0])
    mm32(X, *pend[1])


def kv_poll(X):
    for d in range(4):
        X(f's_load_dword {s(8+d)}, {s(sWS, 2)}, {s(4+d)} glc')


ep, epb = A.new('ep'), A.new('epb')
A(f's_lshl2_add_u32 s3, s2, {s(sW)}')
A(f's_cmp_eq_u32 s3, 3')
A(f's_cbranch_scc1 {ep}')
A.label(epb)
lp, dn = A.new('epl'), A.new('epd')
WARM.label(ep)
WARM(f'v_lshrrev_b32 v3, 2, {v(vL)}')
WARM(f'v_lshlrev_b32 v3, 7, v3')
WARM(f'v_and_b32 v4, 3, {v(vL)}')
WARM(f'v_lshl_add_u32 v3, v4, 4, v3')
WARM(f's_mov_b32 s1, {HELLO}')
WARM('s_mov_b32 s3, 0')
WARM.label(lp)
WARM(f'buffer_load_dwordx4 v[72:75], v3, {srd(rWS)}, s1 offen sc1')
WARM('s_add_u32 s3, s3, 1')
WARM('s_waitcnt vmcnt(0)')
for i in range(4):
    WARM(f'v_xor_b32 {v(72+i)}, {s(sN)}, {v(72+i)}')
WARM('v_or_b32 v72, v72, v73')
WARM('v_or3_b32 v72, v72, v74, v75')
WARM('v_cmp_lt_u32 vcc, 15, v72')
WARM(f's_cmp_lt_u32 s3, {LIMIT}')
WARM(f's_cbranch_vccz {dn}')
WARM(f's_cbranch_scc1 {lp}')
WARM.label(dn)
WARM(f'v_mov_b32 v3, {s(sN)}')
WARM('s_mov_b64 exec, 1')
WARM(f'buffer_store_dword v3, off, {srd(rWS)}, 0 offset:{EPOCH} sc1')
WARM('s_mov_b64 exec, -1')
WARM(f's_branch {epb}')


def kv_wait():
    stamp('own')
    lp, again, dn = A.new('kvp'), A.new('kva'), A.new('kvd')
    A('s_mov_b32 s3, 0')
    A.label(lp)
    A('s_waitcnt lgkmcnt(0)')
    A(f's_xor_b32 s8, s8, {s(sN)}')
    for r in (9, 10, 11):
        A(f's_xor_b32 {s(r)}, {s(r)}, {s(sN)}')
        A(f's_or_b32 s8, s8, {s(r)}')
    A(f's_cbranch_scc1 {again}')
    A.label(dn)
    WARM.label(again)
    WARM('s_add_u32 s3, s3, 1')
    WARM(f's_cmp_ge_u32 s3, {LIMIT}')
    WARM(f's_cbranch_scc1 {dn}')
    kv_poll(WARM)
    WARM(f's_branch {lp}')
    stamp('kvflag')
    A('s_mov_b32 s8, 0xffff')
    A('s_mov_b32 s9, 0xffff')


def halo_loads(X, d):
    X(f's_cmp_ge_u32 {s(sRB)}, {d}')
    X(f's_cselect_b32 {s(rH+2)}, 0x1000000, 0')
    X(f's_sub_u32 s3, {s(sKV)}, {d*4096}')
    t0 = 8 - 2 * d
    for T in (1, 0):
        X(f'buffer_load_dwordx4 {v(KH+4*(t0+T), 4)}, {v(vL16)}, {srd(rH)}, s3 offen offset:{T*2048} sc1')
    X('s_mov_b64 exec, s[8:9]')
    for u in (2, 3, 0, 1):
        t = X(f'buffer_load_dwordx4 {v(VH+8*t0+4*u, 4)}, {v(vVS)}, {srd(rH)}, s3 offen offset:{(u//2)*2048+1024+(u%2)*512} sc1')
    X('s_mov_b64 exec, -1')
    return t


SETS2 = [(1536, vVS), (1024, vG2)]
G2 = VH + 32
qg2 = Q([f'v_lshlrev_b32 {v(vVS)}, 4, v0'] + [x.replace('s1', 's4') for x in gather_loads(SETS2, G2)])
wor = Q([f'ds_read_b64_tr_b16 {a(16*ks+4*tl+2*rd, 2)}, {v(48+tl%2)} offset:{WOS+ks*4096+rd*1024+(tl//2)*512}' for ks in range(16) for tl in range(4) for rd in range(2)])
sW2, sW2b = sFL1, 11
SLOT = {}


def kunit(u):
    if u < 7:
        return 8 * (u // 2), u % 2
    if u == 13:
        return 28, 0
    return 8 * ((u - 7) % 3) + 4, 2 + (u - 7) // 3


SW2 = [sW2, sW2b, 10, sKV]


def w2_dma(m, q):
    SLOT[m] = q
    k, b = kunit(m // 2)
    return [f's_add_u32 m0, {s(sRING)}, {2048*q}' if q < 3 else f's_add_u32 m0, {s(sFKV)}, {8192*(q-3)}',
            f's_add_u32 {s(sBO)}, {s(SW2[b])}, {16384*k + 8192*(m%2)}',
            f'buffer_load_dwordx4 {v(WOA)}, {srd(rW2)}, {s(sBO)} offen {NTW} lds',
            (f'buffer_load_dwordx4 {v(vWD)}, {srd(rW2)}, {s(sBO)} offen offset:1024 {NTW} lds', ('w2', m))]


def lds_sync():
    A.wait_all(ds=True)
    barrier()


bgc = [0]
tok_h = {0: 0}
HS = [-1, OPT.get('h3', 1), OPT.get('h4', 5)]


def att_bg(n):
    bgc[0] += 1
    c = bgc[0]
    if c in HS:
        d = HS.index(c) + 2
        assert d < 4 or not wor.q
        tok_h[d] = halo_loads(A, d)
    elif wor.q:
        wor.pop(8)
    elif c > HS[2]:
        if n >= 12 and qg2.q:
            qg2.grp(OPT.get('g2n', 2))
        else:
            D.grp(1, OPT.get('apace', 50))


NEV = OPT.get('nev', 16)
WR = min(OPT.get('wr', 9), NEV)
wor2 = wor.q[8 * NEV:]
wor.q = wor.q[:8 * NEV]
for i in range(NEV + 1):
    if i == OPT.get('kp', 0):
        kv_poll(A)
    if i == WR:
        kv_wait()
        tok_h[1] = halo_loads(A, 1)
    if i == min(WR + OPT.get('wr2', 2), NEV):
        tok_h[2] = halo_loads(A, 2)
    if i == 8 and NEV > 8:
        A.wait(vm=D.k['wo'])
        barrier()
    wor.pop(8)
    if i < WR:
        D.grp(1, OPT.get('wrp', 100))
D.add([idle_w1] + w1_items(1, range(NI, 4)) + [lds_sync] + mark(w1_items(0, range(NEV // 4)), 'w1') + touch3(rW2, 14, 79, 78) +
      [f's_lshl4_add_u32 {s(sW2b)}, {s(sDL)}, {s(sW2)}', f's_lshl_b32 {s(sFKV)}, {s(sW)}, 11'])
if OPT.get('b0e', 1):
    D.add(w2_dma(0, 1) + w2_dma(1, 2))
attn_units(A, [u for d in range(5) for u in units_of(d)], {0, 1}, bg=att_bg, ready=lambda un: A.wait(vm=tok_h[un[4]]))
print('left after attention:', sum(1 for x in D.q if 'buffer' in str(x)))
D.flush()
assert not D.q and not qg2.q, (len(D.q), len(qg2.q))
stamp('uend')
redo, fin = A.new('redo'), A.new('attfin')
A(f's_mov_b32 s3, {"0" if OPT["forcemax"] else "0x5f800000"}')
A(f's_mov_b32 s1, 0x1f800000')
A(f's_add_u32 {s(sRB2)}, {s(sO)}, 32768')
A(f'v_max_f32 {v(SB)}, {v(OA+8)}, {v(OA+24)}')
A(f'v_min_f32 {v(SB+1)}, {v(OA+8)}, {v(OA+24)}')
A(f'v_cmp_u_f32 s[6:7], {v(OA+8)}, {v(OA+24)}')
A(f'v_cmp_nle_f32 s[4:5], s1, {v(SB+1)}')
A(f'v_cmp_nge_f32 vcc, s3, {v(SB)}')
A('s_or_b64 s[4:5], s[6:7], s[4:5]')
A('s_or_b64 vcc, vcc, s[4:5]')
A(f's_cbranch_vccnz {redo}')
A.label(fin)
C = COLD
C.label(redo)
C('s_waitcnt vmcnt(0)')
C(f'v_lshrrev_b32 v4, 5, {v(vL)}')
C(f'v_and_b32 v3, 15, {v(vL)}')
C(f'v_lshl_add_u32 v3, v4, 4, v3')
C(f'v_lshlrev_b32 {v(vVS)}, 4, v3')
for i in range(32):
    C(f'v_mov_b32 {v(G2+i)}, 0x3f803f80')
for d in (1, 2):
    halo_loads(C, d)
C('s_waitcnt vmcnt(0)')
C(f'v_mov_b32 v3, 0xff7fffff')
C(f'v_mov_b32 v4, 0xff7fffff')
mx_end, p2_end = C.new('mxend'), C.new('p2end')
for d in range(5):
    if d:
        C(f's_cmp_lt_u32 {s(sRB)}, {d}')
        C(f's_cbranch_scc1 {mx_end}')
    for un in units_of(d):
        s_mm(C, un, 0)
        for i in range(0, 16, 2):
            C(f'v_max3_f32 {v(3+un[0])}, {v(3+un[0])}, {v(SB+i)}, {v(SB+i+1)}')
C.label(mx_end)
for q in range(2):
    C(f'v_mov_b32 {v(SB)}, {v(3+q)}')
    C(f'v_permlane32_swap_b32 {v(SB)}, {v(3+q)}')
    C(f'v_max_f32 {v(3+q)}, {v(SB)}, {v(3+q)}')
fs = {0, 1}
for d in range(5):
    if d:
        C(f's_cmp_lt_u32 {s(sRB)}, {d}')
        C(f's_cbranch_scc1 {p2_end}')
    attn_units(C, units_of(d), fs, sub=3)
C('s_nop 7')
C.label(p2_end)
C('s_nop 7')
C(f'v_lshlrev_b32 {v(vVS)}, 4, v0')
for f in gather_loads(SETS2, G2):
    C(f)
C('s_waitcnt vmcnt(0)')
C(f's_branch {fin}')
for q in range(2):
    A(f'v_rcp_f32 {v(OA+16*q+8)}, {v(OA+16*q+8)}')
for q in range(2):
    for i in range(4):
        A(f'v_pk_mul_f32 {v(OA+16*q+2*i, 2)}, {v(OA+16*q+2*i, 2)}, {v(OA+16*q+8, 2)} op_sel_hi:[1,0]')
    for i in range(4):
        A(f'v_cvt_pk_bf16_f32 {v(OA+16*q+i)}, {v(OA+16*q+2*i)}, {v(OA+16*q+2*i+1)}')
    tok_o = A(f'buffer_store_dwordx4 {v(OA+16*q, 4)}, {v(vOS)}, {srd(rWS)}, {s((sO, sRB2)[q])} offen sc1')
stamp('attn')


CG, CS, GB, X1 = 208, 224, 240, 184
vP, vPF, vT32, vYS, vCB = 252, 251, 249, 253, 248
R = Q()
T0 = A.t
if not OPT.get('b0e', 1):
    D.add(w2_dma(0, 1) + w2_dma(1, 2))
    D.flush()
gather_check(SETS2, G2, qg2.tok, 4)
A(f's_cmp_ge_u32 {s(sW)}, 2')
A(f's_cselect_b32 s3, 1.0, 0')
add_const_round(G2, 3)
emit(['v_and_b32 v16, 3, v0', 'v_bfe_u32 v17, v0, 2, 1', 'v_lshl_add_u32 v16, v16, 1, v17', f'v_lshl_add_u32 v4, {s(sW)}, 3, v16',
      's_movk_i32 s4, 0x78', 'v_and_or_b32 v16, v0, s4, v16',
      f's_lshr_b32 s5, {s(sW)}, 1', f's_mul_i32 s3, s5, 1088', f's_add_u32 s3, s3, {T_MOD2}', 'v_lshl_add_u32 v16, v16, 3, s3',
      f's_mov_b32 s3, {T_MOD2+2176}', 'v_lshl_add_u32 v4, v4, 3, s3'])
A(f'ds_write_b64 v16, {v(G2, 2)}')
A(f'ds_write_b64 v4, {v(G2+16, 2)}')
CZ = []
if OPT.get('cz', 1):
    emit(['v_mov_b32 v17, 0', 'v_lshlrev_b32 v18, 2, v0', f'v_add_u32 v18, {T_Z}, v18', 'ds_write_b32 v18, v17'])
    CZ = [f'v_and_b32 v16, 26, {v(vL)}', 'v_cmp_eq_u32 vcc, 0, v16', f'v_mov_b32 v16, {T_Z}', 's_nop 0', 'v_cndmask_b32 v200, v16, v200, vcc']
emit([f's_and_b32 s7, {s(sW)}, 1', 's_lshl_b32 s7, s7, 9', 's_lshl_b32 s3, s5, 16', 's_add_u32 s3, s3, s7', f'v_add_u32 v201, s3, {v(vRB)}',
      f'v_lshrrev_b32 v203, 5, {v(vL)}', f'v_and_b32 v16, 1, {v(vL)}', 'v_mul_u32_u24 v16, 1088, v16', 'v_lshl_add_u32 v16, v203, 4, v16', f'v_add_u32 v200, {T_MOD2}, v16'] + CZ + [
      f'v_and_b32 {v(vT32)}, 31, {v(vL)}', f'v_lshlrev_b32 {v(vP)}, 2, {v(vT32)}'])
if wor2:
    emit([f'v_bfe_u32 v16, {v(vL)}, 4, 1', f'v_lshl_add_u32 v160, v16, 8, {v(vRB)}', 'v_mul_u32_u24 v16, 0x700, v203', 'v_add_u32 v160, v16, v160', 'v_xor_b32 v161, 32, v160'])
stamp('pchk')
A.wait(vm=D.k['w1'], ds=A.ds)
barrier()
stamp('pbar')
tk = {}
CBB, CBA = 96, 144
OB, BA = 16, 80


def w1off(ks, rd):
    return (ks // 2) * 4096 + (ks % 2) * 1024 + rd * 2048


def cb_reads(ks):
    b = CBB + (ks % 6) * 8
    return [f'ds_read_b128 {v(b, 4)}, v200 offset:{ks*32}'] + [f'ds_read_b64_tr_b16 {v(b+4+2*rd, 2)}, v201 offset:{w1off(ks, rd)}' for rd in range(2)]


def split3(dst, x0, x1, tmp, mode):
    l = [f'v_cvt_pk_bf16_f32 {v(tmp)}, {v(x0)}, {v(x1)}'] + unpack2(tmp + 1, tmp)
    l += [f'v_sub_f32 {v(x0)}, {v(x0)}, {v(tmp+1)}', f'v_sub_f32 {v(x1)}, {v(x1)}, {v(tmp+2)}']
    h0, h1 = tmp + 1, tmp + 2
    e = [h0, x0, h0, h1, x1, h1] if mode == 'a' else [h0, h0, x0, h1, h1, x1]
    l += [f'v_cvt_pk_bf16_f32 {v(dst+i)}, {v(e[2*i])}, {v(e[2*i+1])}' for i in range(3)]
    return l + [f'v_mov_b32 {v(dst+3)}, 0']


def cb_steps(k0, k1):
    def pre():
        for ks in range(k0, min(k0 + 5, k1)):
            tk[ks] = emit(cb_reads(ks))

    def step(ks):
        A.wait(ds=tk[min(ks | 1, k1 - 1)])
        b = CBB + (ks % 6) * 8
        mm32(A, v(CBA, 16), v(b, 4), v(b + 4, 4), v(CBA, 16) if ks else '0')
        if ks + 5 < k1:
            tk[ks + 5] = emit(cb_reads(ks + 5))
    return ([pre] if k1 > k0 else []) + [lambda ks=ks: step(ks) for ks in range(k0, k1)]


def run_with(work, events):
    for w in work + [None]:
        while events and (w is None or A.t - T0 >= events[0][0]):
            events.pop(0)[1]()
        if w:
            w()


emit([f's_add_u32 {s(4+i)}, {s(sOL)}, {4096*(i+1)}' for i in range(3)])
qo = Q([(f'buffer_load_dwordx4 {v(OB+4*i, 4)}, {v(vL16)}, {srd(rWS)}, {s((sOL, 4, 5, 6)[i//4])} offen offset:{(i%4)*1024} sc1', i) for i in range(16)])
hold = {}
CA = min(OPT.get('ca', 12), 2 * NEV)


def ev_flag():
    stamp('kw')
    A.wait(vm=tok_o)
    setflag(s(sFO))
    stamp('kf')


def ev_poll():
    hold['po'] = A(poll_load(vP, s(sPO), 0, 3))
    stamp('kp')


def ev_check():
    stamp('prep')
    poll_check(hold['po'], vP, s(sPO), 0, 3)
    stamp('oflag')
    qo.grp(OPT.get('o0', 10))


def consts():
    emit([f'v_and_b32 v96, 48, {v(vL)}', f'v_add_u32 v97, {T_MOD2+2176}, v96', f's_lshl_b32 s3, {s(sHQ)}, 7', f's_add_u32 s3, s3, {T_MOD2+1088}', 'v_add_u32 v98, s3, v96',
          f'v_and_b32 v101, 15, {v(vL)}', f'v_lshrrev_b32 v102, 1, v96', f'v_lshl_add_u32 v102, v101, 7, v102', f'v_add_u32 v102, {s(sRING)}, v102'])
    for tl in range(4):
        A(f'ds_read_b64 {v(120+2*tl, 2)}, v102 offset:{32*tl}')
    for p in range(2):
        A(f'ds_read_b128 {v(104+4*p, 4)}, v97 offset:{64*p}')
        A(f'ds_read_b128 {v(112+4*p, 4)}, v98 offset:{64*p}')
        hold['cs'] = A(f'ds_read_b128 {v(GB+4*p, 4)}, v97 offset:{128+64*p}')


wor2 = [x.replace('v48', 'v160').replace('v49', 'v161') for x in wor2]
TF = OPT.get('of', 700)
run_with([lambda i=i: emit(wor2[i:i + 4]) for i in range(0, len(wor2), 4)] + cb_steps(0, CA),
         [(TF, ev_flag), (TF + OPT.get('op', 300), ev_poll), (TF + OPT.get('oc', 600), ev_check)])
consts()
tcs = hold['cs']
stamp('cb')

if wor2:
    D.add([lds_sync] + mark(w1_items(0, range(NEV // 4, 4)), 'w1b'))


def w2reg(u, tl):
    return 32 + 16 * u + 4 * tl


def w2_read(ms):
    l = [lambda: A.wait(vm=D.k['w2', ms[-1]])]
    for m in ms:
        q = SLOT[m]
        va, off = (180, 2048 * q) if q < 3 else ((182, 8192 * (q - 3)) if q < 11 else (10, 8192 * (q - 11)))
        l += mark([f'ds_read_b64_tr_b16 {a(w2reg(m//2, tl)+2*(m%2), 2)}, {v(va+tl%2)} offset:{off+(tl//2)*512}' for tl in range(4)], ('r', m))
    return l


free = []
nxt_m = [2]
unread = [0, 1]


def w2_more(limit=28):
    if not D.q and free and nxt_m[0] < limit:
        D.add(w2_dma(nxt_m[0], free.pop(0)))
        unread.append(nxt_m[0])
        nxt_m[0] += 1


def turn(k):
    ms = [unread.pop(0) for _ in range(k)]
    R.add(w2_read(ms) + [lambda: A.wait(ds=R.dtok), lambda: free.extend(SLOT[m] for m in ms)])


def refill():
    while free:
        w2_more()
        D.flush()


fb = Q([f'v_bfe_u32 v99, {v(vL)}, 4, 1', f'v_lshl_add_u32 v100, v99, 8, {v(vRB)}', 'v_mul_u32_u24 v103, 768, v203', 'v_add_u32 v100, v100, v103',
        f'v_add_u32 v180, {s(sRING)}, v100', 'v_xor_b32 v181, 32, v180',
        f'v_lshlrev_b32 v103, 4, {v(vT32)}', f'v_add_u32 {v(vCB)}, {T_CB}, v103', f's_lshl_b32 s3, {s(sW)}, 9', f'v_add_u32 v202, s3, {v(vCB)}'] +
       [lambda: A.wait(ds=tcs), lambda: free.append(0)] +
       [x for i in range(8) for x in unpack2(X1 + 2 * i, 120 + i) + unpack2(CG + 2 * i, 104 + i) + unpack2(CS + 2 * i, 112 + i)] +
       [
        f'v_lshlrev_b32 {v(vYS)}, 5, v96', f'v_lshl_add_u32 {v(vYS)}, v101, 4, {v(vYS)}', 'v_lshlrev_b32 v178, 6, v203', 'v_lshl_add_u32 v178, v101, 2, v178'])
late = ['v_lshl_add_u32 v179, v99, 7, v178', f'v_add_u32 v182, {s(sFKV)}, v100', 'v_xor_b32 v183, 32, v182',
        'v_mul_u32_u24 v103, 57344, v99', f'v_lshl_add_u32 {v(vYS)}, v178, 2, v103',
        'v_lshlrev_b32 v103, 10, v101', 'v_lshl_add_u32 v103, v99, 5, v103', 'v_lshl_add_u32 v177, v203, 4, v103',
        f's_lshr_b32 s3, {s(sDL)}, 1', f'v_add_u32 v250, s3, {v(vL16)}', f's_bitcmp1_b32 {s(sW)}, 0',
        f's_cselect_b32 s10, {s(sW2b)}, {s(sW2)}', f's_cselect_b32 {s(sKV)}, {s(sW2)}, {s(sW2b)}', 's_cselect_b32 s4, s3, 0', 's_cselect_b32 s3, 0, s3',
        f'v_add_u32 v236, s4, {v(vL16)}', f'v_add_u32 v237, s3, {v(vL16)}',
        f's_lshr_b32 s3, {s(sTILE)}, 8', 's_and_b32 s3, s3, 0x1c0', f's_add_u32 s3, s3, {T_RST}', 'v_lshl_add_u32 v176, v101, 2, s3',
        f'v_add_u32 v10, {IMG1}, v182', f'v_add_u32 v11, {IMG1}, v183',
        f'v_add_u32 v14, {IMG1}, {v(vRB)}', f'v_and_b32 v254, 60, {v(vP)}',
        f's_mul_i32 s3, {s(sW)}, 28', 's_andn2_b32 s3, s3, 7', f'v_and_b32 v103, 28, {v(vP)}', f'v_add_u32 {v(vPF)}, s3, v103']
fb.pop(OPT.get('fb0', 10))
for grp in ([(0,)] + [(k, k + 1) for k in range(1, 15, 2)] + [(15,)] if CH & 4 else [(k,) for k in range(16)]):
    A.wait(vm=qo.k[grp[-1]], ds=tcs if NEV in grp else None)
    stamp(f'o{grp[0]}')
    if 5 in grp:
        turn(2)
    n = 0
    for tl in range(4):
        for ks in grp:
            mm16(BA + 4 * tl, a(16 * ks + 4 * tl, 4), v(OB + 4 * ks, 4), ks == 0)
            n += 1
            if n % 4 == 1 and qo.q:
                qo.grp()
            elif n % 4 == 1:
                w2_more()
                D.grp()
            else:
                last = n == 4 * len(grp)
                R.fill(8 if last else 4)
                fb.fill(4 if last else 0)
fb.flush()
R.flush()
D.flush()
A(f's_cmp_lt_u32 {s(sJ)}, 14')
A(f's_cselect_b32 {s(rH+2)}, 0x1000000, 0')
stamp('om')
for p in range(2):
    for i in range(4 * p, 4 * p + 4):
        A(f'v_pk_fma_f32 {v(X1+2*i, 2)}, {v(BA+2*i, 2)}, {v(CG+2*i, 2)}, {v(X1+2*i, 2)}')
    for i in range(4 * p, 4 * p + 4):
        A(f'v_pk_mul_f32 {v(CS+2*i, 2)}, {v(CS+2*i, 2)}, {v(X1+2*i, 2)}')
    for i in range(4):
        A(f'v_cvt_pk_bf16_f32 {v(CS+8*p+i)}, {v(CS+8*p+2*i)}, {v(CS+8*p+2*i+1)}')
    A(f'buffer_store_dwordx4 {v(CS+8*p, 4)}, {v(vYS)}, {srd(rWS)}, {s(sY)} offen offset:{2048*p} sc1')
A(f'v_pk_add_f32 {v(CG, 2)}, {v(X1, 2)}, {v(X1+2, 2)}')
A(f'v_pk_mul_f32 {v(CG+2, 2)}, {v(X1, 2)}, {v(X1, 2)}')
for i in range(1, 8):
    if i > 1:
        A(f'v_pk_add_f32 {v(CG, 2)}, {v(CG, 2)}, {v(X1+2*i, 2)}')
    A(f'v_pk_fma_f32 {v(CG+2, 2)}, {v(X1+2*i, 2)}, {v(X1+2*i, 2)}, {v(CG+2, 2)}')
A(f'v_add_f32 {v(CG)}, {v(CG)}, {v(CG+1)}')
A(f'v_add_f32 {v(CG+1)}, {v(CG+2)}, {v(CG+3)}')
emit(late[:2])
A(f'v_permlane32_swap_b32 {v(CG)}, {v(CG+1)}')
A(f'v_add_f32 {v(CG)}, {v(CG)}, {v(CG+1)}')
A(f'v_mov_b32 {v(CG+1)}, {v(CG)}')
A(f'v_permlane16_swap_b32 {v(CG)}, {v(CG+1)}')
A(f'v_add_f32 {v(CG)}, {v(CG)}, {v(CG+1)}')
tok_y = A(f'buffer_store_dword {v(CG)}, v178, {srd(rWS)}, {s(sST)} offen sc1')
stamp('oproj')

YB, FT, BX, SL = 16, [144, 160, 200, 216], 232, 204
qy = Q()
for ks in range(32):
    if ks % 4 == 0:
        qy.add([f's_add_u32 s4, {s(sYL)}, {ks*1024}'])
    qy.add([(f'buffer_load_dwordx4 {v(YB+4*ks, 4)}, {v(vL16)}, {srd(rH)}, s4 offen offset:{(ks%4)*1024} sc1', ks)])
qt = Q([f'buffer_load_dword {v(SL+i)}, v179, {srd(rWS)}, {s(sSTL)} offen offset:{i*256} sc1' for i in range(8)])
T0 = A.t


def y_flag():
    stamp('yw')
    A.wait(vm=tok_y)
    setflag(s(sFY))
    stamp('yf')


def y_poll():
    if OPT.get('yt2', 1):
        turn(len(unread))
        R.flush()
    hold['py'] = A(poll_load(254, s(sPY), 0, 3))
    refill()
    stamp('yp')


def y_check():
    stamp('yc')
    poll_check(hold['py'], 254, s(sPY), 0, 3)
    stamp('yflag')
    qy.grp(OPT.get('y0', 10))
    stamp('yiss')


def w1_landed():
    A.wait(vm=D.k['w1b'])
    barrier()


def cb_done():
    emit(split3(160, CBA + 1, CBA, 164, 'a'))
    A(f'ds_write_b128 v202, {v(160, 4)}')


npre = len(unread)
refill()
emit(late[2:])
if OPT.get('yt1', 1) and npre:
    turn(min(OPT.get('yn', 2), npre))
    R.flush()
    refill()
TF = OPT.get('yf', 600)
run_with(([w1_landed] if wor2 else []) + cb_steps(CA, 32) + [cb_done],
         [(TF, y_flag), (TF + OPT.get('yp', 250), y_poll), (TF + OPT.get('yc', 700), y_check)])
stats = [lambda: A.wait(vm=qt.tok)]
stats += [f'v_add_f32 {v(SL+e)}, {v(SL+e)}, {v(SL+4+e)}' for e in range(4)]
stats += [f'v_add_f32 {v(SL+e)}, {v(SL+e)}, {v(SL+2+e)}' for e in range(2)]
stats += [f'v_add_f32 {v(SL)}, {v(SL)}, {v(SL+1)}', f'v_mov_b32 {v(SL+1)}, {v(SL)}',
          f's_lshl_b32 s3, {s(sW)}, 7', f's_add_u32 s3, s3, {T_RST}', f'v_add_u32 v4, s3, {v(vP)}', f'v_permlane32_swap_b32 {v(SL)}, {v(SL+1)}']
stats += [f'v_mul_f32 {v(SL)}, 0xbb000000, {v(SL)}', f'v_mul_f32 {v(SL+1)}, 0x3b000000, {v(SL+1)}',
          f'v_fma_f32 {v(SL+1)}, -{v(SL)}, {v(SL)}, {v(SL+1)}', f'v_max_f32 {v(SL+1)}, 0, {v(SL+1)}',
          f'v_add_f32 {v(SL+2)}, 0x3727c5ac, {v(SL+1)}', f'v_sqrt_f32 {v(SL+1)}, {v(SL+2)}', f'v_rsq_f32 {v(SL+2)}, {v(SL+2)}',
          f'v_cmp_gt_u32 vcc, 32, {v(vL)}', f'ds_write_b32 v4, {v(SL+2)}',
          f'v_cndmask_b32 {v(SL)}, 0, {v(SL)}, vcc', f'v_cndmask_b32 {v(SL+1)}, 0, {v(SL+1)}, vcc']
stats += split3(BX, SL, SL + 1, SL + 4, 'b')
qs = Q(stats)
cseq = [(0, ks, i) for ks in range(33) for i in range(2)] + [(p, ks, p + 1) for p in (1, 2) for ks in range(33)]
NFB, CLK = 8, OPT.get('clk', 5)
tk = {}


def c_rd(n):
    p, ks, ct = cseq[n]
    b = 4 * (n % NFB)
    if ks == 32:
        return [f'ds_read_b128 {a(b, 4)}, {v(vCB)} offset:{ct*512}']
    return [f'ds_read_b64_tr_b16 {a(b+2*r, 2)}, {v(14 if p else vRB)} offset:{w1off(ks, r)+(ct%2)*512}' for r in range(2)]


def f_epi(t):
    r = FT[t // 2] + 4 * (t % 2)
    src = FT[t // 2] + 8 * (t % 2)
    return ([f'v_cvt_pk_bf16_f32 {v(r+i)}, {v(src+2*i)}, {v(src+2*i+1)}' for i in range(4)] + [f'v_pk_max_i16 {v(r+i)}, {v(r+i)}, 0' for i in range(4)] +
            [f'buffer_store_dwordx4 {v(r, 4)}, {v(vYS)}, {srd(rH)}, {s(sF)} offen offset:{t*512} {"" if OPT.get("fpl") else "sc1"}'])


for n in range(CLK):
    tk[n] = emit(c_rd(n))
if unread:
    turn(len(unread))
R.flush()
print('w2 k-steps requested before FFN1:', nxt_m[0])
NB, ACC, vO1 = 16, 80, 5
INB = IMG1


def fbuf(n):
    return 16 + 4 * (n % NB)


DF = OPT.get('defer', 3)
DG = OPT.get('defer2', 6)
seq = ([(aa, u) for aa in (3, 2, 1) for u in range(7)] + [(0, u) for u in range(7 - DF)] + [(aa, u) for aa in (3, 2, 1) for u in range(7, 10)] +
       [(0, u) for u in range(7 - DF, 10 - DG)] + [(aa, u) for aa in (3, 2, 1) for u in range(10, 14)] + [(0, u) for u in range(10 - DG, 14)])
assert len(seq) == 56
NE, NL = 28 - DF, 40 - DG
ql = Q()
prev = None
for n, (aa, u) in enumerate(seq):
    k, b = kunit(u)
    if (aa, k) != prev:
        ql.add([f's_add_u32 s4, {s(5+aa)}, {k*512}'])
    prev = (aa, k)
    ql.add([(f'buffer_load_dwordx4 {v(fbuf(n), 4)}, {v((vL16, 250, 236, 237)[b])}, {srd(rWS)}, s4 offen sc1', n)])
LK = OPT.get('lk', 8)


def issued():
    return max(ql.k) + 1 if ql.k else 0


CB1 = OPT.get('cb1', 25)
FA, PA, KA = OPT.get('fa', 2), OPT.get('pa', 10), OPT.get('ka', 20)
qe = Q()
qm = Q([x for aa in (3, 2, 1, 0) for x in (f's_xor_b32 s3, {s(sW)}, {aa}', 's_mul_i32 s3, s3, 57344', f's_add_u32 {s(5+aa)}, s3, {s(sFL0)}')] + ['ds_read_b32 v176, v176'])
for n, (p, ks, ct) in enumerate(cseq):
    i = n % 2
    if i == 0:
        A.wait(vm=qy.k[ks] if p == 0 and ks < 32 else None, ds=tk[n + 1])
    if i == 0 or p:
        stamp('abe'[p] + str(ks))
        if (p, ks) == (0, CB1):
            barrier()
            free += list(range(3, 3 + (CB1 + 1) // 4))
        if (p, ks) == (0, 32):
            qs.flush()
        if (p, ks) == (1, 0):
            stamp('c1')
            barrier()
            free += list(range(3 + (CB1 + 1) // 4, 11))
        if (p, ks) == (1, 2):
            D.flush()
            hold['pre'] = len(unread)
            for t in range(4):
                qe.add(f_epi(t))
        if (p, ks) == (1, OPT.get('t1', 12)):
            for _ in range(hold['pre'] // 2):
                turn(2)
        if (p, ks) == (2, 2):
            assert not qe.q
            hold['fa'] = qe.tok
            qe.add(f_epi(4) + f_epi(5))
        if (p, ks) == (2, FA):
            A.wait(vm=hold['fa'])
            setflag(s(sFF))
            for _ in range(OPT.get('t2', 2)):
                turn(2)
        if (p, ks) == (2, KA):
            stamp('fw')
            qm.flush()
            poll_check(tpf, vPF, s(sPO), 256, 255)
            stamp('fflag')
    d = v(FT[ct], 16)
    mm32(A, d, a(4 * (n % NFB), 4), v(BX if ks == 32 else YB + 4 * ks, 4), '0' if ks == 0 else d)
    if p == 0 and (qy.q or qt.q):
        if i == 0:
            qy.grp()
        elif ks >= 4:
            qt.grp()
    elif (p, ks) == (2, PA):
        tpf = A(poll_load(vPF, s(sPO), 256, 255))
    elif qe.q and qe.kind() == 'vmem':
        qe.grp(1, OPT.get('sp', 150))
    elif (p, ks) >= (2, KA) and not D.q:
        if issued() < LK:
            ql.grp()
    else:
        w2_more()
        D.grp(1, OPT.get('c2pace', 45))
    if n + CLK < len(cseq):
        tk[n + CLK] = emit(c_rd(n + CLK))
    res = 4 if i else 0
    if p == 0 and ks >= 18:
        qs.fill(res)
    for _ in range(OPT.get('qe', 3)):
        if qe.q and qe.kind() != 'vmem':
            qe.pop()
    R.fill(res)
    if p:
        qm.fill(res)
assert not qe.q
stamp('c2')

A.wait(vm=qe.tok)
setflag(s(sFF), off=128)
R.flush()
qe.add(f_epi(6) + f_epi(7))
W64 = OPT.get('w64', 0)


def red_write(aa):
    if W64:
        return [f'ds_write_b64 {v(vO1+aa-1)}, {v(ACC+16*aa+2*r, 2)} offset:{r*512}' for r in range(8)]
    return [f'ds_write_b128 {v(vO1+aa-1)}, {v(ACC+16*aa+4*r, 4)} offset:{r*1024}' for r in range(4)]


ra = [f'v_lshlrev_b32 v15, {3 if W64 else 4}, {v(vL)}']
for aa in range(1, 4):
    ra += [f's_xor_b32 s3, {s(sW)}, {aa}', f's_mul_i32 s3, s3, 12288', f's_add_u32 s3, s3, {INB + (aa-1)*4096}', f'v_add_u32 {v(vO1+aa-1)}, s3, v15']
ra += [f's_mul_i32 s3, {s(sW)}, 12288', f's_add_u32 s3, s3, {INB}', f'v_add_u32 v8, s3, v15']
CS = 160
fq = Q([x for i in range(8) for x in unpack2(CS + 2 * i, GB + i)] + ra + [f'v_mul_f32 {v(CS+i)}, {v(CS+i)}, v176' for i in range(16)])
P2, P3 = OPT.get('p2', 6), OPT.get('p3', 17)
PL = OPT.get('pl', 0)
print('w2 k-steps requested before FFN2:', nxt_m[0], 'unread', len(unread))
lim, pend = [NE], []
qr = Q()
P = (144, 216, 200)
RS = OPT.get('rsn', 1)
def d_pre(n, nw):
    A.wait(vm=ql.k[nw], ds=R.k['r', 2 * seq[nw][1] + 1])
    stamp(f'd{n}')
    if not qe.q and 'fc' not in hold and A.vm_done >= qe.tok:
        hold['fc'] = n
        setflag(s(sFF), off=256)
    if pend and (A.vm_done + PL >= pend[0] or issued() - n <= OPT.get('pmin', 5)):
        poll_check(pend[0], vPF, s(sPO), pend[1], 255)
        lim[0] = NL if pend[1] == 384 else 56
        hold[pend[1]] = n
        pend.clear()
    while unread and ('w2', unread[0]) in D.k and A.vm_done >= D.k['w2', unread[0]]:
        turn(1 if len(unread) < 2 or D.k.get(('w2', unread[1]), 10**9) > A.vm_done else 2)
    if n == NL + 4:
        assert not (R.q or fq.q)
        lds_sync()
        if OPT.get('otr', 1):
            fq.add([f'v_and_b32 v4, 15, {v(vL)}', 'v_mul_u32_u24 v4, 144, v4', f'v_lshrrev_b32 v180, 4, {v(vL)}', 'v_lshl_add_u32 v4, v180, 3, v4', f'v_add_u32 v180, {s(sRING)}, v4',
                    f'v_lshrrev_b32 v4, 3, {v(vL)}', f'v_and_b32 v177, 0x70, {v(vL16)}', 'v_mul_u32_u24 v181, 144, v4', f'v_add3_u32 v181, v181, v177, {s(sRING)}',
                    'v_lshl_add_u32 v177, v4, 10, v177', f's_add_u32 s3, {s(sTILE)}, 8192'])
    if n in (NL + 4, NL + 8, NL + 12):
        qr.add(red_write(3 - (n - NL - 4) // 4))
    if n == NL + 12 + OPT.get('rs', 5):
        assert not qr.q
        lds_sync()
        if W64:
            R.add([(f'ds_read2st64_b64 {v(P[p]+4*r, 4)}, v8 offset0:{p*8+2*r} offset1:{p*8+2*r+1}', ('p', r)) for r in range(4) for p in range(3)])
        else:
            R.add([(f'ds_read_b128 {v(P[p]+4*r, 4)}, v8 offset:{p*4096+r*1024}', ('p', r)) for r in range(4) for p in range(3)])
        for r in range(RS):
            fq.add([lambda r=r: A.wait(ds=R.k['p', r])] + [f'v_add_f32 {v(P[0]+4*r+i)}, {v(P[0]+4*r+i)}, {v(P[1]+4*r+i)}' for i in range(4)] +
                   [f'v_add_f32 {v(P[0]+4*r+i)}, {v(P[0]+4*r+i)}, {v(P[2]+4*r+i)}' for i in range(4)] +
                   [f'v_fmac_f32 {v(X1+4*r+i)}, {v(P[0]+4*r+i)}, {v(CS+4*r+i)}' for i in range(4)])


def d_post(n, tl, res):
    for _ in (0,):
        if qe.q:
            if qe.kind() == 'vmem':
                qe.pop()
            else:
                qe.fill(res, 10**6)
            continue
        if tl in (0, 2):
            if (n, tl) in ((P2, 2), (P3, 2)):
                assert not pend
                off = 384 if n == P2 else 512
                pend[:] = [A(poll_load(vPF, s(sPO), off, 255)), off]
            elif issued() < min(n + 1 + LK, lim[0]):
                ql.grp()
            else:
                w2_more()
                D.grp()
        if (tl == 3 or (W64 and tl == 1 and n not in (NL + 4, NL + 8, NL + 12))) and qr.q:
            qr.pop()
        R.fill(res)
        if not R.q or n < NE:
            fq.fill(res)


n = 0
while n < 56:
    pair = CH & 8 and n + 1 < 56 and n > 0 and seq[n + 1][0] == seq[n][0] and n + 1 != NL + 12 + OPT.get('rs', 5)
    grp = (n, n + 1) if pair else (n,)
    d_pre(n, grp[-1])
    k = 0
    for tl in range(4):
        for m in grp:
            aa, u = seq[m]
            mm16(ACC + 16 * aa + 4 * tl, a(w2reg(u, tl), 4), v(fbuf(m), 4), u == 0)
            d_post(n + k // 4, k % 4, 4 if k == 4 * len(grp) - 1 else 0)
            k += 1
    n += len(grp)
print('third flag at step', hold['fc'], 'polls', P2, hold[384], P3, hold[512], 'NE NL', NE, NL)
assert not (R.q or D.q or qr.q)
stamp('ffn2')
fq.flush()
for r in range(RS, 4):
    A.wait(ds=R.k['p', r])
    for src in (P[1], P[2]):
        for h in range(2):
            A(f'v_pk_add_f32 {v(P[0]+4*r+2*h, 2)}, {v(P[0]+4*r+2*h, 2)}, {v(src+4*r+2*h, 2)}')
for r in range(RS, 4):
    for h in range(2):
        A(f'v_pk_add_f32 {v(ACC+4*r+2*h, 2)}, {v(ACC+4*r+2*h, 2)}, {v(P[0]+4*r+2*h, 2)}')
OF_ = ("", "sc1", "nt", "sc1 nt", "sc0 sc1")[OPT["outsc1"]]
if OPT.get('otr', 1):
    for tl in range(4):
        for i in range(2 * tl, 2 * tl + 2):
            A(f'v_pk_fma_f32 {v(X1+2*i, 2)}, {v(ACC+2*i, 2)}, {v(CS+2*i, 2)}, {v(X1+2*i, 2)}')
        for i in range(2 * tl, 2 * tl + 2):
            A(f'v_cvt_pk_bf16_f32 {v(240+i)}, {v(X1+2*i)}, {v(X1+2*i+1)}')
        if tl % 2:
            A(f'ds_write2_b64 v180, {v(240+2*tl-2, 2)}, {v(240+2*tl, 2)} offset0:{4*tl-4} offset1:{4*tl}')
    t = [A(f'ds_read_b128 {v(144+4*k, 4)}, v181 offset:{1152*k}') for k in range(2)]
    for k in range(2):
        A.wait(ds=t[k])
        A(f'buffer_store_dwordx4 {v(144+4*k, 4)}, v177, {srd(rOUT)}, {s((sTILE, 3)[k])} offen {OF_}')
else:
    for k in range(2):
        for i in range(4 * k, 4 * k + 4):
            A(f'v_pk_fma_f32 {v(X1+2*i, 2)}, {v(ACC+2*i, 2)}, {v(CS+2*i, 2)}, {v(X1+2*i, 2)}')
        for i in range(4):
            A(f'v_cvt_pk_bf16_f32 {v(232+8*k+i)}, {v(X1+8*k+2*i)}, {v(X1+8*k+2*i+1)}')
        for r in range(2):
            A(f'v_permlane16_swap_b32 {v(232+8*k+r)}, {v(232+8*k+2+r)}')
        A(f'buffer_store_dwordx4 {v(232+8*k, 4)}, v177, {srd(rOUT)}, {s(sTILE)} offen offset:{64*k} {("", "sc1", "nt", "sc1 nt", "sc0 sc1")[OPT["outsc1"]]}')

if OPT['stamps']:
    A.wait_all(vm=True)
    NAMES_n = len(NAMES)
    A(f's_mov_b32 {s(STAMP0+NAMES_n-1)}, {s(STP)}')
    A(f's_mem{"real" if OPT.get("rts") else ""}time {s(STP, 2)}')
    A('s_memrealtime s[4:5]')
    NAMES.append('end')
    A('s_waitcnt lgkmcnt(0)')
    A('v_mov_b32 v3, 0')
    for k in range(NAMES_n):
        A(f'v_writelane_b32 v3, {s(STAMP0+k)}, {k}')
    A(f'v_writelane_b32 v3, {s(STP)}, {NAMES_n}')
    A(f'v_writelane_b32 v3, s4, 29')
    A(f'v_writelane_b32 v3, {s(sXCC)}, 30')
    A(f'v_writelane_b32 v3, {s(sFAST)}, 31')
    A(f's_lshl_b32 s3, s2, 2')
    A(f's_add_u32 s3, s3, {s(sW)}')
    A(f's_lshl_b32 s3, s3, 7')
    A(f's_add_u32 s3, s3, {STAMPS}')
    A(f'v_lshlrev_b32 v4, 2, {v(vL)}')
    A('s_mov_b32 exec_hi, 0')
    A(f'buffer_store_dword v3, v4, {srd(rWS)}, s3 offen')
if OPT['pad']:
    A.wait_all(vm=True)
    stamp('end')
    A('s_waitcnt lgkmcnt(0)')
    A(f's_mov_b32 s6, {OPT["pad"]}')
    if OPT.get('probe'):
        if OPT.get('pcyc'):
            A('s_sub_u32 s98, s98, s96')
            A('s_mul_i32 s98, s98, 2731')
            A('s_lshr_b32 s98, s98, 16')
        else:
            A('s_sub_u32 s98, s98, s100')
        if OPT.get('pwg') is not None:
            A(f's_cmp_eq_u32 s2, {OPT["pwg"]}')
            A('s_cselect_b32 s98, s98, 0')
        A('s_add_u32 s6, s6, s98')
    A.label('L_padl')
    A('s_memrealtime s[4:5]')
    A('s_waitcnt lgkmcnt(0)')
    A('s_sub_u32 s4, s4, s100')
    A(f's_cmp_lt_u32 s4, s6')
    A('s_cbranch_scc1 L_padl')
A.label('L_end')
A('s_endpgm')
if OPT.get('skel'):
    k = OPT['skel']

    def keep(i):
        if 'redo' in i.text and i.target:
            return False
        if k & 1 and i.kind == 'mfma':
            return False
        if k & 2 and i.kind == 'valu' and any(i.op.startswith(x) for x in ('v_exp', 'v_cvt_pk', 'v_pk_', 'v_dot2', 'v_permlane', 'v_fma', 'v_add_f32', 'v_mul_f32', 'v_cndmask', 'v_mov_b64')):
            return False
        if k & 4 and i.kind == 'ds':
            return False
        if k & 8 and i.kind == 'vmem' and i.ldsdma:
            i.__init__('s_nop 0')
        return True
    A.ins = [i for i in A.ins if keep(i)]
    if k & 8:
        import re
        for i in A.ins:
            if 'vmcnt' in i.text and k & 16:
                pass
A.ins += WARM.ins
A.label('L_hot_end')
A.ins += COLD.ins
body, added = A.text()

hdr = open('cdna_kernels/' + NAME + '.s.ref').read().split('\n')
hdr = [l for l in hdr if l.startswith(';') and '@launch' not in l and 'Override' not in l and 'grid=ceil' not in l]
out = '\n'.join(hdr) + f'''
; @launch grid=(256,1,1) block=(256,1,1) lds=163840
; generated by gen/gen.py (hand-written generator): one persistent launch, one workgroup per CU
.amdgcn_target "amdgcn-amd-amdhsa--gfx950"
.text
.globl {NAME}_kernel
.p2align 8
.type {NAME}_kernel,@function
{NAME}_kernel:
{body}
  s_endpgm
.fill 2048, 4, 0xbf800000
  s_endpgm
.section .rodata,"a"
.p2align 6
.amdhsa_kernel {NAME}_kernel
  .amdhsa_next_free_vgpr 512
  .amdhsa_next_free_sgpr 102
  .amdhsa_accum_offset 256
  .amdhsa_group_segment_fixed_size 0
  .amdhsa_kernarg_size 88
  .amdhsa_user_sgpr_count 2
  .amdhsa_user_sgpr_kernarg_segment_ptr 1
  .amdhsa_system_sgpr_workgroup_id_x 1
  .amdhsa_float_denorm_mode_32 3
.end_amdhsa_kernel
'''
open(sys.argv[1], 'w').write(out)
open(sys.argv[1] + '.names', 'w').write(' '.join(NAMES))
print(f'instructions: {len(A.ins)}, nops added: {added}, stamps: {len(NAMES)}')
```

```python
import sys
from asmlib import Asm, Ins, cost, v, a, s

NAME = 'adaLN_cond__sliding_block__dense_activation_relu__prompt'
OPT = dict(sm=3, sm0=12, smd=14, smn=2, q0=5, wr=9, arate=105, ca=6, fa=2, pa=12, ka=22, p2=4, p3=15, ch=6, ql0=0, kvf=14, stamps=0, fast=1, forcemax=0, fmode=0, dmode=0, ntx=1, ntq=0, ntw=0, touch0=1, touch1=1, chunks=17, pad=0, outsc1=2)
for arg in sys.argv[2:]:
    k, val = arg.split('=')
    OPT[k] = val if k == 'probe' else int(val)

EPOCH = 0
HELLO = 0x1000
FKV = 0x10000
FL = 0x30000
MODP = 0x40000
STATS = 0x80000
STAMPS = 0xC0000
KVB = 0x100000
OBUF = 0x500000
YBUF = 0x700000
FBUF = 0x900000
LH, WVH, WVL, WQL = 0, 65536, 98304, 131072
MODT = WQL
PRED1 = WQL + 4096
IMG0, IMG1 = 0, 65536
WOS = IMG0
PRED2 = WQL + 8192
SCR = 131072
RING = 6144
TAB = SCR + 4 * RING
T_MOD2 = TAB
T_CB = TAB + 2560
T_RST = TAB + 4608
T_Z = TAB + 5120 + 128
sC, sWS = 16, 24
rX, rWQ, rWO, rW1, rW2, rWM, rWS, rOUT = 28, 32, 36, 40, 44, 48, 52, 56
rH = 32
sW, sRB, sHQ, sJ, sRB2, sN, sXCC, sFAST, sHI = 60, 61, 62, 63, 64, 65, 66, 67, 68
(sKV, sFKV, sO, sFO, sPO, sOL, sDL, sTILE, sY, sST, sFY, sPY, sSTL, sYL, sF, sFF, sX, sFL0, sFL1, sBO, sRING, sIW) = (
    12, 13, 14, 15, 18, 19, 20, 21, 22, 23, 26, 27, 69, 70, 71, 72, 73, 74, 75, 76, 77, 0)
STAMP0, STP = 78, 100
LIMIT = 1 << 15
vL, vL16 = 1, 2
W1A, WOA = 5, 9
vG2, vWD, vRB, vOS, vVS = 11, 12, 13, 14, 15

NTX = 'nt' if OPT['ntx'] else ''
NTY = ('', 'nt', 'sc1')[OPT.get('nty', 1)]
NTQ = 'nt' if OPT['ntq'] else ''
NTW = 'nt' if OPT['ntw'] else ''
A = Asm()
if OPT.get('drop'):
    DROP = {1: lambda t: 's[32:35]' in t and 'lds' in t, 2: lambda t: 's[36:39]' in t and 'lds' in t, 3: lambda t: 's[40:43]' in t and 'lds' in t,
            4: lambda t: 's[44:47]' in t and 'lds' in t, 5: lambda t: t.startswith('buffer_load_dword ') and 's[52:55]' not in t,
            6: lambda t: 'load_dwordx4' in t and 's[32:35]' in t and 's3 ' in t, 7: lambda t: 'load_dwordx4' in t and 's[32:35]' in t and 's4 ' in t,
            8: lambda t: 'store_dwordx4' in t and 's[32:35]' in t, 9: lambda t: 'store_dwordx4' in t and 's12 ' in t,
            10: lambda t: 'load_dwordx4' in t and 's[52:55], s4 offen sc1' in t and ', v15,' not in t and ', v11,' not in t,
            11: lambda t: 'lds' in t, 12: lambda t: 's[28:31]' in t, 13: lambda t: 's[48:51]' in t and 'offset:2048' in t,
            14: lambda t: 'store_dwordx4' in t and 's4 ' not in t, 15: lambda t: 's[56:59]' in t}
    A.drop = DROP[OPT['drop']]
COLD = Asm()
COLD.uid = 100000
WARM = Asm()


def srd(r):
    return s(r, 4)


NAMES = []
SETS = {1: 'rt start setup ln_pre mod h kv q m2 own kvflag attn prep oflag o0 oproj yflag c1 e0 c2 d0 ffn2',
        3: 'rt start yflag a0 a16 c1 b16 e0 fw fflag e16 e24 c2 d0 d7 d14 d21 d28 d35 d42 d49 ffn2',
        4: 'rt start mod h0 h1 h2 h3 hw h attn prep oflag o0 o4 o8 o12 om oproj cb yflag',
        6: 'rt start q m2 own kvflag u1 u2 u3 u4 u5 u6 u7 u9 u11 u13 u15 u17 uend attn',
        5: 'rt start attn pchk pbar kw kf kp prep oflag cb o0 om oproj yw yf yp yc yflag yiss a0',
        9: 'rt start',
        2: 'rt start karg iss setup0 nonce pland setup x0 x1 x2 x3 ln_pre wkl wk gchk mod h kv kvst q'}
KEEP = set(SETS.get(OPT['stamps'], '').split())


def stamp(name):
    if OPT.get('probe') == name:
        A(f's_mem{"" if OPT.get("pcyc") else "real"}time s[98:99]')
    if OPT['stamps'] and name in KEEP:
        k = len(NAMES)
        assert k < 22
        if k:
            A(f's_mov_b32 {s(STAMP0+k-1)}, {s(STP)}')
        A(f's_mem{"real" if name == "rt" or OPT.get("rts") else ""}time {s(STP, 2)}')
        NAMES.append(name)
        if name == 'rt':
            A('s_waitcnt lgkmcnt(0)')


def barrier():
    A('s_barrier')


class Q:
    def __init__(self, items=()):
        self.q = list(items)
        self.tok = None
        self.dtok = None
        self.k = {}
        self.last = -10**9

    def add(self, items):
        self.q += list(items)

    def kind(self):
        it = self.q[0]
        return 'call' if callable(it) else Ins(it[0] if isinstance(it, tuple) else it).kind

    def pop(self, n=1):
        for _ in range(n):
            if not self.q:
                return
            kind = self.kind()
            it = self.q.pop(0)
            if callable(it):
                it()
                continue
            txt, key = it if isinstance(it, tuple) else (it, None)
            t = A(txt)
            if kind == 'vmem':
                self.tok = t
                self.last = A.t
            elif kind == 'ds':
                self.dtok = t
            if key is not None:
                self.k[key] = t

    def grp(self, n=1, pace=0):
        for _ in range(n):
            if not self.q or A.t - self.last < pace:
                return
            while self.q and self.kind() != 'vmem':
                self.pop()
            self.pop()
            while self.q and self.kind() == 'salu':
                self.pop()

    def fill(self, reserve=0, pace=0):
        while self.q:
            it = self.q[0]
            if callable(it):
                c = 4
            else:
                i = Ins(it[0] if isinstance(it, tuple) else it)
                if i.kind == 'vmem' and A.t - self.last < pace:
                    return
                c = cost(i, A.prev, True)
            if A.t + c + reserve > A.mfree:
                return
            self.pop()

    def flush(self):
        self.pop(len(self.q))


def poll_load(vaddr, soff, off, vt):
    return f'buffer_load_dword {v(vt)}, {v(vaddr)}, {srd(rWS)}, {soff} offen offset:{off} sc1'


def poll_check(tok, vaddr, soff, off, vt):
    again, chk, ok = A.new('pagain'), A.new('pchk'), A.new('pok')
    A.wait(vm=tok)
    A(f'v_cmp_ne_u32 vcc, {s(sN)}, {v(vt)}')
    A(f's_cbranch_vccnz {again}')
    A.label(ok)
    WARM.label(again)
    WARM('s_mov_b32 s1, 0')
    WARM.label(chk)
    WARM(poll_load(vaddr, soff, off, vt))
    WARM('s_add_u32 s1, s1, 1')
    WARM('s_waitcnt vmcnt(0)')
    WARM(f'v_cmp_ne_u32 vcc, {s(sN)}, {v(vt)}')
    WARM(f's_cmp_ge_u32 s1, {LIMIT}')
    WARM(f's_cbranch_vccz {ok}')
    WARM(f's_cbranch_scc0 {chk}')
    WARM(f's_branch {ok}')


def handoff(stores, fast=True):
    tok = None
    if not (OPT['fast'] and fast):
        for t in stores:
            tok = A(t.replace('@', 'sc1')) or tok
        return tok
    slow, back = A.new('slow'), A.new('back')
    A(f's_cmp_eq_u32 {s(sFAST)}, 0')
    A(f's_cbranch_scc1 {slow}')
    for t in stores:
        tok = A(t.replace('@', '')) or tok
    A.label(back)
    COLD.label(slow)
    for t in stores:
        COLD(t.replace('@', 'sc1'))
    COLD('s_nop 1')
    COLD(f's_branch {back}')
    return tok


def setflag(soff, fast=True, off=0):
    A(f'v_mov_b32 v3, {s(sN)}')
    A('s_mov_b64 exec, 1')
    handoff([f'buffer_store_dword v3, off, {srd(rWS)}, {soff} offset:{off} @'], fast)
    A('s_mov_b64 exec, -1')


def readback(va, soffs, vt):
    if OPT.get('rb', 7):
        for so in soffs:
            A(f'buffer_load_dword {v(vt)}, {v(va)}, {srd(rWS)}, {so} offen sc1')


def unpack2(dst, src):
    return [f'v_lshlrev_b32 {v(dst)}, 16, {v(src)}', f'v_and_b32 {v(dst+1)}, {s(sHI)}, {v(src)}']


def emit(l):
    t = None
    for x in l:
        t = A(x) or t
    return t


def mod_addr(lpr, va, vc, so):
    lg = lpr.bit_length() - 1
    l = [f's_bfe_u32 s3, s2, 0x20005', f's_lshl_b32 s3, s3, 7', f's_lshl_b32 {s(so)}, {s(sW)}, 5', f's_add_u32 s3, s3, {s(so)}',
         f'v_lshrrev_b32 {v(va)}, {lg}, {v(vL)}', f'v_add_u32 {v(va)}, s3, {v(va)}', f'v_lshlrev_b32 {v(vc)}, 1, {v(va)}',
         f'v_mul_u32_u24 {v(va)}, {6144 // 16}, {v(va)}', f'v_and_or_b32 {v(va)}, {v(vL)}, {lpr-1}, {v(va)}', f'v_lshlrev_b32 {v(va)}, 4, {v(va)}',
         f's_lshl_b32 {s(so)}, {s(sRB2)}, 2', f's_and_b32 s3, {s(sHQ)}, 3', f's_add_u32 {s(so)}, {s(so)}, s3', f's_lshl_b32 {s(so)}, {s(so)}, {4+lg}']
    return l


def mod_loads(lpr, colbyte, va, vc, so, PW, PC):
    l = []
    for i in range(lpr // 2):
        if i:
            l.append(f's_add_u32 {s(so)}, {s(so)}, {(64//lpr)*6144}')
        l.append(f'buffer_load_dwordx4 {v(PW+4*i, 4)}, {v(va)}, {srd(rWM)}, {s(so)} offen offset:{colbyte} {NTX}')
    for i in range(lpr // 2):
        l.append(f'global_load_ushort {v(PC+i)}, {v(vc)}, {s(sC, 2)} offset:{(64//lpr)*2*i}')
    return l


def mod_dest(lpr, col0, so, TG):
    lg = lpr.bit_length() - 1
    return [f's_bfe_u32 s5, s2, 0x20005', f's_mul_i32 s5, s5, 12288', f's_and_b32 s3, {s(sHQ)}, 3', f's_lshl2_add_u32 {s(so)}, {s(sRB2)}, s3',
            f's_lshl_b32 {s(so)}, {s(so)}, {5+lg}', f's_add_u32 {s(so)}, {s(so)}, s5', f's_add_u32 {s(so)}, {s(so)}, {MODP + col0*4}',
            f'v_mov_b32 {v(TG)}, {s(sN)}'] + [f'v_lshrrev_b32 {v(TG+e)}, {8*e}, {v(TG)}' for e in range(1, 4)]


def mod_finish(lpr, col0, PW, PC, ACC, UT, pred, bg=lambda: None, pre=None, tw=0):
    nl = lpr // 2
    lg = lpr.bit_length() - 1
    R = range(nl)
    for i in R:
        A(f'v_lshlrev_b32 {v(PC+i)}, 16, {v(PC+i)}')
    for i in R:
        A(f'v_mul_f32 {v(PC+2+i)}, 0xbfb8aa3b, {v(PC+i)}')
    for i in R:
        A(f'v_exp_f32 {v(PC+2+i)}, {v(PC+2+i)}')
    emit(unpack2(UT, PW))
    for i in R:
        A(f'v_add_f32 {v(PC+2+i)}, 1.0, {v(PC+2+i)}')
    for i in R:
        A(f'v_rcp_f32 {v(PC+2+i)}, {v(PC+2+i)}')
    emit(unpack2(UT + 2, PW + 1))
    for i in R:
        A(f'v_mul_f32 {v(PC+i)}, {v(PC+i)}, {v(PC+2+i)}')
    for i in R:
        A(f'v_cvt_pk_bf16_f32 {v(PC+i)}, {v(PC+i)}, {v(PC+i)}')
    for i in R:
        A(f'v_and_b32 {v(PC+i)}, {s(sHI)}, {v(PC+i)}')
    for i in R:
        for r in range(0 if i else 2, 4):
            emit(unpack2(UT + 2 * r, PW + 4 * i + r))
        for e in range(4):
            if i == 0:
                A(f'v_pk_mul_f32 {v(ACC+2*e, 2)}, {v(UT+2*e, 2)}, {v(PC, 2)} op_sel_hi:[1,0]')
            else:
                A(f'v_pk_fma_f32 {v(ACC+2*e, 2)}, {v(UT+2*e, 2)}, {v(PC, 2)}, {v(ACC+2*e, 2)} op_sel:[0,1,0] op_sel_hi:[1,1,1]')
    A(f'v_and_b32 v3, {lpr-1}, {v(vL)}')
    A(f'v_lshlrev_b32 v3, 5, v3')
    for e in range(4):
        A(f'v_permlane32_swap_b32 {v(ACC+e)}, {v(ACC+e+4)}')
    for e in range(2):
        A(f'v_pk_add_f32 {v(ACC+2*e, 2)}, {v(ACC+2*e, 2)}, {v(ACC+2*e+4, 2)}')
    A(f'v_lshrrev_b32 v4, 4, {v(vL)}')
    A(f'v_lshl_add_u32 v3, v4, 3, v3')
    for e in range(2):
        A(f'v_permlane16_swap_b32 {v(ACC+e)}, {v(ACC+e+2)}')
    A(f'v_pk_add_f32 {v(ACC, 2)}, {v(ACC, 2)}, {v(ACC+2, 2)}')
    A(f's_lshl_b32 s5, {s(sW)}, {5+lg}')
    A(f's_add_u32 s5, s5, {pred}')
    extra = [f'v_add_u32 v3, s5, v3', f'v_and_b32 v4, {2*lpr-1}, {v(vL)}', f'v_lshlrev_b32 v4, 4, v4']
    for sh in (8, 4, 2)[:4 - lg]:
        for e in range(2):
            A(f'v_add_f32_dpp {v(ACC+e)}, {v(ACC+e)}, {v(ACC+e)} row_ror:{sh} row_mask:0xf bank_mask:0xf')
        A(extra.pop(0))
    A(f'ds_write_b64 v3, {v(ACC, 2)}')
    emit(extra)
    A(f'v_add_u32 v3, {pred}, v4')
    bg()
    A.wait_all(ds=True)
    barrier()

    def tail():
        for i in range(4):
            A(f'ds_read_b128 {v(UT+4*i, 4)}, v3 offset:{32*lpr*i}')
        so, TG = pre or (4, ACC)
        if not pre:
            emit(mod_dest(lpr, col0, so, TG))
        A(f's_movk_i32 s5, 0xff')
        A.wait_all(ds=True)
        for e in range(2):
            A(f'v_pk_add_f32 {v(UT+2*e, 2)}, {v(UT+2*e, 2)}, {v(UT+4+2*e, 2)}')
            A(f'v_pk_add_f32 {v(UT+8+2*e, 2)}, {v(UT+8+2*e, 2)}, {v(UT+12+2*e, 2)}')
        for e in range(2):
            A(f'v_pk_add_f32 {v(UT+2*e, 2)}, {v(UT+2*e, 2)}, {v(UT+8+2*e, 2)}')
        for e in range(4):
            A(f'v_bfi_b32 {v(ACC+e)}, s5, {v(TG+e)}, {v(UT+e)}')
        A(f's_mov_b64 exec, {(1 << (2*lpr)) - 1}')
        A(f'buffer_store_dwordx4 {v(ACC, 4)}, v4, {srd(rWS)}, {s(so)} offen sc1')
        A('s_mov_b64 exec, -1')
        A('s_nop 1')
    cond_wave(tw, tail)


def gather_loads(sets, G):
    l = []
    for st, (col0, va) in enumerate(sets):
        for q in range(4):
            l += [f's_mov_b32 s1, {MODP + q*12288 + col0*4}',
                  f'buffer_load_dwordx4 {v(G+16*st+4*q, 4)}, {v(va)}, {srd(rWS)}, s1 offen sc1']
    return l


def gather_check(sets, G, tok, T):
    chk, again, ok = A.new('gchk'), A.new('gagain'), A.new('gok')
    for e in range(4):
        A(f's_bfe_u32 {s(4+e)}, {s(sN)}, {hex(0x80000 | (8*e))}')
    A('s_mov_b32 s8, 0')
    A.wait(vm=tok)
    A.label(chk)
    nset = len(sets)
    n = 16 * nset
    for i in range(n):
        A(f'v_xor_b32 {v(G+i)}, {s(4+i%4)}, {v(G+i)}')
    A(f'v_or3_b32 {v(T)}, {v(G)}, {v(G+1)}, {v(G+2)}')
    for i in range(3, n - 1, 2):
        A(f'v_or3_b32 {v(T)}, {v(T)}, {v(G+i)}, {v(G+i+1)}')
    A(f'v_or_b32 {v(T)}, {v(T)}, {v(G+n-1)}')
    A(f'v_lshlrev_b32 {v(T)}, 24, {v(T)}')
    A(f'v_cmp_ne_u32 vcc, 0, {v(T)}')
    A(f's_cbranch_vccnz {again}')
    A.label(ok)
    WARM.label(again)
    WARM('s_add_u32 s8, s8, 1')
    WARM(f's_cmp_ge_u32 s8, {LIMIT}')
    WARM(f's_cbranch_scc1 {ok}')
    for f in gather_loads(sets, G):
        WARM(f)
    WARM('s_waitcnt vmcnt(0)')
    WARM(f's_branch {chk}')
    for st in range(nset):
        g = G + 16 * st
        for e in range(2):
            A(f'v_pk_add_f32 {v(g+2*e, 2)}, {v(g+2*e, 2)}, {v(g+4+2*e, 2)}')
            A(f'v_pk_add_f32 {v(g+8+2*e, 2)}, {v(g+8+2*e, 2)}, {v(g+12+2*e, 2)}')
        for e in range(2):
            A(f'v_pk_add_f32 {v(g+2*e, 2)}, {v(g+2*e, 2)}, {v(g+8+2*e, 2)}')
        A(f'v_cvt_pk_bf16_f32 {v(g)}, {v(g)}, {v(g+1)}')
        A(f'v_cvt_pk_bf16_f32 {v(g+1)}, {v(g+2)}, {v(g+3)}')


def add_const_round(g, sadd):
    emit(unpack2(g + 4, g) + unpack2(g + 6, g + 1))
    for e in range(4):
        A(f'v_add_f32 {v(g+4+e)}, {s(sadd)}, {v(g+4+e)}')
    A(f'v_cvt_pk_bf16_f32 {v(g)}, {v(g+4)}, {v(g+5)}')
    A(f'v_cvt_pk_bf16_f32 {v(g+1)}, {v(g+6)}, {v(g+7)}')


def cond_wave(w, fn):
    sk = A.new('cw')
    A(f's_cmp_lg_u32 {s(sW)}, {w}')
    A(f's_cbranch_scc1 {sk}')
    st = A.cond_begin()
    fn()
    A.cond_end(st)
    A.label(sk)


A('s_cmp_ge_u32 s2, 256')
A('s_cbranch_scc1 L_end')
stamp('rt')
stamp('start')
if OPT['pad']:
    A('s_memrealtime s[100:101]')
    A('s_memtime s[96:97]')
A('s_load_dwordx16 s[4:19], s[0:1], 0')
A('s_load_dwordx2 s[20:21], s[0:1], 64')
A('s_load_dwordx2 s[24:25], s[0:1], 80')
A(f'v_and_b32 {v(vL)}, 63, v0')
A(f'v_lshrrev_b32 v3, 6, v0')
A(f'v_lshlrev_b32 {v(vL16)}, 4, {v(vL)}')
A(f'v_readfirstlane_b32 {s(sW)}, v3')
A(f's_and_b32 s26, s2, 7')
A(f's_lshr_b32 s27, s2, 3')
A(f's_and_b32 {s(sHQ)}, s27, 7')
A(f's_and_b32 {s(sJ)}, s27, 15')
A(f's_lshr_b32 s27, s27, 3')
A(f's_lshl_b32 s26, s26, 2')
A(f's_add_u32 {s(sRB)}, s26, s27')
A(f's_lshr_b32 {s(sRB2)}, {s(sRB)}, 1')
A(f'v_lshlrev_b32 v253, 6, {v(vL)}')
sk = A.new('cpf')
A(f's_cmp_lg_u32 {s(sW)}, 3')
A(f's_cbranch_scc1 {sk}')
A(f's_cmp_ge_u32 s2, {OPT["chunks"]*8}')
A(f's_cbranch_scc1 {sk}')
A(f's_getpc_b64 s[70:71]')
A(f's_lshr_b32 s69, s2, 3')
A(f's_lshl_b32 s69, s69, 11')
A(f'v_add_u32 v3, s69, v253')
st = A.cond_begin()
A('s_mov_b32 exec_hi, 0')
A(f'global_load_dword v255, v3, s[70:71]')
A('s_mov_b32 exec_hi, -1')
A.cond_end(st)
A.label(sk)
A(f's_getreg_b32 {s(sXCC)}, hwreg(HW_REG_XCC_ID, 0, 4)')
A(f's_mov_b32 {s(sHI)}, 0xffff0000')
for r, n in ((rX, 2097152), (rWQ, 1572864), (rWO, 524288), (rW1, 1835008), (rW2, 1835008), (rWM, 3145728), (rWS, 0x1000000), (rOUT, 2097152)):
    A(f's_mov_b32 {s(r+2)}, {n}')
    A(f's_mov_b32 {s(r+3)}, 0x20000')
A(f'v_lshrrev_b32 v5, 4, {v(vL)}')
A(f'v_and_b32 v6, 15, {v(vL)}')
A(f's_lshl_b32 s26, {s(sRB)}, 6')
A(f's_lshl_b32 s27, {s(sW)}, 4')
A(f's_add_u32 s26, s26, s27')
A(f'v_add_u32 v3, s26, v5')
A(f'v_lshlrev_b32 v3, 10, v3')
A(f'v_lshl_add_u32 v254, v6, 4, v3')
A(f'v_min_u32 v24, {31*64}, v253')
A(f'v_min_u32 v25, {23*64}, v253')
A(f's_lshl3_add_u32 s26, {s(sRB)}, {s(sHQ)}')
A(f's_lshl2_add_u32 s26, s26, {s(sW)}')
A(f's_lshl_b32 {s(sBO)}, s26, 11')
A(f's_lshl2_add_u32 s27, s2, {s(sW)}')
A(f's_mul_i32 {s(sFAST)}, s27, 1536')
XF, XP, MOD, GA, PW, PC, PACC = 16, 144, 144, 208, 224, 20, 236
emit(mod_addr(2, 3, 4, 69))
A('s_waitcnt lgkmcnt(0)')
stamp('karg')
if OPT.get('wsoff'):
    A(f's_add_u32 s24, s24, {OPT["wsoff"] << 20}')
    A('s_addc_u32 s25, s25, 0')
A(f's_mov_b64 {s(rWM, 2)}, s[18:19]')
A(f's_mov_b64 {s(rX, 2)}, s[4:5]')
A(f's_mov_b64 {s(rWQ, 2)}, s[6:7]')
tok_p1 = emit(mod_loads(2, 0, 3, 4, 69, PW, PC))
vHW, vWR = 248, 252


def xloads(aa):
    A(f's_movk_i32 s4, {aa << 12}')
    for c in range(4):
        t = A(f'buffer_load_dwordx4 {v(XP+(aa*4+c)*4, 4)}, v254, {srd(rX)}, s4 offen offset:{c*256} {NTY}')
    return t


tok_x = []
SO = {0: ('xab', '', ''), 1: ('x', 'ab', ''), 2: ('x', 'a', 'b'), 3: ('', 'xab', ''), 4: ('x', 'ba', ''), 5: ('xb', 'a', ''), 6: ('', 'xb', 'a'), 7: ('x', 'b', 'a')}[OPT.get('so', 4)]


def first_loads(which):
    for c in which:
        if c == 'x':
            A(f'buffer_load_dword v255, v24, {srd(rX)}, s78 offen {NTX}'.replace('s78', s(sBO)))
        elif c == 'b':
            A(f'buffer_load_dword v255, v25, {srd(rWQ)}, {s(sFAST)} offen')
        else:
            tok_x.append(xloads(0))


first_loads(SO[0])
stamp('iss')
A(f's_load_dword {s(sN)}, {s(sWS, 2)}, {EPOCH}')
for r, p in ((rWO, 8), (rW1, 12), (rW2, 14), (rWS, 24), (rOUT, 20)):
    A(f's_mov_b64 {s(r, 2)}, {s(p, 2)}')
if OPT.get('idle3', 1):
    A(f's_lshr_b32 s3, {s(sJ)}, 3')
    A(f's_cmp_gt_u32 {s(sHQ)}, 3')
    A(f's_subb_u32 {s(sJ)}, {s(sJ)}, s3')
    A(f's_add_u32 s3, s3, 14')
    A(f's_cmp_eq_u32 {s(sHQ)}, 3')
    A(f's_cselect_b32 {s(sJ)}, s3, {s(sJ)}')
A(f's_lshl2_add_u32 s3, {s(sHQ)}, {s(sW)}')
A(f's_lshl_b32 s4, s3, 17')
A(f's_lshl_b32 s5, {s(sRB)}, 12')
A(f's_add_u32 s4, s4, s5')
A(f's_add_u32 {s(sKV)}, s4, {KVB}')
A(f's_lshl_b32 s4, s3, 7')
A(f's_add_u32 s4, s4, s5')
A(f's_add_u32 {s(sFKV)}, s4, {FKV}')
A(f's_lshl_b32 s8, {s(sRB)}, 16')
A(f's_lshl_b32 s5, s3, 9')
A(f's_add_u32 s4, s8, s5')
A(f's_add_u32 {s(sO)}, s4, {OBUF}')
A(f's_lshl_b32 s4, {s(sW)}, 14')
A(f's_add_u32 s4, s4, s8')
A(f's_add_u32 {s(sOL)}, s4, {OBUF}')
A(f's_lshl_b32 s6, {s(sRB)}, 10')
A(f's_add_u32 {s(sPO)}, s6, {FL}')
A(f's_lshl2_add_u32 {s(sFO)}, s3, {s(sPO)}')
A(f's_lshr_b32 s11, {s(sW)}, 1')
A(f's_lshl1_add_u32 s7, {s(sRB)}, s11')
A(f's_lshl_b32 s8, s7, 15')
A(f's_and_b32 s10, {s(sW)}, 1')
A(f's_lshl1_add_u32 s9, {s(sHQ)}, s10')
A(f's_lshl_b32 s4, {s(sHQ)}, 7')
A(f's_add_u32 s4, s4, {s(sOL)}')
A(f's_sub_u32 {s(sTILE)}, s4, {OBUF}')
A(f's_lshl4_add_u32 s4, {s(sHQ)}, s10')
A(f's_lshl_b32 s4, s4, 8')
A(f's_add_u32 s4, s4, s8')
A(f's_add_u32 {s(sY)}, s4, {YBUF}')
A(f's_lshl4_add_u32 s4, s7, s9')
A(f's_lshl_b32 s4, s4, 7')
A(f's_add_u32 {s(sST)}, s4, {STATS}')
A(f's_lshl4_add_u32 s4, s11, s9')
A(f's_lshl2_add_u32 s4, s4, {s(sPO)}')
A(f's_add_u32 {s(sFY)}, s4, 128')
A(f's_mul_i32 s4, s11, {56*512}')
A(f's_mul_i32 s5, s10, {26*512}')
A(f's_add_u32 s4, s4, s5')
A(f's_lshl_b32 {s(sFL1)}, s4, 5')
A(f's_mul_i32 s5, {s(sRB)}, {4*57344}')
A(f's_add_u32 s4, s4, s5')
A(f's_add_u32 {s(sFL0)}, s4, {FBUF}')
A(f's_lshl_b32 s4, s10, 12')
A(f's_add_u32 {s(sDL)}, s4, 2048')
first_loads(SO[1])
A(f's_lshl2_add_u32 s7, {s(sRB2)}, {s(sW)}')
A(f's_lshr_b32 s6, s7, 1')
A(f's_lshl_b32 s6, s6, 10')
A(f's_lshl_b32 s4, s10, 6')
A(f's_add_u32 s4, s4, s6')
A(f's_add_u32 {s(sPY)}, s4, {FL+128}')
A(f's_lshl_b32 s4, s7, 11')
A(f's_add_u32 {s(sSTL)}, s4, {STATS}')
A(f's_lshl_b32 s4, s7, 15')
A(f's_add_u32 {s(sYL)}, s4, {YBUF}')
A(f's_mul_i32 s4, s7, {112*1024}')
A(f's_lshl_b32 s5, {s(sJ)}, 12')
A(f's_add_u32 s4, s4, s5')
A(f's_add_u32 {s(sF)}, s4, {FBUF}')
A(f's_lshl1_add_u32 s5, {s(sJ)}, s10')
A(f's_lshl2_add_u32 s4, s5, s6')
A(f's_add_u32 {s(sFF)}, s4, {FL+256}')
A(f's_mul_i32 s4, {s(sW)}, {RING}')
A(f's_add_u32 {s(sRING)}, s4, {SCR}')
A(f's_lshr_b32 s4, s2, 3')
A(f's_lshl2_add_u32 {s(sIW)}, s4, {s(sW)}')
vQ4 = 244
A(f'v_bfe_u32 v16, {v(vL)}, 2, 3')
A(f'v_mul_u32_u24 v4, 3072, v16')
A(f'v_lshrrev_b32 v17, 5, {v(vL)}')
A(f'v_lshl_add_u32 v4, v17, 6, v4')
A(f'v_and_b32 v3, 3, {v(vL)}')
A(f'v_lshl_add_u32 v4, v3, 4, v4')
A(f's_lshl_b32 s4, {s(sHQ)}, 7')
A(f'v_add_u32 {v(vQ4)}, s4, v4')
A(f'v_xor_b32 v4, 32, {v(vQ4)}')
A(f'v_add_u32 {v(vQ4+1)}, {24576-1024}, v4')
A(f'v_add_u32 {v(vQ4+2)}, {2*(24576-1024)}, {v(vQ4)}')
A(f'v_add_u32 {v(vQ4+3)}, {3*(24576-1024)}, v4')
A(f'v_lshlrev_b32 v4, 10, v16')
A(f'v_lshl_add_u32 v4, v17, 6, v4')
A(f'v_lshl_add_u32 v4, v3, 4, v4')
A(f'v_add_u32 {v(vWD)}, s4, v4')
A(f'v_bfe_u32 v4, {v(vL)}, 4, 1')
A(f'v_lshlrev_b32 v4, 5, v4')
A(f'v_xor_b32 {v(WOA)}, v4, {v(vWD)}')
A(f'v_add_u32 {v(WOA+1)}, 7168, {v(WOA)}')
A(f'v_add_u32 {v(vWD)}, 15360, {v(WOA)}')
A(f'v_mul_u32_u24 v4, 3584, v16')
A(f'v_lshl_add_u32 v4, v17, 6, v4')
A(f'v_lshl_add_u32 v4, v3, 4, v4')
A(f's_lshl_b32 s4, {s(sJ)}, 8')
A(f'v_add_u32 {v(W1A)}, s4, v4')
for i in range(1, 4):
    A(f'v_add_u32 {v(W1A+i)}, {i*(28672-1024)}, {v(W1A)}')
first_loads(SO[2])
A(f'v_lshrrev_b32 v4, 4, {v(vL)}')
A(f'v_lshlrev_b32 v3, 10, v4')
A(f'v_xor_b32 v4, {s(sW)}, v4')
A(f'v_and_b32 v4, 1, v4')
A(f'v_lshl_add_u32 v3, v4, 5, v3')
A(f'v_bfe_u32 v4, {v(vL)}, 2, 2')
A(f'v_lshl_add_u32 v3, v4, 6, v3')
A(f'v_and_b32 v4, 3, {v(vL)}')
A(f'v_lshl_add_u32 v3, v4, 3, v3')
A(f's_lshr_b32 s3, {s(sW)}, 1')
A(f's_lshl_b32 s3, s3, 9')
A(f'v_add_u32 {v(vWR)}, s3, v3')
A(f'v_bfe_u32 v4, {v(vL)}, 2, 2')
A(f'v_lshlrev_b32 v3, 6, v4')
A(f'v_bfe_u32 v4, {v(vL)}, 4, 1')
A(f'v_lshl_add_u32 v3, v4, 5, v3')
A(f'v_and_b32 v4, 3, {v(vL)}')
A(f'v_lshl_add_u32 v3, v4, 3, v3')
A(f'v_lshrrev_b32 v4, 5, {v(vL)}')
A(f'v_lshl_add_u32 {v(vRB)}, v4, 8, v3')
A(f'v_and_b32 v16, 0xe0, v0')
A(f'v_and_b32 v17, 1, v0')
A(f'v_lshl_add_u32 v16, v17, 4, v16')
A(f'v_bfe_u32 v17, v0, 1, 4')
A(f'v_add_u32 v16, v16, v17')
A(f'v_lshlrev_b32 v16, 4, v16')
A(f'v_add_u32 v232, {MODT}, v16')
A(f'v_and_b32 v16, 15, {v(vL)}')
A(f'v_lshlrev_b32 v16, 4, v16')
A(f'v_add_u32 v233, {MODT}, v16')
A(f'v_and_b32 v3, 15, {v(vL)}')
A(f'v_lshl_add_u32 v3, v4, 4, v3')
A(f'v_lshlrev_b32 {v(vVS)}, 4, v3')
A(f'v_bfe_u32 v16, {v(vL)}, 4, 1')
A(f'v_lshl_add_u32 {v(vOS)}, v16, 14, {v(vVS)}')
A(f's_mul_i32 s5, s11, 6144')
A(f's_lshl_b32 s4, s9, 7')
A(f's_add_u32 s4, s4, s5')
A(f'v_and_b32 v17, 7, {v(vL)}')
A(f'v_lshl_add_u32 {v(vG2)}, v17, 4, s4')
A(f'v_lshrrev_b32 v16, 4, {v(vL)}')
A(f'v_and_b32 v4, 15, {v(vL)}')
A(f's_lshl_b32 s5, {s(sW)}, 10')
A(f'v_and_b32 v17, 3, v4')
A(f'v_lshl_add_u32 v3, v17, 8, s5')
A(f'v_lshrrev_b32 v17, 2, v4')
A(f'v_lshl_add_u32 v3, v17, 12, v3')
A(f'v_and_b32 v4, 7, v4')
A(f'v_xor_b32 v4, v4, v16')
for aa in range(4):
    A(f'v_xor_b32 v16, {4*aa}, v4')
    A(f'v_lshl_add_u32 {v(vHW+aa)}, v16, 4, v3')
emit(mod_addr(4, 234, 235, 1))
A(f'v_add_u32 v234, s1, v234')


def mark(l, key):
    l[-1] = (l[-1], key)
    return l


def touch(rs, chunk, va, vt=255):
    return [f's_lshl2_add_u32 s1, s2, {s(sW)}', f's_mul_i32 s1, s1, {chunk}', f'buffer_load_dword {v(vt)}, {v(va)}, {srd(rs)}, s1 offen']


def touch3(rs, n, va, vt=255):
    if not OPT.get('t3', 1) & {rWQ: 1, rW1: 2, rWO: 4, rW2: 8}[rs]:
        return []
    return [f'v_min_u32 {v(va)}, {2*n-1}, {v(vL)}', f'v_lshlrev_b32 {v(vt)}, 9, {v(va)}', f'v_and_b32 {v(va)}, 1, {v(va)}',
            f'v_mul_u32_u24 {v(va)}, 448, {v(va)}', f'v_sub_u32 {v(va)}, {v(vt)}, {v(va)}', f's_mul_i32 s1, {s(sIW)}, {n*1024}',
            f'buffer_load_dword {v(vt)}, {v(va)}, {srd(rs)}, s1 offen offset:384']


def hello():
    A(f's_andn2_b32 s3, {s(sN)}, 15')
    A(f's_or_b32 s3, s3, {s(sXCC)}')
    A(f'v_mov_b32 v16, s3')
    A(f's_lshl_b32 s3, {s(sRB2)}, 7')
    A(f's_lshl2_add_u32 s3, {s(sJ)}, s3')
    A(f's_add_u32 s3, s3, {HELLO}')
    A('s_mov_b64 exec, 1')
    A(f'buffer_store_dword v16, off, {srd(rWS)}, s3 sc1')
    A('s_mov_b64 exec, -1')


def wq_items(colbyte, region, ks0, nks):
    l = []
    for g in range(nks // 4):
        l += [f's_add_u32 m0, {s(sX)}, {region + g*16384}', f's_add_u32 {s(sBO)}, s11, {colbyte + (ks0 + 4*g)*98304}']
        l += [f'buffer_load_dwordx4 {v(vQ4+n)}, {srd(rWQ)}, {s(sBO)} offen offset:{1024*n} {NTQ} lds' for n in range(4)]
    return l


A(f's_lshl_b32 {s(sX)}, {s(sW)}, 12')
A(f's_mul_i32 s11, {s(sW)}, 98304')
emit([f'v_lshrrev_b32 v16, 3, {v(vL)}', f'v_and_b32 v17, 0x70, {v(vL16)}', 'v_lshl_add_u32 v231, v16, 10, v17'])
t3 = touch3(rWQ, 12, 229, 19)
emit(t3[:-2])
stamp('setup0')
if OPT.get('x1e', 1):
    tok_x.append(xloads(1))
A('s_waitcnt lgkmcnt(0)')
stamp('nonce')
A(f's_add_u32 {s(sN)}, {s(sN)}, 0x9e3779b1')
emit(mod_dest(2, 0, 8, 28))
A.wait(vm=tok_p1)
stamp('pland')


D = Q()
for aa in (2, 3):
    D.add([f's_movk_i32 {s(sBO)}, {aa << 12}'] +
          mark([f'buffer_load_dwordx4 {v(XP+(aa*4+c)*4, 4)}, v254, {srd(rX)}, {s(sBO)} offen offset:{c*256} {NTY}' for c in range(4)], aa))


def x1():
    if OPT.get('x1e', 1):
        D.grp(OPT.get('x2n', 4))
    else:
        tok_x.append(xloads(1))


mod_finish(2, 0, PW, PC, PACC, GA, PRED1, bg=x1, pre=(8, 28))
stamp('setup')
D.add([f'buffer_load_dwordx4 v[208:211], v231, {srd(rX)}, {s(sTILE)} offen {NTY}', f's_add_u32 s1, {s(sTILE)}, 8192',
       f'buffer_load_dwordx4 v[212:215], v231, {srd(rX)}, s1 offen {NTY}'])
T3Q = [x.replace('v19', 'v255') for x in t3[-2:]]
if OPT.get('t3p', 0) == 0:
    D.add(T3Q)
else:
    D.q = T3Q + D.q
M2 = mark(['s_mov_b32 s1, 0'] + mod_loads(4, 2048, 234, 235, 1, 236, 230), 'p2')
if OPT.get('m2', 1) == 0:
    D.add(M2)
D.add(mark(wq_items(1024, LH, 0, 16), 'wk'))
D.grp(OPT.get('x0', 4))

ST, MN, G1 = 216, 224, 144
LNP = OPT.get('lnpace', 56)


def V(t):
    A(t)
    D.grp(1, LNP)


SL1 = OPT.get('sl1', 0)


def sm_w1(k):
    A(f's_lshl2_add_u32 s8, s2, {s(sW)}')
    A(f's_mul_i32 s8, s8, 1792')
    for i in range(7):
        A(f's_load_dwordx2 s[98:99], {s(rW1, 2)}, s8 offset:{(7*(1-k)+i)*128+60}')


def row_allreduce(grp):
    for sh in (8, 4, 2, 1):
        for aa in grp:
            t0 = ST + 4 * (aa % 2)
            V(f'v_add_f32_dpp {v(t0)}, {v(t0)}, {v(t0)} row_ror:{sh} row_mask:0xf bank_mask:0xf')


A('s_mov_b32 s9, 0x3b000000')
A('s_mov_b32 s10, 0x3f803f80')
A('s_mov_b32 s7, 0x3f80')
A('s_mov_b32 s6, 0x3f800000')
A('v_mov_b32 v228, 0x3727c5ac')
for grp in ((0, 1), (2, 3)):
    if grp[0] == 0 and SL1 & 1:
        sm_w1(0)
    for aa in grp:
        A.wait(vm=tok_x[aa] if aa < 2 else D.k[aa])
        stamp(f'x{aa}')
        t0 = ST + 4 * (aa % 2)
        for i in range(16):
            V(f'v_dot2_f32_bf16 {v(t0)}, {v(XP+aa*16+i)}, s10, {v(t0) if i else 0}')
    row_allreduce(grp)
    for aa in grp:
        V(f'v_mul_f32 {v(MN+aa)}, 0xbb000000, {v(ST+4*(aa%2))}')
    for aa in grp:
        b = XF + aa * 32
        t0, t1 = ST + 4 * (aa % 2), ST + 4 * (aa % 2) + 2
        for i in range(16):
            V(f'v_dot2_f32_bf16 {v(b+2*i)}, {v(XP+aa*16+i)}, s7, {v(MN+aa)}')
            V(f'v_dot2_f32_bf16 {v(b+2*i+1)}, {v(XP+aa*16+i)}, s6, {v(MN+aa)}')
        for i in range(16):
            t = t0 if i % 2 == 0 else t1
            if i < 2:
                V(f'v_pk_mul_f32 {v(t, 2)}, {v(b+2*i, 2)}, {v(b+2*i, 2)}')
            else:
                V(f'v_pk_fma_f32 {v(t, 2)}, {v(b+2*i, 2)}, {v(b+2*i, 2)}, {v(t, 2)}')
        V(f'v_pk_add_f32 {v(t0, 2)}, {v(t0, 2)}, {v(t1, 2)}')
        V(f'v_add_f32 {v(t0)}, {v(t0)}, {v(t0+1)}')
    if grp == (2, 3):
        D.flush()
        if SL1 & 2:
            sm_w1(1 if SL1 & 1 else 0)
        A(f'v_lshlrev_b32 v4, 4, v0')
        tok_g1 = emit(gather_loads([(0, 4)], G1))
        D.add(mark(wq_items(2048, WVL, 0, 8), 'wvl') + mark(wq_items(2048, WVH, 8, 8), 'wvh'))
    row_allreduce(grp)
    for aa in grp:
        V(f'v_fma_f32 {v(MN+aa)}, {v(ST+4*(aa%2))}, s9, v228')
    for aa in grp:
        V(f'v_rsq_f32 {v(MN+aa)}, {v(MN+aa)}')
    for aa in grp:
        b = XF + aa * 32
        for i in range(16):
            V(f'v_pk_mul_f32 {v(b+2*i, 2)}, {v(b+2*i, 2)}, {v(MN+(aa//2)*2, 2)} op_sel:[0,{aa%2}] op_sel_hi:[1,{aa%2}]')
D.grp(OPT.get('v0', 6))
stamp('ln_pre')
WKR = [f'ds_read_b64_tr_b16 {a(4*ks+2*rd, 2)}, {v(vWR)} offset:{ks*4096+rd*256}' for ks in range(16) for rd in range(2)]
MO1 = OPT.get('mo', 0)
if not MO1:
    A.wait(vm=D.k['wk'])
    barrier()
    stamp('wkl')
    emit(WKR)
    D.grp(2)
    stamp('wk')
gather_check([(0, 4)], G1, tok_g1, 3)
stamp('gchk')
A(f's_cmp_ge_u32 {s(sW)}, 2')
A(f's_cselect_b32 s3, 1.0, 0')
add_const_round(G1, 3)
emit(unpack2(G1 + 4, G1) + unpack2(G1 + 6, G1 + 1))
A(f'ds_write_b128 v232, {v(G1+4, 4)}')
D.grp(2)
A.wait_all(ds=True)
barrier()
stamp('mod')
tm = []


def mod_reads(c):
    for arr in range(2):
        for hlf in range(2):
            t = A(f'ds_read_b128 {v(MOD+arr*32+c*8+hlf*4, 4)}, v233 offset:{arr*2048+c*512+hlf*256}')
    tm.append(t)


mod_reads(0)
if MO1:
    emit(WKR)
    twk = A.ds
    D.grp(2)
mod_reads(1)
vH0, vH1, vB1, vB2 = 224, 225, 226, 227
A(f'v_lshrrev_b32 v254, 4, {v(vL)}')
A(f'v_and_b32 v3, 15, {v(vL)}')
A(f'v_xor_b32 v3, v3, v254')
A(f'v_lshlrev_b32 v3, 4, v3')
A(f'v_lshl_add_u32 {v(vH0)}, v254, 8, v3')
A(f'v_xor_b32 {v(vH1)}, 64, {v(vH0)}')
A(f'v_add_u32 {v(vB1)}, {WVH}, {v(vWR)}')
A(f'v_add_u32 {v(vB2)}, {WQL}, {v(vWR)}')
A(f'v_min_u32 v228, {(13 if SL1 else 27)*64}, v253')
A(f'v_min_u32 v229, {7*64}, v253')
A(f'v_lshrrev_b32 v3, 4, v0')
A(f'v_min_u32 v3, 9, v3')
A(f'v_lshlrev_b32 v3, 6, v3')
D.add(touch(rWO, 512, 229) + (touch(rW1, 1792, 228) if SL1 != 3 else []) + [f'buffer_load_dword v255, v3, {srd(rWS)}, {s(sPO)} offen sc1'])
if OPT.get('m2', 1) == 1:
    D.add(M2)
if OPT.get('sm') not in (2, 3):
    D.add(touch(rW2, 1792, 228))
for c in range(4):
    A.wait(ds=tm[c])
    stamp(f'h{c}')
    for aa in range(4):
        b = XF + aa * 32 + c * 8
        for i in range(4):
            A(f'v_pk_fma_f32 {v(b+2*i, 2)}, {v(b+2*i, 2)}, {v(MOD+32+c*8+2*i, 2)}, {v(MOD+c*8+2*i, 2)}')
        for i in range(4):
            A(f'v_cvt_pk_bf16_f32 {v(b+i)}, {v(b+2*i)}, {v(b+2*i+1)}')
        if aa == 0 and c < 2:
            mod_reads(c + 2)
        if MO1 and (c, aa) == (0, 0):
            A.wait(ds=twk)
            barrier()
        A(f'ds_write_b128 {v(vHW+aa)}, {v(b, 4)} offset:{c*16384}')
        D.grp(1, OPT.get('hp', 50))
D.flush()
stamp('hw')
A.wait(vm=D.k['wvl'], ds=A.ds)
barrier()
stamp('h')

AK, AV, AQ, WB = 144, 160, 176, 64
QF, KO, VO, KH, VH, SB, PB, MD, MO, OA = 16, 24, 32, 48, 80, 144, 176, 192, 208, 224
PW2, PC2 = 48, 56


def hreg(u, ks):
    return v(80 + ks * 16 + u * 4, 4) if ks < 4 else a(ks * 16 + u * 4, 4)


def mm16(d, x, y, first):
    A(f'v_mfma_f32_16x16x32_bf16 {v(d, 4)}, {x}, {y}, {"0" if first else v(d, 4)}')


CH = OPT.get('ch', 4)
VB = [WB, WB + 4, WB + 8, WB + 12] + ([AQ, AQ + 4] if CH & 1 else [])


def kv_reads(ks):
    l = [f'ds_read_b128 {hreg(u, ks)}, {v(vH0 + ks % 2)} offset:{ks*4096+u*1024}' for u in range(4)]
    wb = VB[ks % len(VB)]
    off = WVL - WVH + ks * 4096 if ks < 8 else (ks - 8) * 4096
    w = [f'ds_read_b64_tr_b16 {v(wb+2*rd, 2)}, {v(vB1)} offset:{off+rd*256}' for rd in range(2)]
    return [l[0], w[0], w[1], l[1], l[2], l[3]]


def wo_items(gs):
    l = []
    for g in gs:
        l += [f's_add_u32 m0, {s(sX)}, {WOS + g*16384}', f's_lshl3_add_u32 {s(sBO)}, {s(sX)}, {g*131072}']
        for i in range(4):
            if i == 2:
                l.append(f's_add_u32 {s(sBO)}, {s(sBO)}, 14336')
            l.append(f'buffer_load_dwordx4 {v(WOA+i%2)}, {srd(rWO)}, {s(sBO)} offen offset:{1024*i} {NTW} lds')
    return l


WOE = OPT.get('woe', 0)
fl = Q([f'v_mov_b64 {v(52+2*i, 2)}, {v(208+2*i, 2)}' for i in range(4)] + [f'v_add_u32 v51, {s(sRING)}, {v(vL16)}', f'v_and_b32 v60, 31, {v(vL)}', f'v_lshrrev_b32 v61, 5, {v(vL)}', 'v_lshlrev_b32 v61, 2, v61', 'v_sub_u32 v60, v60, v61',
        'v_mov_b32 v61, 0xf149f2ca', 'v_mov_b32 v62, 0'])
ONE = 'v232' if OPT.get('one', 1) else 's10'
fl.add([f'v_and_b32 v233, 11, {v(vL)}', 'v_cmp_eq_u32 vcc, 0, v233', 'v_mov_b32 v233, s10', 'v_cndmask_b32 v232, v62, v233, vcc'])
for i in range(16):
    fl.add([f'v_cmp_le_i32 vcc, {8*(i//4) + i % 4}, v60'] + ([f'v_mov_b32 {v(VO+8*(i//4)+4+i%4)}, {ONE}'] if i < 8 else []) +
           [f'v_cndmask_b32 {v(MD+i)}, v61, v62, vcc', f'v_cndmask_b32 {v(MO+i)}, v62, v61, vcc'])
QL0, QH0 = OPT.get('ql0', 2), OPT.get('qh0', 8)
fl.q.insert(0, lambda: cond_wave(3, hello))
fl.add([f'v_bfe_u32 v48, {v(vL)}, 4, 1', f'v_lshl_add_u32 v48, v48, 9, {v(vVS)}',
        f'v_and_b32 v50, 15, {v(vL)}', f'v_lshlrev_b32 v50, 2, v50'])
if CH & 1:
    tk = {}
    for ks in range(2):
        for t in kv_reads(ks):
            tk[ks] = A(t)
    todo = Q([(t, ks) for ks in range(2, 16) for t in kv_reads(ks)])
    todo.pop(OPT.get('kvp', 6))
    for kp in range(0, 16, 2):
        A.wait(ds=tk.get(kp + 1) or todo.k[kp + 1], vm=D.k['wvh'] if kp == 4 else None)
        assert not any(k <= kp + 1 for _, k in todo.q)
        if kp in (4, 8):
            barrier()
        for ks in (kp, kp + 1):
            if ks == QL0:
                D.add(mark(wq_items(0, WQL, 0, 8), 'wql'))
            if ks == QH0:
                D.add(touch3(rWO, 4, 17, 18) + mark(wq_items(0, WVL, 8, 8), 'wqh'))
        n = 0
        for u in range(4):
            for which in range(2):
                for ks in (kp, kp + 1):
                    if which == 0:
                        mm16(AK + 4 * u, a(4 * ks, 4), hreg(u, ks), ks == 0)
                    else:
                        mm16(AV + 4 * u, hreg(u, ks), v(VB[ks % 6], 4), ks == 0)
                    n += 1
                    res = 4 if n == 16 else 0
                    if todo.q and n % 4 and not ('tr_b16' in todo.q[0][0] and todo.q[0][1] >= kp + 6):
                        todo.pop()
                    elif n % 8 == 0 and D.q and D.kind() == 'vmem' and len(D.q) > 1.5 * (14 - kp):
                        D.pop()
                    D.fill(res, 60)
                    fl.fill(res)
else:
    LOOK = 2
    tk = {}
    for ks in range(LOOK):
        for t in kv_reads(ks):
            tk[ks] = A(t)
    for ks in range(16):
        nxt = kv_reads(ks + LOOK) if ks + LOOK < 16 else []
        A.wait(ds=tk[ks], vm=D.k['wvh'] if ks == 5 else None)
        if ks == 5:
            barrier()
        if ks == 8:
            barrier()
        if ks == QL0:
            D.add(mark(wq_items(0, WQL, 0, 8), 'wql'))
        if ks == 5 and OPT.get('wo5', 1) and WOE:
            D.add(wo_items((0,)))
        if ks == QH0:
            D.add(touch3(rWO, 4, 17, 18) + mark(wq_items(0, WVL, 8, 8), 'wqh'))
            D.add(wo_items(range(OPT.get('wo5', 1), WOE)))
        wb = v(WB + 4 * (ks % 4), 4)
        n = 0
        for u in range(4):
            for which in range(2):
                if which == 0:
                    mm16(AK + 4 * u, a(4 * ks, 4), hreg(u, ks), ks == 0)
                else:
                    mm16(AV + 4 * u, hreg(u, ks), wb, ks == 0)
                if n < len(nxt):
                    tk[ks + LOOK] = A(nxt[n])
                n += 1
                res = 4 if n == 8 else 0
                if n == 8 and D.q and D.kind() == 'vmem' and len(D.q) > 1.5 * (15 - ks):
                    D.pop()
                D.fill(res, 60)
                fl.fill(res)
D.flush()
assert not fl.q
stamp('kv')


def pack2(dst, acc):
    return [f'v_cvt_pk_bf16_f32 {v(dst+2*u+r)}, {v(acc+4*u+2*r)}, {v(acc+4*u+2*r+1)}' for u in range(2) for r in range(2)]


QB = [WB, WB + 4, WB + 8, WB + 12, 144, 148]


def q_reads(ks):
    wb = QB[ks % 6] if CH & 2 else WB + 4 * (ks % 4)
    base, off = (vB2, ks * 4096) if ks < 8 else (vB1, WVL - WVH + (ks - 8) * 4096)
    return [f'ds_read_b64_tr_b16 {v(wb+2*rd, 2)}, {v(base)} offset:{off+rd*256}' for rd in range(2)]


def q_start():
    A.wait(vm=D.k['wql'])
    barrier()
    for ks in range(LOOK):
        for t in q_reads(ks):
            tk[ks] = A(t)


LOOK = 3
tk = {}
def kv_store(r, T, off, va):
    return A(f'buffer_store_dwordx4 {v(r, 4)}, {v(va)}, {srd(rWS)}, {s(sKV)} offen offset:{T*2048+off} sc1')


def swaps(kind, r):
    return [f'v_permlane{kind}_swap_b32 {v(r+i)}, {v(r+2+i)}' for i in range(2)]


emit(pack2(KO, AK) + pack2(KO + 4, AK + 8) + swaps(16, KO))
kv_store(KO, 0, 0, vL16)
emit(swaps(16, KO + 4) + pack2(VO, AV) + pack2(VO + 8, AV + 8))
kv_store(KO + 4, 1, 0, vL16)
emit(swaps(16, VO) + swaps(16, VO + 8) + swaps(32, VO))
kv_store(VO, 0, 1024, 48)
emit(swaps(32, VO + 8))
q_start()
tok_kv = kv_store(VO + 8, 1, 1024, 48)
stamp('kvst')


def w1_items(img, gs=range(4)):
    l = []
    for g in gs:
        l += [f's_add_u32 m0, {s(sX)}, {img*65536 + g*16384}', f's_mul_i32 {s(sBO)}, {s(sX)}, 28', f's_add_u32 {s(sBO)}, {s(sBO)}, {g*458752 + img*128}']
        l += [f'buffer_load_dwordx4 {v(W1A+i)}, {srd(rW1)}, {s(sBO)} offen offset:{1024*i} {NTW} lds' for i in range(4)]
    return l


def ones(d):
    def f():
        A(f's_cmp_ge_u32 {s(sRB)}, {d}')
        A(f's_cselect_b32 s6, s10, 0')
    r = VH + 16 * (4 - d)
    if OPT.get('one', 1):
        return [f, f'v_and_b32 {v(r)}, s6, v232', f'v_and_b32 {v(r+1)}, s6, v232'] + [f'v_mov_b64 {v(r+2*i, 2)}, {v(r, 2)}' for i in range(1, 8)]
    return [f, 's_mov_b32 s7, s6'] + [f'v_mov_b64 {v(r+2*i, 2)}, s[6:7]' for i in range(8)]


fl.add([f'v_permlane16_swap_b32 {v(VO+8*T+i)}, {v(VO+8*T+4+i)}' for T in range(2) for i in range(4)])
fl.add([f'v_bfe_u32 v16, {v(vL)}, 4, 1', f'v_lshrrev_b32 v19, 5, {v(vL)}', f'v_lshl_add_u32 v48, v16, 8, {v(vRB)}', 'v_mul_u32_u24 v19, 0x700, v19',
        'v_add_u32 v48, v19, v48', 'v_xor_b32 v49, 32, v48'])
fl2 = Q(ones(4) + ones(3) + ones(2) + ones(1))
W1P = OPT.get('w1pace', 60)
D.add(mark([f's_lshl_b32 s1, {s(sRB2)}, 7', f's_add_u32 s1, s1, {HELLO}', f'buffer_load_dword v63, v50, {srd(rWS)}, s1 offen sc1'], 'hello'))
D.k['woa'] = tok_kv
D.add((mark(wo_items(range(WOE, 2)), 'woa') if WOE < 2 else []) + mark(wo_items((2, 3)), 'wo') + touch3(rW1, 14, 60, 61))


def idle_w1():
    A(f's_cmp_lt_u32 {s(sJ)}, 14')
    A(f's_cselect_b32 {s(rW1+2)}, 1835008, 0')


NI = OPT.get('ni', 4)
D.add(([idle_w1] if NI else []) + w1_items(1, range(min(NI, 2))))
D.last = A.t + OPT.get('w10', 100)
def kv_flag():
    A(f'v_mov_b32 v3, {s(sN)}')
    A.wait(vm=tok_kv)
    A('s_mov_b64 exec, 0xffff')
    A(f'buffer_store_dword v3, v50, {srd(rWS)}, {s(sFKV)} offen sc1')
    A('s_mov_b64 exec, -1')


if CH & 2:
    for kp in range(0, 16, 2):
        A.wait(ds=tk[kp + 1], vm=D.k['wqh'] if kp == 4 else None)
        if kp == 4:
            barrier()
        nxt = [(t, ks) for ks in (kp + 3, kp + 4) if ks < 16 for t in q_reads(ks)]
        n = 0
        for u in range(4):
            for ks in (kp, kp + 1):
                mm16(AQ + 4 * u, v(QB[ks % 6], 4), hreg(u, ks), ks == 0)
                n += 1
                res = 4 if n == 8 else 0
                if n % 4 == 1:
                    if kp + n // 4 >= OPT.get('q0', 3) and D.q and D.kind() == 'vmem':
                        D.pop()
                elif nxt and n % 4:
                    t, k = nxt.pop(0)
                    tk[k] = A(t)
                D.fill(res, 10**6)
                fl.fill(res)
                if kp >= 4:
                    fl2.fill(res)
        if kp == OPT.get('kvf', 12):
            kv_flag()
else:
    for ks in range(16):
        nxt = q_reads(ks + LOOK) if ks + LOOK < 16 else []
        A.wait(ds=tk[ks], vm=D.k['wqh'] if ks == 5 else None)
        if ks == 5:
            barrier()
        for u in range(4):
            mm16(AQ + 4 * u, v(WB + 4 * (ks % 4), 4), hreg(u, ks), ks == 0)
            if u >= 2 and nxt:
                tk[ks + LOOK] = A(nxt[u - 2])
            res = 4 if u == 3 else 0
            if u == 0 and ks >= OPT.get('q0', 3) and D.q and D.kind() == 'vmem':
                D.pop()
            D.fill(res, 10**6)
            fl.fill(res)
            if ks >= 4:
                fl2.fill(res)
        if ks == OPT.get('kvf', 12):
            kv_flag()
fl.flush()
fl2.flush()
stamp('q')
D.grp(OPT.get('w1a', 2))
A('s_mov_b32 s4, 0x3eb8aa3b')
A('s_mov_b32 s5, 0x3eb8aa3b')
for i in range(4):
    A(f'v_pk_mul_f32 {v(AQ+2*i, 2)}, {v(AQ+2*i, 2)}, s[4:5]')
emit(pack2(QF, AQ))
for i in range(4, 8):
    A(f'v_pk_mul_f32 {v(AQ+2*i, 2)}, {v(AQ+2*i, 2)}, s[4:5]')
for r in range(2):
    A(f'v_permlane16_swap_b32 {v(QF+r)}, {v(QF+2+r)}')
emit(pack2(QF + 4, AQ + 8))
D.grp()
for r in range(2):
    A(f'v_permlane16_swap_b32 {v(QF+4+r)}, {v(QF+6+r)}')
A(f's_mov_b64 {s(rH, 2)}, {s(sWS, 2)}')
again, chk, ok = A.new('hagain'), A.new('hchk'), A.new('hok')
A(f's_andn2_b32 s3, {s(sN)}, 15')
A(f's_or_b32 s3, s3, {s(sXCC)}')
A(f's_mov_b32 {s(sFAST)}, 1')
A.wait(vm=D.k['hello'])
A(f'v_cmp_ne_u32 vcc, s3, v63')
A(f's_cbranch_vccnz {again}')
A.label(ok)
WARM.label(again)
WARM(f's_lshl_b32 s4, {s(sRB2)}, 7')
WARM(f's_add_u32 s4, s4, {HELLO}')
WARM('s_mov_b32 s5, 0')
WARM.label(chk)
WARM(f'buffer_load_dword v63, v50, {srd(rWS)}, s4 offen sc1')
WARM('s_add_u32 s5, s5, 1')
WARM('s_waitcnt vmcnt(0)')
WARM('v_cmp_ne_u32 vcc, s3, v63')
WARM('v_xor_b32 v63, s3, v63')
WARM('s_cmp_eq_u64 vcc, 0')
WARM(f's_cselect_b32 {s(sFAST)}, 1, 0')
WARM('v_cmp_lt_u32 vcc, 15, v63')
WARM(f's_cmp_ge_u32 s5, {LIMIT}')
WARM(f's_cbranch_vccz {ok}')
WARM(f's_cbranch_scc0 {chk}')
WARM(f's_branch {ok}')
D.grp()


def m2bg():
    D.grp(2)
    A.wait(vm=D.k['woa'])


mod_finish(4, 1024, 236, 230, PB, SB + 16, PRED2, bg=m2bg)
D.add(w1_items(1, range(2, max(NI, 2))))
for d in range(1, 5):
    A(f's_cmp_ge_u32 {s(sRB)}, {d}')
    A(f's_cselect_b32 s3, {d*4096}, 0')
    A(f's_sub_u32 {s(3+d)}, {s(sFKV)}, s3')
A('ds_write_b128 v51, v[52:55]')
A('ds_write_b128 v51, v[56:59] offset:1024')
stamp('m2')


def mm32(X, d, x, y, c):
    X(f'v_mfma_f32_32x32x16_bf16 {d}, {x}, {y}, {c}')


def units_of(blk):
    if blk == 0:
        return [(0, KO, VO, MD, 0), (1, KO, VO, None, 0), (1, KO + 4, VO + 8, MD, 0)]
    t0 = 8 - 2 * blk
    r = []
    for t in (t0 + 1, t0):
        for q in (0, 1):
            if t < q:
                continue
            r.append((q, KH + 4 * t, VH + 8 * t, MO if t == q else None, blk))
    return r


def s_mm(X, un, buf):
    q, k, _, m, _ = un
    mm32(X, v(SB + 16 * buf, 16), v(k, 4), v(QF + 4 * q, 4), v(m, 16) if m else '0')


def attn_units(X, uns, first, sub=None, bg=None, ready=None, head=None):
    if ready:
        ready(uns[0])
    s_mm(X, uns[0], 0)
    if head:
        head()
    pend = None
    for n, un in enumerate(uns):
        q, _, vr, _, _ = un
        if X is A:
            stamp(f'u{n}')
        sb = SB + 16 * (n % 2)
        pb = PB + 8 * (n % 2)
        o = v(OA + 16 * q, 16)
        for hf in range(2):
            b = sb + 8 * hf
            if sub:
                for i in range(8):
                    X(f'v_sub_f32 {v(b+i)}, {v(b+i)}, {v(sub+q)}')
            seq = [('e', 0), ('p', 0), ('e', 1), ('e', 2), ('m', 0), ('c', 0), ('e', 3), ('e', 4), ('c', 1), ('e', 5), ('s', 0), ('e', 6), ('c', 2), ('e', 7)]
            for kind, i in seq:
                if kind == 'e':
                    X(f'v_exp_f32 {v(b+i)}, {v(b+i)}')
                elif kind == 'c':
                    X(f'v_cvt_pk_bf16_f32 {v(pb+4*hf+i)}, {v(b+2*i)}, {v(b+2*i+1)}')
                elif kind == 'p' and pend:
                    X(pend[0])
                elif kind == 'm' and pend:
                    mm32(X, *pend[1])
                    pend = None
                    if bg:
                        bg(n)
                elif kind == 's' and hf == 0 and n + 1 < len(uns):
                    if ready:
                        ready(uns[n + 1])
                    s_mm(X, uns[n + 1], (n + 1) % 2)
                    if bg:
                        bg(n)
            pend = (f'v_cvt_pk_bf16_f32 {v(pb+4*hf+3)}, {v(b+6)}, {v(b+7)}',
                    (o, v(vr + 4 * hf, 4), v(pb + 4 * hf, 4), '0' if q in first else o))
            first.discard(q)
    X(pend[0])
    mm32(X, *pend[1])


def kv_poll(X):
    for d in range(4):
        X(f's_load_dword {s(8+d)}, {s(sWS, 2)}, {s(4+d)} glc')


ep, epb = A.new('ep'), A.new('epb')
A(f's_lshl2_add_u32 s3, s2, {s(sW)}')
A(f's_cmp_eq_u32 s3, 3')
A(f's_cbranch_scc1 {ep}')
A.label(epb)
lp, dn = A.new('epl'), A.new('epd')
WARM.label(ep)
WARM(f'v_lshrrev_b32 v3, 2, {v(vL)}')
WARM(f'v_lshlrev_b32 v3, 7, v3')
WARM(f'v_and_b32 v4, 3, {v(vL)}')
WARM(f'v_lshl_add_u32 v3, v4, 4, v3')
WARM(f's_mov_b32 s1, {HELLO}')
WARM('s_mov_b32 s3, 0')
WARM.label(lp)
WARM(f'buffer_load_dwordx4 v[72:75], v3, {srd(rWS)}, s1 offen sc1')
WARM('s_add_u32 s3, s3, 1')
WARM('s_waitcnt vmcnt(0)')
for i in range(4):
    WARM(f'v_xor_b32 {v(72+i)}, {s(sN)}, {v(72+i)}')
WARM('v_or_b32 v72, v72, v73')
WARM('v_or3_b32 v72, v72, v74, v75')
WARM('v_cmp_lt_u32 vcc, 15, v72')
WARM(f's_cmp_lt_u32 s3, {LIMIT}')
WARM(f's_cbranch_vccz {dn}')
WARM(f's_cbranch_scc1 {lp}')
WARM.label(dn)
WARM(f'v_mov_b32 v3, {s(sN)}')
WARM('s_mov_b64 exec, 1')
WARM(f'buffer_store_dword v3, off, {srd(rWS)}, 0 offset:{EPOCH} sc1')
WARM('s_mov_b64 exec, -1')
WARM(f's_branch {epb}')


def kv_wait():
    stamp('own')
    lp, again, dn = A.new('kvp'), A.new('kva'), A.new('kvd')
    A('s_mov_b32 s3, 0')
    A.label(lp)
    A('s_waitcnt lgkmcnt(0)')
    A(f's_xor_b32 s8, s8, {s(sN)}')
    for r in (9, 10, 11):
        A(f's_xor_b32 {s(r)}, {s(r)}, {s(sN)}')
        A(f's_or_b32 s8, s8, {s(r)}')
    A(f's_cbranch_scc1 {again}')
    A.label(dn)
    WARM.label(again)
    WARM('s_add_u32 s3, s3, 1')
    WARM(f's_cmp_ge_u32 s3, {LIMIT}')
    WARM(f's_cbranch_scc1 {dn}')
    kv_poll(WARM)
    WARM(f's_branch {lp}')
    stamp('kvflag')
    A('s_mov_b32 s8, 0xffff')
    A('s_mov_b32 s9, 0xffff')


def halo_loads(X, d):
    X(f's_cmp_ge_u32 {s(sRB)}, {d}')
    X(f's_cselect_b32 {s(rH+2)}, 0x1000000, 0')
    X(f's_sub_u32 s3, {s(sKV)}, {d*4096}')
    t0 = 8 - 2 * d
    for T in (1, 0):
        X(f'buffer_load_dwordx4 {v(KH+4*(t0+T), 4)}, {v(vL16)}, {srd(rH)}, s3 offen offset:{T*2048} sc1')
    X('s_mov_b64 exec, s[8:9]')
    for u in (2, 3, 0, 1):
        t = X(f'buffer_load_dwordx4 {v(VH+8*t0+4*u, 4)}, {v(vVS)}, {srd(rH)}, s3 offen offset:{(u//2)*2048+1024+(u%2)*512} sc1')
    X('s_mov_b64 exec, -1')
    return t


SETS2 = [(1536, vVS), (1024, vG2)]
G2 = VH + 32
qg2 = Q([f'v_lshlrev_b32 {v(vVS)}, 4, v0'] + [x.replace('s1', 's4') for x in gather_loads(SETS2, G2)])
wor = Q([f'ds_read_b64_tr_b16 {a(16*ks+4*tl+2*rd, 2)}, {v(48+tl%2)} offset:{WOS+ks*4096+rd*1024+(tl//2)*512}' for ks in range(16) for tl in range(4) for rd in range(2)])
sW2, sW2b = sFL1, 11
SLOT = {}


def kunit(u):
    if u < 7:
        return 8 * (u // 2), u % 2
    if u == 13:
        return 28, 0
    return 8 * ((u - 7) % 3) + 4, 2 + (u - 7) // 3


SW2 = [sW2, sW2b, 10, sKV]


def w2_dma(m, q):
    SLOT[m] = q
    k, b = kunit(m // 2)
    return [f's_add_u32 m0, {s(sRING)}, {2048*q}' if q < 3 else f's_add_u32 m0, {s(sFKV)}, {8192*(q-3)}',
            f's_add_u32 {s(sBO)}, {s(SW2[b])}, {16384*k + 8192*(m%2)}',
            f'buffer_load_dwordx4 {v(WOA)}, {srd(rW2)}, {s(sBO)} offen {NTW} lds',
            (f'buffer_load_dwordx4 {v(vWD)}, {srd(rW2)}, {s(sBO)} offen offset:1024 {NTW} lds', ('w2', m))]


def lds_sync():
    A.wait_all(ds=True)
    barrier()


bgc = [0]
SMC = list(range(OPT.get('sm0', 2), 52, OPT.get('smd', 20)))[:OPT.get('smn', 2)]
tok_h = {0: 0}
HS = [-1, OPT.get('h3', 1), OPT.get('h4', 5)]


def att_bg(n):
    bgc[0] += 1
    c = bgc[0]
    if OPT.get('sm') == 3 and c in SMC:
        k = SMC.index(c)
        if k == 0:
            A(f's_lshl2_add_u32 s5, s2, {s(sW)}')
            A(f's_mul_i32 s5, s5, 1792')
        for i in range(14 * k // len(SMC), 14 * (k + 1) // len(SMC)):
            A(f's_load_dwordx2 s[6:7], {s(rW2, 2)}, s5 offset:{i*128+60}')
    if c in HS:
        d = HS.index(c) + 2
        assert d < 4 or not wor.q
        tok_h[d] = halo_loads(A, d)
    elif wor.q:
        wor.pop(8)
    elif c > HS[2]:
        if OPT.get('arate'):
            if 't0' not in tok_h:
                tok_h['t0'], tok_h['k'] = A.t, 0
            if A.t - tok_h['t0'] >= tok_h['k'] * OPT['arate']:
                tok_h['k'] += 1
                if n >= OPT.get('g2u', 12) and qg2.q:
                    qg2.grp(2)
                else:
                    D.grp()
        elif n >= 12 and qg2.q:
            qg2.grp(OPT.get('g2n', 2))
        else:
            D.grp(1, OPT.get('apace', 50))


DFR = OPT.get('dfr', 0)
NEV = OPT.get('nev', 16)
WR = min(OPT.get('wr', 9), NEV)
wor2 = wor.q[8 * NEV:]
wor.q = wor.q[:8 * NEV]
for i in range(NEV + 1):
    if i == OPT.get('kp', 0):
        kv_poll(A)
    if i == WR:
        kv_wait()
        tok_h[1] = halo_loads(A, 1)
    if i == min(WR + OPT.get('wr2', 2), NEV):
        tok_h[2] = halo_loads(A, 2)
    if i == 8 and NEV > 8:
        A.wait(vm=D.k['wo'])
        barrier()
    wor.pop(8)
    if i < WR:
        D.grp(1, OPT.get('wrp', 100))
if OPT.get('sm') == 3:
    lds_sync()
D.add([idle_w1] + w1_items(1, range(NI, 4)) + ([] if OPT.get('sm') == 3 else [lds_sync]) + mark(w1_items(0, range(4 - DFR)), 'w1') + touch3(rW2, 14, 79, 78) +
      [f's_lshl4_add_u32 {s(sW2b)}, {s(sDL)}, {s(sW2)}', f's_lshl_b32 {s(sFKV)}, {s(sW)}, 11'])
if OPT.get('b0e', 1):
    D.add(w2_dma(0, 1) + w2_dma(1, 2))
attn_units(A, [u for d in range(5) for u in units_of(d)], {0, 1}, bg=att_bg, ready=lambda un: A.wait(vm=tok_h[un[4]]))
print('left after attention:', sum(1 for x in D.q if 'buffer' in str(x)))
D.flush()
assert not D.q and not qg2.q, (len(D.q), len(qg2.q))
if OPT.get('sm') == 3:
    A('s_waitcnt lgkmcnt(0)')
stamp('uend')
redo, fin = A.new('redo'), A.new('attfin')
A(f's_mov_b32 s3, {"0" if OPT["forcemax"] else "0x5f800000"}')
A(f's_mov_b32 s1, 0x1f800000')
A(f's_add_u32 {s(sRB2)}, {s(sO)}, 32768')
A(f'v_max_f32 {v(SB)}, {v(OA+8)}, {v(OA+24)}')
A(f'v_min_f32 {v(SB+1)}, {v(OA+8)}, {v(OA+24)}')
A(f'v_cmp_u_f32 s[6:7], {v(OA+8)}, {v(OA+24)}')
A(f'v_cmp_nle_f32 s[4:5], s1, {v(SB+1)}')
A(f'v_cmp_nge_f32 vcc, s3, {v(SB)}')
A('s_or_b64 s[4:5], s[6:7], s[4:5]')
A('s_or_b64 vcc, vcc, s[4:5]')
A(f's_cbranch_vccnz {redo}')
A.label(fin)
C = COLD
C.label(redo)
C('s_waitcnt vmcnt(0)')
C(f'v_lshrrev_b32 v4, 5, {v(vL)}')
C(f'v_and_b32 v3, 15, {v(vL)}')
C(f'v_lshl_add_u32 v3, v4, 4, v3')
C(f'v_lshlrev_b32 {v(vVS)}, 4, v3')
for i in range(32):
    C(f'v_mov_b32 {v(G2+i)}, 0x3f803f80')
for d in (1, 2):
    halo_loads(C, d)
C('s_waitcnt vmcnt(0)')
C(f'v_mov_b32 v3, 0xff7fffff')
C(f'v_mov_b32 v4, 0xff7fffff')
mx_end, p2_end = C.new('mxend'), C.new('p2end')
for d in range(5):
    if d:
        C(f's_cmp_lt_u32 {s(sRB)}, {d}')
        C(f's_cbranch_scc1 {mx_end}')
    for un in units_of(d):
        s_mm(C, un, 0)
        for i in range(0, 16, 2):
            C(f'v_max3_f32 {v(3+un[0])}, {v(3+un[0])}, {v(SB+i)}, {v(SB+i+1)}')
C.label(mx_end)
for q in range(2):
    C(f'v_mov_b32 {v(SB)}, {v(3+q)}')
    C(f'v_permlane32_swap_b32 {v(SB)}, {v(3+q)}')
    C(f'v_max_f32 {v(3+q)}, {v(SB)}, {v(3+q)}')
fs = {0, 1}
for d in range(5):
    if d:
        C(f's_cmp_lt_u32 {s(sRB)}, {d}')
        C(f's_cbranch_scc1 {p2_end}')
    attn_units(C, units_of(d), fs, sub=3)
C('s_nop 7')
C.label(p2_end)
C('s_nop 7')
C(f'v_lshlrev_b32 {v(vVS)}, 4, v0')
for f in gather_loads(SETS2, G2):
    C(f)
C('s_waitcnt vmcnt(0)')
C(f's_branch {fin}')
for q in range(2):
    A(f'v_rcp_f32 {v(OA+16*q+8)}, {v(OA+16*q+8)}')
for q in range(2):
    for i in range(4):
        A(f'v_pk_mul_f32 {v(OA+16*q+2*i, 2)}, {v(OA+16*q+2*i, 2)}, {v(OA+16*q+8, 2)} op_sel_hi:[1,0]')
    for i in range(4):
        A(f'v_cvt_pk_bf16_f32 {v(OA+16*q+i)}, {v(OA+16*q+2*i)}, {v(OA+16*q+2*i+1)}')
    tok_o = A(f'buffer_store_dwordx4 {v(OA+16*q, 4)}, {v(vOS)}, {srd(rWS)}, {s((sO, sRB2)[q])} offen sc1')
stamp('attn')


CG, CS, GB, X1 = 208, 224, 240, 184
vP, vPF, vT32, vYS, vCB = 252, 251, 249, 253, 248
R = Q()
T0 = A.t
DF0 = min(DFR, OPT.get('df0', 2))
if DF0:
    D.add(mark(w1_items(0, range(4 - DFR, 4 - DFR + DF0)), 'w1b'))
    D.flush()
if not OPT.get('b0e', 1):
    D.add(w2_dma(0, 1) + w2_dma(1, 2))
    D.flush()
gather_check(SETS2, G2, qg2.tok, 4)
A(f's_cmp_ge_u32 {s(sW)}, 2')
A(f's_cselect_b32 s3, 1.0, 0')
add_const_round(G2, 3)
emit(['v_and_b32 v16, 3, v0', 'v_bfe_u32 v17, v0, 2, 1', 'v_lshl_add_u32 v16, v16, 1, v17', f'v_lshl_add_u32 v4, {s(sW)}, 3, v16',
      's_movk_i32 s4, 0x78', 'v_and_or_b32 v16, v0, s4, v16',
      f's_lshr_b32 s5, {s(sW)}, 1', f's_mul_i32 s3, s5, 1088', f's_add_u32 s3, s3, {T_MOD2}', 'v_lshl_add_u32 v16, v16, 3, s3',
      f's_mov_b32 s3, {T_MOD2+2176}', 'v_lshl_add_u32 v4, v4, 3, s3'])
A(f'ds_write_b64 v16, {v(G2, 2)}')
A(f'ds_write_b64 v4, {v(G2+16, 2)}')
CZ = []
if OPT.get('cz', 1):
    emit(['v_mov_b32 v17, 0', 'v_lshlrev_b32 v18, 2, v0', f'v_add_u32 v18, {T_Z}, v18', 'ds_write_b32 v18, v17'])
    CZ = [f'v_and_b32 v16, 26, {v(vL)}', 'v_cmp_eq_u32 vcc, 0, v16', f'v_mov_b32 v16, {T_Z}', 's_nop 0', 'v_cndmask_b32 v200, v16, v200, vcc']
emit([f's_and_b32 s7, {s(sW)}, 1', 's_lshl_b32 s7, s7, 9', 's_lshl_b32 s3, s5, 16', 's_add_u32 s3, s3, s7', f'v_add_u32 v201, s3, {v(vRB)}',
      f'v_lshrrev_b32 v203, 5, {v(vL)}', f'v_and_b32 v16, 1, {v(vL)}', 'v_mul_u32_u24 v16, 1088, v16', 'v_lshl_add_u32 v16, v203, 4, v16', f'v_add_u32 v200, {T_MOD2}, v16'] + CZ + [
      f'v_and_b32 {v(vT32)}, 31, {v(vL)}', f'v_lshlrev_b32 {v(vP)}, 2, {v(vT32)}'])
if wor2:
    emit([f'v_bfe_u32 v16, {v(vL)}, 4, 1', f'v_lshl_add_u32 v160, v16, 8, {v(vRB)}', 'v_mul_u32_u24 v16, 0x700, v203', 'v_add_u32 v160, v16, v160', 'v_xor_b32 v161, 32, v160'])
stamp('pchk')
A.wait(vm=D.k['w1'], ds=A.ds)
barrier()
stamp('pbar')
tk = {}
CBB, CBA = 96, 144
OB, BA = 16, 80


def w1off(ks, rd):
    return (ks // 2) * 4096 + (ks % 2) * 1024 + rd * 2048


def cb_reads(ks):
    b = CBB + (ks % 6) * 8
    return [f'ds_read_b128 {v(b, 4)}, v200 offset:{ks*32}'] + [f'ds_read_b64_tr_b16 {v(b+4+2*rd, 2)}, v201 offset:{w1off(ks, rd)}' for rd in range(2)]


def split3(dst, x0, x1, tmp, mode):
    l = [f'v_cvt_pk_bf16_f32 {v(tmp)}, {v(x0)}, {v(x1)}'] + unpack2(tmp + 1, tmp)
    l += [f'v_sub_f32 {v(x0)}, {v(x0)}, {v(tmp+1)}', f'v_sub_f32 {v(x1)}, {v(x1)}, {v(tmp+2)}']
    h0, h1 = tmp + 1, tmp + 2
    e = [h0, x0, h0, h1, x1, h1] if mode == 'a' else [h0, h0, x0, h1, h1, x1]
    l += [f'v_cvt_pk_bf16_f32 {v(dst+i)}, {v(e[2*i])}, {v(e[2*i+1])}' for i in range(3)]
    return l + [f'v_mov_b32 {v(dst+3)}, 0']


def cb_steps(k0, k1):
    def pre():
        for ks in range(k0, min(k0 + 5, k1)):
            tk[ks] = emit(cb_reads(ks))

    def step(ks):
        A.wait(ds=tk[min(ks | 1, k1 - 1)])
        b = CBB + (ks % 6) * 8
        mm32(A, v(CBA, 16), v(b, 4), v(b + 4, 4), v(CBA, 16) if ks else '0')
        if ks + 5 < k1:
            tk[ks + 5] = emit(cb_reads(ks + 5))
    return ([pre] if k1 > k0 else []) + [lambda ks=ks: step(ks) for ks in range(k0, k1)]


def run_with(work, events):
    for w in work + [None]:
        while events and (w is None or A.t - T0 >= events[0][0]):
            events.pop(0)[1]()
        if w:
            w()


emit([f's_add_u32 {s(4+i)}, {s(sOL)}, {4096*(i+1)}' for i in range(3)])
qo = Q([(f'buffer_load_dwordx4 {v(OB+4*i, 4)}, {v(vL16)}, {srd(rWS)}, {s((sOL, 4, 5, 6)[i//4])} offen offset:{(i%4)*1024} sc1', i) for i in range(16)])
hold = {}
CA = min(OPT.get('ca', 12), 32 - 8 * DFR)


def ev_flag():
    stamp('kw')
    A.wait(vm=tok_o)
    setflag(s(sFO))
    stamp('kf')


def ev_poll():
    hold['po'] = A(poll_load(vP, s(sPO), 0, 3))
    stamp('kp')


def ev_check():
    stamp('prep')
    poll_check(hold['po'], vP, s(sPO), 0, 3)
    stamp('oflag')
    qo.grp(OPT.get('o0', 10))


def consts():
    emit([f'v_and_b32 v96, 48, {v(vL)}', f'v_add_u32 v97, {T_MOD2+2176}, v96', f's_lshl_b32 s3, {s(sHQ)}, 7', f's_add_u32 s3, s3, {T_MOD2+1088}', 'v_add_u32 v98, s3, v96',
          f'v_and_b32 v101, 15, {v(vL)}', f'v_lshrrev_b32 v102, 1, v96', f'v_lshl_add_u32 v102, v101, 7, v102', f'v_add_u32 v102, {s(sRING)}, v102'])
    for tl in range(4):
        A(f'ds_read_b64 {v(120+2*tl, 2)}, v102 offset:{32*tl}')
    for p in range(2):
        A(f'ds_read_b128 {v(104+4*p, 4)}, v97 offset:{64*p}')
        A(f'ds_read_b128 {v(112+4*p, 4)}, v98 offset:{64*p}')
        hold['cs'] = A(f'ds_read_b128 {v(GB+4*p, 4)}, v97 offset:{128+64*p}')


wor2 = [x.replace('v48', 'v160').replace('v49', 'v161') for x in wor2]
TF = OPT.get('of', 700)
run_with([lambda i=i: emit(wor2[i:i + 4]) for i in range(0, len(wor2), 4)] + cb_steps(0, CA),
         [(TF, ev_flag), (TF + OPT.get('op', 300), ev_poll), (TF + OPT.get('oc', 600), ev_check)])
consts()
tcs = hold['cs']
stamp('cb')

if DFR > DF0:
    D.add(mark(w1_items(0, range(4 - DFR + DF0, 4)), 'w1b'))


def w2reg(u, tl):
    return 32 + 16 * u + 4 * tl


def w2_read(ms):
    l = [lambda: A.wait(vm=D.k['w2', ms[-1]])]
    for m in ms:
        q = SLOT[m]
        va, off = (180, 2048 * q) if q < 3 else ((182, 8192 * (q - 3)) if q < 11 else (10, 8192 * (q - 11)))
        l += mark([f'ds_read_b64_tr_b16 {a(w2reg(m//2, tl)+2*(m%2), 2)}, {v(va+tl%2)} offset:{off+(tl//2)*512}' for tl in range(4)], ('r', m))
    return l


free = []
nxt_m = [2]
unread = [0, 1]


def w2_more(limit=28):
    if not D.q and free and nxt_m[0] < limit:
        D.add(w2_dma(nxt_m[0], free.pop(0)))
        unread.append(nxt_m[0])
        nxt_m[0] += 1


def turn(k):
    ms = [unread.pop(0) for _ in range(k)]
    R.add(w2_read(ms) + [lambda: A.wait(ds=R.dtok), lambda: free.extend(SLOT[m] for m in ms)])


def refill():
    while free:
        w2_more()
        D.flush()


fb = Q([f'v_bfe_u32 v99, {v(vL)}, 4, 1', f'v_lshl_add_u32 v100, v99, 8, {v(vRB)}', 'v_mul_u32_u24 v103, 768, v203', 'v_add_u32 v100, v100, v103',
        f'v_add_u32 v180, {s(sRING)}, v100', 'v_xor_b32 v181, 32, v180',
        f'v_lshlrev_b32 v103, 4, {v(vT32)}', f'v_add_u32 {v(vCB)}, {T_CB}, v103', f's_lshl_b32 s3, {s(sW)}, 9', f'v_add_u32 v202, s3, {v(vCB)}'] +
       [lambda: A.wait(ds=tcs), lambda: free.append(0)] +
       [x for i in range(8) for x in unpack2(X1 + 2 * i, 120 + i) + unpack2(CG + 2 * i, 104 + i) + unpack2(CS + 2 * i, 112 + i)] +
       [
        f'v_lshlrev_b32 {v(vYS)}, 5, v96', f'v_lshl_add_u32 {v(vYS)}, v101, 4, {v(vYS)}', 'v_lshlrev_b32 v178, 6, v203', 'v_lshl_add_u32 v178, v101, 2, v178'])
late = ['v_lshl_add_u32 v179, v99, 7, v178', f'v_add_u32 v182, {s(sFKV)}, v100', 'v_xor_b32 v183, 32, v182',
        'v_mul_u32_u24 v103, 57344, v99', f'v_lshl_add_u32 {v(vYS)}, v178, 2, v103',
        'v_lshlrev_b32 v103, 10, v101', 'v_lshl_add_u32 v103, v99, 5, v103', 'v_lshl_add_u32 v177, v203, 4, v103',
        f's_lshr_b32 s3, {s(sDL)}, 1', f'v_add_u32 v250, s3, {v(vL16)}', f's_bitcmp1_b32 {s(sW)}, 0',
        f's_cselect_b32 s10, {s(sW2b)}, {s(sW2)}', f's_cselect_b32 {s(sKV)}, {s(sW2)}, {s(sW2b)}', 's_cselect_b32 s4, s3, 0', 's_cselect_b32 s3, 0, s3',
        f'v_add_u32 v236, s4, {v(vL16)}', f'v_add_u32 v237, s3, {v(vL16)}',
        f's_lshr_b32 s3, {s(sTILE)}, 8', 's_and_b32 s3, s3, 0x1c0', f's_add_u32 s3, s3, {T_RST}', 'v_lshl_add_u32 v176, v101, 2, s3',
        f'v_add_u32 v10, {IMG1}, v182', f'v_add_u32 v11, {IMG1}, v183',
        f'v_add_u32 v14, {IMG1}, {v(vRB)}', f'v_and_b32 v254, 60, {v(vP)}',
        f's_mul_i32 s3, {s(sW)}, 28', 's_andn2_b32 s3, s3, 7', f'v_and_b32 v103, 28, {v(vP)}', f'v_add_u32 {v(vPF)}, s3, v103']
fb.pop(OPT.get('fb0', 10))
for grp in ([(0,)] + [(k, k + 1) for k in range(1, 15, 2)] + [(15,)] if CH & 4 else [(k,) for k in range(16)]):
    A.wait(vm=qo.k[grp[-1]], ds=tcs if NEV in grp else None)
    stamp(f'o{grp[0]}')
    if 5 in grp:
        turn(2)
    n = 0
    for tl in range(4):
        for ks in grp:
            mm16(BA + 4 * tl, a(16 * ks + 4 * tl, 4), v(OB + 4 * ks, 4), ks == 0)
            n += 1
            if n % 4 == 1 and qo.q:
                qo.grp()
            elif n % 4 == 1:
                w2_more()
                D.grp()
            else:
                last = n == 4 * len(grp)
                R.fill(8 if last else 4)
                fb.fill(4 if last else 0)
fb.flush()
R.flush()
D.flush()
A(f's_cmp_lt_u32 {s(sJ)}, 14')
A(f's_cselect_b32 {s(rH+2)}, 0x1000000, 0')
stamp('om')
for p in range(2):
    for i in range(4 * p, 4 * p + 4):
        A(f'v_pk_fma_f32 {v(X1+2*i, 2)}, {v(BA+2*i, 2)}, {v(CG+2*i, 2)}, {v(X1+2*i, 2)}')
    for i in range(4 * p, 4 * p + 4):
        A(f'v_pk_mul_f32 {v(CS+2*i, 2)}, {v(CS+2*i, 2)}, {v(X1+2*i, 2)}')
    for i in range(4):
        A(f'v_cvt_pk_bf16_f32 {v(CS+8*p+i)}, {v(CS+8*p+2*i)}, {v(CS+8*p+2*i+1)}')
    A(f'buffer_store_dwordx4 {v(CS+8*p, 4)}, {v(vYS)}, {srd(rWS)}, {s(sY)} offen offset:{2048*p} sc1')
A(f'v_pk_add_f32 {v(CG, 2)}, {v(X1, 2)}, {v(X1+2, 2)}')
A(f'v_pk_mul_f32 {v(CG+2, 2)}, {v(X1, 2)}, {v(X1, 2)}')
for i in range(1, 8):
    if i > 1:
        A(f'v_pk_add_f32 {v(CG, 2)}, {v(CG, 2)}, {v(X1+2*i, 2)}')
    A(f'v_pk_fma_f32 {v(CG+2, 2)}, {v(X1+2*i, 2)}, {v(X1+2*i, 2)}, {v(CG+2, 2)}')
A(f'v_add_f32 {v(CG)}, {v(CG)}, {v(CG+1)}')
A(f'v_add_f32 {v(CG+1)}, {v(CG+2)}, {v(CG+3)}')
emit(late[:2])
A(f'v_permlane32_swap_b32 {v(CG)}, {v(CG+1)}')
A(f'v_add_f32 {v(CG)}, {v(CG)}, {v(CG+1)}')
A(f'v_mov_b32 {v(CG+1)}, {v(CG)}')
A(f'v_permlane16_swap_b32 {v(CG)}, {v(CG+1)}')
A(f'v_add_f32 {v(CG)}, {v(CG)}, {v(CG+1)}')
tok_y = A(f'buffer_store_dword {v(CG)}, v178, {srd(rWS)}, {s(sST)} offen sc1')
stamp('oproj')

YB, FT, BX, SL = 16, [144, 160, 200, 216], 232, 204
qy = Q()
for ks in range(32):
    if ks % 4 == 0:
        qy.add([f's_add_u32 s4, {s(sYL)}, {ks*1024}'])
    qy.add([(f'buffer_load_dwordx4 {v(YB+4*ks, 4)}, {v(vL16)}, {srd(rH)}, s4 offen offset:{(ks%4)*1024} sc1', ks)])
qt = Q([f'buffer_load_dword {v(SL+i)}, v179, {srd(rWS)}, {s(sSTL)} offen offset:{i*256} sc1' for i in range(8)])
T0 = A.t


def y_flag():
    stamp('yw')
    A.wait(vm=tok_y)
    setflag(s(sFY))
    stamp('yf')


def y_poll():
    if OPT.get('yt2', 1):
        turn(len(unread))
        R.flush()
    hold['py'] = A(poll_load(254, s(sPY), 0, 3))
    refill()
    stamp('yp')


def y_check():
    stamp('yc')
    poll_check(hold['py'], 254, s(sPY), 0, 3)
    stamp('yflag')
    qy.grp(OPT.get('y0', 10))
    stamp('yiss')


def w1_landed():
    A.wait(vm=D.k['w1b'])
    barrier()


def cb_done():
    emit(split3(160, CBA + 1, CBA, 164, 'a'))
    A(f'ds_write_b128 v202, {v(160, 4)}')


npre = len(unread)
refill()
emit(late[2:])
if OPT.get('yt1', 1) and npre:
    turn(min(OPT.get('yn', 2), npre))
    R.flush()
    refill()
TF = OPT.get('yf', 600)
run_with(([w1_landed] if DFR else []) + cb_steps(CA, 32) + [cb_done],
         [(TF, y_flag), (TF + OPT.get('yp', 250), y_poll), (TF + OPT.get('yc', 700), y_check)])
stats = [lambda: A.wait(vm=qt.tok)]
stats += [f'v_add_f32 {v(SL+e)}, {v(SL+e)}, {v(SL+4+e)}' for e in range(4)]
stats += [f'v_add_f32 {v(SL+e)}, {v(SL+e)}, {v(SL+2+e)}' for e in range(2)]
stats += [f'v_add_f32 {v(SL)}, {v(SL)}, {v(SL+1)}', f'v_mov_b32 {v(SL+1)}, {v(SL)}',
          f's_lshl_b32 s3, {s(sW)}, 7', f's_add_u32 s3, s3, {T_RST}', f'v_add_u32 v4, s3, {v(vP)}', f'v_permlane32_swap_b32 {v(SL)}, {v(SL+1)}']
stats += [f'v_mul_f32 {v(SL)}, 0xbb000000, {v(SL)}', f'v_mul_f32 {v(SL+1)}, 0x3b000000, {v(SL+1)}',
          f'v_fma_f32 {v(SL+1)}, -{v(SL)}, {v(SL)}, {v(SL+1)}', f'v_max_f32 {v(SL+1)}, 0, {v(SL+1)}',
          f'v_add_f32 {v(SL+2)}, 0x3727c5ac, {v(SL+1)}', f'v_sqrt_f32 {v(SL+1)}, {v(SL+2)}', f'v_rsq_f32 {v(SL+2)}, {v(SL+2)}',
          f'v_cmp_gt_u32 vcc, 32, {v(vL)}', f'ds_write_b32 v4, {v(SL+2)}',
          f'v_cndmask_b32 {v(SL)}, 0, {v(SL)}, vcc', f'v_cndmask_b32 {v(SL+1)}, 0, {v(SL+1)}, vcc']
stats += split3(BX, SL, SL + 1, SL + 4, 'b')
qs = Q(stats)
cseq = [(0, ks, i) for ks in range(33) for i in range(2)] + [(p, ks, p + 1) for p in (1, 2) for ks in range(33)]
NFB, CLK = 8, OPT.get('clk', 5)
tk = {}


def c_rd(n):
    p, ks, ct = cseq[n]
    b = 4 * (n % NFB)
    if ks == 32:
        return [f'ds_read_b128 {a(b, 4)}, {v(vCB)} offset:{ct*512}']
    return [f'ds_read_b64_tr_b16 {a(b+2*r, 2)}, {v(14 if p else vRB)} offset:{w1off(ks, r)+(ct%2)*512}' for r in range(2)]


def f_epi(t):
    r = FT[t // 2] + 4 * (t % 2)
    src = FT[t // 2] + 8 * (t % 2)
    return ([f'v_cvt_pk_bf16_f32 {v(r+i)}, {v(src+2*i)}, {v(src+2*i+1)}' for i in range(4)] + [f'v_pk_max_i16 {v(r+i)}, {v(r+i)}, 0' for i in range(4)] +
            [f'buffer_store_dwordx4 {v(r, 4)}, {v(vYS)}, {srd(rH)}, {s(sF)} offen offset:{t*512} {"" if OPT.get("fpl") else "sc1"}'])


for n in range(CLK):
    tk[n] = emit(c_rd(n))
if unread:
    turn(len(unread))
R.flush()
print('w2 k-steps requested before FFN1:', nxt_m[0])
NB, ACC, vO1 = 16, 80, 5
INB = IMG1


def fbuf(n):
    return 16 + 4 * (n % NB)


DF = OPT.get('defer', 3)
DG = OPT.get('defer2', 6)
seq = ([(aa, u) for aa in (3, 2, 1) for u in range(7)] + [(0, u) for u in range(7 - DF)] + [(aa, u) for aa in (3, 2, 1) for u in range(7, 10)] +
       [(0, u) for u in range(7 - DF, 10 - DG)] + [(aa, u) for aa in (3, 2, 1) for u in range(10, 14)] + [(0, u) for u in range(10 - DG, 14)])
assert len(seq) == 56
NE, NL = 28 - DF, 40 - DG
ql = Q()
prev = None
for n, (aa, u) in enumerate(seq):
    k, b = kunit(u)
    if (aa, k) != prev:
        ql.add([f's_add_u32 s4, {s(5+aa)}, {k*512}'])
    prev = (aa, k)
    ql.add([(f'buffer_load_dwordx4 {v(fbuf(n), 4)}, {v((vL16, 250, 236, 237)[b])}, {srd(rWS)}, s4 offen sc1', n)])
LK = OPT.get('lk', 8)


def issued():
    return max(ql.k) + 1 if ql.k else 0


CB1 = OPT.get('cb1', 25)
FA, PA, KA = OPT.get('fa', 2), OPT.get('pa', 10), OPT.get('ka', 20)
qe = Q()
qm = Q([x for aa in (3, 2, 1, 0) for x in (f's_xor_b32 s3, {s(sW)}, {aa}', 's_mul_i32 s3, s3, 57344', f's_add_u32 {s(5+aa)}, s3, {s(sFL0)}')] + ['ds_read_b32 v176, v176'])
for n, (p, ks, ct) in enumerate(cseq):
    i = n % 2
    if i == 0:
        A.wait(vm=qy.k[ks] if p == 0 and ks < 32 else None, ds=tk[n + 1])
    if i == 0 or p:
        stamp('abe'[p] + str(ks))
        if (p, ks) == (0, CB1):
            barrier()
            free += list(range(3, 3 + (CB1 + 1) // 4))
        if (p, ks) == (0, 32):
            qs.flush()
        if (p, ks) == (1, 0):
            stamp('c1')
            barrier()
            free += list(range(3 + (CB1 + 1) // 4, 11))
        if (p, ks) == (1, 2):
            D.flush()
            hold['pre'] = len(unread)
            for t in range(4):
                qe.add(f_epi(t))
        if (p, ks) == (1, OPT.get('t1', 12)):
            for _ in range(hold['pre'] // 2):
                turn(2)
        if (p, ks) == (2, 2):
            assert not qe.q
            hold['fa'] = qe.tok
            qe.add(f_epi(4) + f_epi(5))
        if (p, ks) == (2, FA):
            A.wait(vm=hold['fa'])
            setflag(s(sFF))
            for _ in range(OPT.get('t2', 2)):
                turn(2)
        if (p, ks) == (2, KA):
            stamp('fw')
            qm.flush()
            poll_check(tpf, vPF, s(sPO), 256, 255)
            stamp('fflag')
    d = v(FT[ct], 16)
    mm32(A, d, a(4 * (n % NFB), 4), v(BX if ks == 32 else YB + 4 * ks, 4), '0' if ks == 0 else d)
    if p == 0 and (qy.q or qt.q):
        if i == 0:
            qy.grp()
        elif ks >= 4:
            qt.grp()
    elif (p, ks) == (2, PA):
        tpf = A(poll_load(vPF, s(sPO), 256, 255))
    elif qe.q and qe.kind() == 'vmem':
        qe.grp(1, OPT.get('sp', 150))
    elif (p, ks) >= (2, KA) and not D.q:
        if issued() < LK:
            ql.grp()
    else:
        w2_more()
        D.grp(1, OPT.get('c2pace', 45))
    if n + CLK < len(cseq):
        tk[n + CLK] = emit(c_rd(n + CLK))
    res = 4 if i else 0
    if p == 0 and ks >= 18:
        qs.fill(res)
    for _ in range(OPT.get('qe', 3)):
        if qe.q and qe.kind() != 'vmem':
            qe.pop()
    R.fill(res)
    if p:
        qm.fill(res)
assert not qe.q
stamp('c2')

A.wait(vm=qe.tok)
setflag(s(sFF), off=128)
R.flush()
qe.add(f_epi(6) + f_epi(7))
W64 = OPT.get('w64', 0)


def red_write(aa):
    if W64:
        return [f'ds_write_b64 {v(vO1+aa-1)}, {v(ACC+16*aa+2*r, 2)} offset:{r*512}' for r in range(8)]
    return [f'ds_write_b128 {v(vO1+aa-1)}, {v(ACC+16*aa+4*r, 4)} offset:{r*1024}' for r in range(4)]


ra = [f'v_lshlrev_b32 v15, {3 if W64 else 4}, {v(vL)}']
for aa in range(1, 4):
    ra += [f's_xor_b32 s3, {s(sW)}, {aa}', f's_mul_i32 s3, s3, 12288', f's_add_u32 s3, s3, {INB + (aa-1)*4096}', f'v_add_u32 {v(vO1+aa-1)}, s3, v15']
ra += [f's_mul_i32 s3, {s(sW)}, 12288', f's_add_u32 s3, s3, {INB}', f'v_add_u32 v8, s3, v15']
CS = 160
fq = Q([x for i in range(8) for x in unpack2(CS + 2 * i, GB + i)] + ra + [f'v_mul_f32 {v(CS+i)}, {v(CS+i)}, v176' for i in range(16)])
P2, P3 = OPT.get('p2', 6), OPT.get('p3', 17)
PL = OPT.get('pl', 0)
print('w2 k-steps requested before FFN2:', nxt_m[0], 'unread', len(unread))
lim, pend = [NE], []
qr = Q()
P = (144, 216, 200)
RS = OPT.get('rsn', 1)
def d_pre(n, nw):
    A.wait(vm=ql.k[nw], ds=R.k['r', 2 * seq[nw][1] + 1])
    stamp(f'd{n}')
    if not qe.q and 'fc' not in hold and A.vm_done >= qe.tok:
        hold['fc'] = n
        setflag(s(sFF), off=256)
    if pend and (A.vm_done + PL >= pend[0] or issued() - n <= OPT.get('pmin', 5)):
        poll_check(pend[0], vPF, s(sPO), pend[1], 255)
        lim[0] = NL if pend[1] == 384 else 56
        hold[pend[1]] = n
        pend.clear()
    while unread and ('w2', unread[0]) in D.k and A.vm_done >= D.k['w2', unread[0]]:
        turn(1 if len(unread) < 2 or D.k.get(('w2', unread[1]), 10**9) > A.vm_done else 2)
    if n == NL + 4:
        assert not (R.q or fq.q)
        lds_sync()
        if OPT.get('otr', 1):
            fq.add([f'v_and_b32 v4, 15, {v(vL)}', 'v_mul_u32_u24 v4, 144, v4', f'v_lshrrev_b32 v180, 4, {v(vL)}', 'v_lshl_add_u32 v4, v180, 3, v4', f'v_add_u32 v180, {s(sRING)}, v4',
                    f'v_lshrrev_b32 v4, 3, {v(vL)}', f'v_and_b32 v177, 0x70, {v(vL16)}', 'v_mul_u32_u24 v181, 144, v4', f'v_add3_u32 v181, v181, v177, {s(sRING)}',
                    'v_lshl_add_u32 v177, v4, 10, v177', f's_add_u32 s3, {s(sTILE)}, 8192'])
    if n in (NL + 4, NL + 8, NL + 12):
        qr.add(red_write(3 - (n - NL - 4) // 4))
    if n == NL + 12 + OPT.get('rs', 5):
        assert not qr.q
        lds_sync()
        if W64:
            R.add([(f'ds_read2st64_b64 {v(P[p]+4*r, 4)}, v8 offset0:{p*8+2*r} offset1:{p*8+2*r+1}', ('p', r)) for r in range(4) for p in range(3)])
        else:
            R.add([(f'ds_read_b128 {v(P[p]+4*r, 4)}, v8 offset:{p*4096+r*1024}', ('p', r)) for r in range(4) for p in range(3)])
        for r in range(RS):
            fq.add([lambda r=r: A.wait(ds=R.k['p', r])] + [f'v_add_f32 {v(P[0]+4*r+i)}, {v(P[0]+4*r+i)}, {v(P[1]+4*r+i)}' for i in range(4)] +
                   [f'v_add_f32 {v(P[0]+4*r+i)}, {v(P[0]+4*r+i)}, {v(P[2]+4*r+i)}' for i in range(4)] +
                   [f'v_fmac_f32 {v(X1+4*r+i)}, {v(P[0]+4*r+i)}, {v(CS+4*r+i)}' for i in range(4)])


def d_post(n, tl, res):
    for _ in (0,):
        if qe.q:
            if qe.kind() == 'vmem':
                qe.pop()
            else:
                qe.fill(res, 10**6)
            continue
        if tl in (0, 2):
            if (n, tl) in ((P2, 2), (P3, 2)):
                assert not pend
                off = 384 if n == P2 else 512
                pend[:] = [A(poll_load(vPF, s(sPO), off, 255)), off]
            elif issued() < min(n + 1 + LK, lim[0]):
                ql.grp()
            else:
                w2_more()
                D.grp()
        if (tl == 3 or (W64 and tl == 1 and n not in (NL + 4, NL + 8, NL + 12))) and qr.q:
            qr.pop()
        R.fill(res)
        if not R.q or n < NE:
            fq.fill(res)


n = 0
while n < 56:
    pair = CH & 8 and n + 1 < 56 and n > 0 and seq[n + 1][0] == seq[n][0] and n + 1 != NL + 12 + OPT.get('rs', 5)
    grp = (n, n + 1) if pair else (n,)
    d_pre(n, grp[-1])
    k = 0
    for tl in range(4):
        for m in grp:
            aa, u = seq[m]
            mm16(ACC + 16 * aa + 4 * tl, a(w2reg(u, tl), 4), v(fbuf(m), 4), u == 0)
            d_post(n + k // 4, k % 4, 4 if k == 4 * len(grp) - 1 else 0)
            k += 1
    n += len(grp)
print('third flag at step', hold['fc'], 'polls', P2, hold[384], P3, hold[512], 'NE NL', NE, NL)
assert not (R.q or D.q or qr.q)
stamp('ffn2')
fq.flush()
for r in range(RS, 4):
    A.wait(ds=R.k['p', r])
    for src in (P[1], P[2]):
        for h in range(2):
            A(f'v_pk_add_f32 {v(P[0]+4*r+2*h, 2)}, {v(P[0]+4*r+2*h, 2)}, {v(src+4*r+2*h, 2)}')
for r in range(RS, 4):
    for h in range(2):
        A(f'v_pk_add_f32 {v(ACC+4*r+2*h, 2)}, {v(ACC+4*r+2*h, 2)}, {v(P[0]+4*r+2*h, 2)}')
OF_ = ("", "sc1", "nt", "sc1 nt", "sc0 sc1")[OPT["outsc1"]]
if OPT.get('otr', 1):
    for tl in range(4):
        for i in range(2 * tl, 2 * tl + 2):
            A(f'v_pk_fma_f32 {v(X1+2*i, 2)}, {v(ACC+2*i, 2)}, {v(CS+2*i, 2)}, {v(X1+2*i, 2)}')
        for i in range(2 * tl, 2 * tl + 2):
            A(f'v_cvt_pk_bf16_f32 {v(240+i)}, {v(X1+2*i)}, {v(X1+2*i+1)}')
        if tl % 2:
            A(f'ds_write2_b64 v180, {v(240+2*tl-2, 2)}, {v(240+2*tl, 2)} offset0:{4*tl-4} offset1:{4*tl}')
    t = [A(f'ds_read_b128 {v(144+4*k, 4)}, v181 offset:{1152*k}') for k in range(2)]
    for k in range(2):
        A.wait(ds=t[k])
        A(f'buffer_store_dwordx4 {v(144+4*k, 4)}, v177, {srd(rOUT)}, {s((sTILE, 3)[k])} offen {OF_}')
else:
    for k in range(2):
        for i in range(4 * k, 4 * k + 4):
            A(f'v_pk_fma_f32 {v(X1+2*i, 2)}, {v(ACC+2*i, 2)}, {v(CS+2*i, 2)}, {v(X1+2*i, 2)}')
        for i in range(4):
            A(f'v_cvt_pk_bf16_f32 {v(232+8*k+i)}, {v(X1+8*k+2*i)}, {v(X1+8*k+2*i+1)}')
        for r in range(2):
            A(f'v_permlane16_swap_b32 {v(232+8*k+r)}, {v(232+8*k+2+r)}')
        A(f'buffer_store_dwordx4 {v(232+8*k, 4)}, v177, {srd(rOUT)}, {s(sTILE)} offen offset:{64*k} {("", "sc1", "nt", "sc1 nt", "sc0 sc1")[OPT["outsc1"]]}')

if OPT['stamps']:
    A.wait_all(vm=True)
    NAMES_n = len(NAMES)
    A(f's_mov_b32 {s(STAMP0+NAMES_n-1)}, {s(STP)}')
    A(f's_mem{"real" if OPT.get("rts") else ""}time {s(STP, 2)}')
    A('s_memrealtime s[4:5]')
    NAMES.append('end')
    A('s_waitcnt lgkmcnt(0)')
    A('v_mov_b32 v3, 0')
    for k in range(NAMES_n):
        A(f'v_writelane_b32 v3, {s(STAMP0+k)}, {k}')
    A(f'v_writelane_b32 v3, {s(STP)}, {NAMES_n}')
    A(f'v_writelane_b32 v3, s4, 29')
    A(f'v_writelane_b32 v3, {s(sXCC)}, 30')
    A(f'v_writelane_b32 v3, {s(sFAST)}, 31')
    A(f's_lshl_b32 s3, s2, 2')
    A(f's_add_u32 s3, s3, {s(sW)}')
    A(f's_lshl_b32 s3, s3, 7')
    A(f's_add_u32 s3, s3, {STAMPS}')
    A(f'v_lshlrev_b32 v4, 2, {v(vL)}')
    A('s_mov_b32 exec_hi, 0')
    A(f'buffer_store_dword v3, v4, {srd(rWS)}, s3 offen')
if OPT['pad']:
    A.wait_all(vm=True)
    stamp('end')
    A('s_waitcnt lgkmcnt(0)')
    A(f's_mov_b32 s6, {OPT["pad"]}')
    if OPT.get('probe'):
        if OPT.get('pcyc'):
            A('s_sub_u32 s98, s98, s96')
            A('s_mul_i32 s98, s98, 2731')
            A('s_lshr_b32 s98, s98, 16')
        else:
            A('s_sub_u32 s98, s98, s100')
        if OPT.get('pwg') is not None:
            A(f's_cmp_eq_u32 s2, {OPT["pwg"]}')
            A('s_cselect_b32 s98, s98, 0')
        A('s_add_u32 s6, s6, s98')
    A.label('L_padl')
    A('s_memrealtime s[4:5]')
    A('s_waitcnt lgkmcnt(0)')
    A('s_sub_u32 s4, s4, s100')
    A(f's_cmp_lt_u32 s4, s6')
    A('s_cbranch_scc1 L_padl')
A.label('L_end')
A('s_endpgm')
if OPT.get('skel'):
    k = OPT['skel']

    def keep(i):
        if 'redo' in i.text and i.target:
            return False
        if k & 1 and i.kind == 'mfma':
            return False
        if k & 2 and i.kind == 'valu' and any(i.op.startswith(x) for x in ('v_exp', 'v_cvt_pk', 'v_pk_', 'v_dot2', 'v_permlane', 'v_fma', 'v_add_f32', 'v_mul_f32', 'v_cndmask', 'v_mov_b64')):
            return False
        if k & 4 and i.kind == 'ds':
            return False
        if k & 8 and i.kind == 'vmem' and i.ldsdma:
            i.__init__('s_nop 0')
        return True
    A.ins = [i for i in A.ins if keep(i)]
    if k & 8:
        import re
        for i in A.ins:
            if 'vmcnt' in i.text and k & 16:
                pass
A.ins += WARM.ins
A.label('L_hot_end')
A.ins += COLD.ins
body, added = A.text()

hdr = open('cdna_kernels/' + NAME + '.s.ref').read().split('\n')
hdr = [l for l in hdr if l.startswith(';') and '@launch' not in l and 'Override' not in l and 'grid=ceil' not in l]
out = '\n'.join(hdr) + f'''
; @launch grid=(256,1,1) block=(256,1,1) lds=163840
; generated by gen/gen.py (hand-written generator): one persistent launch, one workgroup per CU
.amdgcn_target "amdgcn-amd-amdhsa--gfx950"
.text
.globl {NAME}_kernel
.p2align 8
.type {NAME}_kernel,@function
{NAME}_kernel:
{body}
  s_endpgm
.fill 2048, 4, 0xbf800000
  s_endpgm
.section .rodata,"a"
.p2align 6
.amdhsa_kernel {NAME}_kernel
  .amdhsa_next_free_vgpr 512
  .amdhsa_next_free_sgpr 102
  .amdhsa_accum_offset 256
  .amdhsa_group_segment_fixed_size 0
  .amdhsa_kernarg_size 88
  .amdhsa_user_sgpr_count 2
  .amdhsa_user_sgpr_kernarg_segment_ptr 1
  .amdhsa_system_sgpr_workgroup_id_x 1
  .amdhsa_float_denorm_mode_32 3
.end_amdhsa_kernel
'''
open(sys.argv[1], 'w').write(out)
open(sys.argv[1] + '.names', 'w').write(' '.join(NAMES))
print(f'instructions: {len(A.ins)}, nops added: {added}, stamps: {len(NAMES)}')
```

```python
import sys
from asmlib import Asm, Ins, cost, v, a, s

NAME = 'adaLN_cond__sliding_block__dense_activation_relu__prompt'
OPT = dict(pads=2, t1=6, o0=12, sm=0, sm0=12, smd=14, smn=2, q0=5, wr=9, arate=100, ca=6, fa=2, pa=12, ka=22, p2=6, p3=17, ch=6, ql0=0, kvf=14, stamps=0, fast=1, forcemax=0, fmode=0, dmode=0, ntx=0, nty=0, ntq=0, ntw=0, touch0=1, touch1=1, chunks=18, pad=0, outsc1=2)
for arg in sys.argv[2:]:
    k, val = arg.split('=')
    OPT[k] = val if k == 'probe' else int(val)

EPOCH = 0
HELLO = 0x1000
FKV = 0x10000
FL = 0x30000
MODP = 0x40000
STATS = 0x80000
STAMPS = 0xC0000
KVB = 0x100000
OBUF = 0x500000
YBUF = 0x700000
FBUF = 0x900000
LH, WVH, WVL, WQL = 0, 65536, 98304, 131072
MODT = WQL
PRED1 = WQL + 4096
IMG0, IMG1 = 0, 65536
WOS = IMG0
PRED2 = WQL + 8192
SCR = 131072
RING = 6144
TAB = SCR + 4 * RING
T_MOD2 = TAB
T_CB = TAB + 2560
T_RST = TAB + 4608
T_Z = TAB + 5120 + 128
sC, sWS = 16, 24
rX, rWQ, rWO, rW1, rW2, rWM, rWS, rOUT = 28, 32, 36, 40, 44, 48, 52, 56
rH = 32
sW, sRB, sHQ, sJ, sRB2, sN, sXCC, sFAST, sHI = 60, 61, 62, 63, 64, 65, 66, 67, 68
(sKV, sFKV, sO, sFO, sPO, sOL, sDL, sTILE, sY, sST, sFY, sPY, sSTL, sYL, sF, sFF, sX, sFL0, sFL1, sBO, sRING, sIW) = (
    12, 13, 14, 15, 18, 19, 20, 21, 22, 23, 26, 27, 69, 70, 71, 72, 73, 74, 75, 76, 77, 0)
STAMP0, STP = 78, 100
LIMIT = 1 << 15
vL, vL16 = 1, 2
W1A, WOA = 5, 9
vG2, vWD, vRB, vOS, vVS = 11, 12, 13, 14, 15

NTX = 'nt' if OPT['ntx'] else ''
NTY = ('', 'nt', 'sc1')[OPT.get('nty', 1)]
NTQ = 'nt' if OPT['ntq'] else ''
NTW = 'nt' if OPT['ntw'] else ''
A = Asm()
if OPT.get('drop'):
    DROP = {1: lambda t: 's[32:35]' in t and 'lds' in t, 2: lambda t: 's[36:39]' in t and 'lds' in t, 3: lambda t: 's[40:43]' in t and 'lds' in t,
            4: lambda t: 's[44:47]' in t and 'lds' in t, 5: lambda t: t.startswith('buffer_load_dword ') and 's[52:55]' not in t,
            6: lambda t: 'load_dwordx4' in t and 's[32:35]' in t and 's3 ' in t, 7: lambda t: 'load_dwordx4' in t and 's[32:35]' in t and 's4 ' in t,
            8: lambda t: 'store_dwordx4' in t and 's[32:35]' in t, 9: lambda t: 'store_dwordx4' in t and 's12 ' in t,
            10: lambda t: 'load_dwordx4' in t and 's[52:55], s4 offen sc1' in t and ', v15,' not in t and ', v11,' not in t,
            11: lambda t: 'lds' in t, 12: lambda t: 's[28:31]' in t, 13: lambda t: 's[48:51]' in t and 'offset:2048' in t,
            14: lambda t: 'store_dwordx4' in t and 's4 ' not in t, 15: lambda t: 's[56:59]' in t}
    A.drop = DROP[OPT['drop']]
COLD = Asm()
COLD.uid = 100000
WARM = Asm()


def srd(r):
    return s(r, 4)


NAMES = []
SETS = {1: 'rt start setup ln_pre mod h kv q m2 own kvflag attn prep oflag o0 oproj yflag c1 e0 c2 d0 ffn2',
        3: 'rt start yflag a0 a16 c1 b16 e0 fw fflag e16 e24 c2 d0 d7 d14 d21 d28 d35 d42 d49 ffn2',
        4: 'rt start mod h0 h1 h2 h3 hw h attn prep oflag o0 o4 o8 o12 om oproj cb yflag',
        6: 'rt start q m2 own kvflag u1 u2 u3 u4 u5 u6 u7 u9 u11 u13 u15 u17 uend attn',
        5: 'rt start attn pchk pbar kw kf kp prep oflag cb o0 om oproj yw yf yp yc yflag yiss a0',
        9: 'rt start',
        2: 'rt start karg iss setup0 nonce pland setup x0 x1 x2 x3 ln_pre wkl wk gchk mod h kv kvst q'}
KEEP = set(SETS.get(OPT['stamps'], '').split())


def stamp(name):
    if OPT.get('probe') == name:
        A(f's_mem{"" if OPT.get("pcyc") else "real"}time s[98:99]')
    if OPT['stamps'] and name in KEEP:
        k = len(NAMES)
        assert k < 22
        if k:
            A(f's_mov_b32 {s(STAMP0+k-1)}, {s(STP)}')
        A(f's_mem{"real" if name == "rt" or OPT.get("rts") else ""}time {s(STP, 2)}')
        NAMES.append(name)
        if name == 'rt':
            A('s_waitcnt lgkmcnt(0)')


def barrier():
    A('s_barrier')


class Q:
    def __init__(self, items=()):
        self.q = list(items)
        self.tok = None
        self.dtok = None
        self.k = {}
        self.last = -10**9

    def add(self, items):
        self.q += list(items)

    def kind(self):
        it = self.q[0]
        return 'call' if callable(it) else Ins(it[0] if isinstance(it, tuple) else it).kind

    def pop(self, n=1):
        for _ in range(n):
            if not self.q:
                return
            kind = self.kind()
            it = self.q.pop(0)
            if callable(it):
                it()
                continue
            txt, key = it if isinstance(it, tuple) else (it, None)
            t = A(txt)
            if kind == 'vmem':
                self.tok = t
                self.last = A.t
            elif kind == 'ds':
                self.dtok = t
            if key is not None:
                self.k[key] = t

    def grp(self, n=1, pace=0):
        for _ in range(n):
            if not self.q or A.t - self.last < pace:
                return
            while self.q and self.kind() != 'vmem':
                self.pop()
            self.pop()
            while self.q and self.kind() == 'salu':
                self.pop()

    def fill(self, reserve=0, pace=0):
        while self.q:
            it = self.q[0]
            if callable(it):
                c = 4
            else:
                i = Ins(it[0] if isinstance(it, tuple) else it)
                if i.kind == 'vmem' and A.t - self.last < pace:
                    return
                c = cost(i, A.prev, True)
            if A.t + c + reserve > A.mfree:
                return
            self.pop()

    def flush(self):
        self.pop(len(self.q))


def poll_load(vaddr, soff, off, vt):
    return f'buffer_load_dword {v(vt)}, {v(vaddr)}, {srd(rWS)}, {soff} offen offset:{off} sc1'


def poll_check(tok, vaddr, soff, off, vt):
    again, chk, ok = A.new('pagain'), A.new('pchk'), A.new('pok')
    A.wait(vm=tok)
    A(f'v_cmp_ne_u32 vcc, {s(sN)}, {v(vt)}')
    A(f's_cbranch_vccnz {again}')
    A.label(ok)
    WARM.label(again)
    WARM('s_mov_b32 s1, 0')
    WARM.label(chk)
    WARM(poll_load(vaddr, soff, off, vt))
    WARM('s_add_u32 s1, s1, 1')
    WARM('s_waitcnt vmcnt(0)')
    WARM(f'v_cmp_ne_u32 vcc, {s(sN)}, {v(vt)}')
    WARM(f's_cmp_ge_u32 s1, {LIMIT}')
    WARM(f's_cbranch_vccz {ok}')
    WARM(f's_cbranch_scc0 {chk}')
    WARM(f's_branch {ok}')


def handoff(stores, fast=True):
    tok = None
    if not (OPT['fast'] and fast):
        for t in stores:
            tok = A(t.replace('@', 'sc1')) or tok
        return tok
    slow, back = A.new('slow'), A.new('back')
    A(f's_cmp_eq_u32 {s(sFAST)}, 0')
    A(f's_cbranch_scc1 {slow}')
    for t in stores:
        tok = A(t.replace('@', '')) or tok
    A.label(back)
    COLD.label(slow)
    for t in stores:
        COLD(t.replace('@', 'sc1'))
    COLD('s_nop 1')
    COLD(f's_branch {back}')
    return tok


def setflag(soff, fast=True, off=0):
    A(f'v_mov_b32 v3, {s(sN)}')
    A('s_mov_b64 exec, 1')
    handoff([f'buffer_store_dword v3, off, {srd(rWS)}, {soff} offset:{off} @'], fast)
    A('s_mov_b64 exec, -1')


def readback(va, soffs, vt):
    if OPT.get('rb', 7):
        for so in soffs:
            A(f'buffer_load_dword {v(vt)}, {v(va)}, {srd(rWS)}, {so} offen sc1')


def unpack2(dst, src):
    return [f'v_lshlrev_b32 {v(dst)}, 16, {v(src)}', f'v_and_b32 {v(dst+1)}, {s(sHI)}, {v(src)}']


def emit(l):
    t = None
    for x in l:
        t = A(x) or t
    return t


def mod_addr(lpr, va, vc, so):
    lg = lpr.bit_length() - 1
    l = [f's_bfe_u32 s3, s2, 0x20005', f's_lshl_b32 s3, s3, 7', f's_lshl_b32 {s(so)}, {s(sW)}, 5', f's_add_u32 s3, s3, {s(so)}',
         f'v_lshrrev_b32 {v(va)}, {lg}, {v(vL)}', f'v_add_u32 {v(va)}, s3, {v(va)}', f'v_lshlrev_b32 {v(vc)}, 1, {v(va)}',
         f'v_mul_u32_u24 {v(va)}, {6144 // 16}, {v(va)}', f'v_and_or_b32 {v(va)}, {v(vL)}, {lpr-1}, {v(va)}', f'v_lshlrev_b32 {v(va)}, 4, {v(va)}',
         f's_lshl_b32 {s(so)}, {s(sRB2)}, 2', f's_and_b32 s3, {s(sHQ)}, 3', f's_add_u32 {s(so)}, {s(so)}, s3', f's_lshl_b32 {s(so)}, {s(so)}, {4+lg}']
    return l


def mod_loads(lpr, colbyte, va, vc, so, PW, PC):
    l = []
    for i in range(lpr // 2):
        if i:
            l.append(f's_add_u32 {s(so)}, {s(so)}, {(64//lpr)*6144}')
        l.append(f'buffer_load_dwordx4 {v(PW+4*i, 4)}, {v(va)}, {srd(rWM)}, {s(so)} offen offset:{colbyte} {NTX}')
    for i in range(lpr // 2):
        l.append(f'global_load_ushort {v(PC+i)}, {v(vc)}, {s(sC, 2)} offset:{(64//lpr)*2*i}')
    return l


def mod_dest(lpr, col0, so, TG):
    lg = lpr.bit_length() - 1
    return [f's_bfe_u32 s5, s2, 0x20005', f's_mul_i32 s5, s5, 12288', f's_and_b32 s3, {s(sHQ)}, 3', f's_lshl2_add_u32 {s(so)}, {s(sRB2)}, s3',
            f's_lshl_b32 {s(so)}, {s(so)}, {5+lg}', f's_add_u32 {s(so)}, {s(so)}, s5', f's_add_u32 {s(so)}, {s(so)}, {MODP + col0*4}',
            f'v_mov_b32 {v(TG)}, {s(sN)}'] + [f'v_lshrrev_b32 {v(TG+e)}, {8*e}, {v(TG)}' for e in range(1, 4)]


def mod_finish(lpr, col0, PW, PC, ACC, UT, pred, bg=lambda: None, pre=None, tw=0):
    nl = lpr // 2
    lg = lpr.bit_length() - 1
    R = range(nl)
    for i in R:
        A(f'v_lshlrev_b32 {v(PC+i)}, 16, {v(PC+i)}')
    for i in R:
        A(f'v_mul_f32 {v(PC+2+i)}, 0xbfb8aa3b, {v(PC+i)}')
    for i in R:
        A(f'v_exp_f32 {v(PC+2+i)}, {v(PC+2+i)}')
    emit(unpack2(UT, PW))
    for i in R:
        A(f'v_add_f32 {v(PC+2+i)}, 1.0, {v(PC+2+i)}')
    for i in R:
        A(f'v_rcp_f32 {v(PC+2+i)}, {v(PC+2+i)}')
    emit(unpack2(UT + 2, PW + 1))
    for i in R:
        A(f'v_mul_f32 {v(PC+i)}, {v(PC+i)}, {v(PC+2+i)}')
    for i in R:
        A(f'v_cvt_pk_bf16_f32 {v(PC+i)}, {v(PC+i)}, {v(PC+i)}')
    for i in R:
        A(f'v_and_b32 {v(PC+i)}, {s(sHI)}, {v(PC+i)}')
    for i in R:
        for r in range(0 if i else 2, 4):
            emit(unpack2(UT + 2 * r, PW + 4 * i + r))
        for e in range(4):
            if i == 0:
                A(f'v_pk_mul_f32 {v(ACC+2*e, 2)}, {v(UT+2*e, 2)}, {v(PC, 2)} op_sel_hi:[1,0]')
            else:
                A(f'v_pk_fma_f32 {v(ACC+2*e, 2)}, {v(UT+2*e, 2)}, {v(PC, 2)}, {v(ACC+2*e, 2)} op_sel:[0,1,0] op_sel_hi:[1,1,1]')
    A(f'v_and_b32 v3, {lpr-1}, {v(vL)}')
    A(f'v_lshlrev_b32 v3, 5, v3')
    for e in range(4):
        A(f'v_permlane32_swap_b32 {v(ACC+e)}, {v(ACC+e+4)}')
    for e in range(2):
        A(f'v_pk_add_f32 {v(ACC+2*e, 2)}, {v(ACC+2*e, 2)}, {v(ACC+2*e+4, 2)}')
    A(f'v_lshrrev_b32 v4, 4, {v(vL)}')
    A(f'v_lshl_add_u32 v3, v4, 3, v3')
    for e in range(2):
        A(f'v_permlane16_swap_b32 {v(ACC+e)}, {v(ACC+e+2)}')
    A(f'v_pk_add_f32 {v(ACC, 2)}, {v(ACC, 2)}, {v(ACC+2, 2)}')
    A(f's_lshl_b32 s5, {s(sW)}, {5+lg}')
    A(f's_add_u32 s5, s5, {pred}')
    extra = [f'v_add_u32 v3, s5, v3', f'v_and_b32 v4, {2*lpr-1}, {v(vL)}', f'v_lshlrev_b32 v4, 4, v4']
    for sh in (8, 4, 2)[:4 - lg]:
        for e in range(2):
            A(f'v_add_f32_dpp {v(ACC+e)}, {v(ACC+e)}, {v(ACC+e)} row_ror:{sh} row_mask:0xf bank_mask:0xf')
        A(extra.pop(0))
    A(f'ds_write_b64 v3, {v(ACC, 2)}')
    emit(extra)
    A(f'v_add_u32 v3, {pred}, v4')
    bg()
    A.wait_all(ds=True)
    barrier()

    def tail():
        for i in range(4):
            A(f'ds_read_b128 {v(UT+4*i, 4)}, v3 offset:{32*lpr*i}')
        so, TG = pre or (4, ACC)
        if not pre:
            emit(mod_dest(lpr, col0, so, TG))
        A(f's_movk_i32 s5, 0xff')
        A.wait_all(ds=True)
        for e in range(2):
            A(f'v_pk_add_f32 {v(UT+2*e, 2)}, {v(UT+2*e, 2)}, {v(UT+4+2*e, 2)}')
            A(f'v_pk_add_f32 {v(UT+8+2*e, 2)}, {v(UT+8+2*e, 2)}, {v(UT+12+2*e, 2)}')
        for e in range(2):
            A(f'v_pk_add_f32 {v(UT+2*e, 2)}, {v(UT+2*e, 2)}, {v(UT+8+2*e, 2)}')
        for e in range(4):
            A(f'v_bfi_b32 {v(ACC+e)}, s5, {v(TG+e)}, {v(UT+e)}')
        A(f's_mov_b64 exec, {(1 << (2*lpr)) - 1}')
        A(f'buffer_store_dwordx4 {v(ACC, 4)}, v4, {srd(rWS)}, {s(so)} offen sc1')
        A('s_mov_b64 exec, -1')
        A('s_nop 1')
    cond_wave(tw, tail)


def gather_loads(sets, G):
    l = []
    for st, (col0, va) in enumerate(sets):
        for q in range(4):
            l += [f's_mov_b32 s1, {MODP + q*12288 + col0*4}',
                  f'buffer_load_dwordx4 {v(G+16*st+4*q, 4)}, {v(va)}, {srd(rWS)}, s1 offen sc1']
    return l


def gather_check(sets, G, tok, T):
    chk, again, ok = A.new('gchk'), A.new('gagain'), A.new('gok')
    for e in range(4):
        A(f's_bfe_u32 {s(4+e)}, {s(sN)}, {hex(0x80000 | (8*e))}')
    A('s_mov_b32 s8, 0')
    A.wait(vm=tok)
    A.label(chk)
    nset = len(sets)
    n = 16 * nset
    for i in range(n):
        A(f'v_xor_b32 {v(G+i)}, {s(4+i%4)}, {v(G+i)}')
    A(f'v_or3_b32 {v(T)}, {v(G)}, {v(G+1)}, {v(G+2)}')
    for i in range(3, n - 1, 2):
        A(f'v_or3_b32 {v(T)}, {v(T)}, {v(G+i)}, {v(G+i+1)}')
    A(f'v_or_b32 {v(T)}, {v(T)}, {v(G+n-1)}')
    A(f'v_lshlrev_b32 {v(T)}, 24, {v(T)}')
    A(f'v_cmp_ne_u32 vcc, 0, {v(T)}')
    A(f's_cbranch_vccnz {again}')
    A.label(ok)
    WARM.label(again)
    WARM('s_add_u32 s8, s8, 1')
    WARM(f's_cmp_ge_u32 s8, {LIMIT}')
    WARM(f's_cbranch_scc1 {ok}')
    for f in gather_loads(sets, G):
        WARM(f)
    WARM('s_waitcnt vmcnt(0)')
    WARM(f's_branch {chk}')
    for st in range(nset):
        g = G + 16 * st
        for e in range(2):
            A(f'v_pk_add_f32 {v(g+2*e, 2)}, {v(g+2*e, 2)}, {v(g+4+2*e, 2)}')
            A(f'v_pk_add_f32 {v(g+8+2*e, 2)}, {v(g+8+2*e, 2)}, {v(g+12+2*e, 2)}')
        for e in range(2):
            A(f'v_pk_add_f32 {v(g+2*e, 2)}, {v(g+2*e, 2)}, {v(g+8+2*e, 2)}')
        A(f'v_cvt_pk_bf16_f32 {v(g)}, {v(g)}, {v(g+1)}')
        A(f'v_cvt_pk_bf16_f32 {v(g+1)}, {v(g+2)}, {v(g+3)}')


def add_const_round(g, sadd):
    emit(unpack2(g + 4, g) + unpack2(g + 6, g + 1))
    for e in range(4):
        A(f'v_add_f32 {v(g+4+e)}, {s(sadd)}, {v(g+4+e)}')
    A(f'v_cvt_pk_bf16_f32 {v(g)}, {v(g+4)}, {v(g+5)}')
    A(f'v_cvt_pk_bf16_f32 {v(g+1)}, {v(g+6)}, {v(g+7)}')


def cond_wave(w, fn):
    sk = A.new('cw')
    A(f's_cmp_lg_u32 {s(sW)}, {w}')
    A(f's_cbranch_scc1 {sk}')
    st = A.cond_begin()
    fn()
    A.cond_end(st)
    A.label(sk)


A('s_cmp_ge_u32 s2, 256')
A('s_cbranch_scc1 L_end')
stamp('rt')
stamp('start')
if OPT['pad']:
    A('s_memrealtime s[100:101]')
    A('s_memtime s[96:97]')
A('s_load_dwordx16 s[4:19], s[0:1], 0')
A('s_load_dwordx2 s[20:21], s[0:1], 64')
A('s_load_dwordx2 s[24:25], s[0:1], 80')
A(f'v_and_b32 {v(vL)}, 63, v0')
A(f'v_lshrrev_b32 v3, 6, v0')
A(f'v_lshlrev_b32 {v(vL16)}, 4, {v(vL)}')
A(f'v_readfirstlane_b32 {s(sW)}, v3')
A(f's_and_b32 s26, s2, 7')
A(f's_lshr_b32 s27, s2, 3')
A(f's_and_b32 {s(sHQ)}, s27, 7')
A(f's_and_b32 {s(sJ)}, s27, 15')
A(f's_lshr_b32 s27, s27, 3')
A(f's_lshl_b32 s26, s26, 2')
A(f's_add_u32 {s(sRB)}, s26, s27')
A(f's_lshr_b32 {s(sRB2)}, {s(sRB)}, 1')
A(f'v_lshlrev_b32 v253, 6, {v(vL)}')
sk = A.new('cpf')
A(f's_cmp_lg_u32 {s(sW)}, 3')
A(f's_cbranch_scc1 {sk}')
A(f's_cmp_ge_u32 s2, {OPT["chunks"]*8}')
A(f's_cbranch_scc1 {sk}')
A(f's_getpc_b64 s[70:71]')
A(f's_lshr_b32 s69, s2, 3')
A(f's_lshl_b32 s69, s69, 11')
if OPT['pads']:
    A(f's_andn2_b32 s70, s70, 0xfff')
A(f'v_add_u32 v3, s69, v253')
st = A.cond_begin()
A('s_mov_b32 exec_hi, 0')
A(f'global_load_dword v255, v3, s[70:71]')
A('s_mov_b32 exec_hi, -1')
A.cond_end(st)
A.label(sk)
A(f's_getreg_b32 {s(sXCC)}, hwreg(HW_REG_XCC_ID, 0, 4)')
A(f's_mov_b32 {s(sHI)}, 0xffff0000')
for r, n in ((rX, 2097152), (rWQ, 1572864), (rWO, 524288), (rW1, 1835008), (rW2, 1835008), (rWM, 3145728), (rWS, 0x1000000), (rOUT, 2097152)):
    A(f's_mov_b32 {s(r+2)}, {n}')
    A(f's_mov_b32 {s(r+3)}, 0x20000')
A(f'v_lshrrev_b32 v5, 4, {v(vL)}')
A(f'v_and_b32 v6, 15, {v(vL)}')
A(f's_lshl_b32 s26, {s(sRB)}, 6')
A(f's_lshl_b32 s27, {s(sW)}, 4')
A(f's_add_u32 s26, s26, s27')
A(f'v_add_u32 v3, s26, v5')
A(f'v_lshlrev_b32 v3, 10, v3')
A(f'v_lshl_add_u32 v254, v6, 4, v3')
A(f'v_min_u32 v24, {31*64}, v253')
A(f'v_min_u32 v25, {23*64}, v253')
A(f's_lshl3_add_u32 s26, {s(sRB)}, {s(sHQ)}')
A(f's_lshl2_add_u32 s26, s26, {s(sW)}')
A(f's_lshl_b32 {s(sBO)}, s26, 11')
A(f's_lshl2_add_u32 s27, s2, {s(sW)}')
A(f's_mul_i32 {s(sFAST)}, s27, 1536')
XF, XP, MOD, GA, PW, PC, PACC = 16, 144, 144, 208, 224, 20, 236
emit(mod_addr(2, 3, 4, 69))
A('s_waitcnt lgkmcnt(0)')
stamp('karg')
if OPT.get('wsoff'):
    A(f's_add_u32 s24, s24, {OPT["wsoff"] << 20}')
    A('s_addc_u32 s25, s25, 0')
A(f's_mov_b64 {s(rWM, 2)}, s[18:19]')
A(f's_mov_b64 {s(rX, 2)}, s[4:5]')
A(f's_mov_b64 {s(rWQ, 2)}, s[6:7]')
tok_p1 = emit(mod_loads(2, 0, 3, 4, 69, PW, PC))
vHW, vWR = 248, 252


def walk(k):
    if OPT['pads'] != k:
        return
    A('s_mov_b64 exec, 0')
    for w in range(3):
        A(f's_cmp_eq_u32 {s(sW)}, {w}')
        A(f's_cbranch_scc1 L_pad{w+1}')
    A('s_branch L_pad4')
    A.label('L_warm_here')
    A('.p2align 12')
    A.label('L_body')
    A('s_mov_b64 exec, -1')


def xloads(aa):
    A(f's_movk_i32 s4, {aa << 12}')
    for c in range(4):
        t = A(f'buffer_load_dwordx4 {v(XP+(aa*4+c)*4, 4)}, v254, {srd(rX)}, s4 offen offset:{c*256} {NTY}')
    return t


tok_x = []
SO = {0: ('xab', '', ''), 1: ('x', 'ab', ''), 2: ('x', 'a', 'b'), 3: ('', 'xab', ''), 4: ('x', 'ba', ''), 5: ('xb', 'a', ''), 6: ('', 'xb', 'a'), 7: ('x', 'b', 'a')}[OPT.get('so', 4)]


def first_loads(which):
    for c in which:
        if c == 'x':
            A(f'buffer_load_dword v255, v24, {srd(rX)}, s78 offen {NTX}'.replace('s78', s(sBO)))
        elif c == 'b':
            A(f'buffer_load_dword v255, v25, {srd(rWQ)}, {s(sFAST)} offen')
        else:
            tok_x.append(xloads(0))


first_loads(SO[0])
stamp('iss')
A(f's_load_dword {s(sN)}, {s(sWS, 2)}, {EPOCH}')
for r, p in ((rWO, 8), (rW1, 12), (rW2, 14), (rWS, 24), (rOUT, 20)):
    A(f's_mov_b64 {s(r, 2)}, {s(p, 2)}')
if OPT.get('idle3', 1):
    A(f's_lshr_b32 s3, {s(sJ)}, 3')
    A(f's_cmp_gt_u32 {s(sHQ)}, 3')
    A(f's_subb_u32 {s(sJ)}, {s(sJ)}, s3')
    A(f's_add_u32 s3, s3, 14')
    A(f's_cmp_eq_u32 {s(sHQ)}, 3')
    A(f's_cselect_b32 {s(sJ)}, s3, {s(sJ)}')
A(f's_lshl2_add_u32 s3, {s(sHQ)}, {s(sW)}')
A(f's_lshl_b32 s4, s3, 17')
A(f's_lshl_b32 s5, {s(sRB)}, 12')
A(f's_add_u32 s4, s4, s5')
A(f's_add_u32 {s(sKV)}, s4, {KVB}')
A(f's_lshl_b32 s4, s3, 7')
A(f's_add_u32 s4, s4, s5')
A(f's_add_u32 {s(sFKV)}, s4, {FKV}')
A(f's_lshl_b32 s8, {s(sRB)}, 16')
A(f's_lshl_b32 s5, s3, 9')
A(f's_add_u32 s4, s8, s5')
A(f's_add_u32 {s(sO)}, s4, {OBUF}')
A(f's_lshl_b32 s4, {s(sW)}, 14')
A(f's_add_u32 s4, s4, s8')
A(f's_add_u32 {s(sOL)}, s4, {OBUF}')
A(f's_lshl_b32 s6, {s(sRB)}, 10')
A(f's_add_u32 {s(sPO)}, s6, {FL}')
A(f's_lshl2_add_u32 {s(sFO)}, s3, {s(sPO)}')
A(f's_lshr_b32 s11, {s(sW)}, 1')
A(f's_lshl1_add_u32 s7, {s(sRB)}, s11')
A(f's_lshl_b32 s8, s7, 15')
A(f's_and_b32 s10, {s(sW)}, 1')
A(f's_lshl1_add_u32 s9, {s(sHQ)}, s10')
A(f's_lshl_b32 s4, {s(sHQ)}, 7')
A(f's_add_u32 s4, s4, {s(sOL)}')
A(f's_sub_u32 {s(sTILE)}, s4, {OBUF}')
A(f's_lshl4_add_u32 s4, {s(sHQ)}, s10')
A(f's_lshl_b32 s4, s4, 8')
A(f's_add_u32 s4, s4, s8')
A(f's_add_u32 {s(sY)}, s4, {YBUF}')
A(f's_lshl4_add_u32 s4, s7, s9')
A(f's_lshl_b32 s4, s4, 7')
A(f's_add_u32 {s(sST)}, s4, {STATS}')
A(f's_lshl4_add_u32 s4, s11, s9')
A(f's_lshl2_add_u32 s4, s4, {s(sPO)}')
A(f's_add_u32 {s(sFY)}, s4, 128')
A(f's_mul_i32 s4, s11, {56*512}')
A(f's_mul_i32 s5, s10, {26*512}')
A(f's_add_u32 s4, s4, s5')
A(f's_lshl_b32 {s(sFL1)}, s4, 5')
A(f's_mul_i32 s5, {s(sRB)}, {4*57344}')
A(f's_add_u32 s4, s4, s5')
A(f's_add_u32 {s(sFL0)}, s4, {FBUF}')
A(f's_lshl_b32 s4, s10, 12')
A(f's_add_u32 {s(sDL)}, s4, 2048')
first_loads(SO[1])
A(f's_lshl2_add_u32 s7, {s(sRB2)}, {s(sW)}')
A(f's_lshr_b32 s6, s7, 1')
A(f's_lshl_b32 s6, s6, 10')
A(f's_lshl_b32 s4, s10, 6')
A(f's_add_u32 s4, s4, s6')
A(f's_add_u32 {s(sPY)}, s4, {FL+128}')
A(f's_lshl_b32 s4, s7, 11')
A(f's_add_u32 {s(sSTL)}, s4, {STATS}')
A(f's_lshl_b32 s4, s7, 15')
A(f's_add_u32 {s(sYL)}, s4, {YBUF}')
A(f's_mul_i32 s4, s7, {112*1024}')
A(f's_lshl_b32 s5, {s(sJ)}, 12')
A(f's_add_u32 s4, s4, s5')
A(f's_add_u32 {s(sF)}, s4, {FBUF}')
A(f's_lshl1_add_u32 s5, {s(sJ)}, s10')
A(f's_lshl2_add_u32 s4, s5, s6')
A(f's_add_u32 {s(sFF)}, s4, {FL+256}')
A(f's_mul_i32 s4, {s(sW)}, {RING}')
A(f's_add_u32 {s(sRING)}, s4, {SCR}')
A(f's_lshr_b32 s4, s2, 3')
A(f's_lshl2_add_u32 {s(sIW)}, s4, {s(sW)}')
vQ4 = 244
A(f'v_bfe_u32 v16, {v(vL)}, 2, 3')
A(f'v_mul_u32_u24 v4, 3072, v16')
A(f'v_lshrrev_b32 v17, 5, {v(vL)}')
A(f'v_lshl_add_u32 v4, v17, 6, v4')
A(f'v_and_b32 v3, 3, {v(vL)}')
A(f'v_lshl_add_u32 v4, v3, 4, v4')
A(f's_lshl_b32 s4, {s(sHQ)}, 7')
A(f'v_add_u32 {v(vQ4)}, s4, v4')
A(f'v_xor_b32 v4, 32, {v(vQ4)}')
A(f'v_add_u32 {v(vQ4+1)}, {24576-1024}, v4')
A(f'v_add_u32 {v(vQ4+2)}, {2*(24576-1024)}, {v(vQ4)}')
A(f'v_add_u32 {v(vQ4+3)}, {3*(24576-1024)}, v4')
A(f'v_lshlrev_b32 v4, 10, v16')
A(f'v_lshl_add_u32 v4, v17, 6, v4')
A(f'v_lshl_add_u32 v4, v3, 4, v4')
A(f'v_add_u32 {v(vWD)}, s4, v4')
A(f'v_bfe_u32 v4, {v(vL)}, 4, 1')
A(f'v_lshlrev_b32 v4, 5, v4')
A(f'v_xor_b32 {v(WOA)}, v4, {v(vWD)}')
A(f'v_add_u32 {v(WOA+1)}, 7168, {v(WOA)}')
A(f'v_add_u32 {v(vWD)}, 15360, {v(WOA)}')
A(f'v_mul_u32_u24 v4, 3584, v16')
A(f'v_lshl_add_u32 v4, v17, 6, v4')
A(f'v_lshl_add_u32 v4, v3, 4, v4')
A(f's_lshl_b32 s4, {s(sJ)}, 8')
A(f'v_add_u32 {v(W1A)}, s4, v4')
for i in range(1, 4):
    A(f'v_add_u32 {v(W1A+i)}, {i*(28672-1024)}, {v(W1A)}')
first_loads(SO[2])
A(f'v_lshrrev_b32 v4, 4, {v(vL)}')
A(f'v_lshlrev_b32 v3, 10, v4')
A(f'v_xor_b32 v4, {s(sW)}, v4')
A(f'v_and_b32 v4, 1, v4')
A(f'v_lshl_add_u32 v3, v4, 5, v3')
A(f'v_bfe_u32 v4, {v(vL)}, 2, 2')
A(f'v_lshl_add_u32 v3, v4, 6, v3')
A(f'v_and_b32 v4, 3, {v(vL)}')
A(f'v_lshl_add_u32 v3, v4, 3, v3')
A(f's_lshr_b32 s3, {s(sW)}, 1')
A(f's_lshl_b32 s3, s3, 9')
A(f'v_add_u32 {v(vWR)}, s3, v3')
A(f'v_bfe_u32 v4, {v(vL)}, 2, 2')
A(f'v_lshlrev_b32 v3, 6, v4')
A(f'v_bfe_u32 v4, {v(vL)}, 4, 1')
A(f'v_lshl_add_u32 v3, v4, 5, v3')
A(f'v_and_b32 v4, 3, {v(vL)}')
A(f'v_lshl_add_u32 v3, v4, 3, v3')
A(f'v_lshrrev_b32 v4, 5, {v(vL)}')
A(f'v_lshl_add_u32 {v(vRB)}, v4, 8, v3')
walk(3)
A(f'v_and_b32 v16, 0xe0, v0')
A(f'v_and_b32 v17, 1, v0')
A(f'v_lshl_add_u32 v16, v17, 4, v16')
A(f'v_bfe_u32 v17, v0, 1, 4')
A(f'v_add_u32 v16, v16, v17')
A(f'v_lshlrev_b32 v16, 4, v16')
A(f'v_add_u32 v232, {MODT}, v16')
A(f'v_and_b32 v16, 15, {v(vL)}')
A(f'v_lshlrev_b32 v16, 4, v16')
A(f'v_add_u32 v233, {MODT}, v16')
A(f'v_and_b32 v3, 15, {v(vL)}')
A(f'v_lshl_add_u32 v3, v4, 4, v3')
A(f'v_lshlrev_b32 {v(vVS)}, 4, v3')
A(f'v_bfe_u32 v16, {v(vL)}, 4, 1')
A(f'v_lshl_add_u32 {v(vOS)}, v16, 14, {v(vVS)}')
A(f's_mul_i32 s5, s11, 6144')
A(f's_lshl_b32 s4, s9, 7')
A(f's_add_u32 s4, s4, s5')
A(f'v_and_b32 v17, 7, {v(vL)}')
A(f'v_lshl_add_u32 {v(vG2)}, v17, 4, s4')
A(f'v_lshrrev_b32 v16, 4, {v(vL)}')
A(f'v_and_b32 v4, 15, {v(vL)}')
A(f's_lshl_b32 s5, {s(sW)}, 10')
A(f'v_and_b32 v17, 3, v4')
A(f'v_lshl_add_u32 v3, v17, 8, s5')
A(f'v_lshrrev_b32 v17, 2, v4')
A(f'v_lshl_add_u32 v3, v17, 12, v3')
A(f'v_and_b32 v4, 7, v4')
A(f'v_xor_b32 v4, v4, v16')
for aa in range(4):
    A(f'v_xor_b32 v16, {4*aa}, v4')
    A(f'v_lshl_add_u32 {v(vHW+aa)}, v16, 4, v3')
emit(mod_addr(4, 234, 235, 1))
A(f'v_add_u32 v234, s1, v234')


def mark(l, key):
    l[-1] = (l[-1], key)
    return l


def touch(rs, chunk, va, vt=255):
    return [f's_lshl2_add_u32 s1, s2, {s(sW)}', f's_mul_i32 s1, s1, {chunk}', f'buffer_load_dword {v(vt)}, {v(va)}, {srd(rs)}, s1 offen']


def touch3(rs, n, va, vt=255):
    if not OPT.get('t3', 1) & {rWQ: 1, rW1: 2, rWO: 4, rW2: 8}[rs]:
        return []
    return [f'v_min_u32 {v(va)}, {2*n-1}, {v(vL)}', f'v_lshlrev_b32 {v(vt)}, 9, {v(va)}', f'v_and_b32 {v(va)}, 1, {v(va)}',
            f'v_mul_u32_u24 {v(va)}, 448, {v(va)}', f'v_sub_u32 {v(va)}, {v(vt)}, {v(va)}', f's_mul_i32 s1, {s(sIW)}, {n*1024}',
            f'buffer_load_dword {v(vt)}, {v(va)}, {srd(rs)}, s1 offen offset:384']


def hello():
    A(f's_andn2_b32 s3, {s(sN)}, 15')
    A(f's_or_b32 s3, s3, {s(sXCC)}')
    A(f'v_mov_b32 v16, s3')
    A(f's_lshl_b32 s3, {s(sRB2)}, 7')
    A(f's_lshl2_add_u32 s3, {s(sJ)}, s3')
    A(f's_add_u32 s3, s3, {HELLO}')
    A('s_mov_b64 exec, 1')
    A(f'buffer_store_dword v16, off, {srd(rWS)}, s3 sc1')
    A('s_mov_b64 exec, -1')


def wq_items(colbyte, region, ks0, nks):
    l = []
    for g in range(nks // 4):
        l += [f's_add_u32 m0, {s(sX)}, {region + g*16384}', f's_add_u32 {s(sBO)}, s11, {colbyte + (ks0 + 4*g)*98304}']
        l += [f'buffer_load_dwordx4 {v(vQ4+n)}, {srd(rWQ)}, {s(sBO)} offen offset:{1024*n} {NTQ} lds' for n in range(4)]
    return l


A(f's_lshl_b32 {s(sX)}, {s(sW)}, 12')
A(f's_mul_i32 s11, {s(sW)}, 98304')
emit([f'v_lshrrev_b32 v16, 3, {v(vL)}', f'v_and_b32 v17, 0x70, {v(vL16)}', 'v_lshl_add_u32 v231, v16, 10, v17'])
t3 = touch3(rWQ, 12, 229, 19)
emit(t3[:-2])
stamp('setup0')
walk(2)
if OPT.get('x1e', 1):
    tok_x.append(xloads(1))
A('s_waitcnt lgkmcnt(0)')
stamp('nonce')
A(f's_add_u32 {s(sN)}, {s(sN)}, 0x9e3779b1')
emit(mod_dest(2, 0, 8, 28))
walk(1)
A.wait(vm=tok_p1)
stamp('pland')


D = Q()
for aa in (2, 3):
    D.add([f's_movk_i32 {s(sBO)}, {aa << 12}'] +
          mark([f'buffer_load_dwordx4 {v(XP+(aa*4+c)*4, 4)}, v254, {srd(rX)}, {s(sBO)} offen offset:{c*256} {NTY}' for c in range(4)], aa))


def x1():
    if OPT.get('x1e', 1):
        D.grp(OPT.get('x2n', 4))
    else:
        tok_x.append(xloads(1))


mod_finish(2, 0, PW, PC, PACC, GA, PRED1, bg=x1, pre=(8, 28))
stamp('setup')
D.add([f'buffer_load_dwordx4 v[208:211], v231, {srd(rX)}, {s(sTILE)} offen {NTY}', f's_add_u32 s1, {s(sTILE)}, 8192',
       f'buffer_load_dwordx4 v[212:215], v231, {srd(rX)}, s1 offen {NTY}'])
T3Q = [x.replace('v19', 'v255') for x in t3[-2:]]
if OPT.get('t3p', 0) == 0:
    D.add(T3Q)
else:
    D.q = T3Q + D.q
M2 = mark(['s_mov_b32 s1, 0'] + mod_loads(4, 2048, 234, 235, 1, 236, 230), 'p2')
if OPT.get('m2', 1) == 0:
    D.add(M2)
D.add(mark(wq_items(1024, LH, 0, 16), 'wk'))
D.grp(OPT.get('x0', 4))

ST, MN, G1 = 216, 224, 144
LNP = OPT.get('lnpace', 56)


def V(t):
    A(t)
    D.grp(1, LNP)


SL1 = OPT.get('sl1', 0)


def sm_w1(k):
    A(f's_lshl2_add_u32 s8, s2, {s(sW)}')
    A(f's_mul_i32 s8, s8, 1792')
    for i in range(7):
        A(f's_load_dwordx2 s[98:99], {s(rW1, 2)}, s8 offset:{(7*(1-k)+i)*128+60}')


def row_allreduce(grp):
    for sh in (8, 4, 2, 1):
        for aa in grp:
            t0 = ST + 4 * (aa % 2)
            V(f'v_add_f32_dpp {v(t0)}, {v(t0)}, {v(t0)} row_ror:{sh} row_mask:0xf bank_mask:0xf')


A('s_mov_b32 s9, 0x3b000000')
A('s_mov_b32 s10, 0x3f803f80')
A('s_mov_b32 s7, 0x3f80')
A('s_mov_b32 s6, 0x3f800000')
A('v_mov_b32 v228, 0x3727c5ac')
for grp in ((0, 1), (2, 3)):
    if grp[0] == 0 and SL1 & 1:
        sm_w1(0)
    for aa in grp:
        A.wait(vm=tok_x[aa] if aa < 2 else D.k[aa])
        stamp(f'x{aa}')
        t0 = ST + 4 * (aa % 2)
        for i in range(16):
            V(f'v_dot2_f32_bf16 {v(t0)}, {v(XP+aa*16+i)}, s10, {v(t0) if i else 0}')
    row_allreduce(grp)
    for aa in grp:
        V(f'v_mul_f32 {v(MN+aa)}, 0xbb000000, {v(ST+4*(aa%2))}')
    for aa in grp:
        b = XF + aa * 32
        t0, t1 = ST + 4 * (aa % 2), ST + 4 * (aa % 2) + 2
        for i in range(16):
            V(f'v_dot2_f32_bf16 {v(b+2*i)}, {v(XP+aa*16+i)}, s7, {v(MN+aa)}')
            V(f'v_dot2_f32_bf16 {v(b+2*i+1)}, {v(XP+aa*16+i)}, s6, {v(MN+aa)}')
        for i in range(16):
            t = t0 if i % 2 == 0 else t1
            if i < 2:
                V(f'v_pk_mul_f32 {v(t, 2)}, {v(b+2*i, 2)}, {v(b+2*i, 2)}')
            else:
                V(f'v_pk_fma_f32 {v(t, 2)}, {v(b+2*i, 2)}, {v(b+2*i, 2)}, {v(t, 2)}')
        V(f'v_pk_add_f32 {v(t0, 2)}, {v(t0, 2)}, {v(t1, 2)}')
        V(f'v_add_f32 {v(t0)}, {v(t0)}, {v(t0+1)}')
    if grp == (2, 3):
        D.flush()
        if SL1 & 2:
            sm_w1(1 if SL1 & 1 else 0)
        A(f'v_lshlrev_b32 v4, 4, v0')
        tok_g1 = emit(gather_loads([(0, 4)], G1))
        D.add(mark(wq_items(2048, WVL, 0, 8), 'wvl') + mark(wq_items(2048, WVH, 8, 8), 'wvh'))
    row_allreduce(grp)
    for aa in grp:
        V(f'v_fma_f32 {v(MN+aa)}, {v(ST+4*(aa%2))}, s9, v228')
    for aa in grp:
        V(f'v_rsq_f32 {v(MN+aa)}, {v(MN+aa)}')
    for aa in grp:
        b = XF + aa * 32
        for i in range(16):
            V(f'v_pk_mul_f32 {v(b+2*i, 2)}, {v(b+2*i, 2)}, {v(MN+(aa//2)*2, 2)} op_sel:[0,{aa%2}] op_sel_hi:[1,{aa%2}]')
D.grp(OPT.get('v0', 6))
stamp('ln_pre')
WKR = [f'ds_read_b64_tr_b16 {a(4*ks+2*rd, 2)}, {v(vWR)} offset:{ks*4096+rd*256}' for ks in range(16) for rd in range(2)]
MO1 = OPT.get('mo', 0)
if not MO1:
    A.wait(vm=D.k['wk'])
    barrier()
    stamp('wkl')
    emit(WKR)
    D.grp(2)
    stamp('wk')
gather_check([(0, 4)], G1, tok_g1, 3)
stamp('gchk')
A(f's_cmp_ge_u32 {s(sW)}, 2')
A(f's_cselect_b32 s3, 1.0, 0')
add_const_round(G1, 3)
emit(unpack2(G1 + 4, G1) + unpack2(G1 + 6, G1 + 1))
A(f'ds_write_b128 v232, {v(G1+4, 4)}')
D.grp(2)
A.wait_all(ds=True)
barrier()
stamp('mod')
tm = []


def mod_reads(c):
    for arr in range(2):
        for hlf in range(2):
            t = A(f'ds_read_b128 {v(MOD+arr*32+c*8+hlf*4, 4)}, v233 offset:{arr*2048+c*512+hlf*256}')
    tm.append(t)


mod_reads(0)
if MO1:
    emit(WKR)
    twk = A.ds
    D.grp(2)
mod_reads(1)
vH0, vH1, vB1, vB2 = 224, 225, 226, 227
A(f'v_lshrrev_b32 v254, 4, {v(vL)}')
A(f'v_and_b32 v3, 15, {v(vL)}')
A(f'v_xor_b32 v3, v3, v254')
A(f'v_lshlrev_b32 v3, 4, v3')
A(f'v_lshl_add_u32 {v(vH0)}, v254, 8, v3')
A(f'v_xor_b32 {v(vH1)}, 64, {v(vH0)}')
A(f'v_add_u32 {v(vB1)}, {WVH}, {v(vWR)}')
A(f'v_add_u32 {v(vB2)}, {WQL}, {v(vWR)}')
A(f'v_min_u32 v228, {(13 if SL1 else 27)*64}, v253')
A(f'v_min_u32 v229, {7*64}, v253')
A(f'v_lshrrev_b32 v3, 4, v0')
A(f'v_min_u32 v3, 9, v3')
A(f'v_lshlrev_b32 v3, 6, v3')
D.add(touch(rWO, 512, 229) + (touch(rW1, 1792, 228) if SL1 != 3 else []) + [f'buffer_load_dword v255, v3, {srd(rWS)}, {s(sPO)} offen sc1'])
if OPT.get('m2', 1) == 1:
    D.add(M2)
DM = OPT.get('dm', 0)


def dm_touch(va, vt):
    l = [f's_lshl3_add_u32 s1, {s(sRB)}, {s(sHQ)}', f's_lshl2_add_u32 s1, s1, {s(sW)}', 's_lshl_b32 s1, s1, 11', f's_add_u32 s1, s1, {OBUF}']
    if DM & 1:
        l += [f'buffer_load_dword {v(vt)}, {v(va)}, {srd(rWS)}, s1 offen sc1']
    if DM & 2:
        l += [f's_add_u32 s1, s1, {YBUF-OBUF}', f'buffer_load_dword {v(vt)}, {v(va)}, {srd(rWS)}, s1 offen sc1', f'buffer_load_dwordx2 {v(vt-vt%2, 2)}, off, {srd(rWS)}, {s(sST)} offset:60 sc1']
    return l


if DM & 3 and OPT.get('dmp', 0) == 0:
    A(f'v_min_u32 v4, {31*64}, v253')
    D.add(dm_touch(4, 255))
if OPT.get('sm') not in (2, 3):
    D.add(touch(rW2, 1792, 228))
for c in range(4):
    A.wait(ds=tm[c])
    stamp(f'h{c}')
    for aa in range(4):
        b = XF + aa * 32 + c * 8
        for i in range(4):
            A(f'v_pk_fma_f32 {v(b+2*i, 2)}, {v(b+2*i, 2)}, {v(MOD+32+c*8+2*i, 2)}, {v(MOD+c*8+2*i, 2)}')
        for i in range(4):
            A(f'v_cvt_pk_bf16_f32 {v(b+i)}, {v(b+2*i)}, {v(b+2*i+1)}')
        if aa == 0 and c < 2:
            mod_reads(c + 2)
        if MO1 and (c, aa) == (0, 0):
            A.wait(ds=twk)
            barrier()
        A(f'ds_write_b128 {v(vHW+aa)}, {v(b, 4)} offset:{c*16384}')
        D.grp(1, OPT.get('hp', 50))
D.flush()
stamp('hw')
A.wait(vm=D.k['wvl'], ds=A.ds)
barrier()
stamp('h')

AK, AV, AQ, WB = 144, 160, 176, 64
QF, KO, VO, KH, VH, SB, PB, MD, MO, OA = 16, 24, 32, 48, 80, 144, 176, 192, 208, 224
PW2, PC2 = 48, 56


def hreg(u, ks):
    return v(80 + ks * 16 + u * 4, 4) if ks < 4 else a(ks * 16 + u * 4, 4)


def mm16(d, x, y, first):
    A(f'v_mfma_f32_16x16x32_bf16 {v(d, 4)}, {x}, {y}, {"0" if first else v(d, 4)}')


CH = OPT.get('ch', 4)
VB = [WB, WB + 4, WB + 8, WB + 12] + ([AQ, AQ + 4] if CH & 1 else [])


def kv_reads(ks):
    l = [f'ds_read_b128 {hreg(u, ks)}, {v(vH0 + ks % 2)} offset:{ks*4096+u*1024}' for u in range(4)]
    wb = VB[ks % len(VB)]
    off = WVL - WVH + ks * 4096 if ks < 8 else (ks - 8) * 4096
    w = [f'ds_read_b64_tr_b16 {v(wb+2*rd, 2)}, {v(vB1)} offset:{off+rd*256}' for rd in range(2)]
    return [l[0], w[0], w[1], l[1], l[2], l[3]]


def wo_items(gs):
    l = []
    for g in gs:
        l += [f's_add_u32 m0, {s(sX)}, {WOS + g*16384}', f's_lshl3_add_u32 {s(sBO)}, {s(sX)}, {g*131072}']
        for i in range(4):
            if i == 2:
                l.append(f's_add_u32 {s(sBO)}, {s(sBO)}, 14336')
            l.append(f'buffer_load_dwordx4 {v(WOA+i%2)}, {srd(rWO)}, {s(sBO)} offen offset:{1024*i} {NTW} lds')
    return l


WOE = OPT.get('woe', 0)
fl = Q([f'v_mov_b64 {v(52+2*i, 2)}, {v(208+2*i, 2)}' for i in range(4)] + [f'v_add_u32 v51, {s(sRING)}, {v(vL16)}', f'v_and_b32 v60, 31, {v(vL)}', f'v_lshrrev_b32 v61, 5, {v(vL)}', 'v_lshlrev_b32 v61, 2, v61', 'v_sub_u32 v60, v60, v61',
        'v_mov_b32 v61, 0xf149f2ca', 'v_mov_b32 v62, 0'])
ONE = 'v232' if OPT.get('one', 1) else 's10'
fl.add([f'v_and_b32 v233, 11, {v(vL)}', 'v_cmp_eq_u32 vcc, 0, v233', 'v_mov_b32 v233, s10', 'v_cndmask_b32 v232, v62, v233, vcc'])
for i in range(16):
    fl.add([f'v_cmp_le_i32 vcc, {8*(i//4) + i % 4}, v60'] + ([f'v_mov_b32 {v(VO+8*(i//4)+4+i%4)}, {ONE}'] if i < 8 else []) +
           [f'v_cndmask_b32 {v(MD+i)}, v61, v62, vcc', f'v_cndmask_b32 {v(MO+i)}, v62, v61, vcc'])
QL0, QH0 = OPT.get('ql0', 2), OPT.get('qh0', 8)
fl.q.insert(0, lambda: cond_wave(3, hello))
fl.add([f'v_bfe_u32 v48, {v(vL)}, 4, 1', f'v_lshl_add_u32 v48, v48, 9, {v(vVS)}',
        f'v_and_b32 v50, 15, {v(vL)}', f'v_lshlrev_b32 v50, 2, v50'])
if CH & 1:
    tk = {}
    for ks in range(2):
        for t in kv_reads(ks):
            tk[ks] = A(t)
    todo = Q([(t, ks) for ks in range(2, 16) for t in kv_reads(ks)])
    todo.pop(OPT.get('kvp', 6))
    for kp in range(0, 16, 2):
        A.wait(ds=tk.get(kp + 1) or todo.k[kp + 1], vm=D.k['wvh'] if kp == 4 else None)
        assert not any(k <= kp + 1 for _, k in todo.q)
        if kp in (4, 8):
            barrier()
        for ks in (kp, kp + 1):
            if ks == QL0:
                D.add(mark(wq_items(0, WQL, 0, 8), 'wql'))
            if ks == QH0:
                D.add(touch3(rWO, 4, 17, 18) + mark(wq_items(0, WVL, 8, 8), 'wqh'))
        n = 0
        for u in range(4):
            for which in range(2):
                for ks in (kp, kp + 1):
                    if which == 0:
                        mm16(AK + 4 * u, a(4 * ks, 4), hreg(u, ks), ks == 0)
                    else:
                        mm16(AV + 4 * u, hreg(u, ks), v(VB[ks % 6], 4), ks == 0)
                    n += 1
                    res = 4 if n == 16 else 0
                    if todo.q and n % 4 and not ('tr_b16' in todo.q[0][0] and todo.q[0][1] >= kp + 6):
                        todo.pop()
                    elif n % 8 == 0 and D.q and D.kind() == 'vmem' and len(D.q) > 1.5 * (14 - kp):
                        D.pop()
                    D.fill(res, 60)
                    fl.fill(res)
else:
    LOOK = 2
    tk = {}
    for ks in range(LOOK):
        for t in kv_reads(ks):
            tk[ks] = A(t)
    for ks in range(16):
        nxt = kv_reads(ks + LOOK) if ks + LOOK < 16 else []
        A.wait(ds=tk[ks], vm=D.k['wvh'] if ks == 5 else None)
        if ks == 5:
            barrier()
        if ks == 8:
            barrier()
        if ks == QL0:
            D.add(mark(wq_items(0, WQL, 0, 8), 'wql'))
        if ks == 5 and OPT.get('wo5', 1) and WOE:
            D.add(wo_items((0,)))
        if ks == QH0:
            D.add(touch3(rWO, 4, 17, 18) + mark(wq_items(0, WVL, 8, 8), 'wqh'))
            D.add(wo_items(range(OPT.get('wo5', 1), WOE)))
        wb = v(WB + 4 * (ks % 4), 4)
        n = 0
        for u in range(4):
            for which in range(2):
                if which == 0:
                    mm16(AK + 4 * u, a(4 * ks, 4), hreg(u, ks), ks == 0)
                else:
                    mm16(AV + 4 * u, hreg(u, ks), wb, ks == 0)
                if n < len(nxt):
                    tk[ks + LOOK] = A(nxt[n])
                n += 1
                res = 4 if n == 8 else 0
                if n == 8 and D.q and D.kind() == 'vmem' and len(D.q) > 1.5 * (15 - ks):
                    D.pop()
                D.fill(res, 60)
                fl.fill(res)
D.flush()
assert not fl.q
stamp('kv')


def pack2(dst, acc):
    return [f'v_cvt_pk_bf16_f32 {v(dst+2*u+r)}, {v(acc+4*u+2*r)}, {v(acc+4*u+2*r+1)}' for u in range(2) for r in range(2)]


QB = [WB, WB + 4, WB + 8, WB + 12, 144, 148]


def q_reads(ks):
    wb = QB[ks % 6] if CH & 2 else WB + 4 * (ks % 4)
    base, off = (vB2, ks * 4096) if ks < 8 else (vB1, WVL - WVH + (ks - 8) * 4096)
    return [f'ds_read_b64_tr_b16 {v(wb+2*rd, 2)}, {v(base)} offset:{off+rd*256}' for rd in range(2)]


def q_start():
    A.wait(vm=D.k['wql'])
    barrier()
    for ks in range(LOOK):
        for t in q_reads(ks):
            tk[ks] = A(t)


LOOK = 3
tk = {}
def kv_store(r, T, off, va):
    return A(f'buffer_store_dwordx4 {v(r, 4)}, {v(va)}, {srd(rWS)}, {s(sKV)} offen offset:{T*2048+off} sc1')


def swaps(kind, r):
    return [f'v_permlane{kind}_swap_b32 {v(r+i)}, {v(r+2+i)}' for i in range(2)]


emit(pack2(KO, AK) + pack2(KO + 4, AK + 8) + swaps(16, KO))
kv_store(KO, 0, 0, vL16)
emit(swaps(16, KO + 4) + pack2(VO, AV) + pack2(VO + 8, AV + 8))
kv_store(KO + 4, 1, 0, vL16)
emit(swaps(16, VO) + swaps(16, VO + 8) + swaps(32, VO))
kv_store(VO, 0, 1024, 48)
emit(swaps(32, VO + 8))
q_start()
tok_kv = kv_store(VO + 8, 1, 1024, 48)
stamp('kvst')


def w1_items(img, gs=range(4)):
    l = []
    for g in gs:
        l += [f's_add_u32 m0, {s(sX)}, {img*65536 + g*16384}', f's_mul_i32 {s(sBO)}, {s(sX)}, 28', f's_add_u32 {s(sBO)}, {s(sBO)}, {g*458752 + img*128}']
        l += [f'buffer_load_dwordx4 {v(W1A+i)}, {srd(rW1)}, {s(sBO)} offen offset:{1024*i} {NTW} lds' for i in range(4)]
    return l


def ones(d):
    def f():
        A(f's_cmp_ge_u32 {s(sRB)}, {d}')
        A(f's_cselect_b32 s6, s10, 0')
    r = VH + 16 * (4 - d)
    if OPT.get('one', 1):
        return [f, f'v_and_b32 {v(r)}, s6, v232', f'v_and_b32 {v(r+1)}, s6, v232'] + [f'v_mov_b64 {v(r+2*i, 2)}, {v(r, 2)}' for i in range(1, 8)]
    return [f, 's_mov_b32 s7, s6'] + [f'v_mov_b64 {v(r+2*i, 2)}, s[6:7]' for i in range(8)]


fl.add([f'v_permlane16_swap_b32 {v(VO+8*T+i)}, {v(VO+8*T+4+i)}' for T in range(2) for i in range(4)])
fl.add([f'v_bfe_u32 v16, {v(vL)}, 4, 1', f'v_lshrrev_b32 v19, 5, {v(vL)}', f'v_lshl_add_u32 v48, v16, 8, {v(vRB)}', 'v_mul_u32_u24 v19, 0x700, v19',
        'v_add_u32 v48, v19, v48', 'v_xor_b32 v49, 32, v48'])
fl2 = Q(ones(4) + ones(3) + ones(2) + ones(1))
W1P = OPT.get('w1pace', 60)
D.add(mark([f's_lshl_b32 s1, {s(sRB2)}, 7', f's_add_u32 s1, s1, {HELLO}', f'buffer_load_dword v63, v50, {srd(rWS)}, s1 offen sc1'], 'hello'))
D.k['woa'] = tok_kv
D.add((mark(wo_items(range(WOE, 2)), 'woa') if WOE < 2 else []) + mark(wo_items((2, 3)), 'wo') + touch3(rW1, 14, 60, 61))


def idle_w1():
    A(f's_cmp_lt_u32 {s(sJ)}, 14')
    A(f's_cselect_b32 {s(rW1+2)}, 1835008, 0')


NI = OPT.get('ni', 4)
D.add(([idle_w1] if NI else []) + w1_items(1, range(min(NI, 2))))
D.last = A.t + OPT.get('w10', 100)
def kv_flag():
    A(f'v_mov_b32 v3, {s(sN)}')
    A.wait(vm=tok_kv)
    A('s_mov_b64 exec, 0xffff')
    A(f'buffer_store_dword v3, v50, {srd(rWS)}, {s(sFKV)} offen sc1')
    A('s_mov_b64 exec, -1')


if CH & 2:
    for kp in range(0, 16, 2):
        A.wait(ds=tk[kp + 1], vm=D.k['wqh'] if kp == 4 else None)
        if kp == 4:
            barrier()
        nxt = [(t, ks) for ks in (kp + 3, kp + 4) if ks < 16 for t in q_reads(ks)]
        n = 0
        for u in range(4):
            for ks in (kp, kp + 1):
                mm16(AQ + 4 * u, v(QB[ks % 6], 4), hreg(u, ks), ks == 0)
                n += 1
                res = 4 if n == 8 else 0
                if n % 4 == 1:
                    if kp + n // 4 >= OPT.get('q0', 3) and D.q and D.kind() == 'vmem':
                        D.pop()
                elif nxt and n % 4:
                    t, k = nxt.pop(0)
                    tk[k] = A(t)
                D.fill(res, 10**6)
                fl.fill(res)
                if kp >= 4:
                    fl2.fill(res)
        if kp == OPT.get('kvf', 12):
            kv_flag()
else:
    for ks in range(16):
        nxt = q_reads(ks + LOOK) if ks + LOOK < 16 else []
        A.wait(ds=tk[ks], vm=D.k['wqh'] if ks == 5 else None)
        if ks == 5:
            barrier()
        for u in range(4):
            mm16(AQ + 4 * u, v(WB + 4 * (ks % 4), 4), hreg(u, ks), ks == 0)
            if u >= 2 and nxt:
                tk[ks + LOOK] = A(nxt[u - 2])
            res = 4 if u == 3 else 0
            if u == 0 and ks >= OPT.get('q0', 3) and D.q and D.kind() == 'vmem':
                D.pop()
            D.fill(res, 10**6)
            fl.fill(res)
            if ks >= 4:
                fl2.fill(res)
        if ks == OPT.get('kvf', 12):
            kv_flag()
fl.flush()
fl2.flush()
stamp('q')
D.grp(OPT.get('w1a', 2))
A('s_mov_b32 s4, 0x3eb8aa3b')
A('s_mov_b32 s5, 0x3eb8aa3b')
for i in range(4):
    A(f'v_pk_mul_f32 {v(AQ+2*i, 2)}, {v(AQ+2*i, 2)}, s[4:5]')
emit(pack2(QF, AQ))
for i in range(4, 8):
    A(f'v_pk_mul_f32 {v(AQ+2*i, 2)}, {v(AQ+2*i, 2)}, s[4:5]')
for r in range(2):
    A(f'v_permlane16_swap_b32 {v(QF+r)}, {v(QF+2+r)}')
emit(pack2(QF + 4, AQ + 8))
D.grp()
for r in range(2):
    A(f'v_permlane16_swap_b32 {v(QF+4+r)}, {v(QF+6+r)}')
A(f's_mov_b64 {s(rH, 2)}, {s(sWS, 2)}')
again, chk, ok = A.new('hagain'), A.new('hchk'), A.new('hok')
A(f's_andn2_b32 s3, {s(sN)}, 15')
A(f's_or_b32 s3, s3, {s(sXCC)}')
A(f's_mov_b32 {s(sFAST)}, 1')
A.wait(vm=D.k['hello'])
A(f'v_cmp_ne_u32 vcc, s3, v63')
A(f's_cbranch_vccnz {again}')
A.label(ok)
WARM.label(again)
WARM(f's_lshl_b32 s4, {s(sRB2)}, 7')
WARM(f's_add_u32 s4, s4, {HELLO}')
WARM('s_mov_b32 s5, 0')
WARM.label(chk)
WARM(f'buffer_load_dword v63, v50, {srd(rWS)}, s4 offen sc1')
WARM('s_add_u32 s5, s5, 1')
WARM('s_waitcnt vmcnt(0)')
WARM('v_cmp_ne_u32 vcc, s3, v63')
WARM('v_xor_b32 v63, s3, v63')
WARM('s_cmp_eq_u64 vcc, 0')
WARM(f's_cselect_b32 {s(sFAST)}, 1, 0')
WARM('v_cmp_lt_u32 vcc, 15, v63')
WARM(f's_cmp_ge_u32 s5, {LIMIT}')
WARM(f's_cbranch_vccz {ok}')
WARM(f's_cbranch_scc0 {chk}')
WARM(f's_branch {ok}')
D.grp()


def m2bg():
    D.grp(2)
    A.wait(vm=D.k['woa'])


mod_finish(4, 1024, 236, 230, PB, SB + 16, PRED2, bg=m2bg)
D.add(w1_items(1, range(2, max(NI, 2))))
for d in range(1, 5):
    A(f's_cmp_ge_u32 {s(sRB)}, {d}')
    A(f's_cselect_b32 s3, {d*4096}, 0')
    A(f's_sub_u32 {s(3+d)}, {s(sFKV)}, s3')
A('ds_write_b128 v51, v[52:55]')
A('ds_write_b128 v51, v[56:59] offset:1024')
stamp('m2')


def mm32(X, d, x, y, c):
    X(f'v_mfma_f32_32x32x16_bf16 {d}, {x}, {y}, {c}')


def units_of(blk):
    if blk == 0:
        return [(0, KO, VO, MD, 0), (1, KO, VO, None, 0), (1, KO + 4, VO + 8, MD, 0)]
    t0 = 8 - 2 * blk
    r = []
    for t in (t0 + 1, t0):
        for q in (0, 1):
            if t < q:
                continue
            r.append((q, KH + 4 * t, VH + 8 * t, MO if t == q else None, blk))
    return r


def s_mm(X, un, buf):
    q, k, _, m, _ = un
    mm32(X, v(SB + 16 * buf, 16), v(k, 4), v(QF + 4 * q, 4), v(m, 16) if m else '0')


def attn_units(X, uns, first, sub=None, bg=None, ready=None, head=None):
    if ready:
        ready(uns[0])
    s_mm(X, uns[0], 0)
    if head:
        head()
    pend = None
    for n, un in enumerate(uns):
        q, _, vr, _, _ = un
        if X is A:
            stamp(f'u{n}')
        sb = SB + 16 * (n % 2)
        pb = PB + 8 * (n % 2)
        o = v(OA + 16 * q, 16)
        for hf in range(2):
            b = sb + 8 * hf
            if sub:
                for i in range(8):
                    X(f'v_sub_f32 {v(b+i)}, {v(b+i)}, {v(sub+q)}')
            seq = [('e', 0), ('p', 0), ('e', 1), ('e', 2), ('m', 0), ('c', 0), ('e', 3), ('e', 4), ('c', 1), ('e', 5), ('s', 0), ('e', 6), ('c', 2), ('e', 7)]
            for kind, i in seq:
                if kind == 'e':
                    X(f'v_exp_f32 {v(b+i)}, {v(b+i)}')
                elif kind == 'c':
                    X(f'v_cvt_pk_bf16_f32 {v(pb+4*hf+i)}, {v(b+2*i)}, {v(b+2*i+1)}')
                elif kind == 'p' and pend:
                    X(pend[0])
                elif kind == 'm' and pend:
                    mm32(X, *pend[1])
                    pend = None
                    if bg:
                        bg(n)
                elif kind == 's' and hf == 0 and n + 1 < len(uns):
                    if ready:
                        ready(uns[n + 1])
                    s_mm(X, uns[n + 1], (n + 1) % 2)
                    if bg:
                        bg(n)
            pend = (f'v_cvt_pk_bf16_f32 {v(pb+4*hf+3)}, {v(b+6)}, {v(b+7)}',
                    (o, v(vr + 4 * hf, 4), v(pb + 4 * hf, 4), '0' if q in first else o))
            first.discard(q)
    X(pend[0])
    mm32(X, *pend[1])


def kv_poll(X):
    for d in range(4):
        X(f's_load_dword {s(8+d)}, {s(sWS, 2)}, {s(4+d)} glc')


ep, epb = A.new('ep'), A.new('epb')
A(f's_lshl2_add_u32 s3, s2, {s(sW)}')
A(f's_cmp_eq_u32 s3, 3')
A(f's_cbranch_scc1 {ep}')
A.label(epb)
lp, dn = A.new('epl'), A.new('epd')
WARM.label(ep)
WARM(f'v_lshrrev_b32 v3, 2, {v(vL)}')
WARM(f'v_lshlrev_b32 v3, 7, v3')
WARM(f'v_and_b32 v4, 3, {v(vL)}')
WARM(f'v_lshl_add_u32 v3, v4, 4, v3')
WARM(f's_mov_b32 s1, {HELLO}')
WARM('s_mov_b32 s3, 0')
WARM.label(lp)
WARM(f'buffer_load_dwordx4 v[72:75], v3, {srd(rWS)}, s1 offen sc1')
WARM('s_add_u32 s3, s3, 1')
WARM('s_waitcnt vmcnt(0)')
for i in range(4):
    WARM(f'v_xor_b32 {v(72+i)}, {s(sN)}, {v(72+i)}')
WARM('v_or_b32 v72, v72, v73')
WARM('v_or3_b32 v72, v72, v74, v75')
WARM('v_cmp_lt_u32 vcc, 15, v72')
WARM(f's_cmp_lt_u32 s3, {LIMIT}')
WARM(f's_cbranch_vccz {dn}')
WARM(f's_cbranch_scc1 {lp}')
WARM.label(dn)
WARM(f'v_mov_b32 v3, {s(sN)}')
WARM('s_mov_b64 exec, 1')
WARM(f'buffer_store_dword v3, off, {srd(rWS)}, 0 offset:{EPOCH} sc1')
WARM('s_mov_b64 exec, -1')
WARM(f's_branch {epb}')


def kv_wait():
    stamp('own')
    lp, again, dn = A.new('kvp'), A.new('kva'), A.new('kvd')
    A('s_mov_b32 s3, 0')
    A.label(lp)
    A('s_waitcnt lgkmcnt(0)')
    A(f's_xor_b32 s8, s8, {s(sN)}')
    for r in (9, 10, 11):
        A(f's_xor_b32 {s(r)}, {s(r)}, {s(sN)}')
        A(f's_or_b32 s8, s8, {s(r)}')
    A(f's_cbranch_scc1 {again}')
    A.label(dn)
    WARM.label(again)
    WARM('s_add_u32 s3, s3, 1')
    WARM(f's_cmp_ge_u32 s3, {LIMIT}')
    WARM(f's_cbranch_scc1 {dn}')
    kv_poll(WARM)
    WARM(f's_branch {lp}')
    stamp('kvflag')
    A('s_mov_b32 s8, 0xffff')
    A('s_mov_b32 s9, 0xffff')


def halo_loads(X, d):
    X(f's_cmp_ge_u32 {s(sRB)}, {d}')
    X(f's_cselect_b32 {s(rH+2)}, 0x1000000, 0')
    X(f's_sub_u32 s3, {s(sKV)}, {d*4096}')
    t0 = 8 - 2 * d
    for T in (1, 0):
        X(f'buffer_load_dwordx4 {v(KH+4*(t0+T), 4)}, {v(vL16)}, {srd(rH)}, s3 offen offset:{T*2048} sc1')
    X('s_mov_b64 exec, s[8:9]')
    for u in (2, 3, 0, 1):
        t = X(f'buffer_load_dwordx4 {v(VH+8*t0+4*u, 4)}, {v(vVS)}, {srd(rH)}, s3 offen offset:{(u//2)*2048+1024+(u%2)*512} sc1')
    X('s_mov_b64 exec, -1')
    return t


SETS2 = [(1536, vVS), (1024, vG2)]
G2 = VH + 32
qg2 = Q([f'v_lshlrev_b32 {v(vVS)}, 4, v0'] + [x.replace('s1', 's4') for x in gather_loads(SETS2, G2)])
wor = Q([f'ds_read_b64_tr_b16 {a(16*ks+4*tl+2*rd, 2)}, {v(48+tl%2)} offset:{WOS+ks*4096+rd*1024+(tl//2)*512}' for ks in range(16) for tl in range(4) for rd in range(2)])
sW2, sW2b = sFL1, 11
SLOT = {}


def kunit(u):
    if u < 7:
        return 8 * (u // 2), u % 2
    if u == 13:
        return 28, 0
    return 8 * ((u - 7) % 3) + 4, 2 + (u - 7) // 3


SW2 = [sW2, sW2b, 10, sKV]


def w2_dma(m, q):
    SLOT[m] = q
    k, b = kunit(m // 2)
    return [f's_add_u32 m0, {s(sRING)}, {2048*q}' if q < 3 else f's_add_u32 m0, {s(sFKV)}, {8192*(q-3)}',
            f's_add_u32 {s(sBO)}, {s(SW2[b])}, {16384*k + 8192*(m%2)}',
            f'buffer_load_dwordx4 {v(WOA)}, {srd(rW2)}, {s(sBO)} offen {NTW} lds',
            (f'buffer_load_dwordx4 {v(vWD)}, {srd(rW2)}, {s(sBO)} offen offset:1024 {NTW} lds', ('w2', m))]


def lds_sync():
    A.wait_all(ds=True)
    barrier()


bgc = [0]
SMC = list(range(OPT.get('sm0', 2), 52, OPT.get('smd', 20)))[:OPT.get('smn', 2)]
tok_h = {0: 0}
HS = [-1, OPT.get('h3', 1), OPT.get('h4', 5)]


def att_bg(n):
    bgc[0] += 1
    c = bgc[0]
    if OPT.get('sm') == 3 and c in SMC:
        k = SMC.index(c)
        if k == 0:
            A(f's_lshl2_add_u32 s5, s2, {s(sW)}')
            A(f's_mul_i32 s5, s5, 1792')
        for i in range(14 * k // len(SMC), 14 * (k + 1) // len(SMC)):
            A(f's_load_dwordx2 s[6:7], {s(rW2, 2)}, s5 offset:{i*128+60}')
    if c in HS:
        d = HS.index(c) + 2
        assert d < 4 or not wor.q
        tok_h[d] = halo_loads(A, d)
    elif wor.q:
        wor.pop(8)
    elif c > HS[2]:
        if OPT.get('arate'):
            if 't0' not in tok_h:
                tok_h['t0'], tok_h['k'] = A.t, 0
            if A.t - tok_h['t0'] >= tok_h['k'] * OPT['arate']:
                tok_h['k'] += 1
                if n >= OPT.get('g2u', 12) and qg2.q:
                    qg2.grp(2)
                else:
                    D.grp()
        elif n >= 12 and qg2.q:
            qg2.grp(OPT.get('g2n', 2))
        else:
            D.grp(1, OPT.get('apace', 50))


DFR = OPT.get('dfr', 0)
NEV = OPT.get('nev', 16)
WR = min(OPT.get('wr', 9), NEV)
wor2 = wor.q[8 * NEV:]
wor.q = wor.q[:8 * NEV]
for i in range(NEV + 1):
    if i == OPT.get('kp', 0):
        kv_poll(A)
    if i == WR:
        kv_wait()
        tok_h[1] = halo_loads(A, 1)
    if i == min(WR + OPT.get('wr2', 2), NEV):
        tok_h[2] = halo_loads(A, 2)
    if i == 8 and NEV > 8:
        A.wait(vm=D.k['wo'])
        barrier()
    wor.pop(8)
    if i < WR:
        D.grp(1, OPT.get('wrp', 100))
if OPT.get('sm') == 3:
    lds_sync()
D.add([idle_w1] + w1_items(1, range(NI, 4)) + ([] if OPT.get('sm') == 3 else [lds_sync]) + mark(w1_items(0, range(4 - DFR)), 'w1') + touch3(rW2, 14, 79, 78) +
      [f's_lshl4_add_u32 {s(sW2b)}, {s(sDL)}, {s(sW2)}', f's_lshl_b32 {s(sFKV)}, {s(sW)}, 11'])
if DM & 3 and OPT.get('dmp', 0):
    k = len(D.q) * OPT['dmp'] // 10
    D.q[k:k] = [f'v_min_u32 v77, 31, {v(vL)}', 'v_lshlrev_b32 v77, 6, v77'] + dm_touch(77, 79)
if OPT.get('b0e', 1):
    D.add(w2_dma(0, 1) + w2_dma(1, 2))
attn_units(A, [u for d in range(5) for u in units_of(d)], {0, 1}, bg=att_bg, ready=lambda un: A.wait(vm=tok_h[un[4]]))
print('left after attention:', sum(1 for x in D.q if 'buffer' in str(x)))
D.flush()
assert not D.q and not qg2.q, (len(D.q), len(qg2.q))
if OPT.get('sm') == 3:
    A('s_waitcnt lgkmcnt(0)')
stamp('uend')
redo, fin = A.new('redo'), A.new('attfin')
A(f's_mov_b32 s3, {"0" if OPT["forcemax"] else "0x5f800000"}')
A(f's_mov_b32 s1, 0x1f800000')
A(f's_add_u32 {s(sRB2)}, {s(sO)}, 32768')
A(f'v_max_f32 {v(SB)}, {v(OA+8)}, {v(OA+24)}')
A(f'v_min_f32 {v(SB+1)}, {v(OA+8)}, {v(OA+24)}')
A(f'v_cmp_u_f32 s[6:7], {v(OA+8)}, {v(OA+24)}')
A(f'v_cmp_nle_f32 s[4:5], s1, {v(SB+1)}')
A(f'v_cmp_nge_f32 vcc, s3, {v(SB)}')
A('s_or_b64 s[4:5], s[6:7], s[4:5]')
A('s_or_b64 vcc, vcc, s[4:5]')
A(f's_cbranch_vccnz {redo}')
A.label(fin)
C = COLD
C.label(redo)
C('s_waitcnt vmcnt(0)')
C(f'v_lshrrev_b32 v4, 5, {v(vL)}')
C(f'v_and_b32 v3, 15, {v(vL)}')
C(f'v_lshl_add_u32 v3, v4, 4, v3')
C(f'v_lshlrev_b32 {v(vVS)}, 4, v3')
for i in range(32):
    C(f'v_mov_b32 {v(G2+i)}, 0x3f803f80')
for d in (1, 2):
    halo_loads(C, d)
C('s_waitcnt vmcnt(0)')
C(f'v_mov_b32 v3, 0xff7fffff')
C(f'v_mov_b32 v4, 0xff7fffff')
mx_end, p2_end = C.new('mxend'), C.new('p2end')
for d in range(5):
    if d:
        C(f's_cmp_lt_u32 {s(sRB)}, {d}')
        C(f's_cbranch_scc1 {mx_end}')
    for un in units_of(d):
        s_mm(C, un, 0)
        for i in range(0, 16, 2):
            C(f'v_max3_f32 {v(3+un[0])}, {v(3+un[0])}, {v(SB+i)}, {v(SB+i+1)}')
C.label(mx_end)
for q in range(2):
    C(f'v_mov_b32 {v(SB)}, {v(3+q)}')
    C(f'v_permlane32_swap_b32 {v(SB)}, {v(3+q)}')
    C(f'v_max_f32 {v(3+q)}, {v(SB)}, {v(3+q)}')
fs = {0, 1}
for d in range(5):
    if d:
        C(f's_cmp_lt_u32 {s(sRB)}, {d}')
        C(f's_cbranch_scc1 {p2_end}')
    attn_units(C, units_of(d), fs, sub=3)
C('s_nop 7')
C.label(p2_end)
C('s_nop 7')
C(f'v_lshlrev_b32 {v(vVS)}, 4, v0')
for f in gather_loads(SETS2, G2):
    C(f)
C('s_waitcnt vmcnt(0)')
C(f's_branch {fin}')
for q in range(2):
    A(f'v_rcp_f32 {v(OA+16*q+8)}, {v(OA+16*q+8)}')
for q in range(2):
    for i in range(4):
        A(f'v_pk_mul_f32 {v(OA+16*q+2*i, 2)}, {v(OA+16*q+2*i, 2)}, {v(OA+16*q+8, 2)} op_sel_hi:[1,0]')
    for i in range(4):
        A(f'v_cvt_pk_bf16_f32 {v(OA+16*q+i)}, {v(OA+16*q+2*i)}, {v(OA+16*q+2*i+1)}')
    tok_o = A(f'buffer_store_dwordx4 {v(OA+16*q, 4)}, {v(vOS)}, {srd(rWS)}, {s((sO, sRB2)[q])} offen {"" if DM & 1 else "sc1"}')
stamp('attn')


CG, CS, GB, X1 = 208, 224, 240, 184
vP, vPF, vT32, vYS, vCB = 252, 251, 249, 253, 248
R = Q()
T0 = A.t
DF0 = min(DFR, OPT.get('df0', 2))
if DF0:
    D.add(mark(w1_items(0, range(4 - DFR, 4 - DFR + DF0)), 'w1b'))
    D.flush()
if not OPT.get('b0e', 1):
    D.add(w2_dma(0, 1) + w2_dma(1, 2))
    D.flush()
gather_check(SETS2, G2, qg2.tok, 4)
A(f's_cmp_ge_u32 {s(sW)}, 2')
A(f's_cselect_b32 s3, 1.0, 0')
add_const_round(G2, 3)
emit(['v_and_b32 v16, 3, v0', 'v_bfe_u32 v17, v0, 2, 1', 'v_lshl_add_u32 v16, v16, 1, v17', f'v_lshl_add_u32 v4, {s(sW)}, 3, v16',
      's_movk_i32 s4, 0x78', 'v_and_or_b32 v16, v0, s4, v16',
      f's_lshr_b32 s5, {s(sW)}, 1', f's_mul_i32 s3, s5, 1088', f's_add_u32 s3, s3, {T_MOD2}', 'v_lshl_add_u32 v16, v16, 3, s3',
      f's_mov_b32 s3, {T_MOD2+2176}', 'v_lshl_add_u32 v4, v4, 3, s3'])
A(f'ds_write_b64 v16, {v(G2, 2)}')
A(f'ds_write_b64 v4, {v(G2+16, 2)}')
CZ = []
if OPT.get('cz', 1):
    emit(['v_mov_b32 v17, 0', 'v_lshlrev_b32 v18, 2, v0', f'v_add_u32 v18, {T_Z}, v18', 'ds_write_b32 v18, v17'])
    CZ = [f'v_and_b32 v16, 26, {v(vL)}', 'v_cmp_eq_u32 vcc, 0, v16', f'v_mov_b32 v16, {T_Z}', 's_nop 0', 'v_cndmask_b32 v200, v16, v200, vcc']
emit([f's_and_b32 s7, {s(sW)}, 1', 's_lshl_b32 s7, s7, 9', 's_lshl_b32 s3, s5, 16', 's_add_u32 s3, s3, s7', f'v_add_u32 v201, s3, {v(vRB)}',
      f'v_lshrrev_b32 v203, 5, {v(vL)}', f'v_and_b32 v16, 1, {v(vL)}', 'v_mul_u32_u24 v16, 1088, v16', 'v_lshl_add_u32 v16, v203, 4, v16', f'v_add_u32 v200, {T_MOD2}, v16'] + CZ + [
      f'v_and_b32 {v(vT32)}, 31, {v(vL)}', f'v_lshlrev_b32 {v(vP)}, 2, {v(vT32)}'])
if wor2:
    emit([f'v_bfe_u32 v16, {v(vL)}, 4, 1', f'v_lshl_add_u32 v160, v16, 8, {v(vRB)}', 'v_mul_u32_u24 v16, 0x700, v203', 'v_add_u32 v160, v16, v160', 'v_xor_b32 v161, 32, v160'])
stamp('pchk')
A.wait(vm=D.k['w1'], ds=A.ds)
barrier()
stamp('pbar')
tk = {}
CBB, CBA = 96, 144
OB, BA = 16, 80


def w1off(ks, rd):
    return (ks // 2) * 4096 + (ks % 2) * 1024 + rd * 2048


def cb_reads(ks):
    b = CBB + (ks % 6) * 8
    return [f'ds_read_b128 {v(b, 4)}, v200 offset:{ks*32}'] + [f'ds_read_b64_tr_b16 {v(b+4+2*rd, 2)}, v201 offset:{w1off(ks, rd)}' for rd in range(2)]


def split3(dst, x0, x1, tmp, mode):
    l = [f'v_cvt_pk_bf16_f32 {v(tmp)}, {v(x0)}, {v(x1)}'] + unpack2(tmp + 1, tmp)
    l += [f'v_sub_f32 {v(x0)}, {v(x0)}, {v(tmp+1)}', f'v_sub_f32 {v(x1)}, {v(x1)}, {v(tmp+2)}']
    h0, h1 = tmp + 1, tmp + 2
    e = [h0, x0, h0, h1, x1, h1] if mode == 'a' else [h0, h0, x0, h1, h1, x1]
    l += [f'v_cvt_pk_bf16_f32 {v(dst+i)}, {v(e[2*i])}, {v(e[2*i+1])}' for i in range(3)]
    return l + [f'v_mov_b32 {v(dst+3)}, 0']


def cb_steps(k0, k1):
    def pre():
        for ks in range(k0, min(k0 + 5, k1)):
            tk[ks] = emit(cb_reads(ks))

    def step(ks):
        A.wait(ds=tk[min(ks | 1, k1 - 1)])
        b = CBB + (ks % 6) * 8
        mm32(A, v(CBA, 16), v(b, 4), v(b + 4, 4), v(CBA, 16) if ks else '0')
        if ks + 5 < k1:
            tk[ks + 5] = emit(cb_reads(ks + 5))
    return ([pre] if k1 > k0 else []) + [lambda ks=ks: step(ks) for ks in range(k0, k1)]


def run_with(work, events):
    for w in work + [None]:
        while events and (w is None or A.t - T0 >= events[0][0]):
            events.pop(0)[1]()
        if w:
            w()


emit([f's_add_u32 {s(4+i)}, {s(sOL)}, {4096*(i+1)}' for i in range(3)])
qo = Q([(f'buffer_load_dwordx4 {v(OB+4*i, 4)}, {v(vL16)}, {srd(rWS)}, {s((sOL, 4, 5, 6)[i//4])} offen offset:{(i%4)*1024} sc1', i) for i in range(16)])
hold = {}
CA = min(OPT.get('ca', 12), 32 - 8 * DFR)


def ev_flag():
    stamp('kw')
    A.wait(vm=tok_o)
    setflag(s(sFO))
    stamp('kf')


def ev_poll():
    hold['po'] = A(poll_load(vP, s(sPO), 0, 3))
    stamp('kp')


def ev_check():
    stamp('prep')
    poll_check(hold['po'], vP, s(sPO), 0, 3)
    stamp('oflag')
    qo.grp(OPT.get('o0', 10))


def consts():
    emit([f'v_and_b32 v96, 48, {v(vL)}', f'v_add_u32 v97, {T_MOD2+2176}, v96', f's_lshl_b32 s3, {s(sHQ)}, 7', f's_add_u32 s3, s3, {T_MOD2+1088}', 'v_add_u32 v98, s3, v96',
          f'v_and_b32 v101, 15, {v(vL)}', f'v_lshrrev_b32 v102, 1, v96', f'v_lshl_add_u32 v102, v101, 7, v102', f'v_add_u32 v102, {s(sRING)}, v102'])
    for tl in range(4):
        A(f'ds_read_b64 {v(120+2*tl, 2)}, v102 offset:{32*tl}')
    for p in range(2):
        A(f'ds_read_b128 {v(104+4*p, 4)}, v97 offset:{64*p}')
        A(f'ds_read_b128 {v(112+4*p, 4)}, v98 offset:{64*p}')
        hold['cs'] = A(f'ds_read_b128 {v(GB+4*p, 4)}, v97 offset:{128+64*p}')


wor2 = [x.replace('v48', 'v160').replace('v49', 'v161') for x in wor2]
TF = OPT.get('of', 700)
run_with([lambda i=i: emit(wor2[i:i + 4]) for i in range(0, len(wor2), 4)] + cb_steps(0, CA),
         [(TF, ev_flag), (TF + OPT.get('op', 300), ev_poll), (TF + OPT.get('oc', 600), ev_check)])
consts()
tcs = hold['cs']
stamp('cb')

if DFR > DF0:
    D.add(mark(w1_items(0, range(4 - DFR + DF0, 4)), 'w1b'))


def w2reg(u, tl):
    return 32 + 16 * u + 4 * tl


def w2_read(ms):
    l = [lambda: A.wait(vm=D.k['w2', ms[-1]])]
    for m in ms:
        q = SLOT[m]
        va, off = (180, 2048 * q) if q < 3 else ((182, 8192 * (q - 3)) if q < 11 else (10, 8192 * (q - 11)))
        l += mark([f'ds_read_b64_tr_b16 {a(w2reg(m//2, tl)+2*(m%2), 2)}, {v(va+tl%2)} offset:{off+(tl//2)*512}' for tl in range(4)], ('r', m))
    return l


free = []
nxt_m = [2]
unread = [0, 1]


def w2_more(limit=28):
    if not D.q and free and nxt_m[0] < limit:
        D.add(w2_dma(nxt_m[0], free.pop(0)))
        unread.append(nxt_m[0])
        nxt_m[0] += 1


def turn(k):
    ms = [unread.pop(0) for _ in range(k)]
    R.add(w2_read(ms) + [lambda: A.wait(ds=R.dtok), lambda: free.extend(SLOT[m] for m in ms)])


def refill():
    while free:
        w2_more()
        D.flush()


fb = Q([f'v_bfe_u32 v99, {v(vL)}, 4, 1', f'v_lshl_add_u32 v100, v99, 8, {v(vRB)}', 'v_mul_u32_u24 v103, 768, v203', 'v_add_u32 v100, v100, v103',
        f'v_add_u32 v180, {s(sRING)}, v100', 'v_xor_b32 v181, 32, v180',
        f'v_lshlrev_b32 v103, 4, {v(vT32)}', f'v_add_u32 {v(vCB)}, {T_CB}, v103', f's_lshl_b32 s3, {s(sW)}, 9', f'v_add_u32 v202, s3, {v(vCB)}'] +
       [lambda: A.wait(ds=tcs), lambda: free.append(0)] +
       [x for i in range(8) for x in unpack2(X1 + 2 * i, 120 + i) + unpack2(CG + 2 * i, 104 + i) + unpack2(CS + 2 * i, 112 + i)] +
       [
        f'v_lshlrev_b32 {v(vYS)}, 5, v96', f'v_lshl_add_u32 {v(vYS)}, v101, 4, {v(vYS)}', 'v_lshlrev_b32 v178, 6, v203', 'v_lshl_add_u32 v178, v101, 2, v178'])
late = ['v_lshl_add_u32 v179, v99, 7, v178', f'v_add_u32 v182, {s(sFKV)}, v100', 'v_xor_b32 v183, 32, v182',
        'v_mul_u32_u24 v103, 57344, v99', f'v_lshl_add_u32 {v(vYS)}, v178, 2, v103',
        'v_lshlrev_b32 v103, 10, v101', 'v_lshl_add_u32 v103, v99, 5, v103', 'v_lshl_add_u32 v177, v203, 4, v103',
        f's_lshr_b32 s3, {s(sDL)}, 1', f'v_add_u32 v250, s3, {v(vL16)}', f's_bitcmp1_b32 {s(sW)}, 0',
        f's_cselect_b32 s10, {s(sW2b)}, {s(sW2)}', f's_cselect_b32 {s(sKV)}, {s(sW2)}, {s(sW2b)}', 's_cselect_b32 s4, s3, 0', 's_cselect_b32 s3, 0, s3',
        f'v_add_u32 v236, s4, {v(vL16)}', f'v_add_u32 v237, s3, {v(vL16)}',
        f's_lshr_b32 s3, {s(sTILE)}, 8', 's_and_b32 s3, s3, 0x1c0', f's_add_u32 s3, s3, {T_RST}', 'v_lshl_add_u32 v176, v101, 2, s3',
        f'v_add_u32 v10, {IMG1}, v182', f'v_add_u32 v11, {IMG1}, v183',
        f'v_add_u32 v14, {IMG1}, {v(vRB)}', f'v_and_b32 v254, 60, {v(vP)}',
        f's_mul_i32 s3, {s(sW)}, 28', 's_andn2_b32 s3, s3, 7', f'v_and_b32 v103, 28, {v(vP)}', f'v_add_u32 {v(vPF)}, s3, v103']
fb.pop(OPT.get('fb0', 10))
for grp in ([(0,)] + [(k, k + 1) for k in range(1, 15, 2)] + [(15,)] if CH & 4 else [(k,) for k in range(16)]):
    A.wait(vm=qo.k[grp[-1]], ds=tcs if NEV in grp else None)
    stamp(f'o{grp[0]}')
    if 5 in grp:
        turn(2)
    n = 0
    for tl in range(4):
        for ks in grp:
            mm16(BA + 4 * tl, a(16 * ks + 4 * tl, 4), v(OB + 4 * ks, 4), ks == 0)
            n += 1
            if n % 4 == 1 and qo.q:
                qo.grp()
            elif n % 4 == 1:
                w2_more()
                D.grp()
            else:
                last = n == 4 * len(grp)
                R.fill(8 if last else 4)
                fb.fill(4 if last else 0)
fb.flush()
R.flush()
D.flush()
A(f's_cmp_lt_u32 {s(sJ)}, 14')
A(f's_cselect_b32 {s(rH+2)}, 0x1000000, 0')
stamp('om')
for p in range(2):
    for i in range(4 * p, 4 * p + 4):
        A(f'v_pk_fma_f32 {v(X1+2*i, 2)}, {v(BA+2*i, 2)}, {v(CG+2*i, 2)}, {v(X1+2*i, 2)}')
    for i in range(4 * p, 4 * p + 4):
        A(f'v_pk_mul_f32 {v(CS+2*i, 2)}, {v(CS+2*i, 2)}, {v(X1+2*i, 2)}')
    for i in range(4):
        A(f'v_cvt_pk_bf16_f32 {v(CS+8*p+i)}, {v(CS+8*p+2*i)}, {v(CS+8*p+2*i+1)}')
    A(f'buffer_store_dwordx4 {v(CS+8*p, 4)}, {v(vYS)}, {srd(rWS)}, {s(sY)} offen offset:{2048*p} {"" if DM & 2 else "sc1"}')
A(f'v_pk_add_f32 {v(CG, 2)}, {v(X1, 2)}, {v(X1+2, 2)}')
A(f'v_pk_mul_f32 {v(CG+2, 2)}, {v(X1, 2)}, {v(X1, 2)}')
for i in range(1, 8):
    if i > 1:
        A(f'v_pk_add_f32 {v(CG, 2)}, {v(CG, 2)}, {v(X1+2*i, 2)}')
    A(f'v_pk_fma_f32 {v(CG+2, 2)}, {v(X1+2*i, 2)}, {v(X1+2*i, 2)}, {v(CG+2, 2)}')
A(f'v_add_f32 {v(CG)}, {v(CG)}, {v(CG+1)}')
A(f'v_add_f32 {v(CG+1)}, {v(CG+2)}, {v(CG+3)}')
emit(late[:2])
A(f'v_permlane32_swap_b32 {v(CG)}, {v(CG+1)}')
A(f'v_add_f32 {v(CG)}, {v(CG)}, {v(CG+1)}')
A(f'v_mov_b32 {v(CG+1)}, {v(CG)}')
A(f'v_permlane16_swap_b32 {v(CG)}, {v(CG+1)}')
A(f'v_add_f32 {v(CG)}, {v(CG)}, {v(CG+1)}')
tok_y = A(f'buffer_store_dword {v(CG)}, v178, {srd(rWS)}, {s(sST)} offen {"" if DM & 2 else "sc1"}')
stamp('oproj')

YB, FT, BX, SL = 16, [144, 160, 200, 216], 232, 204
qy = Q()
for ks in range(32):
    if ks % 4 == 0:
        qy.add([f's_add_u32 s4, {s(sYL)}, {ks*1024}'])
    qy.add([(f'buffer_load_dwordx4 {v(YB+4*ks, 4)}, {v(vL16)}, {srd(rH)}, s4 offen offset:{(ks%4)*1024} sc1', ks)])
qt = Q([f'buffer_load_dword {v(SL+i)}, v179, {srd(rWS)}, {s(sSTL)} offen offset:{i*256} sc1' for i in range(8)])
T0 = A.t


def y_flag():
    stamp('yw')
    A.wait(vm=tok_y)
    setflag(s(sFY))
    stamp('yf')


def y_poll():
    if OPT.get('yt2', 1):
        turn(len(unread))
        R.flush()
    hold['py'] = A(poll_load(254, s(sPY), 0, 3))
    refill()
    stamp('yp')


def y_check():
    stamp('yc')
    poll_check(hold['py'], 254, s(sPY), 0, 3)
    stamp('yflag')
    qy.grp(OPT.get('y0', 10))
    stamp('yiss')


def w1_landed():
    A.wait(vm=D.k['w1b'])
    barrier()


def cb_done():
    emit(split3(160, CBA + 1, CBA, 164, 'a'))
    A(f'ds_write_b128 v202, {v(160, 4)}')


npre = len(unread)
refill()
emit(late[2:])
if OPT.get('yt1', 1) and npre:
    turn(min(OPT.get('yn', 2), npre))
    R.flush()
    refill()
TF = OPT.get('yf', 600)
run_with(([w1_landed] if DFR else []) + cb_steps(CA, 32) + [cb_done],
         [(TF, y_flag), (TF + OPT.get('yp', 250), y_poll), (TF + OPT.get('yc', 700), y_check)])
stats = [lambda: A.wait(vm=qt.tok)]
stats += [f'v_add_f32 {v(SL+e)}, {v(SL+e)}, {v(SL+4+e)}' for e in range(4)]
stats += [f'v_add_f32 {v(SL+e)}, {v(SL+e)}, {v(SL+2+e)}' for e in range(2)]
stats += [f'v_add_f32 {v(SL)}, {v(SL)}, {v(SL+1)}', f'v_mov_b32 {v(SL+1)}, {v(SL)}',
          f's_lshl_b32 s3, {s(sW)}, 7', f's_add_u32 s3, s3, {T_RST}', f'v_add_u32 v4, s3, {v(vP)}', f'v_permlane32_swap_b32 {v(SL)}, {v(SL+1)}']
stats += [f'v_mul_f32 {v(SL)}, 0xbb000000, {v(SL)}', f'v_mul_f32 {v(SL+1)}, 0x3b000000, {v(SL+1)}',
          f'v_fma_f32 {v(SL+1)}, -{v(SL)}, {v(SL)}, {v(SL+1)}', f'v_max_f32 {v(SL+1)}, 0, {v(SL+1)}',
          f'v_add_f32 {v(SL+2)}, 0x3727c5ac, {v(SL+1)}', f'v_sqrt_f32 {v(SL+1)}, {v(SL+2)}', f'v_rsq_f32 {v(SL+2)}, {v(SL+2)}',
          f'v_cmp_gt_u32 vcc, 32, {v(vL)}', f'ds_write_b32 v4, {v(SL+2)}',
          f'v_cndmask_b32 {v(SL)}, 0, {v(SL)}, vcc', f'v_cndmask_b32 {v(SL+1)}, 0, {v(SL+1)}, vcc']
stats += split3(BX, SL, SL + 1, SL + 4, 'b')
qs = Q(stats)
cseq = [(0, ks, i) for ks in range(33) for i in range(2)] + [(p, ks, p + 1) for p in (1, 2) for ks in range(33)]
NFB, CLK = 8, OPT.get('clk', 5)
tk = {}


def c_rd(n):
    p, ks, ct = cseq[n]
    b = 4 * (n % NFB)
    if ks == 32:
        return [f'ds_read_b128 {a(b, 4)}, {v(vCB)} offset:{ct*512}']
    return [f'ds_read_b64_tr_b16 {a(b+2*r, 2)}, {v(14 if p else vRB)} offset:{w1off(ks, r)+(ct%2)*512}' for r in range(2)]


def f_epi(t):
    r = FT[t // 2] + 4 * (t % 2)
    src = FT[t // 2] + 8 * (t % 2)
    return ([f'v_cvt_pk_bf16_f32 {v(r+i)}, {v(src+2*i)}, {v(src+2*i+1)}' for i in range(4)] + [f'v_pk_max_i16 {v(r+i)}, {v(r+i)}, 0' for i in range(4)] +
            [f'buffer_store_dwordx4 {v(r, 4)}, {v(vYS)}, {srd(rH)}, {s(sF)} offen offset:{t*512} {"" if OPT.get("fpl") else "sc1"}'])


for n in range(CLK):
    tk[n] = emit(c_rd(n))
if unread:
    turn(len(unread))
R.flush()
print('w2 k-steps requested before FFN1:', nxt_m[0])
NB, ACC, vO1 = 16, 80, 5
INB = IMG1


def fbuf(n):
    return 16 + 4 * (n % NB)


DF = OPT.get('defer', 3)
DG = OPT.get('defer2', 6)
seq = ([(aa, u) for aa in (3, 2, 1) for u in range(7)] + [(0, u) for u in range(7 - DF)] + [(aa, u) for aa in (3, 2, 1) for u in range(7, 10)] +
       [(0, u) for u in range(7 - DF, 10 - DG)] + [(aa, u) for aa in (3, 2, 1) for u in range(10, 14)] + [(0, u) for u in range(10 - DG, 14)])
assert len(seq) == 56
NE, NL = 28 - DF, 40 - DG
ql = Q()
prev = None
for n, (aa, u) in enumerate(seq):
    k, b = kunit(u)
    if (aa, k) != prev:
        ql.add([f's_add_u32 s4, {s(5+aa)}, {k*512}'])
    prev = (aa, k)
    ql.add([(f'buffer_load_dwordx4 {v(fbuf(n), 4)}, {v((vL16, 250, 236, 237)[b])}, {srd(rWS)}, s4 offen sc1', n)])
LK = OPT.get('lk', 8)


def issued():
    return max(ql.k) + 1 if ql.k else 0


CB1 = OPT.get('cb1', 25)
FA, PA, KA = OPT.get('fa', 2), OPT.get('pa', 10), OPT.get('ka', 20)
qe = Q()
qm = Q([x for aa in (3, 2, 1, 0) for x in (f's_xor_b32 s3, {s(sW)}, {aa}', 's_mul_i32 s3, s3, 57344', f's_add_u32 {s(5+aa)}, s3, {s(sFL0)}')] + ['ds_read_b32 v176, v176'])
for n, (p, ks, ct) in enumerate(cseq):
    i = n % 2
    if i == 0:
        A.wait(vm=qy.k[ks] if p == 0 and ks < 32 else None, ds=tk[n + 1])
    if i == 0 or p:
        stamp('abe'[p] + str(ks))
        if (p, ks) == (0, CB1):
            barrier()
            free += list(range(3, 3 + (CB1 + 1) // 4))
        if (p, ks) == (0, 32):
            qs.flush()
        if (p, ks) == (1, 0):
            stamp('c1')
            barrier()
            free += list(range(3 + (CB1 + 1) // 4, 11))
        if (p, ks) == (1, 2):
            D.flush()
            hold['pre'] = len(unread)
            for t in range(4):
                qe.add(f_epi(t))
        if (p, ks) == (1, OPT.get('t1', 12)):
            for _ in range(hold['pre'] // 2):
                turn(2)
        if (p, ks) == (2, 2):
            assert not qe.q
            hold['fa'] = qe.tok
            qe.add(f_epi(4) + f_epi(5))
        if (p, ks) == (2, FA):
            A.wait(vm=hold['fa'])
            setflag(s(sFF))
            for _ in range(OPT.get('t2', 2)):
                turn(2)
        if (p, ks) == (2, KA):
            stamp('fw')
            qm.flush()
            poll_check(tpf, vPF, s(sPO), 256, 255)
            stamp('fflag')
    d = v(FT[ct], 16)
    mm32(A, d, a(4 * (n % NFB), 4), v(BX if ks == 32 else YB + 4 * ks, 4), '0' if ks == 0 else d)
    if p == 0 and (qy.q or qt.q):
        if i == 0:
            qy.grp()
        elif ks >= 4:
            qt.grp()
    elif (p, ks) == (2, PA):
        tpf = A(poll_load(vPF, s(sPO), 256, 255))
    elif qe.q and qe.kind() == 'vmem':
        qe.grp(1, OPT.get('sp', 150))
    elif (p, ks) >= (2, KA) and not D.q:
        if issued() < LK:
            ql.grp()
    else:
        w2_more()
        D.grp(1, OPT.get('c2pace', 45))
    if n + CLK < len(cseq):
        tk[n + CLK] = emit(c_rd(n + CLK))
    res = 4 if i else 0
    if p == 0 and ks >= 18:
        qs.fill(res)
    for _ in range(OPT.get('qe', 3)):
        if qe.q and qe.kind() != 'vmem':
            qe.pop()
    R.fill(res)
    if p:
        qm.fill(res)
assert not qe.q
stamp('c2')

A.wait(vm=qe.tok)
setflag(s(sFF), off=128)
R.flush()
qe.add(f_epi(6) + f_epi(7))
W64 = OPT.get('w64', 0)


def red_write(aa):
    if W64:
        return [f'ds_write_b64 {v(vO1+aa-1)}, {v(ACC+16*aa+2*r, 2)} offset:{r*512}' for r in range(8)]
    return [f'ds_write_b128 {v(vO1+aa-1)}, {v(ACC+16*aa+4*r, 4)} offset:{r*1024}' for r in range(4)]


ra = [f'v_lshlrev_b32 v15, {3 if W64 else 4}, {v(vL)}']
for aa in range(1, 4):
    ra += [f's_xor_b32 s3, {s(sW)}, {aa}', f's_mul_i32 s3, s3, 12288', f's_add_u32 s3, s3, {INB + (aa-1)*4096}', f'v_add_u32 {v(vO1+aa-1)}, s3, v15']
ra += [f's_mul_i32 s3, {s(sW)}, 12288', f's_add_u32 s3, s3, {INB}', f'v_add_u32 v8, s3, v15']
CS = 160
fq = Q([x for i in range(8) for x in unpack2(CS + 2 * i, GB + i)] + ra + [f'v_mul_f32 {v(CS+i)}, {v(CS+i)}, v176' for i in range(16)])
P2, P3 = OPT.get('p2', 6), OPT.get('p3', 17)
PL = OPT.get('pl', 0)
print('w2 k-steps requested before FFN2:', nxt_m[0], 'unread', len(unread))
lim, pend = [NE], []
qr = Q()
P = (144, 216, 200)
RS = OPT.get('rsn', 1)
def d_pre(n, nw):
    A.wait(vm=ql.k[nw], ds=R.k['r', 2 * seq[nw][1] + 1])
    stamp(f'd{n}')
    if not qe.q and 'fc' not in hold and A.vm_done >= qe.tok:
        hold['fc'] = n
        setflag(s(sFF), off=256)
    if pend and (A.vm_done + PL >= pend[0] or issued() - n <= OPT.get('pmin', 5)):
        poll_check(pend[0], vPF, s(sPO), pend[1], 255)
        lim[0] = NL if pend[1] == 384 else 56
        hold[pend[1]] = n
        pend.clear()
    while unread and ('w2', unread[0]) in D.k and A.vm_done >= D.k['w2', unread[0]]:
        turn(1 if len(unread) < 2 or D.k.get(('w2', unread[1]), 10**9) > A.vm_done else 2)
    if n == NL + 4:
        assert not (R.q or fq.q)
        lds_sync()
        if OPT.get('otr', 1):
            fq.add([f'v_and_b32 v4, 15, {v(vL)}', 'v_mul_u32_u24 v4, 144, v4', f'v_lshrrev_b32 v180, 4, {v(vL)}', 'v_lshl_add_u32 v4, v180, 3, v4', f'v_add_u32 v180, {s(sRING)}, v4',
                    f'v_lshrrev_b32 v4, 3, {v(vL)}', f'v_and_b32 v177, 0x70, {v(vL16)}', 'v_mul_u32_u24 v181, 144, v4', f'v_add3_u32 v181, v181, v177, {s(sRING)}',
                    'v_lshl_add_u32 v177, v4, 10, v177', f's_add_u32 s3, {s(sTILE)}, 8192'])
    if n in (NL + 4, NL + 8, NL + 12):
        qr.add(red_write(3 - (n - NL - 4) // 4))
    if n == NL + 12 + OPT.get('rs', 5):
        assert not qr.q
        lds_sync()
        if W64:
            R.add([(f'ds_read2st64_b64 {v(P[p]+4*r, 4)}, v8 offset0:{p*8+2*r} offset1:{p*8+2*r+1}', ('p', r)) for r in range(4) for p in range(3)])
        else:
            R.add([(f'ds_read_b128 {v(P[p]+4*r, 4)}, v8 offset:{p*4096+r*1024}', ('p', r)) for r in range(4) for p in range(3)])
        for r in range(RS):
            fq.add([lambda r=r: A.wait(ds=R.k['p', r])] + [f'v_add_f32 {v(P[0]+4*r+i)}, {v(P[0]+4*r+i)}, {v(P[1]+4*r+i)}' for i in range(4)] +
                   [f'v_add_f32 {v(P[0]+4*r+i)}, {v(P[0]+4*r+i)}, {v(P[2]+4*r+i)}' for i in range(4)] +
                   [f'v_fmac_f32 {v(X1+4*r+i)}, {v(P[0]+4*r+i)}, {v(CS+4*r+i)}' for i in range(4)])


def d_post(n, tl, res):
    for _ in (0,):
        if qe.q:
            if qe.kind() == 'vmem':
                qe.pop()
            else:
                qe.fill(res, 10**6)
            continue
        if tl in (0, 2):
            if (n, tl) in ((P2, 2), (P3, 2)):
                assert not pend
                off = 384 if n == P2 else 512
                pend[:] = [A(poll_load(vPF, s(sPO), off, 255)), off]
            elif issued() < min(n + 1 + LK, lim[0]):
                ql.grp()
            else:
                w2_more()
                D.grp()
        if (tl == 3 or (W64 and tl == 1 and n not in (NL + 4, NL + 8, NL + 12))) and qr.q:
            qr.pop()
        R.fill(res)
        if not R.q or n < NE:
            fq.fill(res)


n = 0
while n < 56:
    pair = CH & 8 and n + 1 < 56 and n > 0 and seq[n + 1][0] == seq[n][0] and n + 1 != NL + 12 + OPT.get('rs', 5)
    grp = (n, n + 1) if pair else (n,)
    d_pre(n, grp[-1])
    k = 0
    for tl in range(4):
        for m in grp:
            aa, u = seq[m]
            mm16(ACC + 16 * aa + 4 * tl, a(w2reg(u, tl), 4), v(fbuf(m), 4), u == 0)
            d_post(n + k // 4, k % 4, 4 if k == 4 * len(grp) - 1 else 0)
            k += 1
    n += len(grp)
print('third flag at step', hold['fc'], 'polls', P2, hold[384], P3, hold[512], 'NE NL', NE, NL)
assert not (R.q or D.q or qr.q)
stamp('ffn2')
fq.flush()
for r in range(RS, 4):
    A.wait(ds=R.k['p', r])
    for src in (P[1], P[2]):
        for h in range(2):
            A(f'v_pk_add_f32 {v(P[0]+4*r+2*h, 2)}, {v(P[0]+4*r+2*h, 2)}, {v(src+4*r+2*h, 2)}')
for r in range(RS, 4):
    for h in range(2):
        A(f'v_pk_add_f32 {v(ACC+4*r+2*h, 2)}, {v(ACC+4*r+2*h, 2)}, {v(P[0]+4*r+2*h, 2)}')
OF_ = ("", "sc1", "nt", "sc1 nt", "sc0 sc1")[OPT["outsc1"]]
if OPT.get('otr', 1):
    for tl in range(4):
        for i in range(2 * tl, 2 * tl + 2):
            A(f'v_pk_fma_f32 {v(X1+2*i, 2)}, {v(ACC+2*i, 2)}, {v(CS+2*i, 2)}, {v(X1+2*i, 2)}')
        for i in range(2 * tl, 2 * tl + 2):
            A(f'v_cvt_pk_bf16_f32 {v(240+i)}, {v(X1+2*i)}, {v(X1+2*i+1)}')
        if tl % 2:
            A(f'ds_write2_b64 v180, {v(240+2*tl-2, 2)}, {v(240+2*tl, 2)} offset0:{4*tl-4} offset1:{4*tl}')
    t = [A(f'ds_read_b128 {v(144+4*k, 4)}, v181 offset:{1152*k}') for k in range(2)]
    for k in range(2):
        A.wait(ds=t[k])
        A(f'buffer_store_dwordx4 {v(144+4*k, 4)}, v177, {srd(rOUT)}, {s((sTILE, 3)[k])} offen {OF_}')
else:
    for k in range(2):
        for i in range(4 * k, 4 * k + 4):
            A(f'v_pk_fma_f32 {v(X1+2*i, 2)}, {v(ACC+2*i, 2)}, {v(CS+2*i, 2)}, {v(X1+2*i, 2)}')
        for i in range(4):
            A(f'v_cvt_pk_bf16_f32 {v(232+8*k+i)}, {v(X1+8*k+2*i)}, {v(X1+8*k+2*i+1)}')
        for r in range(2):
            A(f'v_permlane16_swap_b32 {v(232+8*k+r)}, {v(232+8*k+2+r)}')
        A(f'buffer_store_dwordx4 {v(232+8*k, 4)}, v177, {srd(rOUT)}, {s(sTILE)} offen offset:{64*k} {("", "sc1", "nt", "sc1 nt", "sc0 sc1")[OPT["outsc1"]]}')

if OPT['stamps']:
    A.wait_all(vm=True)
    NAMES_n = len(NAMES)
    A(f's_mov_b32 {s(STAMP0+NAMES_n-1)}, {s(STP)}')
    A(f's_mem{"real" if OPT.get("rts") else ""}time {s(STP, 2)}')
    A('s_memrealtime s[4:5]')
    NAMES.append('end')
    A('s_waitcnt lgkmcnt(0)')
    A('v_mov_b32 v3, 0')
    for k in range(NAMES_n):
        A(f'v_writelane_b32 v3, {s(STAMP0+k)}, {k}')
    A(f'v_writelane_b32 v3, {s(STP)}, {NAMES_n}')
    A(f'v_writelane_b32 v3, s4, 29')
    A(f'v_writelane_b32 v3, {s(sXCC)}, 30')
    A(f'v_writelane_b32 v3, {s(sFAST)}, 31')
    A(f's_lshl_b32 s3, s2, 2')
    A(f's_add_u32 s3, s3, {s(sW)}')
    A(f's_lshl_b32 s3, s3, 7')
    A(f's_add_u32 s3, s3, {STAMPS}')
    A(f'v_lshlrev_b32 v4, 2, {v(vL)}')
    A('s_mov_b32 exec_hi, 0')
    A(f'buffer_store_dword v3, v4, {srd(rWS)}, s3 offen')
if OPT['pad']:
    A.wait_all(vm=True)
    stamp('end')
    A('s_waitcnt lgkmcnt(0)')
    A(f's_mov_b32 s6, {OPT["pad"]}')
    if OPT.get('probe'):
        if OPT.get('pcyc'):
            A('s_sub_u32 s98, s98, s96')
            A('s_mul_i32 s98, s98, 2731')
            A('s_lshr_b32 s98, s98, 16')
        else:
            A('s_sub_u32 s98, s98, s100')
        if OPT.get('pwg') is not None:
            A(f's_cmp_eq_u32 s2, {OPT["pwg"]}')
            A('s_cselect_b32 s98, s98, 0')
        A('s_add_u32 s6, s6, s98')
    A.label('L_padl')
    A('s_memrealtime s[4:5]')
    A('s_waitcnt lgkmcnt(0)')
    A('s_sub_u32 s4, s4, s100')
    A(f's_cmp_lt_u32 s4, s6')
    A('s_cbranch_scc1 L_padl')
A.label('L_end')
A('s_endpgm')
if OPT.get('skel'):
    k = OPT['skel']

    def keep(i):
        if 'redo' in i.text and i.target:
            return False
        if k & 1 and i.kind == 'mfma':
            return False
        if k & 2 and i.kind == 'valu' and any(i.op.startswith(x) for x in ('v_exp', 'v_cvt_pk', 'v_pk_', 'v_dot2', 'v_permlane', 'v_fma', 'v_add_f32', 'v_mul_f32', 'v_cndmask', 'v_mov_b64')):
            return False
        if k & 4 and i.kind == 'ds':
            return False
        if k & 8 and i.kind == 'vmem' and i.ldsdma:
            i.__init__('s_nop 0')
        return True
    A.ins = [i for i in A.ins if keep(i)]
    if k & 8:
        import re
        for i in A.ins:
            if 'vmcnt' in i.text and k & 16:
                pass
if OPT['pads']:
    k = [i.label for i in A.ins].index('L_warm_here')
    A.ins[k:k + 1] = WARM.ins
else:
    A.ins += WARM.ins
A.label('L_hot_end')
A.ins += COLD.ins
if OPT['pads']:
    import re
    import subprocess
    import tempfile
    from asmlib import pad_hazards
    ins, added = pad_hazards(A.ins)
    with tempfile.TemporaryDirectory() as td:
        src = '.amdgcn_target "amdgcn-amd-amdhsa--gfx950"\n.text\n' + '\n'.join(re.sub(r'L_pad\d+', 'L_end', i.text) for i in ins if i.kind != 'dir') + '\n'
        open(td + '/a.s', 'w').write(src)
        subprocess.run(['clang', '-x', 'assembler', '-target', 'amdgcn-amd-amdhsa', '-mcpu=gfx950', '-c', td + '/a.s', '-o', td + '/a.o'], check=True)
        dis = subprocess.run(['llvm-objdump', '-d', '--mcpu=gfx950', td + '/a.o'], capture_output=True, text=True).stdout
    sizes = [4 * len(m.group(1).split()) for m in re.finditer(r'//\s*[0-9A-F]{12}:((?: [0-9A-F]{8})+)', dis)]
    real = [i for i in ins if i.kind not in ('label', 'dir')]
    assert len(sizes) == len(real)
    size = {id(i): n for i, n in zip(real, sizes)}
    b0 = [i.label for i in ins].index('L_body')
    e0 = [i.label for i in ins].index('L_end')
    first = sum(size.get(id(i), 0) for i in ins[:b0])
    assert first <= 4096 - 1024, first
    npad = (sum(size.get(id(i), 0) for i in ins[b0:e0]) + 40) // 4096
    assert 4 <= npad <= 8
    out_, off, k, j = ins[:b0], 0, 1, b0
    while j < len(ins):
        if k <= npad and off >= 4096 * k:
            cand, o2 = j, off
            for q in range(j, len(ins)):
                if o2 + 4 > 4096 * k + 64:
                    break
                if ins[q - 1].kind == 'mfma' and ins[q].kind not in ('ds', 'vmem'):
                    cand = q
                    break
                o2 += size.get(id(ins[q]), 0)
            for q in range(j, cand):
                out_.append(ins[q])
                off += size.get(id(ins[q]), 0)
            j = cand
            out_ += [Ins(f'L_pad{k}:'), Ins(f's_cbranch_execz ' + (f'L_pad{k+4}' if k + 4 <= npad else 'L_body'))]
            off += 4
            k += 1
        out_.append(ins[j])
        off += size.get(id(ins[j]), 0)
        j += 1
    print('first page bytes', first, 'pads', npad)
    body = '\n'.join(('' if i.kind == 'label' else '  ') + i.text for i in out_)
else:
    body, added = A.text()

hdr = open('cdna_kernels/' + NAME + '.s.ref').read().split('\n')
hdr = [l for l in hdr if l.startswith(';') and '@launch' not in l and 'Override' not in l and 'grid=ceil' not in l]
out = '\n'.join(hdr) + f'''
; @launch grid=(256,1,1) block=(256,1,1) lds=163840
; generated by gen/gen.py (hand-written generator): one persistent launch, one workgroup per CU
.amdgcn_target "amdgcn-amd-amdhsa--gfx950"
.text
.globl {NAME}_kernel
.p2align 8
.type {NAME}_kernel,@function
{NAME}_kernel:
{body}
  s_endpgm
.fill 2048, 4, 0xbf800000
  s_endpgm
.section .rodata,"a"
.p2align 6
.amdhsa_kernel {NAME}_kernel
  .amdhsa_next_free_vgpr 512
  .amdhsa_next_free_sgpr 102
  .amdhsa_accum_offset 256
  .amdhsa_group_segment_fixed_size 0
  .amdhsa_kernarg_size 88
  .amdhsa_user_sgpr_count 2
  .amdhsa_user_sgpr_kernarg_segment_ptr 1
  .amdhsa_system_sgpr_workgroup_id_x 1
  .amdhsa_float_denorm_mode_32 3
.end_amdhsa_kernel
'''
open(sys.argv[1], 'w').write(out)
open(sys.argv[1] + '.names', 'w').write(' '.join(NAMES))
print(f'instructions: {len(A.ins)}, nops added: {added}, stamps: {len(NAMES)}')
```

```python
import sys
from asmlib import Asm, Ins, cost, v, a, s

NAME = 'adaLN_cond__sliding_block__dense_activation_relu__prompt'
OPT = dict(pads=2, t1=6, o0=12, twp=25, b0e=0, h3=3, h4=8, woe=1, sm=0, sm0=12, smd=14, smn=2, q0=5, wr=11, arate=115, ca=6, of=550, qb=20, qe=4, sp=60, fa=-2, pa=8, ka=18, p2=6, p3=17, ch=6, ql0=0, kvf=14, stamps=0, fast=1, forcemax=0, fmode=0, dmode=0, ntx=0, nty=0, ntq=0, ntw=0, touch0=1, touch1=1, chunks=18, pad=0, outsc1=2)
for arg in sys.argv[2:]:
    k, val = arg.split('=')
    OPT[k] = val if k in ('probe', 'pos') else int(val)

EPOCH = 0
HELLO = 0x1000
FKV = 0x10000
FL = 0x30000
MODP = 0x40000
STATS = 0x80000
STAMPS = 0xC0000
KVB = 0x100000
OBUF = 0x500000
YBUF = 0x700000
FBUF = 0x900000
LH, WVH, WVL, WQL = 0, 65536, 98304, 131072
MODT = WQL
PRED1 = WQL + 4096
IMG0, IMG1 = 0, 65536
WOS = IMG0
PRED2 = WQL + 8192
SCR = 131072
RING = 6144
TAB = SCR + 4 * RING
T_MOD2 = TAB
T_CB = TAB + 2560
T_RST = TAB + 4608
T_Z = TAB + 5120 + 128
sC, sWS = 16, 24
rX, rWQ, rWO, rW1, rW2, rWM, rWS, rOUT = 28, 32, 36, 40, 44, 48, 52, 56
rH = 32
sW, sRB, sHQ, sJ, sRB2, sN, sXCC, sFAST, sHI = 60, 61, 62, 63, 64, 65, 66, 67, 68
(sKV, sFKV, sO, sFO, sPO, sOL, sDL, sTILE, sY, sST, sFY, sPY, sSTL, sYL, sF, sFF, sX, sFL0, sFL1, sBO, sRING, sIW) = (
    12, 13, 14, 15, 18, 19, 20, 21, 22, 23, 26, 27, 69, 70, 71, 72, 73, 74, 75, 76, 77, 0)
STAMP0, STP = 78, 100
LIMIT = 1 << 15
vL, vL16 = 1, 2
W1A, WOA = 5, 9
vG2, vWD, vRB, vOS, vVS = 11, 12, 13, 14, 15

NTX = 'nt' if OPT['ntx'] else ''
NTY = ('', 'nt', 'sc1')[OPT.get('nty', 1)]
NTQ = 'nt' if OPT['ntq'] else ''
NTW = 'nt' if OPT['ntw'] else ''
A = Asm()
if OPT.get('drop'):
    DROP = {1: lambda t: 's[32:35]' in t and 'lds' in t, 2: lambda t: 's[36:39]' in t and 'lds' in t, 3: lambda t: 's[40:43]' in t and 'lds' in t,
            4: lambda t: 's[44:47]' in t and 'lds' in t, 5: lambda t: t.startswith('buffer_load_dword ') and 's[52:55]' not in t,
            6: lambda t: 'load_dwordx4' in t and 's[32:35]' in t and 's3 ' in t, 7: lambda t: 'load_dwordx4' in t and 's[32:35]' in t and 's4 ' in t,
            8: lambda t: 'store_dwordx4' in t and 's[32:35]' in t, 9: lambda t: 'store_dwordx4' in t and 's12 ' in t,
            10: lambda t: 'load_dwordx4' in t and 's[52:55], s4 offen sc1' in t and ', v15,' not in t and ', v11,' not in t,
            11: lambda t: 'lds' in t, 12: lambda t: 's[28:31]' in t, 13: lambda t: 's[48:51]' in t and 'offset:2048' in t,
            14: lambda t: 'store_dwordx4' in t and 's4 ' not in t, 15: lambda t: 's[56:59]' in t}
    A.drop = DROP[OPT['drop']]
COLD = Asm()
COLD.uid = 100000
WARM = Asm()


def srd(r):
    return s(r, 4)


NAMES = []
SETS = {1: 'rt start setup ln_pre mod h kv q m2 own kvflag attn prep oflag o0 oproj yflag c1 e0 c2 d0 ffn2',
        3: 'rt start yflag a0 a16 c1 b16 e0 fw fflag e16 e24 c2 d0 d7 d14 d21 d28 d35 d42 d49 ffn2',
        4: 'rt start mod h0 h1 h2 h3 hw h attn prep oflag o0 o4 o8 o12 om oproj cb yflag',
        6: 'rt start q m2 own kvflag u1 u2 u3 u4 u5 u6 u7 u9 u11 u13 u15 u17 uend attn',
        5: 'rt start attn pchk pbar kw kf kp prep oflag cb o0 om oproj yw yf yp yc yflag yiss a0',
        9: 'rt start',
        2: 'rt start karg iss setup0 nonce pland setup x0 x1 x2 x3 ln_pre wkl wk gchk mod h kv kvst q'}
KEEP = set(SETS.get(OPT['stamps'], '').split())


def stamp(name):
    if OPT.get('probe') == name:
        A(f's_mem{"" if OPT.get("pcyc") else "real"}time s[98:99]')
    if OPT['stamps'] and name in KEEP:
        k = len(NAMES)
        assert k < 22
        if k:
            A(f's_mov_b32 {s(STAMP0+k-1)}, {s(STP)}')
        A(f's_mem{"real" if name == "rt" or OPT.get("rts") else ""}time {s(STP, 2)}')
        NAMES.append(name)
        if name == 'rt':
            A('s_waitcnt lgkmcnt(0)')


def barrier():
    A('s_barrier')


class Q:
    def __init__(self, items=()):
        self.q = list(items)
        self.tok = None
        self.dtok = None
        self.k = {}
        self.last = -10**9

    def add(self, items):
        self.q += list(items)

    def kind(self):
        it = self.q[0]
        return 'call' if callable(it) else Ins(it[0] if isinstance(it, tuple) else it).kind

    def pop(self, n=1):
        for _ in range(n):
            if not self.q:
                return
            kind = self.kind()
            it = self.q.pop(0)
            if callable(it):
                it()
                continue
            txt, key = it if isinstance(it, tuple) else (it, None)
            t = A(txt)
            if kind == 'vmem':
                self.tok = t
                self.last = A.t
            elif kind == 'ds':
                self.dtok = t
            if key is not None:
                self.k[key] = t

    def grp(self, n=1, pace=0):
        for _ in range(n):
            if not self.q or A.t - self.last < pace:
                return
            while self.q and self.kind() != 'vmem':
                self.pop()
            self.pop()
            while self.q and self.kind() == 'salu':
                self.pop()

    def fill(self, reserve=0, pace=0):
        while self.q:
            it = self.q[0]
            if callable(it):
                c = 4
            else:
                i = Ins(it[0] if isinstance(it, tuple) else it)
                if i.kind == 'vmem' and A.t - self.last < pace:
                    return
                c = cost(i, A.prev, True)
            if A.t + c + reserve > A.mfree:
                return
            self.pop()

    def flush(self):
        self.pop(len(self.q))


def poll_load(vaddr, soff, off, vt):
    return f'buffer_load_dword {v(vt)}, {v(vaddr)}, {srd(rWS)}, {soff} offen offset:{off} sc1'


def poll_check(tok, vaddr, soff, off, vt):
    again, chk, ok = A.new('pagain'), A.new('pchk'), A.new('pok')
    A.wait(vm=tok)
    A(f'v_cmp_ne_u32 vcc, {s(sN)}, {v(vt)}')
    A(f's_cbranch_vccnz {again}')
    A.label(ok)
    WARM.label(again)
    WARM('s_mov_b32 s1, 0')
    WARM.label(chk)
    WARM(poll_load(vaddr, soff, off, vt))
    WARM('s_add_u32 s1, s1, 1')
    WARM('s_waitcnt vmcnt(0)')
    WARM(f'v_cmp_ne_u32 vcc, {s(sN)}, {v(vt)}')
    WARM(f's_cmp_ge_u32 s1, {LIMIT}')
    WARM(f's_cbranch_vccz {ok}')
    WARM(f's_cbranch_scc0 {chk}')
    WARM(f's_branch {ok}')


def handoff(stores, fast=True):
    tok = None
    if not (OPT['fast'] and fast):
        for t in stores:
            tok = A(t.replace('@', 'sc1')) or tok
        return tok
    slow, back = A.new('slow'), A.new('back')
    A(f's_cmp_eq_u32 {s(sFAST)}, 0')
    A(f's_cbranch_scc1 {slow}')
    for t in stores:
        tok = A(t.replace('@', '')) or tok
    A.label(back)
    COLD.label(slow)
    for t in stores:
        COLD(t.replace('@', 'sc1'))
    COLD('s_nop 1')
    COLD(f's_branch {back}')
    return tok


def setflag(soff, fast=True, off=0):
    A(f'v_mov_b32 v3, {s(sN)}')
    A('s_mov_b64 exec, 1')
    handoff([f'buffer_store_dword v3, off, {srd(rWS)}, {soff} offset:{off} @'], fast)
    A('s_mov_b64 exec, -1')


def readback(va, soffs, vt):
    if OPT.get('rb', 7):
        for so in soffs:
            A(f'buffer_load_dword {v(vt)}, {v(va)}, {srd(rWS)}, {so} offen sc1')


def unpack2(dst, src):
    return [f'v_lshlrev_b32 {v(dst)}, 16, {v(src)}', f'v_and_b32 {v(dst+1)}, {s(sHI)}, {v(src)}']


def emit(l):
    t = None
    for x in l:
        t = A(x) or t
    return t


def mod_addr(lpr, va, vc, so):
    lg = lpr.bit_length() - 1
    l = [f's_bfe_u32 s3, s2, 0x20005', f's_lshl_b32 s3, s3, 7', f's_lshl_b32 {s(so)}, {s(sW)}, 5', f's_add_u32 s3, s3, {s(so)}',
         f'v_lshrrev_b32 {v(va)}, {lg}, {v(vL)}', f'v_add_u32 {v(va)}, s3, {v(va)}', f'v_lshlrev_b32 {v(vc)}, 1, {v(va)}',
         f'v_mul_u32_u24 {v(va)}, {6144 // 16}, {v(va)}', f'v_and_or_b32 {v(va)}, {v(vL)}, {lpr-1}, {v(va)}', f'v_lshlrev_b32 {v(va)}, 4, {v(va)}',
         f's_lshl_b32 {s(so)}, {s(sRB2)}, 2', f's_and_b32 s3, {s(sHQ)}, 3', f's_add_u32 {s(so)}, {s(so)}, s3', f's_lshl_b32 {s(so)}, {s(so)}, {4+lg}']
    return l


def mod_loads(lpr, colbyte, va, vc, so, PW, PC):
    l = []
    for i in range(lpr // 2):
        if i:
            l.append(f's_add_u32 {s(so)}, {s(so)}, {(64//lpr)*6144}')
        l.append(f'buffer_load_dwordx4 {v(PW+4*i, 4)}, {v(va)}, {srd(rWM)}, {s(so)} offen offset:{colbyte} {NTX}')
    for i in range(lpr // 2):
        l.append(f'global_load_ushort {v(PC+i)}, {v(vc)}, {s(sC, 2)} offset:{(64//lpr)*2*i}')
    return l


def mod_dest(lpr, col0, so, TG):
    lg = lpr.bit_length() - 1
    return [f's_bfe_u32 s5, s2, 0x20005', f's_mul_i32 s5, s5, 12288', f's_and_b32 s3, {s(sHQ)}, 3', f's_lshl2_add_u32 {s(so)}, {s(sRB2)}, s3',
            f's_lshl_b32 {s(so)}, {s(so)}, {5+lg}', f's_add_u32 {s(so)}, {s(so)}, s5', f's_add_u32 {s(so)}, {s(so)}, {MODP + col0*4}',
            f'v_mov_b32 {v(TG)}, {s(sN)}'] + [f'v_lshrrev_b32 {v(TG+e)}, {8*e}, {v(TG)}' for e in range(1, 4)]


def mod_finish(lpr, col0, PW, PC, ACC, UT, pred, bg=lambda: None, pre=None, tw=0):
    nl = lpr // 2
    lg = lpr.bit_length() - 1
    R = range(nl)
    for i in R:
        A(f'v_lshlrev_b32 {v(PC+i)}, 16, {v(PC+i)}')
    for i in R:
        A(f'v_mul_f32 {v(PC+2+i)}, 0xbfb8aa3b, {v(PC+i)}')
    for i in R:
        A(f'v_exp_f32 {v(PC+2+i)}, {v(PC+2+i)}')
    emit(unpack2(UT, PW))
    for i in R:
        A(f'v_add_f32 {v(PC+2+i)}, 1.0, {v(PC+2+i)}')
    for i in R:
        A(f'v_rcp_f32 {v(PC+2+i)}, {v(PC+2+i)}')
    emit(unpack2(UT + 2, PW + 1))
    for i in R:
        A(f'v_mul_f32 {v(PC+i)}, {v(PC+i)}, {v(PC+2+i)}')
    for i in R:
        A(f'v_cvt_pk_bf16_f32 {v(PC+i)}, {v(PC+i)}, {v(PC+i)}')
    for i in R:
        A(f'v_and_b32 {v(PC+i)}, {s(sHI)}, {v(PC+i)}')
    for i in R:
        for r in range(0 if i else 2, 4):
            emit(unpack2(UT + 2 * r, PW + 4 * i + r))
        for e in range(4):
            if i == 0:
                A(f'v_pk_mul_f32 {v(ACC+2*e, 2)}, {v(UT+2*e, 2)}, {v(PC, 2)} op_sel_hi:[1,0]')
            else:
                A(f'v_pk_fma_f32 {v(ACC+2*e, 2)}, {v(UT+2*e, 2)}, {v(PC, 2)}, {v(ACC+2*e, 2)} op_sel:[0,1,0] op_sel_hi:[1,1,1]')
    A(f'v_and_b32 v3, {lpr-1}, {v(vL)}')
    A(f'v_lshlrev_b32 v3, 5, v3')
    for e in range(4):
        A(f'v_permlane32_swap_b32 {v(ACC+e)}, {v(ACC+e+4)}')
    for e in range(2):
        A(f'v_pk_add_f32 {v(ACC+2*e, 2)}, {v(ACC+2*e, 2)}, {v(ACC+2*e+4, 2)}')
    A(f'v_lshrrev_b32 v4, 4, {v(vL)}')
    A(f'v_lshl_add_u32 v3, v4, 3, v3')
    for e in range(2):
        A(f'v_permlane16_swap_b32 {v(ACC+e)}, {v(ACC+e+2)}')
    A(f'v_pk_add_f32 {v(ACC, 2)}, {v(ACC, 2)}, {v(ACC+2, 2)}')
    A(f's_lshl_b32 s5, {s(sW)}, {5+lg}')
    A(f's_add_u32 s5, s5, {pred}')
    extra = [f'v_add_u32 v3, s5, v3', f'v_and_b32 v4, {2*lpr-1}, {v(vL)}', f'v_lshlrev_b32 v4, 4, v4']
    for sh in (8, 4, 2)[:4 - lg]:
        for e in range(2):
            A(f'v_add_f32_dpp {v(ACC+e)}, {v(ACC+e)}, {v(ACC+e)} row_ror:{sh} row_mask:0xf bank_mask:0xf')
        A(extra.pop(0))
    A(f'ds_write_b64 v3, {v(ACC, 2)}')
    emit(extra)
    A(f'v_add_u32 v3, {pred}, v4')
    bg()
    A.wait_all(ds=True)
    barrier()

    def tail():
        for i in range(4):
            A(f'ds_read_b128 {v(UT+4*i, 4)}, v3 offset:{32*lpr*i}')
        so, TG = pre or (4, ACC)
        if not pre:
            emit(mod_dest(lpr, col0, so, TG))
        A(f's_movk_i32 s5, 0xff')
        A.wait_all(ds=True)
        for e in range(2):
            A(f'v_pk_add_f32 {v(UT+2*e, 2)}, {v(UT+2*e, 2)}, {v(UT+4+2*e, 2)}')
            A(f'v_pk_add_f32 {v(UT+8+2*e, 2)}, {v(UT+8+2*e, 2)}, {v(UT+12+2*e, 2)}')
        for e in range(2):
            A(f'v_pk_add_f32 {v(UT+2*e, 2)}, {v(UT+2*e, 2)}, {v(UT+8+2*e, 2)}')
        for e in range(4):
            A(f'v_bfi_b32 {v(ACC+e)}, s5, {v(TG+e)}, {v(UT+e)}')
        A(f's_mov_b64 exec, {(1 << (2*lpr)) - 1}')
        A(f'buffer_store_dwordx4 {v(ACC, 4)}, v4, {srd(rWS)}, {s(so)} offen sc1')
        A('s_mov_b64 exec, -1')
        A('s_nop 1')
    cond_wave(tw, tail)


def gather_loads(sets, G):
    l = []
    for st, (col0, va) in enumerate(sets):
        for q in range(4):
            l += [f's_mov_b32 s1, {MODP + q*12288 + col0*4}',
                  f'buffer_load_dwordx4 {v(G+16*st+4*q, 4)}, {v(va)}, {srd(rWS)}, s1 offen sc1']
    return l


def gather_check(sets, G, tok, T):
    chk, again, ok = A.new('gchk'), A.new('gagain'), A.new('gok')
    for e in range(4):
        A(f's_bfe_u32 {s(4+e)}, {s(sN)}, {hex(0x80000 | (8*e))}')
    A('s_mov_b32 s8, 0')
    A.wait(vm=tok)
    A.label(chk)
    nset = len(sets)
    n = 16 * nset
    for i in range(n):
        A(f'v_xor_b32 {v(G+i)}, {s(4+i%4)}, {v(G+i)}')
    A(f'v_or3_b32 {v(T)}, {v(G)}, {v(G+1)}, {v(G+2)}')
    for i in range(3, n - 1, 2):
        A(f'v_or3_b32 {v(T)}, {v(T)}, {v(G+i)}, {v(G+i+1)}')
    A(f'v_or_b32 {v(T)}, {v(T)}, {v(G+n-1)}')
    A(f'v_lshlrev_b32 {v(T)}, 24, {v(T)}')
    A(f'v_cmp_ne_u32 vcc, 0, {v(T)}')
    A(f's_cbranch_vccnz {again}')
    A.label(ok)
    WARM.label(again)
    WARM('s_add_u32 s8, s8, 1')
    WARM(f's_cmp_ge_u32 s8, {LIMIT}')
    WARM(f's_cbranch_scc1 {ok}')
    for f in gather_loads(sets, G):
        WARM(f)
    WARM('s_waitcnt vmcnt(0)')
    WARM(f's_branch {chk}')
    for st in range(nset):
        g = G + 16 * st
        for e in range(2):
            A(f'v_pk_add_f32 {v(g+2*e, 2)}, {v(g+2*e, 2)}, {v(g+4+2*e, 2)}')
            A(f'v_pk_add_f32 {v(g+8+2*e, 2)}, {v(g+8+2*e, 2)}, {v(g+12+2*e, 2)}')
        for e in range(2):
            A(f'v_pk_add_f32 {v(g+2*e, 2)}, {v(g+2*e, 2)}, {v(g+8+2*e, 2)}')
        A(f'v_cvt_pk_bf16_f32 {v(g)}, {v(g)}, {v(g+1)}')
        A(f'v_cvt_pk_bf16_f32 {v(g+1)}, {v(g+2)}, {v(g+3)}')


def add_const_round(g, sadd):
    emit(unpack2(g + 4, g) + unpack2(g + 6, g + 1))
    for e in range(4):
        A(f'v_add_f32 {v(g+4+e)}, {s(sadd)}, {v(g+4+e)}')
    A(f'v_cvt_pk_bf16_f32 {v(g)}, {v(g+4)}, {v(g+5)}')
    A(f'v_cvt_pk_bf16_f32 {v(g+1)}, {v(g+6)}, {v(g+7)}')


def cond_wave(w, fn):
    sk = A.new('cw')
    A(f's_cmp_lg_u32 {s(sW)}, {w}')
    A(f's_cbranch_scc1 {sk}')
    st = A.cond_begin()
    fn()
    A.cond_end(st)
    A.label(sk)


A('s_cmp_ge_u32 s2, 256')
A('s_cbranch_scc1 L_end')
stamp('rt')
stamp('start')
if OPT['pad']:
    A('s_memrealtime s[100:101]')
    A('s_memtime s[96:97]')
A('s_load_dwordx16 s[4:19], s[0:1], 0')
A('s_load_dwordx2 s[20:21], s[0:1], 64')
A('s_load_dwordx2 s[24:25], s[0:1], 80')
A(f'v_and_b32 {v(vL)}, 63, v0')
A(f'v_lshrrev_b32 v3, 6, v0')
A(f'v_lshlrev_b32 {v(vL16)}, 4, {v(vL)}')
A(f'v_readfirstlane_b32 {s(sW)}, v3')
A(f's_and_b32 s26, s2, 7')
A(f's_lshr_b32 s27, s2, 3')
A(f's_and_b32 {s(sHQ)}, s27, 7')
A(f's_and_b32 {s(sJ)}, s27, 15')
A(f's_lshr_b32 s27, s27, 3')
A(f's_lshl_b32 s26, s26, 2')
A(f's_add_u32 {s(sRB)}, s26, s27')
A(f's_lshr_b32 {s(sRB2)}, {s(sRB)}, 1')
A(f'v_lshlrev_b32 v253, 6, {v(vL)}')
sk = A.new('cpf')
A(f's_cmp_lg_u32 {s(sW)}, 3')
A(f's_cbranch_scc1 {sk}')
A(f's_cmp_ge_u32 s2, {OPT["chunks"]*8}')
A(f's_cbranch_scc1 {sk}')
A(f's_getpc_b64 s[70:71]')
A(f's_lshr_b32 s69, s2, 3')
A(f's_lshl_b32 s69, s69, 11')
if OPT['pads']:
    A(f's_andn2_b32 s70, s70, 0xfff')
A(f'v_add_u32 v3, s69, v253')
st = A.cond_begin()
A('s_mov_b32 exec_hi, 0')
A(f'global_load_dword v255, v3, s[70:71]')
A('s_mov_b32 exec_hi, -1')
A.cond_end(st)
A.label(sk)
A(f's_getreg_b32 {s(sXCC)}, hwreg(HW_REG_XCC_ID, 0, 4)')
A(f's_mov_b32 {s(sHI)}, 0xffff0000')
for r, n in ((rX, 2097152), (rWQ, 1572864), (rWO, 524288), (rW1, 1835008), (rW2, 1835008), (rWM, 3145728), (rWS, 0x1000000), (rOUT, 2097152)):
    A(f's_mov_b32 {s(r+2)}, {n}')
    A(f's_mov_b32 {s(r+3)}, 0x20000')
A(f'v_lshrrev_b32 v5, 4, {v(vL)}')
A(f'v_and_b32 v6, 15, {v(vL)}')
A(f's_lshl_b32 s26, {s(sRB)}, 6')
A(f's_lshl_b32 s27, {s(sW)}, 4')
A(f's_add_u32 s26, s26, s27')
A(f'v_add_u32 v3, s26, v5')
A(f'v_lshlrev_b32 v3, 10, v3')
A(f'v_lshl_add_u32 v254, v6, 4, v3')
A(f'v_min_u32 v24, {31*64}, v253')
A(f'v_min_u32 v25, {23*64}, v253')
A(f's_lshl3_add_u32 s26, {s(sRB)}, {s(sHQ)}')
A(f's_lshl2_add_u32 s26, s26, {s(sW)}')
A(f's_lshl_b32 {s(sBO)}, s26, 11')
A(f's_lshl2_add_u32 s27, s2, {s(sW)}')
A(f's_mul_i32 {s(sFAST)}, s27, 1536')
XF, XP, MOD, GA, PW, PC, PACC = 16, 144, 144, 208, 224, 20, 236
emit(mod_addr(2, 3, 4, 69))
A('s_waitcnt lgkmcnt(0)')
stamp('karg')
if OPT.get('wsoff'):
    A(f's_add_u32 s24, s24, {OPT["wsoff"] << 20}')
    A('s_addc_u32 s25, s25, 0')
A(f's_mov_b64 {s(rWM, 2)}, s[18:19]')
A(f's_mov_b64 {s(rX, 2)}, s[4:5]')
A(f's_mov_b64 {s(rWQ, 2)}, s[6:7]')
tok_p1 = emit(mod_loads(2, 0, 3, 4, 69, PW, PC))
vHW, vWR = 248, 252


def walk(k):
    if OPT['pads'] != k:
        return
    A('s_mov_b64 exec, 0')
    for w in range(3):
        A(f's_cmp_eq_u32 {s(sW)}, {w}')
        A(f's_cbranch_scc1 L_pad{w+1}')
    A('s_branch L_pad4')
    A.label('L_warm_here')
    A('.p2align 12')
    A.label('L_body')
    A('s_mov_b64 exec, -1')


def xloads(aa):
    A(f's_movk_i32 s4, {aa << 12}')
    for c in range(4):
        t = A(f'buffer_load_dwordx4 {v(XP+(aa*4+c)*4, 4)}, v254, {srd(rX)}, s4 offen offset:{c*256} {NTY}')
    return t


tok_x = []
SO = {0: ('xab', '', ''), 1: ('x', 'ab', ''), 2: ('x', 'a', 'b'), 3: ('', 'xab', ''), 4: ('x', 'ba', ''), 5: ('xb', 'a', ''), 6: ('', 'xb', 'a'), 7: ('x', 'b', 'a')}[OPT.get('so', 4)]


def first_loads(which):
    for c in which:
        if c == 'x':
            A(f'buffer_load_dword v255, v24, {srd(rX)}, s78 offen {NTX}'.replace('s78', s(sBO)))
        elif c == 'b':
            A(f'buffer_load_dword v255, v25, {srd(rWQ)}, {s(sFAST)} offen')
        else:
            tok_x.append(xloads(0))


first_loads(SO[0])
stamp('iss')
A(f's_load_dword {s(sN)}, {s(sWS, 2)}, {EPOCH}')
for r, p in ((rWO, 8), (rW1, 12), (rW2, 14), (rWS, 24), (rOUT, 20)):
    A(f's_mov_b64 {s(r, 2)}, {s(p, 2)}')
if OPT.get('idle3', 1):
    A(f's_lshr_b32 s3, {s(sJ)}, 3')
    A(f's_cmp_gt_u32 {s(sHQ)}, 3')
    A(f's_subb_u32 {s(sJ)}, {s(sJ)}, s3')
    A(f's_add_u32 s3, s3, 14')
    A(f's_cmp_eq_u32 {s(sHQ)}, 3')
    A(f's_cselect_b32 {s(sJ)}, s3, {s(sJ)}')
A(f's_lshl2_add_u32 s3, {s(sHQ)}, {s(sW)}')
A(f's_lshl_b32 s4, s3, 17')
A(f's_lshl_b32 s5, {s(sRB)}, 12')
A(f's_add_u32 s4, s4, s5')
A(f's_add_u32 {s(sKV)}, s4, {KVB}')
A(f's_lshl_b32 s4, s3, 7')
A(f's_add_u32 s4, s4, s5')
A(f's_add_u32 {s(sFKV)}, s4, {FKV}')
A(f's_lshl_b32 s8, {s(sRB)}, 16')
A(f's_lshl_b32 s5, s3, 9')
A(f's_add_u32 s4, s8, s5')
A(f's_add_u32 {s(sO)}, s4, {OBUF}')
A(f's_lshl_b32 s4, {s(sW)}, 14')
A(f's_add_u32 s4, s4, s8')
A(f's_add_u32 {s(sOL)}, s4, {OBUF}')
A(f's_lshl_b32 s6, {s(sRB)}, 10')
A(f's_add_u32 {s(sPO)}, s6, {FL}')
A(f's_lshl2_add_u32 {s(sFO)}, s3, {s(sPO)}')
A(f's_lshr_b32 s11, {s(sW)}, 1')
A(f's_lshl1_add_u32 s7, {s(sRB)}, s11')
A(f's_lshl_b32 s8, s7, 15')
A(f's_and_b32 s10, {s(sW)}, 1')
A(f's_lshl1_add_u32 s9, {s(sHQ)}, s10')
A(f's_lshl_b32 s4, {s(sHQ)}, 7')
A(f's_add_u32 s4, s4, {s(sOL)}')
A(f's_sub_u32 {s(sTILE)}, s4, {OBUF}')
A(f's_lshl4_add_u32 s4, {s(sHQ)}, s10')
A(f's_lshl_b32 s4, s4, 8')
A(f's_add_u32 s4, s4, s8')
A(f's_add_u32 {s(sY)}, s4, {YBUF}')
A(f's_lshl4_add_u32 s4, s7, s9')
A(f's_lshl_b32 s4, s4, 7')
A(f's_add_u32 {s(sST)}, s4, {STATS}')
A(f's_lshl4_add_u32 s4, s11, s9')
A(f's_lshl2_add_u32 s4, s4, {s(sPO)}')
A(f's_add_u32 {s(sFY)}, s4, 128')
A(f's_mul_i32 s4, s11, {56*512}')
A(f's_mul_i32 s5, s10, {26*512}')
A(f's_add_u32 s4, s4, s5')
A(f's_lshl_b32 {s(sFL1)}, s4, 5')
A(f's_mul_i32 s5, {s(sRB)}, {4*57344}')
A(f's_add_u32 s4, s4, s5')
A(f's_add_u32 {s(sFL0)}, s4, {FBUF}')
A(f's_lshl_b32 s4, s10, 12')
A(f's_add_u32 {s(sDL)}, s4, 2048')
first_loads(SO[1])
A(f's_lshl2_add_u32 s7, {s(sRB2)}, {s(sW)}')
A(f's_lshr_b32 s6, s7, 1')
A(f's_lshl_b32 s6, s6, 10')
A(f's_lshl_b32 s4, s10, 6')
A(f's_add_u32 s4, s4, s6')
A(f's_add_u32 {s(sPY)}, s4, {FL+128}')
A(f's_lshl_b32 s4, s7, 11')
A(f's_add_u32 {s(sSTL)}, s4, {STATS}')
A(f's_lshl_b32 s4, s7, 15')
A(f's_add_u32 {s(sYL)}, s4, {YBUF}')
A(f's_mul_i32 s4, s7, {112*1024}')
A(f's_lshl_b32 s5, {s(sJ)}, 12')
A(f's_add_u32 s4, s4, s5')
A(f's_add_u32 {s(sF)}, s4, {FBUF}')
A(f's_lshl1_add_u32 s5, {s(sJ)}, s10')
A(f's_lshl2_add_u32 s4, s5, s6')
A(f's_add_u32 {s(sFF)}, s4, {FL+256}')
A(f's_mul_i32 s4, {s(sW)}, {RING}')
A(f's_add_u32 {s(sRING)}, s4, {SCR}')
A(f's_lshr_b32 s4, s2, 3')
A(f's_lshl2_add_u32 {s(sIW)}, s4, {s(sW)}')
vQ4 = 244
A(f'v_bfe_u32 v16, {v(vL)}, 2, 3')
A(f'v_mul_u32_u24 v4, 3072, v16')
A(f'v_lshrrev_b32 v17, 5, {v(vL)}')
A(f'v_lshl_add_u32 v4, v17, 6, v4')
A(f'v_and_b32 v3, 3, {v(vL)}')
A(f'v_lshl_add_u32 v4, v3, 4, v4')
A(f's_lshl_b32 s4, {s(sHQ)}, 7')
A(f'v_add_u32 {v(vQ4)}, s4, v4')
A(f'v_xor_b32 v4, 32, {v(vQ4)}')
A(f'v_add_u32 {v(vQ4+1)}, {24576-1024}, v4')
A(f'v_add_u32 {v(vQ4+2)}, {2*(24576-1024)}, {v(vQ4)}')
A(f'v_add_u32 {v(vQ4+3)}, {3*(24576-1024)}, v4')
A(f'v_lshlrev_b32 v4, 10, v16')
A(f'v_lshl_add_u32 v4, v17, 6, v4')
A(f'v_lshl_add_u32 v4, v3, 4, v4')
A(f'v_add_u32 {v(vWD)}, s4, v4')
A(f'v_bfe_u32 v4, {v(vL)}, 4, 1')
A(f'v_lshlrev_b32 v4, 5, v4')
A(f'v_xor_b32 {v(WOA)}, v4, {v(vWD)}')
A(f'v_add_u32 {v(WOA+1)}, 7168, {v(WOA)}')
A(f'v_add_u32 {v(vWD)}, 15360, {v(WOA)}')
A(f'v_mul_u32_u24 v4, 3584, v16')
A(f'v_lshl_add_u32 v4, v17, 6, v4')
A(f'v_lshl_add_u32 v4, v3, 4, v4')
A(f's_lshl_b32 s4, {s(sJ)}, 8')
A(f'v_add_u32 {v(W1A)}, s4, v4')
for i in range(1, 4):
    A(f'v_add_u32 {v(W1A+i)}, {i*(28672-1024)}, {v(W1A)}')
first_loads(SO[2])
A(f'v_lshrrev_b32 v4, 4, {v(vL)}')
A(f'v_lshlrev_b32 v3, 10, v4')
A(f'v_xor_b32 v4, {s(sW)}, v4')
A(f'v_and_b32 v4, 1, v4')
A(f'v_lshl_add_u32 v3, v4, 5, v3')
A(f'v_bfe_u32 v4, {v(vL)}, 2, 2')
A(f'v_lshl_add_u32 v3, v4, 6, v3')
A(f'v_and_b32 v4, 3, {v(vL)}')
A(f'v_lshl_add_u32 v3, v4, 3, v3')
A(f's_lshr_b32 s3, {s(sW)}, 1')
A(f's_lshl_b32 s3, s3, 9')
A(f'v_add_u32 {v(vWR)}, s3, v3')
A(f'v_bfe_u32 v4, {v(vL)}, 2, 2')
A(f'v_lshlrev_b32 v3, 6, v4')
A(f'v_bfe_u32 v4, {v(vL)}, 4, 1')
A(f'v_lshl_add_u32 v3, v4, 5, v3')
A(f'v_and_b32 v4, 3, {v(vL)}')
A(f'v_lshl_add_u32 v3, v4, 3, v3')
A(f'v_lshrrev_b32 v4, 5, {v(vL)}')
A(f'v_lshl_add_u32 {v(vRB)}, v4, 8, v3')
walk(3)
A(f'v_and_b32 v16, 0xe0, v0')
A(f'v_and_b32 v17, 1, v0')
A(f'v_lshl_add_u32 v16, v17, 4, v16')
A(f'v_bfe_u32 v17, v0, 1, 4')
A(f'v_add_u32 v16, v16, v17')
A(f'v_lshlrev_b32 v16, 4, v16')
A(f'v_add_u32 v232, {MODT}, v16')
A(f'v_and_b32 v16, 15, {v(vL)}')
A(f'v_lshlrev_b32 v16, 4, v16')
A(f'v_add_u32 v233, {MODT}, v16')
A(f'v_and_b32 v3, 15, {v(vL)}')
A(f'v_lshl_add_u32 v3, v4, 4, v3')
A(f'v_lshlrev_b32 {v(vVS)}, 4, v3')
A(f'v_bfe_u32 v16, {v(vL)}, 4, 1')
A(f'v_lshl_add_u32 {v(vOS)}, v16, 14, {v(vVS)}')
A(f's_mul_i32 s5, s11, 6144')
A(f's_lshl_b32 s4, s9, 7')
A(f's_add_u32 s4, s4, s5')
A(f'v_and_b32 v17, 7, {v(vL)}')
A(f'v_lshl_add_u32 {v(vG2)}, v17, 4, s4')
A(f'v_lshrrev_b32 v16, 4, {v(vL)}')
A(f'v_and_b32 v4, 15, {v(vL)}')
A(f's_lshl_b32 s5, {s(sW)}, 10')
A(f'v_and_b32 v17, 3, v4')
A(f'v_lshl_add_u32 v3, v17, 8, s5')
A(f'v_lshrrev_b32 v17, 2, v4')
A(f'v_lshl_add_u32 v3, v17, 12, v3')
A(f'v_and_b32 v4, 7, v4')
A(f'v_xor_b32 v4, v4, v16')
for aa in range(4):
    A(f'v_xor_b32 v16, {4*aa}, v4')
    A(f'v_lshl_add_u32 {v(vHW+aa)}, v16, 4, v3')
emit(mod_addr(4, 234, 235, 1))
A(f'v_add_u32 v234, s1, v234')


def mark(l, key):
    l[-1] = (l[-1], key)
    return l


def touch(rs, chunk, va, vt=255):
    return [f's_lshl2_add_u32 s1, s2, {s(sW)}', f's_mul_i32 s1, s1, {chunk}', f'buffer_load_dword {v(vt)}, {v(va)}, {srd(rs)}, s1 offen']


POS = OPT.get('pos', '')


def pieces(place, va=230, vt=255):
    l = []
    for c, (rs, chunk, off) in zip(POS, ((rWO, 512, 0), (rW1, 1792, 0), (rW1, 1792, 896), (rW2, 1792, 0), (rW2, 1792, 896))):
        if c == place:
            l += [f's_lshl2_add_u32 s1, s2, {s(sW)}', f's_mul_i32 s1, s1, {chunk}', f'buffer_load_dword {v(vt)}, {v(va)}, {srd(rs)}, s1 offen offset:{off}']
    return l


def touch3(rs, n, va, vt=255):
    if not OPT.get('t3', 1) & {rWQ: 1, rW1: 2, rWO: 4, rW2: 8}[rs]:
        return []
    return [f'v_min_u32 {v(va)}, {2*n-1}, {v(vL)}', f'v_lshlrev_b32 {v(vt)}, 9, {v(va)}', f'v_and_b32 {v(va)}, 1, {v(va)}',
            f'v_mul_u32_u24 {v(va)}, 448, {v(va)}', f'v_sub_u32 {v(va)}, {v(vt)}, {v(va)}', f's_mul_i32 s1, {s(sIW)}, {n*1024}',
            f'buffer_load_dword {v(vt)}, {v(va)}, {srd(rs)}, s1 offen offset:384']


def hello():
    A(f's_andn2_b32 s3, {s(sN)}, 15')
    A(f's_or_b32 s3, s3, {s(sXCC)}')
    A(f'v_mov_b32 v16, s3')
    A(f's_lshl_b32 s3, {s(sRB2)}, 7')
    A(f's_lshl2_add_u32 s3, {s(sJ)}, s3')
    A(f's_add_u32 s3, s3, {HELLO}')
    A('s_mov_b64 exec, 1')
    A(f'buffer_store_dword v16, off, {srd(rWS)}, s3 sc1')
    A('s_mov_b64 exec, -1')


def wq_items(colbyte, region, ks0, nks):
    l = []
    for g in range(nks // 4):
        l += [f's_add_u32 m0, {s(sX)}, {region + g*16384}', f's_add_u32 {s(sBO)}, s11, {colbyte + (ks0 + 4*g)*98304}']
        l += [f'buffer_load_dwordx4 {v(vQ4+n)}, {srd(rWQ)}, {s(sBO)} offen offset:{1024*n} {NTQ} lds' for n in range(4)]
    return l


A(f's_lshl_b32 {s(sX)}, {s(sW)}, 12')
A(f's_mul_i32 s11, {s(sW)}, 98304')
emit([f'v_lshrrev_b32 v16, 3, {v(vL)}', f'v_and_b32 v17, 0x70, {v(vL16)}', 'v_lshl_add_u32 v231, v16, 10, v17'])
if POS:
    A(f'v_min_u32 v230, {13*64}, v253')
    emit(pieces('S'))
t3 = touch3(rWQ, 12, 229, 19)
emit(t3[:-2])
stamp('setup0')
walk(2)
if OPT.get('x1e', 1):
    tok_x.append(xloads(1))
A('s_waitcnt lgkmcnt(0)')
stamp('nonce')
A(f's_add_u32 {s(sN)}, {s(sN)}, 0x9e3779b1')
emit(mod_dest(2, 0, 8, 28))
walk(1)
A.wait(vm=tok_p1)
stamp('pland')


D = Q()
for aa in (2, 3):
    D.add([f's_movk_i32 {s(sBO)}, {aa << 12}'] +
          mark([f'buffer_load_dwordx4 {v(XP+(aa*4+c)*4, 4)}, v254, {srd(rX)}, {s(sBO)} offen offset:{c*256} {NTY}' for c in range(4)], aa))


def x1():
    if OPT.get('x1e', 1):
        D.grp(OPT.get('x2n', 4))
    else:
        tok_x.append(xloads(1))


mod_finish(2, 0, PW, PC, PACC, GA, PRED1, bg=x1, pre=(8, 28))
stamp('setup')
D.add([f'buffer_load_dwordx4 v[208:211], v231, {srd(rX)}, {s(sTILE)} offen {NTY}', f's_add_u32 s1, {s(sTILE)}, 8192',
       f'buffer_load_dwordx4 v[212:215], v231, {srd(rX)}, s1 offen {NTY}'])
T3Q = [x.replace('v19', 'v255') for x in t3[-2:]]
if OPT.get('t3p', 0) == 0:
    D.add(T3Q)
else:
    D.q = T3Q + D.q
M2 = mark(['s_mov_b32 s1, 0'] + mod_loads(4, 2048, 234, 235, 1, 236, 230), 'p2')
if OPT.get('m2', 1) == 0:
    D.add(M2)
D.add(pieces('X'))
SPL = OPT.get('spl', 0)
G1 = 144
if SPL:
    wk = wq_items(1024, LH, 0, 16)
    GP = OPT.get('gp', 2)
    mark(wk, 'wk')
    wk[11] = (wk[11], 'wka')
    D.add(wk[:6 * GP])
    WK2 = wk[6 * GP:]
else:
    D.add(mark(wq_items(1024, LH, 0, 16), 'wk'))
D.grp(OPT.get('x0', 4))

ST, MN, G1 = 216, 224, 144
LNP = OPT.get('lnpace', 56)


def V(t):
    A(t)
    D.grp(1, LNP)


SL1 = OPT.get('sl1', 0)


def sm_w1(k):
    A(f's_lshl2_add_u32 s8, s2, {s(sW)}')
    A(f's_mul_i32 s8, s8, 1792')
    for i in range(7):
        A(f's_load_dwordx2 s[98:99], {s(rW1, 2)}, s8 offset:{(7*(1-k)+i)*128+60}')


def first_look():
    D.flush()
    A(f'v_lshlrev_b32 v4, 4, v0')
    D.k['g1'] = emit(gather_loads([(0, 4)], G1))
    D.add((WK2 if SPL else []) + pieces('G') + mark(wq_items(2048, WVL, 0, 8), 'wvl') + pieces('V') + mark(wq_items(2048, WVH, 8, 8), 'wvh'))


def row_allreduce(grp):
    for sh in (8, 4, 2, 1):
        for aa in grp:
            t0 = ST + 4 * (aa % 2)
            V(f'v_add_f32_dpp {v(t0)}, {v(t0)}, {v(t0)} row_ror:{sh} row_mask:0xf bank_mask:0xf')


A('s_mov_b32 s9, 0x3b000000')
A('s_mov_b32 s10, 0x3f803f80')
A('s_mov_b32 s7, 0x3f80')
A('s_mov_b32 s6, 0x3f800000')
A('v_mov_b32 v228, 0x3727c5ac')
for grp in ((0, 1), (2, 3)):
    if grp[0] == 0 and SL1 & 1:
        sm_w1(0)
    for aa in grp:
        A.wait(vm=tok_x[aa] if aa < 2 else D.k[aa])
        stamp(f'x{aa}')
        t0 = ST + 4 * (aa % 2)
        for i in range(16):
            V(f'v_dot2_f32_bf16 {v(t0)}, {v(XP+aa*16+i)}, s10, {v(t0) if i else 0}')
    row_allreduce(grp)
    for aa in grp:
        V(f'v_mul_f32 {v(MN+aa)}, 0xbb000000, {v(ST+4*(aa%2))}')
    for aa in grp:
        if SPL and aa == OPT.get('ga', 2):
            first_look()
        b = XF + aa * 32
        t0, t1 = ST + 4 * (aa % 2), ST + 4 * (aa % 2) + 2
        for i in range(16):
            V(f'v_dot2_f32_bf16 {v(b+2*i)}, {v(XP+aa*16+i)}, s7, {v(MN+aa)}')
            V(f'v_dot2_f32_bf16 {v(b+2*i+1)}, {v(XP+aa*16+i)}, s6, {v(MN+aa)}')
        for i in range(16):
            t = t0 if i % 2 == 0 else t1
            if i < 2:
                V(f'v_pk_mul_f32 {v(t, 2)}, {v(b+2*i, 2)}, {v(b+2*i, 2)}')
            else:
                V(f'v_pk_fma_f32 {v(t, 2)}, {v(b+2*i, 2)}, {v(b+2*i, 2)}, {v(t, 2)}')
        V(f'v_pk_add_f32 {v(t0, 2)}, {v(t0, 2)}, {v(t1, 2)}')
        V(f'v_add_f32 {v(t0)}, {v(t0)}, {v(t0+1)}')
    if grp == (2, 3) and 'g1' not in D.k:
        first_look()
    row_allreduce(grp)
    for aa in grp:
        V(f'v_fma_f32 {v(MN+aa)}, {v(ST+4*(aa%2))}, s9, v228')
    for aa in grp:
        V(f'v_rsq_f32 {v(MN+aa)}, {v(MN+aa)}')
    for aa in grp:
        b = XF + aa * 32
        for i in range(16):
            V(f'v_pk_mul_f32 {v(b+2*i, 2)}, {v(b+2*i, 2)}, {v(MN+(aa//2)*2, 2)} op_sel:[0,{aa%2}] op_sel_hi:[1,{aa%2}]')
D.grp(OPT.get('v0', 6))
stamp('ln_pre')
WKR = [f'ds_read_b64_tr_b16 {a(4*ks+2*rd, 2)}, {v(vWR)} offset:{ks*4096+rd*256}' for ks in range(16) for rd in range(2)]
MO1 = OPT.get('mo', 0)
if not MO1:
    A.wait(vm=D.k['wka' if SPL else 'wk'])
    barrier()
    stamp('wkl')
    emit(WKR[:16] if SPL else WKR)
    D.grp(2)
    stamp('wk')
gather_check([(0, 4)], G1, D.k['g1'], 3)
stamp('gchk')
A(f's_cmp_ge_u32 {s(sW)}, 2')
A(f's_cselect_b32 s3, 1.0, 0')
add_const_round(G1, 3)
emit(unpack2(G1 + 4, G1) + unpack2(G1 + 6, G1 + 1))
A(f'ds_write_b128 v232, {v(G1+4, 4)}')
D.grp(2)
HB = OPT.get('hb', 0)
A.wait(ds=A.ds, vm=D.k['wk'] if SPL and HB == 0 else None)
barrier()
stamp('mod')
tm = []


def mod_reads(c):
    for arr in range(2):
        for hlf in range(2):
            t = A(f'ds_read_b128 {v(MOD+arr*32+c*8+hlf*4, 4)}, v233 offset:{arr*2048+c*512+hlf*256}')
    tm.append(t)


mod_reads(0)
if MO1:
    emit(WKR)
    twk = A.ds
    D.grp(2)
mod_reads(1)
vH0, vH1, vB1, vB2 = 224, 225, 226, 227
A(f'v_lshrrev_b32 v254, 4, {v(vL)}')
A(f'v_and_b32 v3, 15, {v(vL)}')
A(f'v_xor_b32 v3, v3, v254')
A(f'v_lshlrev_b32 v3, 4, v3')
A(f'v_lshl_add_u32 {v(vH0)}, v254, 8, v3')
A(f'v_xor_b32 {v(vH1)}, 64, {v(vH0)}')
A(f'v_add_u32 {v(vB1)}, {WVH}, {v(vWR)}')
A(f'v_add_u32 {v(vB2)}, {WQL}, {v(vWR)}')
A(f'v_min_u32 v228, {(13 if SL1 else 27)*64}, v253')
A(f'v_min_u32 v229, {7*64}, v253')
A(f'v_lshrrev_b32 v3, 4, v0')
A(f'v_min_u32 v3, 9, v3')
A(f'v_lshlrev_b32 v3, 6, v3')
D.add((pieces('H') if POS else touch(rWO, 512, 229) + touch(rW1, 1792, 228)) + [f'buffer_load_dword v255, v3, {srd(rWS)}, {s(sPO)} offen sc1'])
if OPT.get('m2', 1) == 1:
    D.add(M2)
DM = OPT.get('dm', 0)


def dm_touch(va, vt):
    l = [f's_lshl3_add_u32 s1, {s(sRB)}, {s(sHQ)}', f's_lshl2_add_u32 s1, s1, {s(sW)}', 's_lshl_b32 s1, s1, 11', f's_add_u32 s1, s1, {OBUF}']
    if DM & 1:
        l += [f'buffer_load_dword {v(vt)}, {v(va)}, {srd(rWS)}, s1 offen sc1']
    if DM & 2:
        l += [f's_add_u32 s1, s1, {YBUF-OBUF}', f'buffer_load_dword {v(vt)}, {v(va)}, {srd(rWS)}, s1 offen sc1', f'buffer_load_dwordx2 {v(vt-vt%2, 2)}, off, {srd(rWS)}, {s(sST)} offset:60 sc1']
    return l


if DM & 3 and OPT.get('dmp', 0) == 0:
    A(f'v_min_u32 v4, {31*64}, v253')
    D.add(dm_touch(4, 255))
TWP = OPT.get('twp', -1) if OPT.get('sm') != 3 and not POS else 99
if TWP == -1:
    D.add(touch(rW2, 1792, 228))
for c in range(4):
    A.wait(ds=tm[c])
    stamp(f'h{c}')
    for aa in range(4):
        b = XF + aa * 32 + c * 8
        for i in range(4):
            A(f'v_pk_fma_f32 {v(b+2*i, 2)}, {v(b+2*i, 2)}, {v(MOD+32+c*8+2*i, 2)}, {v(MOD+c*8+2*i, 2)}')
        for i in range(4):
            A(f'v_cvt_pk_bf16_f32 {v(b+i)}, {v(b+2*i)}, {v(b+2*i+1)}')
        if aa == 0 and c < 2:
            mod_reads(c + 2)
        if SPL and 4 * c + aa == HB:
            if HB:
                A.wait(vm=D.k['wk'])
                barrier()
            twk = emit(WKR[16:])
        if SPL and (c, aa) == (2, 0):
            A.wait(ds=twk)
            barrier()
        if MO1 and (c, aa) == (0, 0):
            A.wait(ds=twk)
            barrier()
        A(f'ds_write_b128 {v(vHW+aa)}, {v(b, 4)} offset:{c*16384}')
        D.grp(1, OPT.get('hp', 50))
D.flush()
stamp('hw')
A.wait(vm=D.k['wvl'], ds=A.ds)
barrier()
stamp('h')

AK, AV, AQ, WB = 144, 160, 176, 64
QF, KO, VO, KH, VH, SB, PB, MD, MO, OA = 16, 24, 32, 48, 80, 144, 176, 192, 208, 224
PW2, PC2 = 48, 56


def hreg(u, ks):
    return v(80 + ks * 16 + u * 4, 4) if ks < 4 else a(ks * 16 + u * 4, 4)


def mm16(d, x, y, first):
    A(f'v_mfma_f32_16x16x32_bf16 {v(d, 4)}, {x}, {y}, {"0" if first else v(d, 4)}')


CH = OPT.get('ch', 4)
VB = [WB, WB + 4, WB + 8, WB + 12] + ([AQ, AQ + 4] if CH & 1 else [])


def kv_reads(ks):
    l = [f'ds_read_b128 {hreg(u, ks)}, {v(vH0 + ks % 2)} offset:{ks*4096+u*1024}' for u in range(4)]
    wb = VB[ks % len(VB)]
    off = WVL - WVH + ks * 4096 if ks < 8 else (ks - 8) * 4096
    w = [f'ds_read_b64_tr_b16 {v(wb+2*rd, 2)}, {v(vB1)} offset:{off+rd*256}' for rd in range(2)]
    return [l[0], w[0], w[1], l[1], l[2], l[3]]


def wo_items(gs):
    l = []
    for g in gs:
        l += [f's_add_u32 m0, {s(sX)}, {WOS + g*16384}', f's_lshl3_add_u32 {s(sBO)}, {s(sX)}, {g*131072}']
        for i in range(4):
            if i == 2:
                l.append(f's_add_u32 {s(sBO)}, {s(sBO)}, 14336')
            l.append(f'buffer_load_dwordx4 {v(WOA+i%2)}, {srd(rWO)}, {s(sBO)} offen offset:{1024*i} {NTW} lds')
    return l


WOE = OPT.get('woe', 0)
fl = Q([f'v_mov_b64 {v(52+2*i, 2)}, {v(208+2*i, 2)}' for i in range(4)] + [f'v_add_u32 v51, {s(sRING)}, {v(vL16)}', f'v_and_b32 v60, 31, {v(vL)}', f'v_lshrrev_b32 v61, 5, {v(vL)}', 'v_lshlrev_b32 v61, 2, v61', 'v_sub_u32 v60, v60, v61',
        'v_mov_b32 v61, 0xf149f2ca', 'v_mov_b32 v62, 0'])
ONE = 'v232' if OPT.get('one', 1) else 's10'
fl.add([f'v_and_b32 v233, 11, {v(vL)}', 'v_cmp_eq_u32 vcc, 0, v233', 'v_mov_b32 v233, s10', 'v_cndmask_b32 v232, v62, v233, vcc'])
for i in range(16):
    fl.add([f'v_cmp_le_i32 vcc, {8*(i//4) + i % 4}, v60'] + ([f'v_mov_b32 {v(VO+8*(i//4)+4+i%4)}, {ONE}'] if i < 8 else []) +
           [f'v_cndmask_b32 {v(MD+i)}, v61, v62, vcc', f'v_cndmask_b32 {v(MO+i)}, v62, v61, vcc'])
QL0, QH0 = OPT.get('ql0', 2), OPT.get('qh0', 8)
fl.q.insert(0, lambda: cond_wave(3, hello))
fl.add([f'v_bfe_u32 v48, {v(vL)}, 4, 1', f'v_lshl_add_u32 v48, v48, 9, {v(vVS)}',
        f'v_and_b32 v50, 15, {v(vL)}', f'v_lshlrev_b32 v50, 2, v50'])
if CH & 1:
    tk = {}
    for ks in range(2):
        for t in kv_reads(ks):
            tk[ks] = A(t)
    todo = Q([(t, ks) for ks in range(2, 16) for t in kv_reads(ks)])
    todo.pop(OPT.get('kvp', 6))
    for kp in range(0, 16, 2):
        A.wait(ds=tk.get(kp + 1) or todo.k[kp + 1], vm=D.k['wvh'] if kp == 4 else None)
        assert not any(k <= kp + 1 for _, k in todo.q)
        if kp in (4, 8):
            barrier()
        for ks in (kp, kp + 1):
            if ks == TWP:
                D.add(touch(rW2, 1792, 228, 20))
            if ks == QL0:
                D.add(mark(wq_items(0, WQL, 0, 8), 'wql'))
            if ks == 5 and OPT.get('wo5', 1) and WOE:
                D.add(wo_items((0,)))
            if ks == QH0:
                D.add(touch3(rWO, 4, 17, 18) + mark(wq_items(0, WVL, 8, 8), 'wqh'))
                D.add(wo_items(range(OPT.get('wo5', 1), WOE)))
        n = 0
        for u in range(4):
            for which in range(2):
                for ks in (kp, kp + 1):
                    if which == 0:
                        mm16(AK + 4 * u, a(4 * ks, 4), hreg(u, ks), ks == 0)
                    else:
                        mm16(AV + 4 * u, hreg(u, ks), v(VB[ks % 6], 4), ks == 0)
                    n += 1
                    res = 4 if n == 16 else 0
                    if todo.q and n % 4 and not ('tr_b16' in todo.q[0][0] and todo.q[0][1] >= kp + 6):
                        todo.pop()
                    elif n % 8 == 0 and D.q and D.kind() == 'vmem' and len(D.q) > 1.5 * (14 - kp):
                        D.pop()
                    D.fill(res, 60)
                    fl.fill(res)
else:
    LOOK = 2
    tk = {}
    for ks in range(LOOK):
        for t in kv_reads(ks):
            tk[ks] = A(t)
    for ks in range(16):
        nxt = kv_reads(ks + LOOK) if ks + LOOK < 16 else []
        A.wait(ds=tk[ks], vm=D.k['wvh'] if ks == 5 else None)
        if ks == 5:
            barrier()
        if ks == 8:
            barrier()
        if ks == TWP:
            D.add(touch(rW2, 1792, 228, 20))
        if ks == QL0:
            D.add(mark(wq_items(0, WQL, 0, 8), 'wql'))
        if ks == 5 and OPT.get('wo5', 1) and WOE:
            D.add(wo_items((0,)))
        if ks == QH0:
            D.add(touch3(rWO, 4, 17, 18) + mark(wq_items(0, WVL, 8, 8), 'wqh'))
            D.add(wo_items(range(OPT.get('wo5', 1), WOE)))
        wb = v(WB + 4 * (ks % 4), 4)
        n = 0
        for u in range(4):
            for which in range(2):
                if which == 0:
                    mm16(AK + 4 * u, a(4 * ks, 4), hreg(u, ks), ks == 0)
                else:
                    mm16(AV + 4 * u, hreg(u, ks), wb, ks == 0)
                if n < len(nxt):
                    tk[ks + LOOK] = A(nxt[n])
                n += 1
                res = 4 if n == 8 else 0
                if n == 8 and D.q and D.kind() == 'vmem' and len(D.q) > 1.5 * (15 - ks):
                    D.pop()
                D.fill(res, 60)
                fl.fill(res)
D.flush()
assert not fl.q
stamp('kv')


def pack2(dst, acc):
    return [f'v_cvt_pk_bf16_f32 {v(dst+2*u+r)}, {v(acc+4*u+2*r)}, {v(acc+4*u+2*r+1)}' for u in range(2) for r in range(2)]


QB = [WB, WB + 4, WB + 8, WB + 12, 144, 148]


def q_reads(ks):
    wb = QB[ks % 6] if CH & 2 else WB + 4 * (ks % 4)
    base, off = (vB2, ks * 4096) if ks < 8 else (vB1, WVL - WVH + (ks - 8) * 4096)
    return [f'ds_read_b64_tr_b16 {v(wb+2*rd, 2)}, {v(base)} offset:{off+rd*256}' for rd in range(2)]


def q_start():
    A.wait(vm=D.k['wql'])
    barrier()
    for ks in range(LOOK):
        for t in q_reads(ks):
            tk[ks] = A(t)


LOOK = 3
tk = {}
def kv_store(r, T, off, va):
    return A(f'buffer_store_dwordx4 {v(r, 4)}, {v(va)}, {srd(rWS)}, {s(sKV)} offen offset:{T*2048+off} sc1')


def swaps(kind, r):
    return [f'v_permlane{kind}_swap_b32 {v(r+i)}, {v(r+2+i)}' for i in range(2)]


emit(pack2(KO, AK) + pack2(KO + 4, AK + 8) + swaps(16, KO))
kv_store(KO, 0, 0, vL16)
emit(swaps(16, KO + 4) + pack2(VO, AV) + pack2(VO + 8, AV + 8))
kv_store(KO + 4, 1, 0, vL16)
emit(swaps(16, VO) + swaps(16, VO + 8) + swaps(32, VO))
kv_store(VO, 0, 1024, 48)
emit(swaps(32, VO + 8))
q_start()
tok_kv = kv_store(VO + 8, 1, 1024, 48)
stamp('kvst')


def w1_items(img, gs=range(4)):
    l = []
    for g in gs:
        l += [f's_add_u32 m0, {s(sX)}, {img*65536 + g*16384}', f's_mul_i32 {s(sBO)}, {s(sX)}, 28', f's_add_u32 {s(sBO)}, {s(sBO)}, {g*458752 + img*128}']
        l += [f'buffer_load_dwordx4 {v(W1A+i)}, {srd(rW1)}, {s(sBO)} offen offset:{1024*i} {NTW} lds' for i in range(4)]
    return l


def ones(d):
    def f():
        A(f's_cmp_ge_u32 {s(sRB)}, {d}')
        A(f's_cselect_b32 s6, s10, 0')
    r = VH + 16 * (4 - d)
    if OPT.get('one', 1):
        return [f, f'v_and_b32 {v(r)}, s6, v232', f'v_and_b32 {v(r+1)}, s6, v232'] + [f'v_mov_b64 {v(r+2*i, 2)}, {v(r, 2)}' for i in range(1, 8)]
    return [f, 's_mov_b32 s7, s6'] + [f'v_mov_b64 {v(r+2*i, 2)}, s[6:7]' for i in range(8)]


fl.add([f'v_permlane16_swap_b32 {v(VO+8*T+i)}, {v(VO+8*T+4+i)}' for T in range(2) for i in range(4)])
fl.add([f'v_bfe_u32 v16, {v(vL)}, 4, 1', f'v_lshrrev_b32 v19, 5, {v(vL)}', f'v_lshl_add_u32 v48, v16, 8, {v(vRB)}', 'v_mul_u32_u24 v19, 0x700, v19',
        'v_add_u32 v48, v19, v48', 'v_xor_b32 v49, 32, v48'])
fl2 = Q(ones(4) + ones(3) + ones(2) + ones(1))
W1P = OPT.get('w1pace', 60)
D.add(mark([f's_lshl_b32 s1, {s(sRB2)}, 7', f's_add_u32 s1, s1, {HELLO}', f'buffer_load_dword v63, v50, {srd(rWS)}, s1 offen sc1'], 'hello'))
D.k['woa'] = tok_kv
if TWP == 16:
    D.q = touch(rW2, 1792, 228, 61) + D.q
D.add((mark(wo_items(range(WOE, 2)), 'woa') if WOE < 2 else []) + mark(wo_items((2, 3)), 'wo') + touch3(rW1, 14, 60, 61))


def idle_w1():
    A(f's_cmp_lt_u32 {s(sJ)}, 14')
    A(f's_cselect_b32 {s(rW1+2)}, 1835008, 0')


NI = OPT.get('ni', 4)

D.add(([idle_w1] if NI else []) + w1_items(1, range(min(NI, 2))))
D.last = A.t + OPT.get('w10', 100)
def kv_flag():
    A(f'v_mov_b32 v3, {s(sN)}')
    A.wait(vm=tok_kv)
    A('s_mov_b64 exec, 0xffff')
    A(f'buffer_store_dword v3, v50, {srd(rWS)}, {s(sFKV)} offen sc1')
    A('s_mov_b64 exec, -1')


if CH & 2:
    for kp in range(0, 16, 2):
        A.wait(ds=tk[kp + 1], vm=D.k['wqh'] if kp == 4 else None)
        if kp == 4:
            barrier()
        nxt = [(t, ks) for ks in (kp + 3, kp + 4) if ks < 16 for t in q_reads(ks)]
        n = 0
        for u in range(4):
            for ks in (kp, kp + 1):
                mm16(AQ + 4 * u, v(QB[ks % 6], 4), hreg(u, ks), ks == 0)
                n += 1
                res = 4 if n == 8 else 0
                if n % 4 == 1:
                    if kp + n // 4 >= OPT.get('q0', 3) and D.q and D.kind() == 'vmem':
                        D.pop()
                elif nxt and n % 4:
                    t, k = nxt.pop(0)
                    tk[k] = A(t)
                D.fill(res, 10**6)
                fl.fill(res)
                if kp >= 4:
                    fl2.fill(res)
        if kp == OPT.get('kvf', 12):
            kv_flag()
else:
    for ks in range(16):
        nxt = q_reads(ks + LOOK) if ks + LOOK < 16 else []
        A.wait(ds=tk[ks], vm=D.k['wqh'] if ks == 5 else None)
        if ks == 5:
            barrier()
        for u in range(4):
            mm16(AQ + 4 * u, v(WB + 4 * (ks % 4), 4), hreg(u, ks), ks == 0)
            if u >= 2 and nxt:
                tk[ks + LOOK] = A(nxt[u - 2])
            res = 4 if u == 3 else 0
            if u == 0 and ks >= OPT.get('q0', 3) and D.q and D.kind() == 'vmem':
                D.pop()
            D.fill(res, 10**6)
            fl.fill(res)
            if ks >= 4:
                fl2.fill(res)
        if ks == OPT.get('kvf', 12):
            kv_flag()
fl.flush()
fl2.flush()
stamp('q')
D.grp(OPT.get('w1a', 2))
A('s_mov_b32 s4, 0x3eb8aa3b')
A('s_mov_b32 s5, 0x3eb8aa3b')
for i in range(4):
    A(f'v_pk_mul_f32 {v(AQ+2*i, 2)}, {v(AQ+2*i, 2)}, s[4:5]')
emit(pack2(QF, AQ))
for i in range(4, 8):
    A(f'v_pk_mul_f32 {v(AQ+2*i, 2)}, {v(AQ+2*i, 2)}, s[4:5]')
for r in range(2):
    A(f'v_permlane16_swap_b32 {v(QF+r)}, {v(QF+2+r)}')
emit(pack2(QF + 4, AQ + 8))
D.grp()
for r in range(2):
    A(f'v_permlane16_swap_b32 {v(QF+4+r)}, {v(QF+6+r)}')
A(f's_mov_b64 {s(rH, 2)}, {s(sWS, 2)}')
again, chk, ok = A.new('hagain'), A.new('hchk'), A.new('hok')
A(f's_andn2_b32 s3, {s(sN)}, 15')
A(f's_or_b32 s3, s3, {s(sXCC)}')
A(f's_mov_b32 {s(sFAST)}, 1')
A.wait(vm=D.k['hello'])
A(f'v_cmp_ne_u32 vcc, s3, v63')
A(f's_cbranch_vccnz {again}')
A.label(ok)
WARM.label(again)
WARM(f's_lshl_b32 s4, {s(sRB2)}, 7')
WARM(f's_add_u32 s4, s4, {HELLO}')
WARM('s_mov_b32 s5, 0')
WARM.label(chk)
WARM(f'buffer_load_dword v63, v50, {srd(rWS)}, s4 offen sc1')
WARM('s_add_u32 s5, s5, 1')
WARM('s_waitcnt vmcnt(0)')
WARM('v_cmp_ne_u32 vcc, s3, v63')
WARM('v_xor_b32 v63, s3, v63')
WARM('s_cmp_eq_u64 vcc, 0')
WARM(f's_cselect_b32 {s(sFAST)}, 1, 0')
WARM('v_cmp_lt_u32 vcc, 15, v63')
WARM(f's_cmp_ge_u32 s5, {LIMIT}')
WARM(f's_cbranch_vccz {ok}')
WARM(f's_cbranch_scc0 {chk}')
WARM(f's_branch {ok}')
D.grp()


def m2bg():
    D.grp(2)
    A.wait(vm=D.k['woa'])


mod_finish(4, 1024, 236, 230, PB, SB + 16, PRED2, bg=m2bg)
D.add(w1_items(1, range(2, max(NI, 2))))
for d in range(1, 5):
    A(f's_cmp_ge_u32 {s(sRB)}, {d}')
    A(f's_cselect_b32 s3, {d*4096}, 0')
    A(f's_sub_u32 {s(3+d)}, {s(sFKV)}, s3')
A('ds_write_b128 v51, v[52:55]')
A('ds_write_b128 v51, v[56:59] offset:1024')
stamp('m2')


def mm32(X, d, x, y, c):
    X(f'v_mfma_f32_32x32x16_bf16 {d}, {x}, {y}, {c}')


def units_of(blk):
    if blk == 0:
        return [(0, KO, VO, MD, 0), (1, KO, VO, None, 0), (1, KO + 4, VO + 8, MD, 0)]
    t0 = 8 - 2 * blk
    r = []
    for t in (t0 + 1, t0):
        for q in (0, 1):
            if t < q:
                continue
            r.append((q, KH + 4 * t, VH + 8 * t, MO if t == q else None, blk))
    return r


def s_mm(X, un, buf):
    q, k, _, m, _ = un
    mm32(X, v(SB + 16 * buf, 16), v(k, 4), v(QF + 4 * q, 4), v(m, 16) if m else '0')


def attn_units(X, uns, first, sub=None, bg=None, ready=None, head=None):
    if ready:
        ready(uns[0])
    s_mm(X, uns[0], 0)
    if head:
        head()
    pend = None
    for n, un in enumerate(uns):
        q, _, vr, _, _ = un
        if X is A:
            stamp(f'u{n}')
        sb = SB + 16 * (n % 2)
        pb = PB + 8 * (n % 2)
        o = v(OA + 16 * q, 16)
        for hf in range(2):
            b = sb + 8 * hf
            if sub:
                for i in range(8):
                    X(f'v_sub_f32 {v(b+i)}, {v(b+i)}, {v(sub+q)}')
            seq = [('e', 0), ('p', 0), ('e', 1), ('e', 2), ('m', 0), ('c', 0), ('e', 3), ('e', 4), ('c', 1), ('e', 5), ('s', 0), ('e', 6), ('c', 2), ('e', 7)]
            for kind, i in seq:
                if kind == 'e':
                    X(f'v_exp_f32 {v(b+i)}, {v(b+i)}')
                elif kind == 'c':
                    X(f'v_cvt_pk_bf16_f32 {v(pb+4*hf+i)}, {v(b+2*i)}, {v(b+2*i+1)}')
                elif kind == 'p' and pend:
                    X(pend[0])
                elif kind == 'm' and pend:
                    mm32(X, *pend[1])
                    pend = None
                    if bg:
                        bg(n)
                elif kind == 's' and hf == 0 and n + 1 < len(uns):
                    if ready:
                        ready(uns[n + 1])
                    s_mm(X, uns[n + 1], (n + 1) % 2)
                    if bg:
                        bg(n)
            pend = (f'v_cvt_pk_bf16_f32 {v(pb+4*hf+3)}, {v(b+6)}, {v(b+7)}',
                    (o, v(vr + 4 * hf, 4), v(pb + 4 * hf, 4), '0' if q in first else o))
            first.discard(q)
    X(pend[0])
    mm32(X, *pend[1])


def kv_poll(X):
    if OPT.get('vp'):
        if X is A:
            X('v_mov_b32 v61, s4')
            for d in range(1, 4):
                X(f'v_writelane_b32 v61, {s(4+d)}, {d}')
            tok_h['vp'] = X(poll_load(61, '0', 0, 60))
        return
    for d in range(4):
        X(f's_load_dword {s(8+d)}, {s(sWS, 2)}, {s(4+d)} glc')


ep, epb = A.new('ep'), A.new('epb')


def epoch_site(k):
    if OPT.get('ep', 0) == k:
        A(f's_lshl2_add_u32 s3, s2, {s(sW)}')
        A(f's_cmp_eq_u32 s3, 3')
        A(f's_cbranch_scc1 {ep}')
        A.label(epb)


epoch_site(0)
lp, dn = A.new('epl'), A.new('epd')
WARM.label(ep)
WARM(f'v_lshrrev_b32 v3, 2, {v(vL)}')
WARM(f'v_lshlrev_b32 v3, 7, v3')
WARM(f'v_and_b32 v4, 3, {v(vL)}')
WARM(f'v_lshl_add_u32 v3, v4, 4, v3')
WARM(f's_mov_b32 s1, {HELLO}')
WARM('s_mov_b32 s3, 0')
WARM.label(lp)
WARM(f'buffer_load_dwordx4 v[72:75], v3, {srd(rWS)}, s1 offen sc1')
WARM('s_add_u32 s3, s3, 1')
WARM('s_waitcnt vmcnt(0)')
for i in range(4):
    WARM(f'v_xor_b32 {v(72+i)}, {s(sN)}, {v(72+i)}')
WARM('v_or_b32 v72, v72, v73')
WARM('v_or3_b32 v72, v72, v74, v75')
WARM('v_cmp_lt_u32 vcc, 15, v72')
WARM(f's_cmp_lt_u32 s3, {LIMIT}')
WARM(f's_cbranch_vccz {dn}')
WARM(f's_cbranch_scc1 {lp}')
WARM.label(dn)
WARM(f'v_mov_b32 v3, {s(sN)}')
WARM('s_mov_b64 exec, 1')
WARM(f'buffer_store_dword v3, off, {srd(rWS)}, 0 offset:{EPOCH} sc1')
WARM('s_mov_b64 exec, -1')
WARM(f's_branch {epb}')


def kv_wait():
    stamp('own')
    if OPT.get('vp'):
        poll_check(tok_h['vp'], 61, '0', 0, 60)
        stamp('kvflag')
        A('s_mov_b32 s8, 0xffff')
        A('s_mov_b32 s9, 0xffff')
        return
    lp, again, dn = A.new('kvp'), A.new('kva'), A.new('kvd')
    A('s_mov_b32 s3, 0')
    A.label(lp)
    A('s_waitcnt lgkmcnt(0)')
    A(f's_xor_b32 s8, s8, {s(sN)}')
    for r in (9, 10, 11):
        A(f's_xor_b32 {s(r)}, {s(r)}, {s(sN)}')
        A(f's_or_b32 s8, s8, {s(r)}')
    A(f's_cbranch_scc1 {again}')
    A.label(dn)
    WARM.label(again)
    WARM('s_add_u32 s3, s3, 1')
    WARM(f's_cmp_ge_u32 s3, {LIMIT}')
    WARM(f's_cbranch_scc1 {dn}')
    kv_poll(WARM)
    WARM(f's_branch {lp}')
    stamp('kvflag')
    A('s_mov_b32 s8, 0xffff')
    A('s_mov_b32 s9, 0xffff')


def halo_loads(X, d):
    X(f's_cmp_ge_u32 {s(sRB)}, {d}')
    X(f's_cselect_b32 {s(rH+2)}, 0x1000000, 0')
    X(f's_sub_u32 s3, {s(sKV)}, {d*4096}')
    t0 = 8 - 2 * d
    for T in (1, 0):
        X(f'buffer_load_dwordx4 {v(KH+4*(t0+T), 4)}, {v(vL16)}, {srd(rH)}, s3 offen offset:{T*2048} sc1')
    X('s_mov_b64 exec, s[8:9]')
    for u in (2, 3, 0, 1):
        t = X(f'buffer_load_dwordx4 {v(VH+8*t0+4*u, 4)}, {v(vVS)}, {srd(rH)}, s3 offen offset:{(u//2)*2048+1024+(u%2)*512} sc1')
    X('s_mov_b64 exec, -1')
    return t


SETS2 = [(1536, vVS), (1024, vG2)]
G2 = VH + 32
qg2 = Q([f'v_lshlrev_b32 {v(vVS)}, 4, v0'] + [x.replace('s1', 's4') for x in gather_loads(SETS2, G2)])
wor = Q([f'ds_read_b64_tr_b16 {a(16*ks+4*tl+2*rd, 2)}, {v(48+tl%2)} offset:{WOS+ks*4096+rd*1024+(tl//2)*512}' for ks in range(16) for tl in range(4) for rd in range(2)])
sW2, sW2b = sFL1, 11
SLOT = {}


def kunit(u):
    if u < 7:
        return 8 * (u // 2), u % 2
    if u == 13:
        return 28, 0
    return 8 * ((u - 7) % 3) + 4, 2 + (u - 7) // 3


SW2 = [sW2, sW2b, 10, sKV]


def w2_dma(m, q):
    SLOT[m] = q
    k, b = kunit(m // 2)
    return [f's_add_u32 m0, {s(sRING)}, {2048*q}' if q < 3 else f's_add_u32 m0, {s(sFKV)}, {8192*(q-3)}',
            f's_add_u32 {s(sBO)}, {s(SW2[b])}, {16384*k + 8192*(m%2)}',
            f'buffer_load_dwordx4 {v(WOA)}, {srd(rW2)}, {s(sBO)} offen {NTW} lds',
            (f'buffer_load_dwordx4 {v(vWD)}, {srd(rW2)}, {s(sBO)} offen offset:1024 {NTW} lds', ('w2', m))]


def lds_sync():
    A.wait_all(ds=True)
    barrier()


bgc = [0]
SMC = list(range(OPT.get('sm0', 2), 52, OPT.get('smd', 20)))[:OPT.get('smn', 2)]
tok_h = {0: 0}
HS = [-1, OPT.get('h3', 1), OPT.get('h4', 5)]


def att_bg(n):
    bgc[0] += 1
    c = bgc[0]
    if OPT.get('sm') == 3 and c in SMC:
        k = SMC.index(c)
        if k == 0:
            A(f's_lshl2_add_u32 s5, s2, {s(sW)}')
            A(f's_mul_i32 s5, s5, 1792')
        for i in range(14 * k // len(SMC), 14 * (k + 1) // len(SMC)):
            A(f's_load_dwordx2 s[6:7], {s(rW2, 2)}, s5 offset:{i*128+60}')
    if c in HS:
        d = HS.index(c) + 2
        assert d < 4 or not wor.q
        tok_h[d] = halo_loads(A, d)
    elif wor.q:
        wor.pop(8)
    elif c > HS[2]:
        if OPT.get('arate'):
            if 't0' not in tok_h:
                tok_h['t0'], tok_h['k'] = A.t, 0
            if A.t - tok_h['t0'] >= tok_h['k'] * OPT['arate']:
                tok_h['k'] += 1
                if n >= OPT.get('g2u', 12) and qg2.q:
                    qg2.grp(2)
                else:
                    D.grp()
        elif n >= 12 and qg2.q:
            qg2.grp(OPT.get('g2n', 2))
        else:
            D.grp(1, OPT.get('apace', 50))


DFR = OPT.get('dfr', 0)
NEV = OPT.get('nev', 16)
WR = min(OPT.get('wr', 9), NEV)
wor2 = wor.q[8 * NEV:]
wor.q = wor.q[:8 * NEV]
for i in range(NEV + 1):
    if i == OPT.get('kp', 0):
        kv_poll(A)
    if i == WR:
        kv_wait()
        tok_h[1] = halo_loads(A, 1)
    if i == min(WR + OPT.get('wr2', 2), NEV):
        tok_h[2] = halo_loads(A, 2)
    if i == 8 and NEV > 8:
        A.wait(vm=D.k['wo'])
        barrier()
    wor.pop(8)
    if i < WR:
        D.grp(1, OPT.get('wrp', 100))

if OPT.get('sm') == 3:
    lds_sync()
D.add([idle_w1] + w1_items(1, range(NI, 4)) + ([] if OPT.get('sm') == 3 else [lds_sync]) + mark(w1_items(0, range(4 - DFR)), 'w1') + touch3(rW2, 14, 79, 78) +
      [f's_lshl4_add_u32 {s(sW2b)}, {s(sDL)}, {s(sW2)}', f's_lshl_b32 {s(sFKV)}, {s(sW)}, 11'])
if 'A' in POS:
    k = len(D.q) * OPT.get('pa_', 3) // 10
    D.q[k:k] = [f'v_min_u32 v3, 13, {v(vL)}', 'v_lshlrev_b32 v3, 6, v3'] + pieces('A', 3, 4)
if 20 <= TWP <= 30:
    k = len(D.q) * (TWP - 20) // 10
    D.q[k:k] = [f'v_min_u32 v3, 27, {v(vL)}', 'v_lshlrev_b32 v3, 6, v3'] + touch(rW2, 1792, 3, 3)
if DM & 3 and OPT.get('dmp', 0):
    k = len(D.q) * OPT['dmp'] // 10
    D.q[k:k] = [f'v_min_u32 v77, 31, {v(vL)}', 'v_lshlrev_b32 v77, 6, v77'] + dm_touch(77, 79)
if OPT.get('b0e', 1):
    D.add(w2_dma(0, 1) + w2_dma(1, 2))
attn_units(A, [u for d in range(5) for u in units_of(d)], {0, 1}, bg=att_bg, ready=lambda un: A.wait(vm=tok_h[un[4]]))
print('left after attention:', sum(1 for x in D.q if 'buffer' in str(x)))
D.flush()
assert not D.q and not qg2.q, (len(D.q), len(qg2.q))
if OPT.get('sm') == 3:
    A('s_waitcnt lgkmcnt(0)')
stamp('uend')
redo, fin = A.new('redo'), A.new('attfin')
A(f's_mov_b32 s3, {"0" if OPT["forcemax"] else "0x5f800000"}')
A(f's_mov_b32 s1, 0x1f800000')
A(f's_add_u32 {s(sRB2)}, {s(sO)}, 32768')
A(f'v_max_f32 {v(SB)}, {v(OA+8)}, {v(OA+24)}')
A(f'v_min_f32 {v(SB+1)}, {v(OA+8)}, {v(OA+24)}')
A(f'v_cmp_u_f32 s[6:7], {v(OA+8)}, {v(OA+24)}')
A(f'v_cmp_nle_f32 s[4:5], s1, {v(SB+1)}')
A(f'v_cmp_nge_f32 vcc, s3, {v(SB)}')
A('s_or_b64 s[4:5], s[6:7], s[4:5]')
A('s_or_b64 vcc, vcc, s[4:5]')
A(f's_cbranch_vccnz {redo}')
A.label(fin)
C = COLD
C.label(redo)
C('s_waitcnt vmcnt(0)')
C(f'v_lshrrev_b32 v4, 5, {v(vL)}')
C(f'v_and_b32 v3, 15, {v(vL)}')
C(f'v_lshl_add_u32 v3, v4, 4, v3')
C(f'v_lshlrev_b32 {v(vVS)}, 4, v3')
for i in range(32):
    C(f'v_mov_b32 {v(G2+i)}, 0x3f803f80')
for d in (1, 2):
    halo_loads(C, d)
C('s_waitcnt vmcnt(0)')
C(f'v_mov_b32 v3, 0xff7fffff')
C(f'v_mov_b32 v4, 0xff7fffff')
mx_end, p2_end = C.new('mxend'), C.new('p2end')
for d in range(5):
    if d:
        C(f's_cmp_lt_u32 {s(sRB)}, {d}')
        C(f's_cbranch_scc1 {mx_end}')
    for un in units_of(d):
        s_mm(C, un, 0)
        for i in range(0, 16, 2):
            C(f'v_max3_f32 {v(3+un[0])}, {v(3+un[0])}, {v(SB+i)}, {v(SB+i+1)}')
C.label(mx_end)
for q in range(2):
    C(f'v_mov_b32 {v(SB)}, {v(3+q)}')
    C(f'v_permlane32_swap_b32 {v(SB)}, {v(3+q)}')
    C(f'v_max_f32 {v(3+q)}, {v(SB)}, {v(3+q)}')
fs = {0, 1}
for d in range(5):
    if d:
        C(f's_cmp_lt_u32 {s(sRB)}, {d}')
        C(f's_cbranch_scc1 {p2_end}')
    attn_units(C, units_of(d), fs, sub=3)
C('s_nop 7')
C.label(p2_end)
C('s_nop 7')
C(f'v_lshlrev_b32 {v(vVS)}, 4, v0')
for f in gather_loads(SETS2, G2):
    C(f)
C('s_waitcnt vmcnt(0)')
C(f's_branch {fin}')
for q in range(2):
    A(f'v_rcp_f32 {v(OA+16*q+8)}, {v(OA+16*q+8)}')
for q in range(2):
    for i in range(4):
        A(f'v_pk_mul_f32 {v(OA+16*q+2*i, 2)}, {v(OA+16*q+2*i, 2)}, {v(OA+16*q+8, 2)} op_sel_hi:[1,0]')
    for i in range(4):
        A(f'v_cvt_pk_bf16_f32 {v(OA+16*q+i)}, {v(OA+16*q+2*i)}, {v(OA+16*q+2*i+1)}')
    tok_o = A(f'buffer_store_dwordx4 {v(OA+16*q, 4)}, {v(vOS)}, {srd(rWS)}, {s((sO, sRB2)[q])} offen {"" if DM & 1 else "sc1"}')
stamp('attn')


CG, CS, GB, X1 = 208, 224, 240, 184
vP, vPF, vT32, vYS, vCB = 252, 251, 249, 253, 248
R = Q()
T0 = A.t
DF0 = min(DFR, OPT.get('df0', 2))
if DF0:
    D.add(mark(w1_items(0, range(4 - DFR, 4 - DFR + DF0)), 'w1b'))
    D.flush()
if not OPT.get('b0e', 1):
    D.add(w2_dma(0, 1) + w2_dma(1, 2))
    D.flush()
gather_check(SETS2, G2, qg2.tok, 4)
A(f's_cmp_ge_u32 {s(sW)}, 2')
A(f's_cselect_b32 s3, 1.0, 0')
add_const_round(G2, 3)
emit(['v_and_b32 v16, 3, v0', 'v_bfe_u32 v17, v0, 2, 1', 'v_lshl_add_u32 v16, v16, 1, v17', f'v_lshl_add_u32 v4, {s(sW)}, 3, v16',
      's_movk_i32 s4, 0x78', 'v_and_or_b32 v16, v0, s4, v16',
      f's_lshr_b32 s5, {s(sW)}, 1', f's_mul_i32 s3, s5, 1088', f's_add_u32 s3, s3, {T_MOD2}', 'v_lshl_add_u32 v16, v16, 3, s3',
      f's_mov_b32 s3, {T_MOD2+2176}', 'v_lshl_add_u32 v4, v4, 3, s3'])
A(f'ds_write_b64 v16, {v(G2, 2)}')
A(f'ds_write_b64 v4, {v(G2+16, 2)}')
CZ = []
if OPT.get('cz', 1):
    emit(['v_mov_b32 v17, 0', 'v_lshlrev_b32 v18, 2, v0', f'v_add_u32 v18, {T_Z}, v18', 'ds_write_b32 v18, v17'])
    CZ = [f'v_and_b32 v16, 26, {v(vL)}', 'v_cmp_eq_u32 vcc, 0, v16', f'v_mov_b32 v16, {T_Z}', 's_nop 0', 'v_cndmask_b32 v200, v16, v200, vcc']
emit([f's_and_b32 s7, {s(sW)}, 1', 's_lshl_b32 s7, s7, 9', 's_lshl_b32 s3, s5, 16', 's_add_u32 s3, s3, s7', f'v_add_u32 v201, s3, {v(vRB)}',
      f'v_lshrrev_b32 v203, 5, {v(vL)}', f'v_and_b32 v16, 1, {v(vL)}', 'v_mul_u32_u24 v16, 1088, v16', 'v_lshl_add_u32 v16, v203, 4, v16', f'v_add_u32 v200, {T_MOD2}, v16'] + CZ + [
      f'v_and_b32 {v(vT32)}, 31, {v(vL)}', f'v_lshlrev_b32 {v(vP)}, 2, {v(vT32)}'])
if wor2:
    emit([f'v_bfe_u32 v16, {v(vL)}, 4, 1', f'v_lshl_add_u32 v160, v16, 8, {v(vRB)}', 'v_mul_u32_u24 v16, 0x700, v203', 'v_add_u32 v160, v16, v160', 'v_xor_b32 v161, 32, v160'])
stamp('pchk')
A.wait(vm=D.k['w1'], ds=A.ds)
barrier()
stamp('pbar')
tk = {}
CBB, CBA = 96, 144
OB, BA = 16, 80


def w1off(ks, rd):
    return (ks // 2) * 4096 + (ks % 2) * 1024 + rd * 2048


def cb_reads(ks):
    b = CBB + (ks % 6) * 8
    return [f'ds_read_b128 {v(b, 4)}, v200 offset:{ks*32}'] + [f'ds_read_b64_tr_b16 {v(b+4+2*rd, 2)}, v201 offset:{w1off(ks, rd)}' for rd in range(2)]


def split3(dst, x0, x1, tmp, mode):
    l = [f'v_cvt_pk_bf16_f32 {v(tmp)}, {v(x0)}, {v(x1)}'] + unpack2(tmp + 1, tmp)
    l += [f'v_sub_f32 {v(x0)}, {v(x0)}, {v(tmp+1)}', f'v_sub_f32 {v(x1)}, {v(x1)}, {v(tmp+2)}']
    h0, h1 = tmp + 1, tmp + 2
    e = [h0, x0, h0, h1, x1, h1] if mode == 'a' else [h0, h0, x0, h1, h1, x1]
    l += [f'v_cvt_pk_bf16_f32 {v(dst+i)}, {v(e[2*i])}, {v(e[2*i+1])}' for i in range(3)]
    return l + [f'v_mov_b32 {v(dst+3)}, 0']


def cb_steps(k0, k1):
    def pre():
        for ks in range(k0, min(k0 + 5, k1)):
            tk[ks] = emit(cb_reads(ks))

    def step(ks):
        A.wait(ds=tk[min(ks | 1, k1 - 1)])
        b = CBB + (ks % 6) * 8
        mm32(A, v(CBA, 16), v(b, 4), v(b + 4, 4), v(CBA, 16) if ks else '0')
        if ks + 5 < k1:
            tk[ks + 5] = emit(cb_reads(ks + 5))
    return ([pre] if k1 > k0 else []) + [lambda ks=ks: step(ks) for ks in range(k0, k1)]


def run_with(work, events):
    for w in work + [None]:
        while events and (w is None or A.t - T0 >= events[0][0]):
            events.pop(0)[1]()
        if w:
            w()


emit([f's_add_u32 {s(4+i)}, {s(sOL)}, {4096*(i+1)}' for i in range(3)])
qo = Q([(f'buffer_load_dwordx4 {v(OB+4*i, 4)}, {v(vL16)}, {srd(rWS)}, {s((sOL, 4, 5, 6)[i//4])} offen offset:{(i%4)*1024} sc1', i) for i in range(16)])
hold = {}
CA = min(OPT.get('ca', 12), 32 - 8 * DFR)


def ev_flag():
    stamp('kw')
    A.wait(vm=tok_o)
    setflag(s(sFO))
    stamp('kf')


def ev_poll():
    hold['po'] = A(poll_load(vP, s(sPO), 0, 3))
    stamp('kp')


def ev_check():
    stamp('prep')
    poll_check(hold['po'], vP, s(sPO), 0, 3)
    stamp('oflag')
    qo.grp(OPT.get('o0', 10))


def consts():
    emit([f'v_and_b32 v96, 48, {v(vL)}', f'v_add_u32 v97, {T_MOD2+2176}, v96', f's_lshl_b32 s3, {s(sHQ)}, 7', f's_add_u32 s3, s3, {T_MOD2+1088}', 'v_add_u32 v98, s3, v96',
          f'v_and_b32 v101, 15, {v(vL)}', f'v_lshrrev_b32 v102, 1, v96', f'v_lshl_add_u32 v102, v101, 7, v102', f'v_add_u32 v102, {s(sRING)}, v102'])
    for tl in range(4):
        A(f'ds_read_b64 {v(120+2*tl, 2)}, v102 offset:{32*tl}')
    for p in range(2):
        A(f'ds_read_b128 {v(104+4*p, 4)}, v97 offset:{64*p}')
        A(f'ds_read_b128 {v(112+4*p, 4)}, v98 offset:{64*p}')
        hold['cs'] = A(f'ds_read_b128 {v(GB+4*p, 4)}, v97 offset:{128+64*p}')


wor2 = [x.replace('v48', 'v160').replace('v49', 'v161') for x in wor2]
TF = OPT.get('of', 700)
run_with([lambda i=i: emit(wor2[i:i + 4]) for i in range(0, len(wor2), 4)] + cb_steps(0, CA),
         [(TF, ev_flag), (TF + OPT.get('op', 300), ev_poll), (TF + OPT.get('oc', 600), ev_check)])
consts()
tcs = hold['cs']
stamp('cb')

if DFR > DF0:
    D.add(mark(w1_items(0, range(4 - DFR + DF0, 4)), 'w1b'))


def w2reg(u, tl):
    return 32 + 16 * u + 4 * tl


def w2_read(ms):
    l = [lambda: A.wait(vm=D.k['w2', ms[-1]])]
    for m in ms:
        q = SLOT[m]
        va, off = (180, 2048 * q) if q < 3 else ((182, 8192 * (q - 3)) if q < 11 else (10, 8192 * (q - 11)))
        l += mark([f'ds_read_b64_tr_b16 {a(w2reg(m//2, tl)+2*(m%2), 2)}, {v(va+tl%2)} offset:{off+(tl//2)*512}' for tl in range(4)], ('r', m))
    return l


free = []
nxt_m = [2]
unread = [0, 1]


def w2_more(limit=28):
    if not D.q and free and nxt_m[0] < limit:
        D.add(w2_dma(nxt_m[0], free.pop(0)))
        unread.append(nxt_m[0])
        nxt_m[0] += 1


def turn(k):
    ms = [unread.pop(0) for _ in range(k)]
    R.add(w2_read(ms) + [lambda: A.wait(ds=R.dtok), lambda: free.extend(SLOT[m] for m in ms)])


def refill():
    while free:
        w2_more()
        D.flush()


fb = Q([f'v_bfe_u32 v99, {v(vL)}, 4, 1', f'v_lshl_add_u32 v100, v99, 8, {v(vRB)}', 'v_mul_u32_u24 v103, 768, v203', 'v_add_u32 v100, v100, v103',
        f'v_add_u32 v180, {s(sRING)}, v100', 'v_xor_b32 v181, 32, v180',
        f'v_lshlrev_b32 v103, 4, {v(vT32)}', f'v_add_u32 {v(vCB)}, {T_CB}, v103', f's_lshl_b32 s3, {s(sW)}, 9', f'v_add_u32 v202, s3, {v(vCB)}'] +
       [lambda: A.wait(ds=tcs), lambda: free.append(0)] +
       [x for i in range(8) for x in unpack2(X1 + 2 * i, 120 + i) + unpack2(CG + 2 * i, 104 + i) + unpack2(CS + 2 * i, 112 + i)] +
       [
        f'v_lshlrev_b32 {v(vYS)}, 5, v96', f'v_lshl_add_u32 {v(vYS)}, v101, 4, {v(vYS)}', 'v_lshlrev_b32 v178, 6, v203', 'v_lshl_add_u32 v178, v101, 2, v178'])
late = ['v_lshl_add_u32 v179, v99, 7, v178', f'v_add_u32 v182, {s(sFKV)}, v100', 'v_xor_b32 v183, 32, v182',
        'v_mul_u32_u24 v103, 57344, v99', f'v_lshl_add_u32 {v(vYS)}, v178, 2, v103',
        'v_lshlrev_b32 v103, 10, v101', 'v_lshl_add_u32 v103, v99, 5, v103', 'v_lshl_add_u32 v177, v203, 4, v103',
        f's_lshr_b32 s3, {s(sDL)}, 1', f'v_add_u32 v250, s3, {v(vL16)}', f's_bitcmp1_b32 {s(sW)}, 0',
        f's_cselect_b32 s10, {s(sW2b)}, {s(sW2)}', f's_cselect_b32 {s(sKV)}, {s(sW2)}, {s(sW2b)}', 's_cselect_b32 s4, s3, 0', 's_cselect_b32 s3, 0, s3',
        f'v_add_u32 v236, s4, {v(vL16)}', f'v_add_u32 v237, s3, {v(vL16)}',
        f's_lshr_b32 s3, {s(sTILE)}, 8', 's_and_b32 s3, s3, 0x1c0', f's_add_u32 s3, s3, {T_RST}', 'v_lshl_add_u32 v176, v101, 2, s3',
        f'v_add_u32 v10, {IMG1}, v182', f'v_add_u32 v11, {IMG1}, v183',
        f'v_add_u32 v14, {IMG1}, {v(vRB)}', f'v_and_b32 v254, 60, {v(vP)}',
        f's_mul_i32 s3, {s(sW)}, 28', 's_andn2_b32 s3, s3, 7', f'v_and_b32 v103, 28, {v(vP)}', f'v_add_u32 {v(vPF)}, s3, v103']
fb.pop(OPT.get('fb0', 10))
for grp in ([(0,)] + [(k, k + 1) for k in range(1, 15, 2)] + [(15,)] if CH & 4 else [(k,) for k in range(16)]):
    A.wait(vm=qo.k[grp[-1]], ds=tcs if NEV in grp else None)
    stamp(f'o{grp[0]}')
    if 5 in grp:
        turn(2)
    n = 0
    for tl in range(4):
        for ks in grp:
            mm16(BA + 4 * tl, a(16 * ks + 4 * tl, 4), v(OB + 4 * ks, 4), ks == 0)
            n += 1
            if n % 4 == 1 and qo.q:
                qo.grp()
            elif n % 4 == 1:
                w2_more()
                D.grp()
            else:
                last = n == 4 * len(grp)
                R.fill(8 if last else 4)
                fb.fill(4 if last else 0)
fb.flush()
R.flush()
D.flush()
A(f's_cmp_lt_u32 {s(sJ)}, 14')
A(f's_cselect_b32 {s(rH+2)}, 0x1000000, 0')
stamp('om')
for p in range(2):
    for i in range(4 * p, 4 * p + 4):
        A(f'v_pk_fma_f32 {v(X1+2*i, 2)}, {v(BA+2*i, 2)}, {v(CG+2*i, 2)}, {v(X1+2*i, 2)}')
    for i in range(4 * p, 4 * p + 4):
        A(f'v_pk_mul_f32 {v(CS+2*i, 2)}, {v(CS+2*i, 2)}, {v(X1+2*i, 2)}')
    for i in range(4):
        A(f'v_cvt_pk_bf16_f32 {v(CS+8*p+i)}, {v(CS+8*p+2*i)}, {v(CS+8*p+2*i+1)}')
    A(f'buffer_store_dwordx4 {v(CS+8*p, 4)}, {v(vYS)}, {srd(rWS)}, {s(sY)} offen offset:{2048*p} {"" if DM & 2 else "sc1"}')
A(f'v_pk_add_f32 {v(CG, 2)}, {v(X1, 2)}, {v(X1+2, 2)}')
A(f'v_pk_mul_f32 {v(CG+2, 2)}, {v(X1, 2)}, {v(X1, 2)}')
for i in range(1, 8):
    if i > 1:
        A(f'v_pk_add_f32 {v(CG, 2)}, {v(CG, 2)}, {v(X1+2*i, 2)}')
    A(f'v_pk_fma_f32 {v(CG+2, 2)}, {v(X1+2*i, 2)}, {v(X1+2*i, 2)}, {v(CG+2, 2)}')
A(f'v_add_f32 {v(CG)}, {v(CG)}, {v(CG+1)}')
A(f'v_add_f32 {v(CG+1)}, {v(CG+2)}, {v(CG+3)}')
emit(late[:2])
A(f'v_permlane32_swap_b32 {v(CG)}, {v(CG+1)}')
A(f'v_add_f32 {v(CG)}, {v(CG)}, {v(CG+1)}')
A(f'v_mov_b32 {v(CG+1)}, {v(CG)}')
A(f'v_permlane16_swap_b32 {v(CG)}, {v(CG+1)}')
A(f'v_add_f32 {v(CG)}, {v(CG)}, {v(CG+1)}')
tok_y = A(f'buffer_store_dword {v(CG)}, v178, {srd(rWS)}, {s(sST)} offen {"" if DM & 2 else "sc1"}')
stamp('oproj')

YB, FT, BX, SL = 16, [144, 160, 200, 216], 232, 204
qy = Q()
for ks in range(32):
    if ks % 4 == 0:
        qy.add([f's_add_u32 s4, {s(sYL)}, {ks*1024}'])
    qy.add([(f'buffer_load_dwordx4 {v(YB+4*ks, 4)}, {v(vL16)}, {srd(rH)}, s4 offen offset:{(ks%4)*1024} sc1', ks)])
qt = Q([f'buffer_load_dword {v(SL+i)}, v179, {srd(rWS)}, {s(sSTL)} offen offset:{i*256} sc1' for i in range(8)])
T0 = A.t


def y_flag():
    stamp('yw')
    A.wait(vm=tok_y)
    setflag(s(sFY))
    stamp('yf')


def y_poll():
    if OPT.get('yt2', 1):
        turn(len(unread))
        R.flush()
    hold['py'] = A(poll_load(254, s(sPY), 0, 3))
    refill()
    stamp('yp')


def y_check():
    stamp('yc')
    poll_check(hold['py'], 254, s(sPY), 0, 3)
    stamp('yflag')
    qy.grp(OPT.get('y0', 10))
    stamp('yiss')


def w1_landed():
    A.wait(vm=D.k['w1b'])
    barrier()


def cb_done():
    emit(split3(160, CBA + 1, CBA, 164, 'a'))
    A(f'ds_write_b128 v202, {v(160, 4)}')


npre = len(unread)
refill()
emit(late[2:])
if OPT.get('yt1', 1) and npre:
    turn(min(OPT.get('yn', 2), npre))
    R.flush()
    refill()
TF = OPT.get('yf', 600)
run_with(([w1_landed] if DFR else []) + cb_steps(CA, 32) + [cb_done],
         [(TF, y_flag), (TF + OPT.get('yp', 250), y_poll), (TF + OPT.get('yc', 700), y_check)])
stats = [lambda: A.wait(vm=qt.tok)]
stats += [f'v_add_f32 {v(SL+e)}, {v(SL+e)}, {v(SL+4+e)}' for e in range(4)]
stats += [f'v_add_f32 {v(SL+e)}, {v(SL+e)}, {v(SL+2+e)}' for e in range(2)]
stats += [f'v_add_f32 {v(SL)}, {v(SL)}, {v(SL+1)}', f'v_mov_b32 {v(SL+1)}, {v(SL)}',
          f's_lshl_b32 s3, {s(sW)}, 7', f's_add_u32 s3, s3, {T_RST}', f'v_add_u32 v4, s3, {v(vP)}', f'v_permlane32_swap_b32 {v(SL)}, {v(SL+1)}']
stats += [f'v_mul_f32 {v(SL)}, 0xbb000000, {v(SL)}', f'v_mul_f32 {v(SL+1)}, 0x3b000000, {v(SL+1)}',
          f'v_fma_f32 {v(SL+1)}, -{v(SL)}, {v(SL)}, {v(SL+1)}', f'v_max_f32 {v(SL+1)}, 0, {v(SL+1)}',
          f'v_add_f32 {v(SL+2)}, 0x3727c5ac, {v(SL+1)}', f'v_sqrt_f32 {v(SL+1)}, {v(SL+2)}', f'v_rsq_f32 {v(SL+2)}, {v(SL+2)}',
          f'v_cmp_gt_u32 vcc, 32, {v(vL)}', f'ds_write_b32 v4, {v(SL+2)}',
          f'v_cndmask_b32 {v(SL)}, 0, {v(SL)}, vcc', f'v_cndmask_b32 {v(SL+1)}, 0, {v(SL+1)}, vcc']
stats += split3(BX, SL, SL + 1, SL + 4, 'b')
qs = Q(stats)
cseq = [(0, ks, i) for ks in range(33) for i in range(2)] + [(p, ks, p + 1) for p in (1, 2) for ks in range(33)]
NFB, CLK = 8, OPT.get('clk', 5)
tk = {}


def c_rd(n):
    p, ks, ct = cseq[n]
    b = 4 * (n % NFB)
    if ks == 32:
        return [f'ds_read_b128 {a(b, 4)}, {v(vCB)} offset:{ct*512}']
    return [f'ds_read_b64_tr_b16 {a(b+2*r, 2)}, {v(14 if p else vRB)} offset:{w1off(ks, r)+(ct%2)*512}' for r in range(2)]


def f_epi(t):
    r = FT[t // 2] + 4 * (t % 2)
    src = FT[t // 2] + 8 * (t % 2)
    return ([f'v_cvt_pk_bf16_f32 {v(r+i)}, {v(src+2*i)}, {v(src+2*i+1)}' for i in range(4)] + [f'v_pk_max_i16 {v(r+i)}, {v(r+i)}, 0' for i in range(4)] +
            [f'buffer_store_dwordx4 {v(r, 4)}, {v(vYS)}, {srd(rH)}, {s(sF)} offen offset:{t*512} {"" if OPT.get("fpl") else "sc1"}'])


for n in range(CLK):
    tk[n] = emit(c_rd(n))
if unread:
    turn(len(unread))
R.flush()
print('w2 k-steps requested before FFN1:', nxt_m[0])
NB, ACC, vO1 = 16, 80, 5
INB = IMG1


def fbuf(n):
    return 16 + 4 * (n % NB)


DF = OPT.get('defer', 3)
DG = OPT.get('defer2', 6)
seq = ([(aa, u) for aa in (3, 2, 1) for u in range(7)] + [(0, u) for u in range(7 - DF)] + [(aa, u) for aa in (3, 2, 1) for u in range(7, 10)] +
       [(0, u) for u in range(7 - DF, 10 - DG)] + [(aa, u) for aa in (3, 2, 1) for u in range(10, 14)] + [(0, u) for u in range(10 - DG, 14)])
assert len(seq) == 56
NE, NL = 28 - DF, 40 - DG
ql = Q()
prev = None
for n, (aa, u) in enumerate(seq):
    k, b = kunit(u)
    if (aa, k) != prev:
        ql.add([f's_add_u32 s4, {s(5+aa)}, {k*512}'])
    prev = (aa, k)
    ql.add([(f'buffer_load_dwordx4 {v(fbuf(n), 4)}, {v((vL16, 250, 236, 237)[b])}, {srd(rWS)}, s4 offen sc1', n)])
LK = OPT.get('lk', 8)


def issued():
    return max(ql.k) + 1 if ql.k else 0


CB1 = OPT.get('cb1', 25)
FA, PA, KA = OPT.get('fa', 2), OPT.get('pa', 10), OPT.get('ka', 20)
qe = Q()
qm = Q([x for aa in (3, 2, 1, 0) for x in (f's_xor_b32 s3, {s(sW)}, {aa}', 's_mul_i32 s3, s3, 57344', f's_add_u32 {s(5+aa)}, s3, {s(sFL0)}')] + ['ds_read_b32 v176, v176'])
for n, (p, ks, ct) in enumerate(cseq):
    i = n % 2
    if i == 0:
        A.wait(vm=qy.k[ks] if p == 0 and ks < 32 else None, ds=tk[n + 1])
    if i == 0 or p:
        stamp('abe'[p] + str(ks))
        if (p, ks) == (0, CB1):
            barrier()
            free += list(range(3, 3 + (CB1 + 1) // 4))
        if (p, ks) == (0, 32):
            qs.flush()
        if (p, ks) == (1, 0):
            stamp('c1')
            barrier()
            free += list(range(3 + (CB1 + 1) // 4, 11))
        if (p, ks) == (1, 2):
            D.flush()
            hold['pre'] = len(unread)
            for t in range(4):
                qe.add(f_epi(t))
        if (p, ks) == (1, OPT.get('t1', 12)):
            for _ in range(hold['pre'] // 2):
                turn(2)
        if (p, ks) == (2, 2):
            assert not qe.q
            hold['fa'] = qe.tok
            qe.add(f_epi(4) + f_epi(5))
        if (p, ks) == ((2, FA) if FA >= 2 else (1, 33 + FA)):
            assert 'fa' in hold or not qe.q
            A.wait(vm=hold.get('fa', qe.tok))
            setflag(s(sFF))
            for _ in range(min(OPT.get('t2', 2), max(0, len(unread) // 2 - 2))):
                turn(2)
        if (p, ks) == (2, KA):
            stamp('fw')
            qm.flush()
            poll_check(tpf, vPF, s(sPO), 256, 255)
            stamp('fflag')
    d = v(FT[ct], 16)
    mm32(A, d, a(4 * (n % NFB), 4), v(BX if ks == 32 else YB + 4 * ks, 4), '0' if ks == 0 else d)
    if p == 0 and (qy.q or qt.q):
        if i == 0:
            qy.grp()
        elif ks >= 4:
            qt.grp()
    elif (p, ks) == (2, PA):
        tpf = A(poll_load(vPF, s(sPO), 256, 255))
    elif qe.q and qe.kind() == 'vmem':
        qe.grp(1, OPT.get('sp', 150))
    elif (p, ks) >= (2, KA) and not D.q:
        if issued() < OPT.get('lk0', LK):
            ql.grp(1, OPT.get('lkp', 0))
    elif not ((0, OPT.get('qa', 99)) <= (p, ks) < (1, OPT.get('qb', 0)) or (2, OPT.get('qc', 99)) <= (p, ks)) or D.q:
        w2_more()
        D.grp(1, OPT.get('c2pace', 45))
    if n + CLK < len(cseq):
        tk[n + CLK] = emit(c_rd(n + CLK))
    res = 4 if i else 0
    if p == 0 and ks >= 18:
        qs.fill(res)
    for _ in range(OPT.get('qe', 3)):
        if qe.q and qe.kind() != 'vmem':
            qe.pop()
    R.fill(res)
    if p:
        qm.fill(res)
assert not qe.q
stamp('c2')

A.wait(vm=qe.tok)
setflag(s(sFF), off=128)
R.flush()
qe.add(f_epi(6) + f_epi(7))
W64 = OPT.get('w64', 0)


def red_write(aa):
    if W64:
        return [f'ds_write_b64 {v(vO1+aa-1)}, {v(ACC+16*aa+2*r, 2)} offset:{r*512}' for r in range(8)]
    return [f'ds_write_b128 {v(vO1+aa-1)}, {v(ACC+16*aa+4*r, 4)} offset:{r*1024}' for r in range(4)]


ra = [f'v_lshlrev_b32 v15, {3 if W64 else 4}, {v(vL)}']
for aa in range(1, 4):
    ra += [f's_xor_b32 s3, {s(sW)}, {aa}', f's_mul_i32 s3, s3, 12288', f's_add_u32 s3, s3, {INB + (aa-1)*4096}', f'v_add_u32 {v(vO1+aa-1)}, s3, v15']
ra += [f's_mul_i32 s3, {s(sW)}, 12288', f's_add_u32 s3, s3, {INB}', f'v_add_u32 v8, s3, v15']
CS = 160
fq = Q([x for i in range(8) for x in unpack2(CS + 2 * i, GB + i)] + ra + [f'v_mul_f32 {v(CS+i)}, {v(CS+i)}, v176' for i in range(16)])
P2, P3 = OPT.get('p2', 6), OPT.get('p3', 17)
PL = OPT.get('pl', 0)
print('w2 k-steps requested before FFN2:', nxt_m[0], 'unread', len(unread))
lim, pend = [NE], []
qr = Q()
P = (144, 216, 200)
RS = OPT.get('rsn', 1)
def d_pre(n, nw):
    A.wait(vm=ql.k[nw], ds=R.k['r', 2 * seq[nw][1] + 1])
    stamp(f'd{n}')
    if not qe.q and 'fc' not in hold and A.vm_done >= qe.tok:
        hold['fc'] = n
        setflag(s(sFF), off=256)
    if pend and (A.vm_done + PL >= pend[0] or issued() - n <= OPT.get('pmin', 5)):
        poll_check(pend[0], vPF, s(sPO), pend[1], 255)
        lim[0] = NL if pend[1] == 384 else 56
        hold[pend[1]] = n
        pend.clear()
    while unread and ('w2', unread[0]) in D.k and A.vm_done >= D.k['w2', unread[0]]:
        turn(1 if len(unread) < 2 or D.k.get(('w2', unread[1]), 10**9) > A.vm_done else 2)
    if n == NL + 4:
        assert not (R.q or fq.q)
        lds_sync()
        if OPT.get('otr', 1):
            fq.add([f'v_and_b32 v4, 15, {v(vL)}', 'v_mul_u32_u24 v4, 144, v4', f'v_lshrrev_b32 v180, 4, {v(vL)}', 'v_lshl_add_u32 v4, v180, 3, v4', f'v_add_u32 v180, {s(sRING)}, v4',
                    f'v_lshrrev_b32 v4, 3, {v(vL)}', f'v_and_b32 v177, 0x70, {v(vL16)}', 'v_mul_u32_u24 v181, 144, v4', f'v_add3_u32 v181, v181, v177, {s(sRING)}',
                    'v_lshl_add_u32 v177, v4, 10, v177', f's_add_u32 s3, {s(sTILE)}, 8192'])
    if n in (NL + 4, NL + 8, NL + 12):
        qr.add(red_write(3 - (n - NL - 4) // 4))
    if n == NL + 12 + OPT.get('rs', 5):
        assert not qr.q
        lds_sync()
        if W64:
            R.add([(f'ds_read2st64_b64 {v(P[p]+4*r, 4)}, v8 offset0:{p*8+2*r} offset1:{p*8+2*r+1}', ('p', r)) for r in range(4) for p in range(3)])
        else:
            R.add([(f'ds_read_b128 {v(P[p]+4*r, 4)}, v8 offset:{p*4096+r*1024}', ('p', r)) for r in range(4) for p in range(3)])
        for r in range(RS):
            fq.add([lambda r=r: A.wait(ds=R.k['p', r])] + [f'v_add_f32 {v(P[0]+4*r+i)}, {v(P[0]+4*r+i)}, {v(P[1]+4*r+i)}' for i in range(4)] +
                   [f'v_add_f32 {v(P[0]+4*r+i)}, {v(P[0]+4*r+i)}, {v(P[2]+4*r+i)}' for i in range(4)] +
                   [f'v_fmac_f32 {v(X1+4*r+i)}, {v(P[0]+4*r+i)}, {v(CS+4*r+i)}' for i in range(4)])


def d_post(n, tl, res):
    for _ in (0,):
        if qe.q:
            if qe.kind() == 'vmem':
                qe.pop()
            else:
                qe.fill(res, 10**6)
            continue
        if tl in (0, 2):
            if (n, tl) in ((P2, 2), (P3, 2)):
                assert not pend
                off = 384 if n == P2 else 512
                pend[:] = [A(poll_load(vPF, s(sPO), off, 255)), off]
            elif issued() < min(n + 1 + LK, lim[0]):
                ql.grp()
            else:
                w2_more()
                D.grp()
        if (tl == 3 or (W64 and tl == 1 and n not in (NL + 4, NL + 8, NL + 12))) and qr.q:
            qr.pop()
        R.fill(res)
        if not R.q or n < NE:
            fq.fill(res)


n = 0
while n < 56:
    pair = CH & 8 and n + 1 < 56 and n > 0 and seq[n + 1][0] == seq[n][0] and n + 1 != NL + 12 + OPT.get('rs', 5)
    grp = (n, n + 1) if pair else (n,)
    d_pre(n, grp[-1])
    k = 0
    for tl in range(4):
        for m in grp:
            aa, u = seq[m]
            mm16(ACC + 16 * aa + 4 * tl, a(w2reg(u, tl), 4), v(fbuf(m), 4), u == 0)
            d_post(n + k // 4, k % 4, 4 if k == 4 * len(grp) - 1 else 0)
            k += 1
    n += len(grp)
print('third flag at step', hold['fc'], 'polls', P2, hold[384], P3, hold[512], 'NE NL', NE, NL)
assert not (R.q or D.q or qr.q)
stamp('ffn2')
fq.flush()
for r in range(RS, 4):
    A.wait(ds=R.k['p', r])
    for src in (P[1], P[2]):
        for h in range(2):
            A(f'v_pk_add_f32 {v(P[0]+4*r+2*h, 2)}, {v(P[0]+4*r+2*h, 2)}, {v(src+4*r+2*h, 2)}')
for r in range(RS, 4):
    for h in range(2):
        A(f'v_pk_add_f32 {v(ACC+4*r+2*h, 2)}, {v(ACC+4*r+2*h, 2)}, {v(P[0]+4*r+2*h, 2)}')
OF_ = ("", "sc1", "nt", "sc1 nt", "sc0 sc1")[OPT["outsc1"]]
if OPT.get('otr', 1):
    for tl in range(4):
        for i in range(2 * tl, 2 * tl + 2):
            A(f'v_pk_fma_f32 {v(X1+2*i, 2)}, {v(ACC+2*i, 2)}, {v(CS+2*i, 2)}, {v(X1+2*i, 2)}')
        for i in range(2 * tl, 2 * tl + 2):
            A(f'v_cvt_pk_bf16_f32 {v(240+i)}, {v(X1+2*i)}, {v(X1+2*i+1)}')
        if tl % 2:
            A(f'ds_write2_b64 v180, {v(240+2*tl-2, 2)}, {v(240+2*tl, 2)} offset0:{4*tl-4} offset1:{4*tl}')
    t = [A(f'ds_read_b128 {v(144+4*k, 4)}, v181 offset:{1152*k}') for k in range(2)]
    for k in range(2):
        A.wait(ds=t[k])
        A(f'buffer_store_dwordx4 {v(144+4*k, 4)}, v177, {srd(rOUT)}, {s((sTILE, 3)[k])} offen {OF_}')
else:
    for k in range(2):
        for i in range(4 * k, 4 * k + 4):
            A(f'v_pk_fma_f32 {v(X1+2*i, 2)}, {v(ACC+2*i, 2)}, {v(CS+2*i, 2)}, {v(X1+2*i, 2)}')
        for i in range(4):
            A(f'v_cvt_pk_bf16_f32 {v(232+8*k+i)}, {v(X1+8*k+2*i)}, {v(X1+8*k+2*i+1)}')
        for r in range(2):
            A(f'v_permlane16_swap_b32 {v(232+8*k+r)}, {v(232+8*k+2+r)}')
        A(f'buffer_store_dwordx4 {v(232+8*k, 4)}, v177, {srd(rOUT)}, {s(sTILE)} offen offset:{64*k} {("", "sc1", "nt", "sc1 nt", "sc0 sc1")[OPT["outsc1"]]}')

epoch_site(1)
if OPT['stamps']:
    A.wait_all(vm=True)
    NAMES_n = len(NAMES)
    A(f's_mov_b32 {s(STAMP0+NAMES_n-1)}, {s(STP)}')
    A(f's_mem{"real" if OPT.get("rts") else ""}time {s(STP, 2)}')
    A('s_memrealtime s[4:5]')
    NAMES.append('end')
    A('s_waitcnt lgkmcnt(0)')
    A('v_mov_b32 v3, 0')
    for k in range(NAMES_n):
        A(f'v_writelane_b32 v3, {s(STAMP0+k)}, {k}')
    A(f'v_writelane_b32 v3, {s(STP)}, {NAMES_n}')
    A(f'v_writelane_b32 v3, s4, 29')
    A(f'v_writelane_b32 v3, {s(sXCC)}, 30')
    A(f'v_writelane_b32 v3, {s(sFAST)}, 31')
    A(f's_lshl_b32 s3, s2, 2')
    A(f's_add_u32 s3, s3, {s(sW)}')
    A(f's_lshl_b32 s3, s3, 7')
    A(f's_add_u32 s3, s3, {STAMPS}')
    A(f'v_lshlrev_b32 v4, 2, {v(vL)}')
    A('s_mov_b32 exec_hi, 0')
    A(f'buffer_store_dword v3, v4, {srd(rWS)}, s3 offen')
if OPT['pad']:
    A.wait_all(vm=True)
    stamp('end')
    A('s_waitcnt lgkmcnt(0)')
    A(f's_mov_b32 s6, {OPT["pad"]}')
    if OPT.get('probe'):
        if OPT.get('pcyc'):
            A('s_sub_u32 s98, s98, s96')
            A('s_mul_i32 s98, s98, 2731')
            A('s_lshr_b32 s98, s98, 16')
        else:
            A('s_sub_u32 s98, s98, s100')
        if OPT.get('pwg') is not None:
            A(f's_cmp_eq_u32 s2, {OPT["pwg"]}')
            A('s_cselect_b32 s98, s98, 0')
        A('s_add_u32 s6, s6, s98')
    A.label('L_padl')
    A('s_memrealtime s[4:5]')
    A('s_waitcnt lgkmcnt(0)')
    A('s_sub_u32 s4, s4, s100')
    A(f's_cmp_lt_u32 s4, s6')
    A('s_cbranch_scc1 L_padl')
A.label('L_end')
A('s_endpgm')
if OPT.get('skel'):
    k = OPT['skel']

    def keep(i):
        if 'redo' in i.text and i.target:
            return False
        if k & 1 and i.kind == 'mfma':
            return False
        if k & 2 and i.kind == 'valu' and any(i.op.startswith(x) for x in ('v_exp', 'v_cvt_pk', 'v_pk_', 'v_dot2', 'v_permlane', 'v_fma', 'v_add_f32', 'v_mul_f32', 'v_cndmask', 'v_mov_b64')):
            return False
        if k & 4 and i.kind == 'ds':
            return False
        if k & 8 and i.kind == 'vmem' and i.ldsdma:
            i.__init__('s_nop 0')
        return True
    A.ins = [i for i in A.ins if keep(i)]
    if k & 8:
        import re
        for i in A.ins:
            if 'vmcnt' in i.text and k & 16:
                pass
if OPT['pads']:
    k = [i.label for i in A.ins].index('L_warm_here')
    A.ins[k:k + 1] = WARM.ins
else:
    A.ins += WARM.ins
A.label('L_hot_end')
A.ins += COLD.ins
if OPT['pads']:
    import re
    import subprocess
    import tempfile
    from asmlib import pad_hazards
    ins, added = pad_hazards(A.ins)
    with tempfile.TemporaryDirectory() as td:
        src = '.amdgcn_target "amdgcn-amd-amdhsa--gfx950"\n.text\n' + '\n'.join(re.sub(r'L_pad\d+', 'L_end', i.text) for i in ins if i.kind != 'dir') + '\n'
        open(td + '/a.s', 'w').write(src)
        subprocess.run(['clang', '-x', 'assembler', '-target', 'amdgcn-amd-amdhsa', '-mcpu=gfx950', '-c', td + '/a.s', '-o', td + '/a.o'], check=True)
        dis = subprocess.run(['llvm-objdump', '-d', '--mcpu=gfx950', td + '/a.o'], capture_output=True, text=True).stdout
    sizes = [4 * len(m.group(1).split()) for m in re.finditer(r'//\s*[0-9A-F]{12}:((?: [0-9A-F]{8})+)', dis)]
    real = [i for i in ins if i.kind not in ('label', 'dir')]
    assert len(sizes) == len(real)
    size = {id(i): n for i, n in zip(real, sizes)}
    b0 = [i.label for i in ins].index('L_body')
    e0 = [i.label for i in ins].index('L_end')
    first = sum(size.get(id(i), 0) for i in ins[:b0])
    assert first <= 4096 - 1024, first
    npad = (sum(size.get(id(i), 0) for i in ins[b0:e0]) + 40) // 4096
    assert 4 <= npad <= 8
    out_, off, k, j = ins[:b0], 0, 1, b0
    while j < len(ins):
        if k <= npad and off >= 4096 * k:
            cand, o2 = j, off
            for q in range(j, len(ins)):
                if o2 + 4 > 4096 * k + 64:
                    break
                if ins[q - 1].kind == 'mfma' and ins[q].kind not in ('ds', 'vmem'):
                    cand = q
                    break
                o2 += size.get(id(ins[q]), 0)
            for q in range(j, cand):
                out_.append(ins[q])
                off += size.get(id(ins[q]), 0)
            j = cand
            out_ += [Ins(f'L_pad{k}:'), Ins(f's_cbranch_execz ' + (f'L_pad{k+4}' if k + 4 <= npad else 'L_body'))]
            off += 4
            k += 1
        out_.append(ins[j])
        off += size.get(id(ins[j]), 0)
        j += 1
    print('first page bytes', first, 'pads', npad)
    body = '\n'.join(('' if i.kind == 'label' else '  ') + i.text for i in out_)
else:
    body, added = A.text()

hdr = open('cdna_kernels/' + NAME + '.s.ref').read().split('\n')
hdr = [l for l in hdr if l.startswith(';') and '@launch' not in l and 'Override' not in l and 'grid=ceil' not in l]
out = '\n'.join(hdr) + f'''
; @launch grid=(256,1,1) block=(256,1,1) lds=163840
; generated by gen/gen.py (hand-written generator): one persistent launch, one workgroup per CU
.amdgcn_target "amdgcn-amd-amdhsa--gfx950"
.text
.globl {NAME}_kernel
.p2align 8
.type {NAME}_kernel,@function
{NAME}_kernel:
{body}
  s_endpgm
.fill 2048, 4, 0xbf800000
  s_endpgm
.section .rodata,"a"
.p2align 6
.amdhsa_kernel {NAME}_kernel
  .amdhsa_next_free_vgpr 512
  .amdhsa_next_free_sgpr 102
  .amdhsa_accum_offset 256
  .amdhsa_group_segment_fixed_size 0
  .amdhsa_kernarg_size 88
  .amdhsa_user_sgpr_count 2
  .amdhsa_user_sgpr_kernarg_segment_ptr 1
  .amdhsa_system_sgpr_workgroup_id_x 1
  .amdhsa_float_denorm_mode_32 3
.end_amdhsa_kernel
'''
open(sys.argv[1], 'w').write(out)
open(sys.argv[1] + '.names', 'w').write(' '.join(NAMES))
print(f'instructions: {len(A.ins)}, nops added: {added}, stamps: {len(NAMES)}')
```
